```python
import torch

def _softmax(x, axis=-1):
    return torch.softmax(x, dim=axis)
def _gelu(x):
    return torch.nn.functional.gelu(x, approximate="tanh")
def _silu(x):
    return torch.nn.functional.silu(x)
def _sigmoid(x):
    return torch.sigmoid(x)
def _layernorm(x, axis=-1, eps=1e-5):
    m = x.mean(dim=axis, keepdim=True)
    v = x.var(dim=axis, keepdim=True, unbiased=False)
    return (x - m) / torch.sqrt(v + eps)
def _scatter_add(tgt, idx, src, axis=0):
    return tgt.clone().index_add_(axis, idx, src)
def _segment_sum(src, seg, n):
    out = torch.zeros((n,) + src.shape[1:], dtype=src.dtype)
    return out.index_add_(0, seg, src)
def _pad(x, pw):
    flat = tuple(v for pair in reversed(pw) for v in pair)
    return torch.nn.functional.pad(x, flat)

kernel_name = 'parallel_sum__softmax_full_mha__swiglu_ffn__prompt'

def setup_inputs():

    _w = (lambda a: (lambda t: t.to(torch.bfloat16) if t.is_floating_point() else t)(torch.as_tensor(a)))
    def _A_setup():
        B, S, D = 1, 2048, 448
        return {
            "x": _w((lambda *s: torch.randn(*s, dtype=torch.bfloat16) * 0.05)(B, S, D)),
            "wqkv": _w((lambda *s: torch.randn(*s, dtype=torch.bfloat16) * 0.2)(D, 3 * D)),
            "wo": _w((lambda *s: torch.randn(*s, dtype=torch.bfloat16) * 0.1)(D, D)),
        }
    _A_in = _A_setup()

    def _B_setup():
        B, S, D, F = 1, 2048, 448, 1792
        return {
            "x": _w((lambda *s: torch.randn(*s, dtype=torch.bfloat16) * 0.05)(B, S, D)),
            "w_gate": _w((lambda *s: torch.randn(*s, dtype=torch.bfloat16) * 0.1)(D, F)),
            "w_up": _w((lambda *s: torch.randn(*s, dtype=torch.bfloat16) * 0.1)(D, F)),
            "w_down": _w((lambda *s: torch.randn(*s, dtype=torch.bfloat16) * 0.1)(F, D)),
        }
    _B_in = _B_setup()

    return {
        "A_x": _A_in["x"],
        "A_wqkv": _A_in["wqkv"],
        "A_wo": _A_in["wo"],
        "B_x": _B_in["x"],
        "B_w_gate": _B_in["w_gate"],
        "B_w_up": _B_in["w_up"],
        "B_w_down": _B_in["w_down"],
    }

def reference(A_x, A_wqkv, A_wo, B_x, B_w_gate, B_w_up, B_w_down):
    def _A_ref(x, wqkv, wo):
        B, S, D = x.shape
        H = 16; Dh = D // H
        qkv = (lambda x, *d: x.permute(*d))((x @ wqkv).reshape(B, S, 3, H, Dh), 2, 0, 3, 1, 4)
        q, k, v = qkv[0], qkv[1], qkv[2]
        scale = Dh ** -0.5
        scores = torch.einsum("bhqd,bhkd->bhqk", q, k) * scale
        p = _softmax(scores, axis=-1)
        o = torch.einsum("bhqk,bhkd->bhqd", p, v)
        return (lambda x, *d: x.permute(*d))(o, 0, 2, 1, 3).reshape(B, S, D) @ wo

    def _B_ref(x, w_gate, w_up, w_down):
        g = _silu(x @ w_gate)
        u = x @ w_up
        return (g * u) @ w_down

    x = A_x
    xn = _layernorm(x, axis=-1)
    return x + _A_ref(xn, A_wqkv, A_wo) + _B_ref(xn, B_w_gate, B_w_up, B_w_down)
```

```python
import re

REG_RE = re.compile(r'\b([vsa])(\d+)\b|\b([vsa])\[(\d+):(\d+)\]|\b(vcc|exec|m0|scc)\b|@([\w:.]+)')

def regs_of(tok):
    out = []
    for m in REG_RE.finditer(tok):
        if m.group(1):
            out.append(m.group(1) + m.group(2))
        elif m.group(3):
            out += [m.group(3) + str(i) for i in range(int(m.group(4)), int(m.group(5)) + 1)]
        elif m.group(6):
            out.append(m.group(6))
    return out

TRANS = ('v_exp_f32', 'v_log_f32', 'v_rcp_f32', 'v_rsq_f32', 'v_sqrt_f32', 'v_sin_f32', 'v_cos_f32')

class Ins:
    __slots__ = ('text', 'mn', 'ops', 'kind', 'rd', 'wr', 'label', 'target', 'needs', 'gives', 'srcC', 'cmt', 'auto')
    def __init__(self, text, needs=(), gives=()):
        self.text = text.strip()
        self.needs = list(needs)
        self.gives = list(gives)
        self.label = None; self.target = None; self.srcC = []
        self.auto = False
        t = self.text.split(';')[0].strip()
        if t.endswith(':'):
            self.mn = ''; self.kind = 'label'; self.label = t[:-1]; self.ops = []; self.rd = []; self.wr = []
            return
        if t.startswith('.') or t == '':
            self.mn = t; self.kind = 'dir'; self.ops = []; self.rd = []; self.wr = []
            return
        parts = t.split(None, 1)
        mn = parts[0]; self.mn = mn
        rest = parts[1] if len(parts) > 1 else ''
        ops = [o.strip() for o in rest.split(',')] if rest else []
        self.ops = ops
        base = re.sub(r'_(e32|e64|sdwa|dpp)$', '', mn)
        rd, wr = [], []
        k = None
        if mn.startswith('v_mfma'):
            k = 'mfma'
            wr = regs_of(ops[0]); rd = regs_of(ops[1]) + regs_of(ops[2]) + regs_of(ops[3]); self.srcC = regs_of(ops[3])
        elif mn.startswith('v_cmp'):
            k = 'valu'
            wr = regs_of(ops[0]); rd = sum((regs_of(o) for o in ops[1:]), [])
        elif mn.startswith('v_permlane32_swap') or mn.startswith('v_permlane16_swap'):
            k = 'valu'
            wr = regs_of(ops[0]) + regs_of(ops[1]); rd = list(wr)
        elif mn.startswith('v_'):
            k = 'trans' if base in TRANS else 'valu'
            wr = regs_of(ops[0]); rd = sum((regs_of(o) for o in ops[1:]), [])
            if base in ('v_fmac_f32', 'v_dot2c_f32_bf16', 'v_mac_f32') or 'UNUSED_PRESERVE' in t:
                rd += wr
            if base == 'v_cndmask_b32' and len(ops) == 3:
                rd.append('vcc')
            if base in ('v_add_co_u32', 'v_addc_co_u32', 'v_sub_co_u32'):
                wr = regs_of(ops[0]) + regs_of(ops[1]); rd = sum((regs_of(o) for o in ops[2:]), [])
            if base == 'v_writelane_b32': rd += wr
        elif mn.startswith('ds_read') or mn.startswith('ds_bpermute') or mn.startswith('ds_swizzle'):
            k = 'dsr'
            wr = regs_of(ops[0]); rd = sum((regs_of(o.split(' offset')[0]) for o in ops[1:]), [])
        elif mn.startswith('ds_add_rtn'):
            k = 'dsr'
            wr = regs_of(ops[0]); rd = sum((regs_of(o.split(' offset')[0]) for o in ops[1:]), [])
        elif mn.startswith('ds_write') or mn.startswith('ds_add'):
            k = 'dsw'
            rd = sum((regs_of(o.split(' offset')[0]) for o in ops), [])
        elif mn.startswith('buffer_load') or mn.startswith('global_load'):
            islds = bool(re.search(r'\blds\b', t)) or 'load_lds' in mn
            if islds:
                k = 'dma'; rd = sum((regs_of(o) for o in ops), []) + ['m0']
            else:
                k = 'vld'; wr = regs_of(ops[0]); rd = sum((regs_of(o) for o in ops[1:]), [])
        elif mn.startswith('buffer_store') or mn.startswith('global_store'):
            k = 'vst'; rd = sum((regs_of(o) for o in ops), [])
        elif mn.startswith('buffer_atomic') or mn.startswith('global_atomic'):
            k = 'vst'; rd = sum((regs_of(o) for o in ops), [])
            if 'sc0' in t: wr = regs_of(ops[0]); k = 'vld'
        elif mn.startswith('s_load') or mn.startswith('s_buffer_load') or mn.startswith('s_memtime') or mn.startswith('s_memrealtime'):
            k = 'smem'; wr = regs_of(ops[0]); rd = sum((regs_of(o) for o in ops[1:]), [])
        elif mn == 's_waitcnt':
            k = 'wait'
        elif mn == 's_nop':
            k = 'nop'
        elif mn == 's_barrier':
            k = 'bar'
        elif mn == 's_endpgm':
            k = 'end'
        elif mn in ('s_branch',) or mn.startswith('s_cbranch'):
            k = 'br'; self.target = ops[0]
            if 'scc' in mn: rd = ['scc']
            if 'vcc' in mn: rd = ['vcc']
            if 'exec' in mn: rd = ['exec']
        elif mn.startswith('s_cmp') or mn.startswith('s_bitcmp'):
            k = 'salu'; wr = ['scc']; rd = sum((regs_of(o) for o in ops), [])
        elif mn in ('s_setprio', 's_sleep', 'buffer_inv', 'buffer_wbl2', 's_sethalt'):
            k = 'salu'
        elif mn.startswith('s_'):
            k = 'salu'
            wr = regs_of(ops[0]); rd = sum((regs_of(o) for o in ops[1:]), [])
            if mn.startswith('s_and_saveexec') or mn.startswith('s_or_saveexec'):
                wr += ['exec', 'scc']; rd += ['exec']
            if mn.startswith('s_cselect'): rd.append('scc')
            if mn.startswith('s_addc'): rd.append('scc')
            if mn in ('s_addk_i32', 's_mulk_i32'): rd += wr
            if re.match(r's_(add|sub|and|or|xor|lshl|lshr|ashr|min|max|bfe|andn2|addk|addc|not|mul_hi|abs)', mn) and not mn.startswith('s_mul'):
                wr.append('scc')
        else:
            raise ValueError('unknown instr: ' + text)
        self.kind = k
        def ex(l):
            return l
        self.rd = ex(rd); self.wr = ex(wr)

    def isvalu(self): return self.kind in ('valu', 'trans')
    def states(self):
        if self.kind == 'nop':
            return int(self.ops[0], 0) + 1
        if self.kind in ('label', 'dir'): return 0
        return 1

class Prog:
    def __init__(self):
        self.ins = []
    def __call__(self, text, needs=(), gives=()):
        for line in text.split('\n'):
            line = line.strip()
            if not line or line.startswith(';'): continue
            self.ins.append(Ins(line, needs, gives))
    def add(self, ins_list):
        for i in ins_list:
            if isinstance(i, str): self(i)
            else: self.ins.append(i)
    def label(self, l): self.ins.append(Ins(l + ':'))

def I(text, needs=(), gives=()):
    return Ins(text, needs, gives)

def build_cfg(ins):
    lab = {x.label: i for i, x in enumerate(ins) if x.kind == 'label'}
    succ = [[] for _ in ins]
    for i, x in enumerate(ins):
        if x.kind == 'end': continue
        if x.kind == 'br':
            if x.target not in lab: raise ValueError('unknown label ' + x.target)
            succ[i].append(lab[x.target])
            if x.mn != 's_branch' and i + 1 < len(ins): succ[i].append(i + 1)
        elif i + 1 < len(ins):
            succ[i].append(i + 1)
    pred = [[] for _ in ins]
    for i, s in enumerate(succ):
        for j in s: pred[j].append(i)
    return succ, pred

LG_MAX, VM_MAX = 15, 63

def parse_wait(x):
    lg = vm = None
    t = x.text
    m = re.search(r'lgkmcnt\((\d+)\)', t); lg = int(m.group(1)) if m else None
    m = re.search(r'vmcnt\((\d+)\)', t); vm = int(m.group(1)) if m else None
    return lg, vm

def insert_waits(ins, entries):
    n = len(ins)
    succ, pred = build_cfg(ins)
    need_lg = [None] * n
    need_vm = [None] * n
    def merge(a, b):
        if a is None: return b
        out = dict(a); ch = False
        for k, v in b.items():
            if k not in out or v < out[k]: out[k] = v
        return out
    changed_any = True
    while changed_any:
        changed_any = False
        st_in = [None] * n
        work = []
        for e in entries:
            st_in[e] = ({}, {}); work.append(e)
        while work:
            i = work.pop()
            lg, vm = dict(st_in[i][0]), dict(st_in[i][1])
            x = ins[i]
            res = set(x.rd) | set(x.wr) | set(x.needs)
            rl = min([lg[r] for r in res if r in lg], default=None)
            rv = min([vm[r] for r in res if r in vm], default=None)
            if x.kind == 'smem' or x.kind == 'end': pass
            if rl is not None:
                rl = min(rl, LG_MAX)
                if need_lg[i] is None or rl < need_lg[i]:
                    need_lg[i] = rl; changed_any = True
            if rv is not None:
                rv = min(rv, VM_MAX)
                if need_vm[i] is None or rv < need_vm[i]:
                    need_vm[i] = rv; changed_any = True
            wl, wv = need_lg[i], need_vm[i]
            if x.kind == 'wait':
                a, b = parse_wait(x)
                if a is not None: wl = a if wl is None else min(wl, a)
                if b is not None: wv = b if wv is None else min(wv, b)
            if wl is not None: lg = {k: v for k, v in lg.items() if v < wl}
            if wv is not None: vm = {k: v for k, v in vm.items() if v < wv}
            if x.kind in ('dsr', 'dsw'):
                lg = {k: v + 1 for k, v in lg.items()}
                for r in x.wr + x.gives: lg[r] = 0
            elif x.kind == 'smem':
                lg = {k: 0 for k in lg}
                for r in x.wr + x.gives: lg[r] = -1000
            elif x.kind in ('vld', 'vst', 'dma'):
                vm = {k: v + 1 for k, v in vm.items()}
                for r in x.wr + x.gives: vm[r] = 0
            if any(v < -500 for v in lg.values()) and x.kind in ('dsr', 'dsw'):
                pass
            for j in succ[i]:
                if st_in[j] is None:
                    st_in[j] = (lg, vm); work.append(j)
                else:
                    nl, nv = merge(st_in[j][0], lg), merge(st_in[j][1], vm)
                    if nl != st_in[j][0] or nv != st_in[j][1]:
                        st_in[j] = (nl, nv); work.append(j)
    out = []
    for i, x in enumerate(ins):
        l, v = need_lg[i], need_vm[i]
        if l is not None and l < 0: l = 0
        if l is not None or v is not None:
            parts = []
            if v is not None: parts.append('vmcnt(%d)' % v)
            if l is not None: parts.append('lgkmcnt(%d)' % l)
            w = Ins('s_waitcnt ' + ' '.join(parts)); w.auto = True
            out.append(w)
        out.append(x)
    return out

def isv(r): return r[0] == 'v' and r != 'vcc' or (r[0] == 'a' and r[1:].isdigit())
def iss(r): return (r[0] == 's' and r[1:].isdigit()) or r in ('vcc',)

def hazard_need(p, c):
    need = 0
    pw, cr, cw = set(p.wr), set(c.rd), set(c.wr)
    if p.isvalu():
        vw = {r for r in pw if isv(r)}
        sw = {r for r in pw if iss(r)}
        if c.kind == 'mfma' and vw & cr: need = max(need, 2)
        if c.mn.startswith('v_readfirstlane') or c.mn.startswith('v_readlane'):
            if vw & cr: need = max(need, 1)
        if c.mn.startswith('v_permlane') and vw & cr: need = max(need, 2)
        if c.isvalu() and ('dpp' in c.text or 'quad_perm' in c.text or 'row_' in c.text) and vw & cr: need = max(need, 2)
        if p.kind == 'trans' and c.kind in ('valu',) and vw & cr: need = max(need, 1)
        if p.kind == 'trans' and c.kind == 'mfma' and vw & cr: need = max(need, 2)
        if sw:
            if (c.isvalu() or c.kind == 'mfma') and sw & cr: need = max(need, 2)
            if c.kind in ('vld', 'vst', 'dma') and sw & cr: need = max(need, 5)
            if c.kind in ('salu', 'br') and sw & cr: need = max(need, 1)
        if ('sdwa' in p.mn or 'op_sel' in p.text) and c.isvalu() and vw & (cr | cw): need = max(need, 1)
    if p.mn.startswith('v_dot2'):
        if c.mn == p.mn:
            ab = set(sum((regs_of(o) for o in c.ops[1:3]), []))
            if pw & ab: need = max(need, 3)
        elif pw & (cr | cw): need = max(need, 3)
    if p.kind == 'mfma':
        d = pw
        if c.kind == 'mfma':
            ab = set(regs_of(c.ops[1]) + regs_of(c.ops[2]))
            cc = set(c.srcC)
            if d & ab: need = max(need, 12)
            if d & cc and not (c.ops[3] == p.ops[0]): need = max(need, 10)
            if d & set(c.wr) and not (c.ops[0] == p.ops[0]) and not (d & cc): need = max(need, 10)
        elif c.kind in ('valu', 'trans', 'dsr', 'dsw', 'vld', 'vst', 'dma'):
            if d & (cr | cw): need = max(need, 12)
        if c.isvalu() and set(p.srcC) & cw: need = max(need, 7)
    if p.kind == 'salu' and 'm0' in pw and c.kind == 'dma': need = max(need, 1)
    if p.kind == 'salu' and 'exec' in pw and c.kind == 'mfma': need = max(need, 4)
    if p.kind == 'vst' and ('x4' in p.mn or 'x3' in p.mn) and c.isvalu():
        data = set(regs_of(p.ops[0])) if p.mn.startswith('buffer') else set(regs_of(p.ops[1]))
        if data & cw: need = max(need, 2)
    return need

def pad_hazards(ins, entries, verbose=False):
    MAXW = 13
    while True:
        succ, pred = build_cfg(ins)
        fix = {}
        for i, c in enumerate(ins):
            if c.kind in ('label', 'dir', 'nop', 'wait'): continue
            stack = [(p, 0) for p in pred[i]]
            seen = {}
            while stack:
                j, d = stack.pop()
                if j in seen and seen[j] <= d: continue
                seen[j] = d
                pj = ins[j]
                nd = hazard_need(pj, c) if pj.kind not in ('label', 'dir') else 0
                if nd > d:
                    fix[i] = max(fix.get(i, 0), nd - d)
                d2 = d + pj.states()
                if d2 < MAXW:
                    for q in pred[j]: stack.append((q, d2))
        if not fix: return ins
        keep = {}; last = -100
        for i in sorted(fix):
            if i - last > 16:
                keep[i] = fix[i]; last = i
        fix = keep
        out = []
        for i, x in enumerate(ins):
            if i in fix:
                k = fix[i]
                if verbose: print('pad %d before: %s' % (k, x.text))
                while k > 0:
                    m = min(k, 16)
                    nn = Ins('s_nop %d' % (m - 1)); nn.auto = True
                    out.append(nn); k -= m
            out.append(x)
        ins = out

def finalize(prog, entry_labels, verbose=False):
    ins = prog.ins
    lab = {x.label: i for i, x in enumerate(ins) if x.kind == 'label'}
    ins = insert_waits(ins, [lab[l] for l in entry_labels])
    lab = {x.label: i for i, x in enumerate(ins) if x.kind == 'label'}
    ins = pad_hazards(ins, [lab[l] for l in entry_labels], verbose)
    return ins

def render(ins):
    out = []
    for x in ins:
        if x.kind == 'label': out.append(x.text)
        else: out.append('    ' + x.text)
    return '\n'.join(out) + '\n'

def interleave(main, fillers, start=0, end=None):
    end = len(main) if end is None else end
    n = end - start
    out = []
    k = 0
    for s, slot in enumerate(main):
        out += slot
        if start <= s < end:
            upto = (len(fillers) * (s - start + 1) + n - 1) // n
            out += fillers[k:upto]; k = upto
    out += fillers[k:]
    return out
```

```python
from asmlib import *

WS_QF = 0
WS_KV = 2 << 20
WS_HF = 6 << 20
WS_OF = 14 << 20
WS_FLAG = 16 << 20
WS_SIZE = (16 << 20) + 4096

SLOT = 14336
NSLOT = 11
RING = SLOT * NSLOT
L_CSP = RING
L_CSF = L_CSP + 2048
L_STAT = L_CSF + 1024
L_TOK = L_STAT + 1024
LDS_BYTES = L_TOK + 2048

LOG2E = 1.4426950408889634
CQ = (28 ** -0.5) * LOG2E
import struct
def f2u(f): return struct.unpack('<I', struct.pack('<f', f))[0]
def hexf(f): return '0x%08x' % f2u(f)

def vr(b, n=1): return 'v%d' % b if n == 1 else 'v[%d:%d]' % (b, b + n - 1)
def sr(b, n=1): return 's%d' % b if n == 1 else 's[%d:%d]' % (b, b + n - 1)

def flat(l):
    o = []
    for x in l:
        if isinstance(x, list): o += flat(x)
        else: o.append(x)
    return o

def gen_k1(name, code_bytes_hint=16384):
    p = Prog()
    S_X, S_W, S_GU, S_WS = 8, 12, 16, 20
    s_w, s_r4, s_ch, s_rb, s_g, s_pr, s_tb, s_sub, s_reg = 30, 31, 32, 33, 34, 35, 36, 37, 38
    s_lead = 39
    s_q = 40
    s_qk = 45
    s_qn = 46
    s_dslot = 47
    s_rslot = 48
    s_cslot = 49
    s_hi = 50
    s_pad = 52
    s_ones = 54
    s_t0, s_t1, s_t2, s_t3 = 55, 56, 57, 58
    s_soff, s_str = 59, 60
    s_dsrd = 64
    s_par = 61
    s_stq, s_stkv, s_sth = 62, 63, 68
    s_scq = 69
    s_padk = 70
    s_cnt = 71
    s_sthi = 72
    v_lane16 = 1
    v_patq, v_patg = 2, 3
    v_wa = [4, 5]
    v_ca = 6
    v_dq, v_dg = 7, 8
    v_dsel = 9
    v_csp_r, v_csp_w, v_csf_w, v_csf_r = 10, 11, 12, 13
    v_nmean, v_kk, v_vv, v_sc = 14, 15, 16, 17
    v_t = 18
    v_cacc = [26, 27]
    v_padv = 28
    v_tokr = 29
    CB = [32, 36]
    WF = [40, 44, 48, 52]
    ACCA, ACCB = 56, 72
    TP = 88
    XF = 128
    v_pf = 240

    L = lambda s: name + '_' + s

    p.label(name)
    p(f's_cmp_ge_u32 s2, 256')
    p(f's_cbranch_scc1 {L("end")}')
    p('s_load_dwordx4 s[4:7], s[0:1], 0')
    p('s_load_dwordx4 s[24:27], s[0:1], 32')
    p('s_load_dwordx2 s[28:29], s[0:1], 72')
    p('s_getpc_b64 s[74:75]')
    p(f'v_and_b32 v{v_t}, 63, v0')
    p(f'v_lshlrev_b32 v{v_t}, 6, v{v_t}')
    p(f'v_lshrrev_b32 v{v_t+1}, 6, v0')
    p(f'v_readfirstlane_b32 s{s_w}, v{v_t+1}')
    p(f'v_lshlrev_b32 v{v_t+1}, 12, v{v_t+1}')
    p(f'v_add_u32 v{v_t}, v{v_t}, v{v_t+1}')
    p(f'global_load_dword v{v_pf}, v{v_t}, s[74:75]')
    p(f's_and_b32 s{s_g}, s2, 15')
    p(f's_lshr_b32 s{s_rb}, s2, 4')
    p(f's_lshr_b32 s{s_pr}, s{s_g}, 1')
    p(f's_and_b32 s{s_tb}, s{s_g}, 1')
    p(f's_and_b32 s{s_r4}, s{s_w}, 3')
    p(f's_lshr_b32 s{s_ch}, s{s_w}, 2')
    p(f's_lshr_b32 s{s_sub}, s{s_w}, 1')
    p(f's_and_b32 s{s_reg}, s{s_w}, 1')
    p(f's_mov_b32 s{s_ones}, 0x3f803f80')
    p(f's_mov_b32 s{s_hi}, 0')
    p(f's_mov_b32 s{s_hi+1}, -1')
    p(f's_mov_b32 s{s_pad}, 0xf0000000')
    p(f's_mov_b32 s{s_pad+1}, 0xf0000000')
    lane, m, hh = v_t + 2, v_t + 3, v_t + 4
    p(f'v_and_b32 v{lane}, 63, v0')
    p(f'v_lshlrev_b32 v{v_lane16}, 4, v{lane}')
    p(f'v_and_b32 v{m}, 31, v0')
    p(f'v_bfe_u32 v{hh}, v0, 5, 1')
    xa, xb = TP, TP + 1
    p(f'v_lshrrev_b32 v{v_t}, 3, v{lane}')
    p(f'v_mul_u32_u24 v{v_t}, 896, v{v_t}')
    p(f'v_lshrrev_b32 v{v_t+1}, 4, v{lane}')
    p(f'v_and_b32 v{v_t+5}, 7, v{lane}')
    p(f'v_xor_b32 v{v_t+1}, v{v_t+1}, v{v_t+5}')
    p(f'v_lshlrev_b32 v{v_t+1}, 4, v{v_t+1}')
    p(f'v_add_u32 v{xa}, v{v_t}, v{v_t+1}')
    p(f'v_xor_b32 v{v_t+1}, 64, v{v_t+1}')
    p(f'v_add_u32 v{xb}, v{v_t}, v{v_t+1}')
    p('s_waitcnt lgkmcnt(0)')
    p(f's_mov_b32 s{S_X}, s4')
    p(f's_mov_b32 s{S_X+1}, s5')
    p(f's_mov_b32 s{S_X+2}, {2048*896}')
    p(f's_mov_b32 s{S_X+3}, 0x20000')
    p(f's_mov_b32 s{S_W}, s6')
    p(f's_mov_b32 s{S_W+1}, s7')
    p(f's_mov_b32 s{S_W+2}, {448*2688}')
    p(f's_mov_b32 s{S_W+3}, 0x20000')
    p(f's_cmp_eq_u32 s{s_reg}, 0')
    p(f's_cselect_b32 s{S_GU}, s24, s26')
    p(f's_cselect_b32 s{S_GU+1}, s25, s27')
    p(f's_mov_b32 s{S_GU+2}, {448*3584}')
    p(f's_mov_b32 s{S_GU+3}, 0x20000')
    p(f's_mov_b32 s{S_WS}, s28')
    p(f's_mov_b32 s{S_WS+1}, s29')
    p(f's_mov_b32 s{S_WS+2}, {WS_SIZE}')
    p(f's_mov_b32 s{S_WS+3}, 0x20000')
    p(f's_lshl_b32 s{s_t0}, s{s_rb}, 7')
    p(f's_lshl_b32 s{s_t1}, s{s_w}, 4')
    p(f's_add_u32 s{s_t0}, s{s_t0}, s{s_t1}')
    p(f's_mul_i32 s{s_t0}, s{s_t0}, 896')
    p(f's_add_u32 s{s_t1}, s{s_t0}, {8*896}')
    p(f's_lshl_b32 s{s_t2}, s{s_w}, 11')
    p(f's_mov_b32 m0, s{s_t2}')
    for a in range(7):
        p(f'buffer_load_dwordx4 v{xa}, s[{S_X}:{S_X+3}], s{s_t0} offen lds')
        p(f's_addk_i32 m0, 1024')
        p(f's_addk_i32 s{s_t0}, 128')
        p(f'buffer_load_dwordx4 v{xb}, s[{S_X}:{S_X+3}], s{s_t1} offen lds')
        if a < 6:
            p(f's_addk_i32 m0, {16384-1024}')
            p(f's_addk_i32 s{s_t1}, 128')
    p(f'v_lshrrev_b32 v{v_t}, 2, v{lane}')
    p(f'v_and_b32 v{v_t+1}, 3, v{lane}')
    p(f'v_mul_u32_u24 v{v_dq}, 2688, v{v_t}')
    p(f'v_lshlrev_b32 v{v_t+5}, 4, v{v_t+1}')
    p(f'v_add_u32 v{v_dq}, v{v_dq}, v{v_t+5}')
    p(f's_lshl_b32 s{s_t0}, s{s_reg}, 5')
    p(f'v_xor_b32 v{v_t+5}, s{s_t0}, v{v_t+5}')
    p(f'v_mul_u32_u24 v{v_dg}, 3584, v{v_t}')
    p(f'v_add_u32 v{v_dg}, v{v_dg}, v{v_t+5}')
    p(f's_mul_i32 s{s_t0}, s{s_sub}, {112*2688}')
    p(f's_mul_i32 s{s_t1}, s{s_sub}, {112*3584}')
    p(f's_lshl_b32 s{s_t2}, s{s_pr}, 1')
    p(f's_add_u32 s{s_t3}, s{s_t2}, s{s_tb}')
    p(f's_mul_i32 s{s_q}, s{s_t3}, 56')
    p(f's_mul_i32 s{s_soff}, s{s_reg}, 896')
    p(f's_add_u32 s{s_q}, s{s_q}, s{s_soff}')
    p(f's_add_u32 s{s_q}, s{s_q}, s{s_t0}')
    p(f's_lshl_b32 s{s_cnt}, s{s_rb}, 2')
    p(f's_add_u32 s{s_cnt}, s{s_cnt}, s{s_r4}')
    p(f's_lshl_b32 s{s_stq}, s{s_t3}, 6')
    p(f's_add_u32 s{s_stq}, s{s_stq}, s{s_cnt}')
    p(f's_add_u32 s{s_str}, s{s_ch}, 11')
    p(f's_lshl_b32 s{s_stq}, s{s_stq}, s{s_str}')
    p(f's_mul_i32 s{s_str}, s{s_ch}, {WS_KV}')
    p(f's_add_u32 s{s_stq}, s{s_stq}, s{s_str}')
    p(f's_add_u32 s{s_stkv}, s{s_t2}, s{s_ch}')
    p(f's_lshl_b32 s{s_stkv}, s{s_stkv}, 6')
    p(f's_add_u32 s{s_stkv}, s{s_stkv}, s{s_cnt}')
    p(f's_lshl_b32 s{s_stkv}, s{s_stkv}, 12')
    p(f's_add_u32 s{s_stkv}, s{s_stkv}, {WS_KV + 2048}')
    p(f's_mul_i32 s{s_str}, s{s_pr}, 7')
    p(f's_mul_i32 s{s_soff}, s{s_tb}, 3')
    p(f's_add_u32 s{s_str}, s{s_str}, s{s_soff}')
    p(f's_mul_i32 s{s_sth}, s{s_cnt}, 112')
    p(f's_lshl_b32 s{s_soff}, s{s_str}, 1')
    p(f's_add_u32 s{s_sth}, s{s_sth}, s{s_soff}')
    p(f's_add_u32 s{s_sth}, s{s_sth}, s{s_ch}')
    p(f's_lshl_b32 s{s_sth}, s{s_sth}, 10')
    p(f's_add_u32 s{s_sth}, s{s_sth}, {WS_HF}')
    p(f's_lshl_b32 s{s_str}, s{s_str}, 6')
    p(f's_add_u32 s{s_str}, s{s_str}, s{s_t1}')
    p(f's_add_u32 s{s_soff}, s{s_t2}, s{s_reg}')
    p(f's_mul_i32 s{s_soff}, s{s_soff}, 56')
    p(f's_add_u32 s{s_soff}, s{s_soff}, 1792')
    p(f's_add_u32 s{s_soff}, s{s_soff}, s{s_t0}')
    p(f's_add_u32 s{s_t0}, s{s_str}, 64')
    p(f's_add_u32 s{s_t1}, s{s_str}, 128')
    p(f's_add_u32 s{s_t2}, s{s_str}, 192')
    p(f's_cmp_eq_u32 s{s_tb}, 0')
    p(f's_cselect_b32 s{s_q+1}, s{s_soff}, s{s_str}')
    p(f's_cselect_b32 s{s_q+2}, s{s_str}, s{s_t0}')
    p(f's_cselect_b32 s{s_q+3}, s{s_t0}, s{s_t1}')
    p(f's_cselect_b32 s{s_q+4}, s{s_t1}, s{s_t2}')
    p(f's_cselect_b32 s{s_qk}, 2, 1')
    p(f's_mov_b32 s{s_qn}, 5')
    p(f's_add_u32 s{s_t0}, s{s_sub}, 8')
    p(f's_cmp_ge_u32 s{s_t0}, 11')
    p(f's_cselect_b32 s{s_t1}, 11, 0')
    p(f's_sub_u32 s{s_t0}, s{s_t0}, s{s_t1}')
    p(f's_mul_i32 s{s_dslot}, s{s_t0}, {SLOT}')
    p(f's_mul_i32 s{s_t0}, s{s_reg}, 7168')
    p(f's_add_u32 s{s_dslot}, s{s_dslot}, s{s_t0}')
    p(f's_cmp_ge_u32 s{s_w}, 6')
    p(f's_cselect_b32 s{s_lead}, 1, 0')

    uid = [0]
    def issue():
        uid[0] += 1
        u = uid[0]
        o = []
        o.append(I(f's_cmp_eq_u32 s{s_qn}, 0'))
        o.append(I(f's_cbranch_scc1 {L("iss_done%d" % u)}'))
        o.append(I(f's_cmp_lg_u32 s{s_qk}, 0'))
        o.append(I(f's_cselect_b64 s[{s_dsrd}:{s_dsrd+1}], s[{S_W}:{S_W+1}], s[{S_GU}:{S_GU+1}]'))
        o.append(I(f's_cselect_b32 s{s_dsrd+2}, s{S_W+2}, s{S_GU+2}'))
        o.append(I(f's_mov_b32 s{s_dsrd+3}, 0x20000'))
        o.append(I(f's_cselect_b32 s{s_str}, {16*2688}, {16*3584}') if False else I(f's_movk_i32 s{s_str}, 0'))
        o[-1] = I(f's_cselect_b32 s{s_str}, s{s_c2688}, s{s_c3584}')
        o.append(I(f's_cbranch_scc1 {L("iss_q%d" % u)}'))
        o.append(I(f'v_mov_b32 v{v_dsel}, v{v_dg}'))
        o.append(I(f's_branch {L("iss_c%d" % u)}'))
        o.append(I(f'{L("iss_q%d" % u)}:'))
        o.append(I(f'v_mov_b32 v{v_dsel}, v{v_dq}'))
        o.append(I(f's_sub_u32 s{s_qk}, s{s_qk}, 1'))
        o.append(I(f'{L("iss_c%d" % u)}:'))
        o.append(I(f's_mov_b32 m0, s{s_dslot}'))
        o.append(I(f's_mov_b32 s{s_soff}, s{s_q}'))
        for i in range(7):
            o.append(I(f'buffer_load_dwordx4 v{v_dsel}, s[{s_dsrd}:{s_dsrd+3}], s{s_soff} offen lds'))
            if i < 6:
                o.append(I(f's_addk_i32 m0, 1024'))
                o.append(I(f's_add_u32 s{s_soff}, s{s_soff}, s{s_str}'))
        for i in range(4):
            o.append(I(f's_mov_b32 s{s_q+i}, s{s_q+i+1}'))
        o.append(I(f's_sub_u32 s{s_qn}, s{s_qn}, 1'))
        o.append(I(f's_add_u32 s{s_dslot}, s{s_dslot}, {4*SLOT}'))
        o.append(I(f's_cmp_ge_u32 s{s_dslot}, {RING}'))
        o.append(I(f's_cselect_b32 s{s_t0}, {RING}, 0'))
        o.append(I(f's_sub_u32 s{s_dslot}, s{s_dslot}, s{s_t0}'))
        o.append(I(f'{L("iss_done%d" % u)}:'))
        return o
    s_c2688, s_c3584 = 76, 77
    p(f's_mov_b32 s{s_c2688}, {16*2688}')
    p(f's_mov_b32 s{s_c3584}, {16*3584}')
    p(f's_cmp_lg_u32 s{s_lead}, 0')
    p(f's_cbranch_scc1 {L("pro_skip")}')
    p.add(issue())
    p.label(L('pro_skip'))

    p(f'v_bfe_u32 v{v_t}, v{lane}, 2, 2')
    p(f'v_lshlrev_b32 v{v_t+1}, 3, v{hh}')
    p(f'v_add_u32 v{v_t}, v{v_t}, v{v_t+1}')
    p(f'v_lshlrev_b32 v{v_t}, 6, v{v_t}')
    p(f'v_and_b32 v{v_t+1}, 3, v{lane}')
    p(f'v_lshlrev_b32 v{v_t+1}, 3, v{v_t+1}')
    p(f'v_add_u32 v{v_t}, v{v_t}, v{v_t+1}')
    p(f'v_bfe_u32 v{v_t+1}, v{lane}, 4, 1')
    p(f's_mul_i32 s{s_t0}, s{s_ch}, 7168')
    p(f'v_lshlrev_b32 v{v_t+5}, 5, v{v_t+1}')
    p(f'v_add_u32 v{v_patq}, v{v_t}, v{v_t+5}')
    p(f'v_add_u32 v{v_patq}, s{s_t0}, v{v_patq}')
    p(f'v_mul_u32_u24 v{v_patg}, 7168, v{v_t+1}')
    p(f'v_add_u32 v{v_patg}, v{v_patg}, v{v_t}')
    p(f'v_xor_b32 v{v_t+5}, s{s_ch}, v{v_t+1}')
    p(f'v_lshlrev_b32 v{v_t+5}, 5, v{v_t+5}')
    p(f'v_add_u32 v{v_patg}, v{v_patg}, v{v_t+5}')
    p(f's_lshl_b32 s{s_t0}, s{s_ch}, 9')
    p(f's_add_u32 s{s_t0}, s{s_t0}, {L_CSP}')
    p(f'v_lshlrev_b32 v{v_csp_r}, 4, v{m}')
    p(f'v_add_u32 v{v_csp_r}, s{s_t0}, v{v_csp_r}')
    p(f's_lshl_b32 s{s_t1}, s{s_r4}, 2')
    p(f'v_add_u32 v{v_csp_w}, s{s_t1}, v{v_csp_r}')
    p(f's_lshl_b32 s{s_t0}, s{s_w}, 7')
    p(f's_add_u32 s{s_t0}, s{s_t0}, {L_CSF}')
    p(f'v_lshlrev_b32 v{v_csf_w}, 2, v{m}')
    p(f'v_add_u32 v{v_csf_w}, s{s_t0}, v{v_csf_w}')
    p(f'v_lshlrev_b32 v{v_csf_r}, 4, v{hh}')
    p(f'v_add_u32 v{v_csf_r}, s{s_t0}, v{v_csf_r}')
    p(f's_lshl_b32 s{s_t0}, s{s_w}, 8')
    p(f's_add_u32 s{s_t0}, s{s_t0}, {L_TOK}')
    p(f'v_lshlrev_b32 v{v_tokr}, 4, v{hh}')
    p(f'v_add_u32 v{v_tokr}, s{s_t0}, v{v_tokr}')
    p(f'v_cmp_eq_u32 vcc, 28, v{m}')
    p(f'v_mov_b32 v{v_padv}, 0')
    p(f'v_mov_b32 v{v_t}, s{s_ones}')
    p(f'v_cndmask_b32 v{v_padv}, v{v_padv}, v{v_t}, vcc')
    p(f's_cmp_eq_u32 s{s_ch}, 0')
    p(f's_cselect_b32 s{s_scq}, {hexf(CQ)}, 1.0')
    p(f's_cselect_b32 s{s_padk}, 0, 0x3f80')
    xr = [TP + 2 + u for u in range(4)]
    p(f's_lshl_b32 s{s_t0}, s{s_r4}, 12')
    p(f'v_lshlrev_b32 v{v_t}, 7, v{m}')
    p(f'v_add_u32 v{v_t}, s{s_t0}, v{v_t}')
    p(f'v_bfe_u32 v{v_t+1}, v{m}, 1, 3')
    p(f'v_xor_b32 v{v_t+1}, v{v_t+1}, v{hh}')
    for u in range(4):
        p(f'v_xor_b32 v{v_t+5}, {2*u}, v{v_t+1}')
        p(f'v_lshlrev_b32 v{v_t+5}, 4, v{v_t+5}')
        p(f'v_add_u32 v{xr[u]}, v{v_t}, v{v_t+5}')
    v_stw, v_str = 30, 31
    p(f's_lshl_b32 s{s_t0}, s{s_r4}, 7')
    p(f's_add_u32 s{s_t0}, s{s_t0}, {L_STAT}')
    p(f'v_lshlrev_b32 v{v_str}, 2, v{m}')
    p(f'v_add_u32 v{v_str}, s{s_t0}, v{v_str}')
    p(f's_lshl_b32 s{s_t0}, s{s_ch}, 9')
    p(f'v_add_u32 v{v_stw}, s{s_t0}, v{v_str}')
    p(f's_mov_b32 s{s_rslot}, {8*SLOT}')
    p(f's_add_u32 s{s_t0}, s{s_r4}, 8')
    p(f's_cmp_ge_u32 s{s_t0}, 11')
    p(f's_cselect_b32 s{s_t1}, 11, 0')
    p(f's_sub_u32 s{s_t0}, s{s_t0}, s{s_t1}')
    p(f's_mul_i32 s{s_cslot}, s{s_t0}, {SLOT}')
    p(f's_mov_b32 s{s_par}, 0')
    p(f's_cmp_lg_u32 s{s_w}, 0')
    p(f's_cbranch_scc1 {L("noflag")}')
    p(f's_lshl_b32 s{s_t0}, s2, 2')
    p(f's_add_u32 s{s_t0}, s{s_t0}, {WS_FLAG}')
    p(f'v_mov_b32 v{v_t}, 0')
    p(f'v_mov_b32 v{v_t+1}, 0')
    p(f'buffer_store_dword v{v_t}, v{v_t+1}, s[{S_WS}:{S_WS+3}], s{s_t0} offen')
    p.label(L('noflag'))

    p('s_waitcnt vmcnt(0)')
    p('s_barrier')
    for t in range(28):
        a, u = t >> 2, t & 3
        if t == 16:
            for uu in range(4): p(f'v_add_u32 v{xr[uu]}, 0x10000, v{xr[uu]}')
        off = (a * 16384) & 0xffff
        p(f'ds_read_b128 v[{XF+4*t}:{XF+4*t+3}], v{xr[u]} offset:{off}', gives=['lds:x'])
    p('s_waitcnt lgkmcnt(0)')
    p('s_barrier')
    p.add(issue())
    p.add(issue())

    def ring_adv(s):
        return [I(f's_add_u32 s{s}, s{s}, {SLOT}'),
                I(f's_cmp_ge_u32 s{s}, {RING}'),
                I(f's_cselect_b32 s{s_t1}, {RING}, 0'),
                I(f's_sub_u32 s{s}, s{s}, s{s_t1}')]

    def wread(t, pat_cur, pat_next):
        o = []
        tt = t % 28
        sub, ks = tt // 7, tt % 7
        gsub = t // 7
        va = v_wa[gsub & 1]
        if ks == 0:
            pat = pat_cur if t < 28 else pat_next
            o.append(I(f'v_add_u32 v{va}, s{s_rslot}, v{pat}'))
            o += ring_adv(s_rslot)
        b = WF[t & 3]
        o.append(I(f'ds_read_b64_tr_b16 v[{b}:{b+1}], v{va} offset:{ks*1024}', gives=['rd:ring']))
        o.append(I(f'ds_read_b64_tr_b16 v[{b+2}:{b+3}], v{va} offset:{ks*1024+256}', gives=['rd:ring']))
        return o

    def mstream(w_is_a, pat_cur, pat_next, midbar=None):
        slots = []
        for t in range(28):
            s = []
            if midbar is not None and t == midbar:
                s += [I('s_waitcnt vmcnt(7)'), I('s_barrier')]
            s += wread(t + 3, pat_cur, pat_next)
            b = WF[t & 3]
            x = XF + 4 * t
            d = ACCB if t == 27 else ACCA
            c = '0' if t == 0 else f'v[{ACCA}:{ACCA+15}]'
            if w_is_a:
                s.append(I(f'v_mfma_f32_32x32x16_bf16 v[{d}:{d+15}], v[{b}:{b+3}], v[{x}:{x+3}], {c}'))
            else:
                s.append(I(f'v_mfma_f32_32x32x16_bf16 v[{d}:{d+15}], v[{x}:{x+3}], v[{b}:{b+3}], {c}'))
            slots.append(s)
        return slots

    def cs_stream(pat):
        o = []
        o.append(I(f'v_add_u32 v{v_ca}, s{s_cslot}, v{pat}'))
        o.append(I(f'v_mov_b32 v{v_cacc[0]}, 0'))
        o.append(I(f'v_mov_b32 v{v_cacc[1]}, 0'))
        def rd(f):
            b = CB[f & 1]
            return [I(f'ds_read_b64_tr_b16 v[{b}:{b+1}], v{v_ca} offset:{f*1024}', gives=['rd:ring']),
                    I(f'ds_read_b64_tr_b16 v[{b+2}:{b+3}], v{v_ca} offset:{f*1024+256}', gives=['rd:ring'])]
        o += rd(0) + rd(1)
        for f in range(7):
            b = CB[f & 1]
            for r in range(4):
                o.append(I(f'v_dot2c_f32_bf16 v{v_cacc[r&1]}, s{s_ones}, v{b+r}'))
            if f + 2 < 7: o += rd(f + 2)
        o.append(I(f'v_add_f32 v{v_cacc[0]}, v{v_cacc[0]}, v{v_cacc[1]}'))
        o.append(I(f'v_mov_b32 v{v_cacc[1]}, v{v_cacc[0]}'))
        o.append(I(f'v_permlane32_swap_b32 v{v_cacc[0]}, v{v_cacc[1]}'))
        o.append(I(f'v_add_f32 v{v_cacc[0]}, v{v_cacc[0]}, v{v_cacc[1]}'))
        o.append(I(f'v_add_u32 v{v_cacc[1]}, s{s_par}, v{v_csp_w}'))
        o.append(I(f'ds_write_b32 v{v_cacc[1]}, v{v_cacc[0]}', gives=['lds:cs']))
        o.append([I(f's_add_u32 s{s_cslot}, s{s_cslot}, {4*SLOT}'),
                  I(f's_cmp_ge_u32 s{s_cslot}, {RING}'),
                  I(f's_cselect_b32 s{s_t2}, {RING}, 0'),
                  I(f's_sub_u32 s{s_cslot}, s{s_cslot}, s{s_t2}'),
                  I(f's_xor_b32 s{s_par}, s{s_par}, 1024')])
        return o

    CS = TP
    T2 = TP + 16
    def cs_fetch(bcast=True):
        o = []
        o.append(I(f's_xor_b32 s{s_t3}, s{s_par}, 1024'))
        o.append(I(f'v_add_u32 v{T2}, s{s_t3}, v{v_csp_r}'))
        o.append(I(f'ds_read_b128 v[{T2+4}:{T2+7}], v{T2}'))
        gap = []
        o2 = []
        o2.append(I(f'v_add_f32 v{T2+4}, v{T2+4}, v{T2+5}'))
        o2.append(I(f'v_add_f32 v{T2+6}, v{T2+6}, v{T2+7}'))
        o2.append(I(f'v_add_f32 v{T2+4}, v{T2+4}, v{T2+6}'))
        if bcast:
            o2.append(I(f'ds_write_b32 v{v_csf_w}, v{T2+4}'))
            for i in range(4):
                o2.append(I(f'ds_read_b128 v[{CS+4*i}:{CS+4*i+3}], v{v_csf_r} offset:{32*i}'))
        return o, o2

    def e_gu():
        a, b = cs_fetch()
        o = a + [I('s_nop 0')] * 0
        body = []
        G, U = ACCB, ACCB + 8
        for half in range(2):
            r0 = 4 * half
            tg = [T2 + i for i in range(4)]
            tu = [T2 + 4 + i for i in range(4)]
            ee = [T2 + 8 + i for i in range(4)]
            for i in range(4):
                body.append(I(f'v_fma_f32 v{tg[i]}, v{v_nmean}, v{CS+r0+i}, v{G+r0+i}'))
            for i in range(4):
                body.append(I(f'v_mul_f32 v{ee[i]}, v{tg[i]}, v{v_kk}'))
            for i in range(4):
                body.append(I(f'v_exp_f32 v{ee[i]}, v{ee[i]}'))
                body.append(I(f'v_fma_f32 v{tu[i]}, v{v_nmean}, v{CS+8+r0+i}, v{U+r0+i}'))
            for i in range(4):
                body.append(I(f'v_fma_f32 v{ee[i]}, v{ee[i]}, v{v_vv}, v{v_vv}'))
                body.append(I(f'v_mul_f32 v{tg[i]}, v{tg[i]}, v{tu[i]}'))
            for i in range(4):
                body.append(I(f'v_rcp_f32 v{ee[i]}, v{ee[i]}'))
            for i in range(4):
                body.append(I(f'v_mul_f32 v{tg[i]}, v{tg[i]}, v{ee[i]}'))
            hp = T2 + 12 + 2 * half
            body.append(I(f'v_cvt_pk_bf16_f32 v{hp}, v{tg[0]}, v{tg[1]}'))
            body.append(I(f'v_cvt_pk_bf16_f32 v{hp+1}, v{tg[2]}, v{tg[3]}'))
        body.append(I(f'buffer_store_dwordx4 v[{T2+12}:{T2+15}], v{v_lane16}, s[{S_WS}:{S_WS+3}], s{s_sth} offen'))
        body.append(I(f's_add_u32 s{s_sth}, s{s_sth}, 2048'))
        return a, b, body

    def stats_final(need_tok):
        o = []
        t0, t1, t2 = v_t, v_t + 1, v_t + 2
        o.append(I(f'ds_read_b32 v{t0}, v{v_str}'))
        o.append(I(f'ds_read_b32 v{t1}, v{v_str} offset:512'))
        o2 = []
        o2.append(I(f'v_mul_f32 v{t0}, {hexf(1/448)}, v{t0}'))
        o2.append(I(f'v_mul_f32 v{t1}, {hexf(1/448)}, v{t1}'))
        o2.append(I(f'v_fma_f32 v{t1}, -v{t0}, v{t0}, v{t1}'))
        o2.append(I(f'v_max_f32 v{t1}, 0, v{t1}'))
        o2.append(I(f'v_add_f32 v{v_vv}, {hexf(1e-5)}, v{t1}'))
        o2.append(I(f'v_rsq_f32 v{t2}, v{v_vv}'))
        o2.append(I(f'v_sub_f32 v{v_nmean}, 0, v{t0}'))
        o2.append(I(f'v_mul_f32 v{v_kk}, {hexf(-LOG2E)}, v{t2}'))
        o2.append(I(f'v_mul_f32 v{v_sc}, s{s_scq}, v{t2}'))
        if need_tok:
            o2.append(I(f'v_mul_f32 v{t0}, v{v_nmean}, v{t2}'))
            o2.append(I(f's_lshl_b32 s{s_t3}, s{s_w}, 7'))
            o2.append(I(f's_add_u32 s{s_t3}, s{s_t3}, {L_TOK - L_CSF}'))
            o2.append(I(f'v_add_u32 v{t1}, s{s_t3}, v{v_csf_w}'))
            o2.append(I(f'ds_write_b32 v{t1}, v{t2}'))
            o2.append(I(f'ds_write_b32 v{t1}, v{t0} offset:128'))
        return o, o2

    def e_qk():
        a, b = cs_fetch()
        body = []
        for r in range(16):
            body.append(I(f'v_fma_f32 v{T2+r}, v{v_nmean}, v{CS+r}, v{ACCB+r}'))
        for r in range(16):
            body.append(I(f'v_mul_f32 v{T2+r}, v{T2+r}, v{v_sc}'))
        for d in range(8):
            body.append(I(f'v_cvt_pk_bf16_f32 v{CS+d}, v{T2+2*d}, v{T2+2*d+1}'))
        body.append(I(f'v_mov_b32 v{T2}, s{s_padk}'))
        body.append(I(f'v_mov_b32 v{T2+1}, 0'))
        body.append(I(f'v_cndmask_b32 v{CS+6}, v{CS+6}, v{T2}, s[{s_hi}:{s_hi+1}]'))
        body.append(I(f'v_cndmask_b32 v{CS+7}, v{CS+7}, v{T2+1}, s[{s_hi}:{s_hi+1}]'))
        body.append(I(f'buffer_store_dwordx4 v[{CS}:{CS+3}], v{v_lane16}, s[{S_WS}:{S_WS+3}], s{s_stq} offen'))
        body.append(I(f'buffer_store_dwordx4 v[{CS+4}:{CS+7}], v{v_lane16}, s[{S_WS}:{S_WS+3}], s{s_stq} offen offset:1024'))
        return a, b, body

    def e_vv():
        a, b = cs_fetch(bcast=False)
        RS, MR = TP, TP + 24
        MR = TP + 16
        b = b + [I(f'v_mov_b32 v{v_t+5}, v{T2+4}')]
        rd = []
        for i in range(4):
            rd.append(I(f'ds_read_b128 v[{RS+4*i}:{RS+4*i+3}], v{v_tokr} offset:{32*i}'))
        for i in range(4):
            rd.append(I(f'ds_read_b128 v[{MR+4*i}:{MR+4*i+3}], v{v_tokr} offset:{128+32*i}'))
        body = []
        for r in range(16):
            body.append(I(f'v_mul_f32 v{RS+r}, v{RS+r}, v{ACCB+r}'))
        for r in range(16):
            body.append(I(f'v_fma_f32 v{RS+r}, v{MR+r}, v{v_t+5}, v{RS+r}'))
        O = TP + 32
        for d in range(8):
            body.append(I(f'v_cvt_pk_bf16_f32 v{O+d}, v{RS+2*d}, v{RS+2*d+1}'))
        for d in range(8):
            body.append(I(f'v_cndmask_b32 v{O+d}, v{O+d}, v{v_padv}, s[{s_pad}:{s_pad+1}]'))
        body.append(I(f'buffer_store_dwordx4 v[{O}:{O+3}], v{v_lane16}, s[{S_WS}:{S_WS+3}], s{s_stkv} offen'))
        body.append(I(f'buffer_store_dwordx4 v[{O+4}:{O+7}], v{v_lane16}, s[{S_WS}:{S_WS+3}], s{s_stkv} offen offset:1024'))
        return a, b + rd, body

    def stage(w_is_a, pat_cur, pat_next, pre, epi, nstores, midbar=None, cs_start=2, bar=True):
        slots = mstream(w_is_a, pat_cur, pat_next, midbar)
        fill_by_slot = [[] for _ in range(28)]
        cs = cs_stream(pat_cur)
        sl = 0
        for part in pre:
            fill_by_slot[sl] += part; sl += 2
        if epi is not None:
            a, b, body = epi
            fill_by_slot[sl] += a
            fill_by_slot[sl + 2] += b
            st, en = sl + 5, 26
            n = en - st
            for k in range(n):
                fill_by_slot[st + k] += body[len(body) * k // n: len(body) * (k + 1) // n]
        st, en = cs_start, 25
        n = en - st
        for k in range(n):
            fill_by_slot[st + k] += cs[len(cs) * k // n: len(cs) * (k + 1) // n]
        out = []
        for t in range(28):
            out += slots[t] + flat(fill_by_slot[t])
        if bar:
            out.append(I(f's_waitcnt vmcnt({nstores})'))
            out.append(I('s_barrier', needs=['lds:cs', 'lds:stat', 'rd:ringX']))
        return out

    for t in range(3):
        p.add(wread(t, v_patq, v_patq))
    SA = [v_t, v_t + 1, v_t + 2, v_t + 3]
    def stats(sq):
        o = []
        for i in range(4): o.append(I(f'v_mov_b32 v{SA[i]}, 0'))
        for k in range(112):
            if sq: o.append(I(f'v_dot2c_f32_bf16 v{SA[k&3]}, v{XF+k}, v{XF+k}'))
            else: o.append(I(f'v_dot2c_f32_bf16 v{SA[k&3]}, s{s_ones}, v{XF+k}'))
        o.append(I(f'v_add_f32 v{SA[0]}, v{SA[0]}, v{SA[1]}'))
        o.append(I(f'v_add_f32 v{SA[2]}, v{SA[2]}, v{SA[3]}'))
        o.append(I(f'v_add_f32 v{SA[0]}, v{SA[0]}, v{SA[2]}'))
        o.append(I(f'v_mov_b32 v{SA[1]}, v{SA[0]}'))
        o.append(I(f'v_permlane32_swap_b32 v{SA[0]}, v{SA[1]}'))
        o.append(I(f'v_add_f32 v{SA[0]}, v{SA[0]}, v{SA[1]}'))
        o.append(I(f'ds_write_b32 v{v_stw}, v{SA[0]}', gives=['lds:stat']))
        return o
    p(f's_cmp_lg_u32 s{s_ch}, 0')
    p(f's_cbranch_scc1 {L("st_nosum")}')
    p.add(stats(False))
    p.label(L('st_nosum'))
    v_patn = v_dsel + 0
    v_patn = 241
    p(f's_cmp_eq_u32 s{s_tb}, 0')
    p(f's_cbranch_scc1 {L("pn_a")}')
    p(f'v_mov_b32 v{v_patn}, v{v_patg}')
    p(f's_branch {L("pn_c")}')
    p.label(L('pn_a'))
    p(f'v_mov_b32 v{v_patn}, v{v_patq}')
    p.label(L('pn_c'))
    st0 = stage(True, v_patq, v_patn, [], None, 0, midbar=18, cs_start=19, bar=False)
    p.add(st0)
    p(f's_cmp_eq_u32 s{s_ch}, 0')
    p(f's_cbranch_scc1 {L("st_nosq")}')
    p.add(stats(True))
    p.label(L('st_nosq'))
    p.add([I('s_waitcnt vmcnt(0)'), I('s_barrier', needs=['lds:cs', 'lds:stat'])])

    p(f's_cmp_eq_u32 s{s_tb}, 0')
    p(f's_cbranch_scc0 {L("typeB")}')
    p.add(issue())
    p.add(stage(False, v_patq, v_patg, list(stats_final(True)), e_qk(), 2))
    p.add(issue())
    p.add(stage(True, v_patg, v_patg, [], e_vv(), 2))
    p(f's_mov_b32 s{s_cnt}, 2')
    p(f's_branch {L("guloop")}')
    p.label(L('typeB'))
    p.add(issue())
    p.add(stage(True, v_patg, v_patg, list(stats_final(False)), e_qk(), 2))
    p(f's_mov_b32 s{s_cnt}, 3')
    p.label(L('guloop'))
    p.add(issue())
    p.add(stage(True, v_patg, v_patg, [], e_gu(), 1))
    p(f's_sub_u32 s{s_cnt}, s{s_cnt}, 1')
    p(f's_cmp_lg_u32 s{s_cnt}, 0')
    p(f's_cbranch_scc1 {L("guloop")}')
    a, b, body = e_gu()
    p.add(a + b + body)
    p('s_waitcnt vmcnt(0) lgkmcnt(0)')
    p.label(L('end'))
    p('s_endpgm')
    desc = f"""
.amdhsa_kernel {name}
  .amdhsa_next_free_vgpr 248
  .amdhsa_next_free_sgpr 96
  .amdhsa_accum_offset 248
  .amdhsa_group_segment_fixed_size 0
  .amdhsa_kernarg_size 80
  .amdhsa_user_sgpr_count 2
  .amdhsa_user_sgpr_kernarg_segment_ptr 1
  .amdhsa_system_sgpr_workgroup_id_x 1
  .amdhsa_float_denorm_mode_32 3
.end_amdhsa_kernel
"""
    return p, desc
```

```python
from asmlib import *
from k1 import WS_QF, WS_KV, WS_HF, WS_OF, WS_FLAG, WS_SIZE, hexf, flat

KVSLOT = 16384
KVN = 4
G0 = KVSLOT * KVN
GSLOT = 28672
GN = 3
L_CNT = G0 + GSLOT * GN + 1024
LDS2 = 163840
MARGIN = 64.0

def gen_k2(name):
    p = Prog()
    L = lambda s: name + '_' + s
    S_WS, S_WD, S_WO, S_X, S_OUT = 8, 12, 16, 20, 24
    s_w, s_hd, s_qb, s_tm, s_tn, s_wm, s_wn, s_lw = 30, 31, 32, 33, 34, 35, 36, 37
    s_hi = 38
    s_t0, s_t1, s_t2, s_t3 = 40, 41, 42, 43
    s_i = 44
    s_kvs = 45
    s_kvn = 46
    s_kvg = 47
    s_gs = 48
    s_gd = 49
    s_gg = 50
    s_gstep = 51
    s_gadv = 52
    s_dsrd = 56
    s_soff = 53
    s_ost = 54
    s_flag = 55

    p.label(name)
    p('s_cmp_ge_u32 s2, 256')
    p(f's_cbranch_scc1 {L("end")}')
    p('s_load_dwordx2 s[4:5], s[0:1], 0')
    p('s_load_dwordx2 s[6:7], s[0:1], 16')
    p('s_load_dwordx4 s[60:63], s[0:1], 48')
    p('s_load_dwordx2 s[28:29], s[0:1], 72')
    p('s_getpc_b64 s[74:75]')
    p('v_and_b32 v2, 63, v0')
    p('v_lshlrev_b32 v3, 6, v2')
    p('v_lshrrev_b32 v4, 6, v0')
    p(f'v_readfirstlane_b32 s{s_w}, v4')
    p('v_lshlrev_b32 v4, 12, v4')
    p('v_add_u32 v3, v3, v4')
    p('global_load_dword v5, v3, s[74:75]')
    p('v_lshlrev_b32 v1, 4, v2')
    p(f's_and_b32 s{s_hd}, s2, 15')
    p(f's_lshr_b32 s{s_qb}, s2, 4')
    p(f's_mov_b32 s{s_hi}, 0')
    p(f's_mov_b32 s{s_hi+1}, -1')
    p('s_waitcnt lgkmcnt(0)')
    for (S, lo, hi, size) in ((S_WS, 28, 29, WS_SIZE), (S_WD, 60, 61, 1792 * 896), (S_WO, 6, 7, 448 * 896), (S_X, 4, 5, 2048 * 896), (S_OUT, 62, 63, 2048 * 896)):
        p(f's_mov_b32 s{S}, s{lo}')
        p(f's_mov_b32 s{S+1}, s{hi}')
        p(f's_mov_b32 s{S+2}, {size}')
        p(f's_mov_b32 s{S+3}, 0x20000')
    p(f's_cmp_ge_u32 s{s_w}, 4')
    p(f's_cbranch_scc1 {L("loader")}')

    Q, KB, VB, S, P, O = 8, [16, 24], [32, 40], [48, 64], 80, 96
    v_a, v_b = 2, 3
    T = 112
    p(f'v_mov_b32 v{T}, {L_CNT}')
    p(f'v_mov_b32 v{T+1}, 0')
    p(f'ds_write_b32 v{T}, v{T+1}', gives=['lds:cnt'])
    p(f's_lshl_b32 s{s_t0}, s{s_hd}, 6')
    p(f's_lshl_b32 s{s_t1}, s{s_qb}, 2')
    p(f's_add_u32 s{s_t0}, s{s_t0}, s{s_t1}')
    p(f's_add_u32 s{s_t0}, s{s_t0}, s{s_w}')
    p(f's_lshl_b32 s{s_t0}, s{s_t0}, 11')
    p(f'buffer_load_dwordx4 v[{Q}:{Q+3}], v1, s[{S_WS}:{S_WS+3}], s{s_t0} offen')
    p(f'buffer_load_dwordx4 v[{Q+4}:{Q+7}], v1, s[{S_WS}:{S_WS+3}], s{s_t0} offen offset:1024')
    p(f's_add_u32 s{s_t1}, s{s_t1}, s{s_w}')
    p(f's_lshl_b32 s{s_ost}, s{s_t1}, 5')
    p(f's_lshl_b32 s{s_t2}, s{s_hd}, 1')
    p(f's_add_u32 s{s_ost}, s{s_ost}, s{s_t2}')
    p(f's_lshl_b32 s{s_ost}, s{s_ost}, 10')
    p(f's_add_u32 s{s_ost}, s{s_ost}, {WS_OF}')
    for r in range(16): p(f'v_mov_b32 v{O+r}, 0')
    for r in range(4): p(f'v_mov_b32 v{P+4+r}, 0')
    for r in range(4): p(f'v_mov_b32 v{VB[1]+4+r}, 0')
    p(f'v_mov_b32 v{v_a}, v1')
    p(f'v_add_u32 v{v_b}, {KVSLOT}, v1')
    p(f's_mov_b32 s{s_kvn}, {2*KVSLOT}')
    p.add([I('s_barrier', needs=['lds:cnt'])])
    def rdK(buf, va, tile):
        return [I(f'ds_read_b128 v[{buf}:{buf+3}], v{va} offset:{tile*4096}'),
                I(f'ds_read_b128 v[{buf+4}:{buf+7}], v{va} offset:{tile*4096+1024}')]
    def rdV(buf, va, tile):
        return [I(f'ds_read_b128 v[{buf}:{buf+3}], v{va} offset:{tile*4096+2048}'),
                I(f'ds_read_b128 v[{buf+4}:{buf+7}], v{va} offset:{tile*4096+3072}')]
    p.add(rdK(KB[0], v_a, 0) + rdK(KB[1], v_a, 1) + rdV(VB[0], v_a, 0))
    def mS(dst, kb, part):
        c = '0' if part == 0 else f'v[{dst}:{dst+15}]'
        return I(f'v_mfma_f32_32x32x16_bf16 v[{dst}:{dst+15}], v[{kb+4*part}:{kb+4*part+3}], v[{Q+4*part}:{Q+4*part+3}], {c}')
    def mPV(vb, part):
        return I(f'v_mfma_f32_32x32x16_bf16 v[{O}:{O+15}], v[{vb+4*part}:{vb+4*part+3}], v[{P+4*part}:{P+4*part+3}], v[{O}:{O+15}]')
    p.add([mS(S[0], KB[0], 0), mS(S[0], KB[0], 1)])
    s0 = S[0]
    p(f'v_max3_f32 v{T}, v{s0}, v{s0+1}, v{s0+2}')
    p(f'v_max3_f32 v{T+1}, v{s0+3}, v{s0+4}, v{s0+5}')
    p(f'v_max3_f32 v{T+2}, v{s0+6}, v{s0+7}, v{s0+8}')
    p(f'v_max3_f32 v{T+3}, v{s0+9}, v{s0+10}, v{s0+11}')
    p(f'v_max3_f32 v{T}, v{T}, v{s0+12}, v{s0+13}')
    p(f'v_max3_f32 v{T+1}, v{T+1}, v{s0+14}, v{s0+15}')
    p(f'v_max3_f32 v{T}, v{T}, v{T+1}, v{T+2}')
    p(f'v_max_f32 v{T}, v{T}, v{T+3}')
    p(f'v_mov_b32 v{T+1}, v{T}')
    p(f'v_permlane32_swap_b32 v{T}, v{T+1}')
    p(f'v_max_f32 v{T}, v{T}, v{T+1}')
    p(f'v_add_f32 v{T}, {hexf(MARGIN)}, v{T}')
    p(f'v_sub_f32 v{T}, 0, v{T}')
    p(f'v_mov_b32 v{T+1}, 0')
    p(f'v_cvt_pk_bf16_f32 v{T}, v{T}, v{T+1}')
    p(f'v_cndmask_b32 v{Q+6}, v{Q+6}, v{T}, s[{s_hi}:{s_hi+1}]')
    p.add([mS(S[0], KB[0], 0), mS(S[0], KB[0], 1)])
    p('s_nop 12')

    def period(t, rk, rv, do_s=True):
        cur, nxt = S[t & 1], S[(t + 1) & 1]
        E = lambda r: I(f'v_exp_f32 v{cur+r}, v{cur+r}')
        C = lambda d: I(f'v_cvt_pk_bf16_f32 v{P+d}, v{cur+2*d}, v{cur+2*d+1}')
        o = []
        o += [E(0), E(1)]
        o += [mPV(VB[(t - 1) & 1], 1)]
        o += rk[:1] + [E(2), E(3)] + rk[1:] + [C(0), C(1)]
        if do_s: o += [mS(nxt, KB[(t + 1) & 1], 0)]
        o += [E(4), E(5)] + rv[:1] + [E(6), E(7)] + rv[1:] + [C(2), C(3)]
        if do_s: o += [mS(nxt, KB[(t + 1) & 1], 1)]
        o += [E(8), E(9), E(10), E(11), C(4), C(5)]
        o += [mPV(VB[t & 1], 0)]
        o += [E(12), E(13), E(14), E(15), C(6), C(7)]
        return o

    p(f's_mov_b32 s{s_i}, 15')
    p.label(L('aloop'))
    p.add(period(0, rdK(KB[0], v_a, 2), rdV(VB[1], v_a, 1)))
    p.add(period(1, rdK(KB[1], v_a, 3), rdV(VB[0], v_a, 2)))
    p.add([I('s_barrier')])
    p.add(period(2, rdK(KB[0], v_b, 0), rdV(VB[1], v_a, 3)))
    p.add(period(3, rdK(KB[1], v_b, 1), rdV(VB[0], v_b, 0)))
    p(f'v_mov_b32 v{v_a}, v{v_b}')
    p(f'v_add_u32 v{v_b}, s{s_kvn}, v1')
    p(f's_add_u32 s{s_kvn}, s{s_kvn}, {KVSLOT}')
    p(f's_and_b32 s{s_kvn}, s{s_kvn}, {KVSLOT*KVN-1}')
    p(f's_sub_u32 s{s_i}, s{s_i}, 1')
    p(f's_cmp_lg_u32 s{s_i}, 0')
    p(f's_cbranch_scc1 {L("aloop")}')
    p.add(period(0, rdK(KB[0], v_a, 2), rdV(VB[1], v_a, 1)))
    p.add(period(1, rdK(KB[1], v_a, 3), rdV(VB[0], v_a, 2)))
    p.add(period(2, [], rdV(VB[1], v_a, 3)))
    p.add(period(3, [], [], do_s=False))
    p.add([mPV(VB[1], 1)])

    def normalize_store():
        o = []
        o.append(I(f'v_mov_b32 v{T}, v{O+12}'))
        o.append(I(f'v_mov_b32 v{T+1}, v{O+12}'))
        o.append(I(f'v_permlane32_swap_b32 v{T}, v{T+1}'))
        return o
    p.label(L('afin'))
    p.add(normalize_store())
    p(f'v_mul_f32 v{T+2}, 0, v{O}')
    for r in range(1, 16):
        p(f'v_fma_f32 v{T+2}, v{O+r}, 0, v{T+2}')
    p(f'v_add_f32 v{T+2}, v{T+2}, v{T+1}')
    p(f'v_mov_b32 v{T+3}, {hexf(2.0**-80)}')
    p(f'v_mov_b32 v{T+4}, 0x7f800000')
    p(f'v_cmp_ge_f32 s[{s_t0}:{s_t0+1}], v{T+2}, v{T+3}')
    p(f'v_cmp_lt_f32 vcc, v{T+2}, v{T+4}')
    p(f's_and_b64 vcc, vcc, s[{s_t0}:{s_t0+1}]')
    p(f's_cmp_eq_u64 vcc, -1')
    p(f's_cbranch_scc0 {L("slow")}')
    p.label(L('astore'))
    p(f'v_rcp_f32 v{T+2}, v{T+1}')
    for r in range(16):
        p(f'v_mul_f32 v{O+r}, v{O+r}, v{T+2}')
    for d in range(8):
        p(f'v_cvt_pk_bf16_f32 v{P+d}, v{O+2*d}, v{O+2*d+1}')
    p(f'v_mov_b32 v{T}, 0')
    p(f'v_cndmask_b32 v{P+6}, v{P+6}, v{T}, s[{s_hi}:{s_hi+1}]')
    p(f'v_cndmask_b32 v{P+7}, v{P+7}, v{T}, s[{s_hi}:{s_hi+1}]')
    p(f'buffer_store_dwordx4 v[{P}:{P+3}], v1, s[{S_WS}:{S_WS+3}], s{s_ost} offen sc1')
    p(f'buffer_store_dwordx4 v[{P+4}:{P+7}], v1, s[{S_WS}:{S_WS+3}], s{s_ost} offen offset:1024 sc1')
    p('s_waitcnt vmcnt(0)')
    p(f'v_mov_b32 v{T}, {L_CNT}')
    p(f'v_mov_b32 v{T+1}, 1')
    p(f'v_cmp_eq_u32 vcc, 0, v1')
    p(f's_and_saveexec_b64 s[{s_t0}:{s_t0+1}], vcc')
    p(f'ds_add_rtn_u32 v{T+2}, v{T}, v{T+1}')
    p('s_waitcnt lgkmcnt(0)')
    p(f'v_readfirstlane_b32 s{s_t2}, v{T+2}')
    p(f's_cmp_eq_u32 s{s_t2}, 3')
    p(f's_cbranch_scc0 {L("end")}')
    p(f's_lshl_b32 s{s_t2}, s2, 2')
    p(f's_add_u32 s{s_t2}, s{s_t2}, {WS_FLAG}')
    p(f'v_mov_b32 v{T}, 0')
    p(f'buffer_store_dword v{T+1}, v{T}, s[{S_WS}:{S_WS+3}], s{s_t2} offen sc1')
    p('s_endpgm')

    p.label(L('slow'))
    M = T + 5
    p(f'v_mov_b32 v{T}, 0')
    p(f'v_cndmask_b32 v{Q+6}, v{Q+6}, v{T}, s[{s_hi}:{s_hi+1}]')
    for r in range(16): p(f'v_mov_b32 v{O+r}, 0')
    p(f'v_mov_b32 v{M}, 0xff800000')
    p(f's_lshl_b32 s{s_t2}, s{s_hd}, 18')
    p(f's_add_u32 s{s_t2}, s{s_t2}, {WS_KV}')
    p(f's_mov_b32 s{s_i}, 64')
    p.label(L('sloop'))
    p(f'buffer_load_dwordx4 v[{KB[0]}:{KB[0]+3}], v1, s[{S_WS}:{S_WS+3}], s{s_t2} offen')
    p(f'buffer_load_dwordx4 v[{KB[0]+4}:{KB[0]+7}], v1, s[{S_WS}:{S_WS+3}], s{s_t2} offen offset:1024')
    p(f'buffer_load_dwordx4 v[{VB[0]}:{VB[0]+3}], v1, s[{S_WS}:{S_WS+3}], s{s_t2} offen offset:2048')
    p(f'buffer_load_dwordx4 v[{VB[0]+4}:{VB[0]+7}], v1, s[{S_WS}:{S_WS+3}], s{s_t2} offen offset:3072')
    p.add([mS(S[0], KB[0], 0), mS(S[0], KB[0], 1)])
    p(f'v_max3_f32 v{T}, v{s0}, v{s0+1}, v{s0+2}')
    for r in range(3, 15, 2):
        p(f'v_max3_f32 v{T}, v{T}, v{s0+r}, v{s0+r+1}')
    p(f'v_max_f32 v{T}, v{T}, v{s0+15}')
    p(f'v_mov_b32 v{T+1}, v{T}')
    p(f'v_permlane32_swap_b32 v{T}, v{T+1}')
    p(f'v_max3_f32 v{T}, v{T}, v{T+1}, v{M}')
    p(f'v_sub_f32 v{T+1}, v{M}, v{T}')
    p(f'v_exp_f32 v{T+1}, v{T+1}')
    p(f'v_mov_b32 v{M}, v{T}')
    for r in range(16):
        p(f'v_sub_f32 v{s0+r}, v{s0+r}, v{M}')
    for r in range(16):
        p(f'v_exp_f32 v{s0+r}, v{s0+r}')
    for r in range(16):
        p(f'v_mul_f32 v{O+r}, v{O+r}, v{T+1}')
    for d in range(8):
        p(f'v_cvt_pk_bf16_f32 v{P+d}, v{s0+2*d}, v{s0+2*d+1}')
    p.add([mPV(VB[0], 0), mPV(VB[0], 1)])
    p(f's_add_u32 s{s_t2}, s{s_t2}, 4096')
    p(f's_sub_u32 s{s_i}, s{s_i}, 1')
    p(f's_cmp_lg_u32 s{s_i}, 0')
    p(f's_cbranch_scc1 {L("sloop")}')
    p.add(normalize_store())
    p(f's_branch {L("astore")}')

    p.label(L('loader'))
    ACC = 8
    HB = [24, 28]
    WB = [32, 36, 40]
    XR = 44
    v_pw, v_ha, v_wa, v_db, v_t = 2, 3, 4, 5, 6
    OFR = 64
    p(f's_sub_u32 s{s_lw}, s{s_w}, 4')
    p(f's_lshr_b32 s{s_wm}, s{s_lw}, 1')
    p(f's_and_b32 s{s_wn}, s{s_lw}, 1')
    p(f's_lshl_b32 s{s_kvg}, s{s_hd}, 6')
    p(f's_add_u32 s{s_kvg}, s{s_kvg}, s{s_lw}')
    p(f's_lshl_b32 s{s_kvg}, s{s_kvg}, 12')
    p(f's_add_u32 s{s_kvg}, s{s_kvg}, {WS_KV}')
    p(f's_lshl_b32 s{s_kvs}, s{s_lw}, 12')
    def kv_issue():
        o = [I(f's_mov_b32 m0, s{s_kvs}')]
        for q in range(4):
            o.append(I(f'buffer_load_dwordx4 v1, s[{S_WS}:{S_WS+3}], s{s_kvg} offen offset:{q*1024} lds'))
        o.append(I(f's_add_u32 s{s_kvg}, s{s_kvg}, {4*4096}'))
        o.append(I(f's_add_u32 s{s_kvs}, s{s_kvs}, {KVSLOT}'))
        o.append(I(f's_and_b32 s{s_kvs}, s{s_kvs}, {KVSLOT*KVN-1}'))
        return o
    p('s_cmp_ge_u32 s2, 224')
    p(f's_cbranch_scc1 {L("kvonly")}')
    p(f's_lshr_b32 s{s_t0}, s2, 3')
    p(f's_mul_i32 s{s_t1}, s{s_t0}, 37')
    p(f's_lshr_b32 s{s_t1}, s{s_t1}, 8')
    p(f's_mul_i32 s{s_t2}, s{s_t1}, 7')
    p(f's_sub_u32 s{s_tn}, s{s_t0}, s{s_t2}')
    p(f's_and_b32 s{s_tm}, s2, 7')
    p(f's_lshl_b32 s{s_tm}, s{s_tm}, 2')
    p(f's_add_u32 s{s_tm}, s{s_tm}, s{s_t1}')
    p('v_and_b32 v52, 63, v0')
    p('v_and_b32 v53, 31, v0')
    p('v_bfe_u32 v54, v0, 5, 1')
    p(f's_lshl_b32 s{s_t0}, s{s_tm}, 6')
    p(f's_lshl_b32 s{s_t1}, s{s_wm}, 5')
    p(f's_add_u32 s{s_t0}, s{s_t0}, s{s_t1}')
    p(f's_mul_i32 s{s_t0}, s{s_t0}, 896')
    p(f's_lshl_b32 s{s_t1}, s{s_tn}, 7')
    p(f's_lshl_b32 s{s_t2}, s{s_wn}, 6')
    p(f's_add_u32 s{s_t0}, s{s_t0}, s{s_t1}')
    p(f's_add_u32 s{s_ost}, s{s_t0}, s{s_t2}')
    p('v_mul_u32_u24 v55, 896, v53')
    p('v_lshlrev_b32 v56, 3, v54')
    p('v_add_u32 v55, v55, v56')
    for i in range(4):
        p(f'buffer_load_dwordx2 v[{XR+2*i}:{XR+2*i+1}], v55, s[{S_X}:{S_X+3}], s{s_ost} offen offset:{16*i}')
    p(f'v_lshrrev_b32 v{v_t}, 3, v52')
    p(f'v_mul_u32_u24 v{v_t}, 896, v{v_t}')
    p(f'v_bfe_u32 v{v_t+1}, v52, 4, 1')
    p(f'v_lshlrev_b32 v{v_t+1}, 2, v{v_t+1}')
    p(f'v_and_b32 v56, 7, v52')
    p(f'v_xor_b32 v{v_t+1}, v{v_t+1}, v56')
    p(f'v_lshlrev_b32 v{v_t+1}, 4, v{v_t+1}')
    p(f'v_add_u32 v57, v{v_t}, v{v_t+1}')
    p(f's_cmp_ge_u32 s{s_lw}, 2')
    p(f's_cbranch_scc1 {L("setB")}')
    p(f'v_mov_b32 v{v_db}, v1')
    p(f's_lshl_b32 s{s_t0}, s{s_tm}, 1')
    p(f's_add_u32 s{s_t0}, s{s_t0}, s{s_lw}')
    p(f's_mul_i32 s{s_gg}, s{s_t0}, {112*1024}')
    p(f's_add_u32 s{s_gg}, s{s_gg}, {WS_HF}')
    p(f's_mov_b32 s{s_gstep}, 1024')
    p(f's_mul_i32 s{s_gd}, s{s_lw}, 7168')
    p(f's_mov_b64 s[{s_dsrd}:{s_dsrd+1}], s[{S_WS}:{S_WS+1}]')
    p(f's_mov_b32 s{s_dsrd+2}, {WS_SIZE}')
    p(f's_branch {L("setC")}')
    p.label(L('setB'))
    p(f'v_mov_b32 v{v_db}, v57')
    p(f's_sub_u32 s{s_t0}, s{s_lw}, 2')
    p(f's_mul_i32 s{s_gg}, s{s_t0}, {56*896}')
    p(f's_lshl_b32 s{s_t1}, s{s_tn}, 7')
    p(f's_add_u32 s{s_gg}, s{s_gg}, s{s_t1}')
    p(f's_mov_b32 s{s_gstep}, {8*896}')
    p(f's_mul_i32 s{s_gd}, s{s_t0}, 7168')
    p(f's_add_u32 s{s_gd}, s{s_gd}, 14336')
    p(f's_mov_b64 s[{s_dsrd}:{s_dsrd+1}], s[{S_WD}:{S_WD+1}]')
    p(f's_mov_b32 s{s_dsrd+2}, {1792*896}')
    p.label(L('setC'))
    p(f's_mov_b32 s{s_dsrd+3}, 0x20000')
    p(f's_add_u32 s{s_gd}, s{s_gd}, {G0}')
    p(f's_cmp_ge_u32 s{s_lw}, 2')
    p(f's_mov_b32 s{s_gadv}, {7*1024}')
    p(f's_cselect_b32 s{s_gadv}, {112*896}, s{s_gadv}')
    s_gring = 64
    p(f's_mov_b32 s{s_gring}, 0')
    def g_issue():
        o = [I(f's_mul_i32 s{s_t0}, s{s_gring}, {GSLOT}'),
             I(f's_add_u32 m0, s{s_gd}, s{s_t0}'),
             I(f's_mov_b32 s{s_soff}, s{s_gg}')]
        for q in range(7):
            o.append(I(f'buffer_load_dwordx4 v{v_db}, s[{s_dsrd}:{s_dsrd+3}], s{s_soff} offen lds'))
            if q < 6:
                o.append(I('s_addk_i32 m0, 1024'))
                o.append(I(f's_add_u32 s{s_soff}, s{s_soff}, s{s_gstep}'))
        o.append(I(f's_add_u32 s{s_gg}, s{s_gg}, s{s_gadv}'))
        o.append(I(f's_add_u32 s{s_gring}, s{s_gring}, 1'))
        o.append(I(f's_cmp_eq_u32 s{s_gring}, 3'))
        o.append(I(f's_cselect_b32 s{s_gring}, 0, s{s_gring}'))
        return o
    p.add(kv_issue() + g_issue() + kv_issue() + g_issue())
    p(f'v_bfe_u32 v{v_t}, v52, 2, 2')
    p(f'v_lshlrev_b32 v{v_t+1}, 2, v54')
    p(f'v_add_u32 v{v_t+1}, v{v_t+1}, v{v_t}')
    p(f'v_lshlrev_b32 v{v_pw}, 7, v{v_t+1}')
    p(f'v_lshrrev_b32 v{v_t}, 1, v{v_t}')
    p(f'v_xor_b32 v{v_t}, s{s_wn}, v{v_t}')
    p(f'v_lshlrev_b32 v{v_t}, 6, v{v_t}')
    p(f'v_add_u32 v{v_pw}, v{v_pw}, v{v_t}')
    p(f'v_bfe_u32 v{v_t}, v52, 4, 1')
    p(f'v_lshlrev_b32 v{v_t}, 5, v{v_t}')
    p(f'v_add_u32 v{v_pw}, v{v_pw}, v{v_t}')
    p(f'v_and_b32 v{v_t}, 3, v52')
    p(f'v_lshlrev_b32 v{v_t}, 3, v{v_t}')
    p(f'v_add_u32 v{v_pw}, v{v_pw}, v{v_t}')
    p(f's_mul_i32 s{s_t0}, s{s_wm}, 7168')
    p(f'v_add_u32 v58, s{s_t0}, v1')
    for r in range(16): p(f'v_mov_b32 v{ACC+r}, 0')
    p(f's_mov_b32 s{s_gs}, {G0}')
    p(f's_mov_b32 s{s_i}, 0')
    s_wog = 65
    p(f's_mul_i32 s{s_wog}, s{s_lw}, {56*896}')
    p(f's_lshl_b32 s{s_t1}, s{s_tn}, 7')
    p(f's_add_u32 s{s_wog}, s{s_wog}, s{s_t1}')
    s_wol = 66
    p(f's_mul_i32 s{s_wol}, s{s_lw}, 7168')
    p(f's_add_u32 s{s_wol}, s{s_wol}, {G0 + GSLOT}')
    def wo_issue(n):
        o = [I(f's_mov_b32 m0, s{s_wol}'), I(f's_mov_b32 s{s_soff}, s{s_wog}')]
        for q in range(n):
            o.append(I(f'buffer_load_dwordx4 v57, s[{S_WO}:{S_WO+3}], s{s_soff} offen lds'))
            if q < n - 1:
                o.append(I('s_addk_i32 m0, 1024'))
                o.append(I(f's_add_u32 s{s_soff}, s{s_soff}, {8*896}'))
        o.append(I(f's_add_u32 s{s_wog}, s{s_wog}, {224*896}'))
        o.append(I(f's_add_u32 s{s_wol}, s{s_wol}, {GSLOT}'))
        return o
    def gcompute():
        o = [I(f'v_add_u32 v{v_ha}, s{s_gs}, v58'),
             I(f's_add_u32 s{s_t0}, s{s_gs}, 14336'),
             I(f'v_add_u32 v{v_wa}, s{s_t0}, v{v_pw}')]
        def rd(ks):
            hb, wb = HB[ks & 1], WB[ks % 3]
            return [I(f'ds_read_b128 v[{hb}:{hb+3}], v{v_ha} offset:{ks*1024}', gives=['rd:g']),
                    I(f'ds_read_b64_tr_b16 v[{wb}:{wb+1}], v{v_wa} offset:{ks*2048}', gives=['rd:g']),
                    I(f'ds_read_b64_tr_b16 v[{wb+2}:{wb+3}], v{v_wa} offset:{ks*2048+1024}', gives=['rd:g'])]
        o += rd(0) + rd(1)
        for ks in range(7):
            hb, wb = HB[ks & 1], WB[ks % 3]
            o.append(I(f'v_mfma_f32_32x32x16_bf16 v[{ACC}:{ACC+15}], v[{wb}:{wb+3}], v[{hb}:{hb+3}], v[{ACC}:{ACC+15}]'))
            if ks + 2 < 7: o += rd(ks + 2)
        o += [I(f's_add_u32 s{s_gs}, s{s_gs}, {GSLOT}'),
              I(f's_cmp_ge_u32 s{s_gs}, {G0 + GN*GSLOT}'),
              I(f's_cselect_b32 s{s_gs}, {G0}, s{s_gs}')]
        return o
    p.label(L('gloop'))
    p(f's_cmp_lt_u32 s{s_i}, 15')
    p(f's_cbranch_scc1 {L("gw11")}')
    p('s_waitcnt vmcnt(7)')
    p(f's_branch {L("gwd")}')
    p.label(L('gw11'))
    p('s_waitcnt vmcnt(11)')
    p.label(L('gwd'))
    p('s_barrier')
    p(f's_cmp_ge_u32 s{s_i}, 14')
    p(f's_cbranch_scc1 {L("gwo")}')
    p.add(kv_issue() + g_issue())
    p(f's_branch {L("gcomp")}')
    p.label(L('gwo'))
    p.add(wo_issue(7))
    p.label(L('gcomp'))
    p.add(gcompute())
    p(f's_add_u32 s{s_i}, s{s_i}, 1')
    p(f's_cmp_lt_u32 s{s_i}, 16')
    p(f's_cbranch_scc1 {L("gloop")}')
    p(f's_cmp_eq_u32 s{s_lw}, 3')
    p(f's_cbranch_scc0 {L("nopad")}')
    p(f's_mov_b32 m0, {G0 + GSLOT + 448*128}')
    p(f's_mov_b32 s{s_soff}, {448*896}')
    p(f'buffer_load_dwordx4 v57, s[{S_WO}:{S_WO+3}], s{s_soff} offen lds')
    p.label(L('nopad'))
    p(f's_lshr_b32 s{s_t0}, s{s_tm}, 1')
    p(f's_lshl_b32 s{s_t0}, s{s_t0}, 6')
    p(f's_add_u32 s{s_flag}, s{s_t0}, {WS_FLAG}')
    p(f'v_and_b32 v59, 15, v0')
    p(f'v_lshlrev_b32 v59, 2, v59')
    p(f's_mov_b32 s{s_i}, 0x200000')
    p.label(L('poll'))
    p(f'buffer_load_dword v60, v59, s[{S_WS}:{S_WS+3}], s{s_flag} offen sc1')
    p('s_waitcnt vmcnt(0)')
    p('v_cmp_eq_u32 vcc, 1, v60')
    p('s_cmp_eq_u64 vcc, -1')
    p(f's_cbranch_scc1 {L("polled")}')
    p('s_sleep 1')
    p(f's_sub_u32 s{s_i}, s{s_i}, 1')
    p(f's_cmp_lg_u32 s{s_i}, 0')
    p(f's_cbranch_scc1 {L("poll")}')
    p.label(L('polled'))
    p(f's_lshl_b32 s{s_t0}, s{s_tm}, 1')
    p(f's_add_u32 s{s_t0}, s{s_t0}, s{s_wm}')
    p(f's_lshl_b32 s{s_t0}, s{s_t0}, 15')
    p(f's_add_u32 s{s_t0}, s{s_t0}, {WS_OF}')
    for ks in range(32):
        p(f'buffer_load_dwordx4 v[{OFR+4*ks}:{OFR+4*ks+3}], v1, s[{S_WS}:{S_WS+3}], s{s_t0} offen offset:{(ks&3)*1024} sc1')
        if ks & 3 == 3: p(f's_add_u32 s{s_t0}, s{s_t0}, 4096')
    p('s_barrier')
    p(f'v_add_u32 v{v_wa}, {G0 + GSLOT}, v{v_pw}')
    def rdw(ks):
        h, t = ks >> 1, ks & 1
        row = 28 * h + 16 * t
        wb = WB[ks % 3]
        return [I(f'ds_read_b64_tr_b16 v[{wb}:{wb+1}], v{v_wa} offset:{row*128}'),
                I(f'ds_read_b64_tr_b16 v[{wb+2}:{wb+3}], v{v_wa} offset:{row*128+1024}')]
    p.add(rdw(0) + rdw(1))
    for ks in range(32):
        wb = WB[ks % 3]
        p.add([I(f'v_mfma_f32_32x32x16_bf16 v[{ACC}:{ACC+15}], v[{wb}:{wb+3}], v[{OFR+4*ks}:{OFR+4*ks+3}], v[{ACC}:{ACC+15}]')])
        if ks + 2 < 32: p.add(rdw(ks + 2))
    for i in range(4):
        for hlf in range(2):
            xr = XR + 2 * i + hlf
            p(f'v_lshlrev_b32 v{60+2*hlf}, 16, v{xr}')
            p(f'v_and_b32 v{61+2*hlf}, 0xffff0000, v{xr}')
            p(f'v_add_f32 v{60+2*hlf}, v{60+2*hlf}, v{ACC+4*i+2*hlf}')
            p(f'v_add_f32 v{61+2*hlf}, v{61+2*hlf}, v{ACC+4*i+2*hlf+1}')
            p(f'v_cvt_pk_bf16_f32 v{xr}, v{60+2*hlf}, v{61+2*hlf}')
        p(f'buffer_store_dwordx2 v[{XR+2*i}:{XR+2*i+1}], v55, s[{S_OUT}:{S_OUT+3}], s{s_ost} offen offset:{16*i}')
    p('s_endpgm')

    p.label(L('kvonly'))
    p.add(kv_issue() + kv_issue())
    p(f's_mov_b32 s{s_i}, 0')
    p.label(L('kloop'))
    p(f's_cmp_lt_u32 s{s_i}, 15')
    p(f's_cbranch_scc1 {L("kw4")}')
    p('s_waitcnt vmcnt(0)')
    p(f's_branch {L("kwd")}')
    p.label(L('kw4'))
    p('s_waitcnt vmcnt(4)')
    p.label(L('kwd'))
    p('s_barrier')
    p(f's_cmp_ge_u32 s{s_i}, 14')
    p(f's_cbranch_scc1 {L("knext")}')
    p.add(kv_issue())
    p.label(L('knext'))
    p(f's_add_u32 s{s_i}, s{s_i}, 1')
    p(f's_cmp_lt_u32 s{s_i}, 16')
    p(f's_cbranch_scc1 {L("kloop")}')
    p.label(L('end'))
    p('s_endpgm')
    desc = f"""
.amdhsa_kernel {name}
  .amdhsa_next_free_vgpr 192
  .amdhsa_next_free_sgpr 96
  .amdhsa_accum_offset 192
  .amdhsa_group_segment_fixed_size 0
  .amdhsa_kernarg_size 80
  .amdhsa_user_sgpr_count 2
  .amdhsa_user_sgpr_kernarg_segment_ptr 1
  .amdhsa_system_sgpr_workgroup_id_x 1
  .amdhsa_float_denorm_mode_32 3
.end_amdhsa_kernel
"""
    return p, desc
```

```python
import sys
from asmlib import *
import k1, k2
HEAD = """; parallel_sum(softmax MHA, SwiGLU FFN) on layernormed input -- hand-written gfx950 assembly (generated by my own scripts)
; @launch kernel=psum_k1_kernel grid=(256,1,1) block=(512,1,1) lds=163840
; @launch kernel=psum_k2_kernel grid=(256,1,1) block=(512,1,1) lds=163840
.amdgcn_target "amdgcn-amd-amdhsa--gfx950"
.text
"""
def build(path, verbose=False):
    out = HEAD
    descs = ''
    for name, gen in (('psum_k1_kernel', k1.gen_k1), ('psum_k2_kernel', k2.gen_k2)):
        p, d = gen(name)
        ins = finalize(p, [name], verbose)
        out += f'.globl {name}\n.p2align 8\n.type {name},@function\n' + render(ins)
        descs += d
    out += '.section .rodata,"a"\n.p2align 6\n' + descs.replace('\n.amdhsa_kernel', '\n.p2align 6\n.amdhsa_kernel')
    open(path, 'w').write(out)
if __name__ == '__main__':
    build(sys.argv[1] if len(sys.argv) > 1 else 'parallel_sum__softmax_full_mha__swiglu_ffn__prompt.s', verbose=True)
```

```python
import re

REG_RE = re.compile(r'\b([vsa])(\d+)\b|\b([vsa])\[(\d+):(\d+)\]|\b(vcc|exec_lo|exec_hi|exec|m0|scc)\b|@([\w:.]+)')

def regs_of(tok):
    out = []
    for m in REG_RE.finditer(tok):
        if m.group(1):
            out.append(m.group(1) + m.group(2))
        elif m.group(3):
            out += [m.group(3) + str(i) for i in range(int(m.group(4)), int(m.group(5)) + 1)]
        elif m.group(6):
            out.append(m.group(6))
    return out

TRANS = ('v_exp_f32', 'v_log_f32', 'v_rcp_f32', 'v_rsq_f32', 'v_sqrt_f32', 'v_sin_f32', 'v_cos_f32')

class Ins:
    __slots__ = ('text', 'mn', 'ops', 'kind', 'rd', 'wr', 'label', 'target', 'needs', 'gives', 'srcC', 'cmt', 'auto')
    def __init__(self, text, needs=(), gives=()):
        self.text = text.strip()
        self.needs = list(needs)
        self.gives = list(gives)
        self.label = None; self.target = None; self.srcC = []
        self.auto = False
        t = self.text.split(';')[0].strip()
        if t.endswith(':'):
            self.mn = ''; self.kind = 'label'; self.label = t[:-1]; self.ops = []; self.rd = []; self.wr = []
            return
        if t.startswith('.') or t == '':
            self.mn = t; self.kind = 'dir'; self.ops = []; self.rd = []; self.wr = []
            return
        parts = t.split(None, 1)
        mn = parts[0]; self.mn = mn
        rest = parts[1] if len(parts) > 1 else ''
        ops = [o.strip() for o in rest.split(',')] if rest else []
        self.ops = ops
        base = re.sub(r'_(e32|e64|sdwa|dpp)$', '', mn)
        rd, wr = [], []
        k = None
        if mn.startswith('v_mfma'):
            k = 'mfma'
            wr = regs_of(ops[0]); rd = regs_of(ops[1]) + regs_of(ops[2]) + regs_of(ops[3]); self.srcC = regs_of(ops[3])
        elif mn.startswith('v_cmp'):
            k = 'valu'
            wr = regs_of(ops[0]); rd = sum((regs_of(o) for o in ops[1:]), [])
        elif mn.startswith('v_permlane32_swap') or mn.startswith('v_permlane16_swap'):
            k = 'valu'
            wr = regs_of(ops[0]) + regs_of(ops[1]); rd = list(wr)
        elif mn.startswith('v_'):
            k = 'trans' if base in TRANS else 'valu'
            wr = regs_of(ops[0]); rd = sum((regs_of(o) for o in ops[1:]), [])
            if base in ('v_fmac_f32', 'v_dot2c_f32_bf16', 'v_mac_f32') or 'UNUSED_PRESERVE' in t:
                rd += wr
            if base == 'v_cndmask_b32' and len(ops) == 3:
                rd.append('vcc')
            if base in ('v_add_co_u32', 'v_addc_co_u32', 'v_sub_co_u32'):
                wr = regs_of(ops[0]) + regs_of(ops[1]); rd = sum((regs_of(o) for o in ops[2:]), [])
            if base == 'v_writelane_b32': rd += wr
        elif mn.startswith('ds_read') or mn.startswith('ds_bpermute') or mn.startswith('ds_swizzle'):
            k = 'dsr'
            wr = regs_of(ops[0]); rd = sum((regs_of(o.split(' offset')[0]) for o in ops[1:]), [])
        elif mn.startswith('ds_add_rtn'):
            k = 'dsr'
            wr = regs_of(ops[0]); rd = sum((regs_of(o.split(' offset')[0]) for o in ops[1:]), [])
        elif mn.startswith('ds_write') or mn.startswith('ds_add'):
            k = 'dsw'
            rd = sum((regs_of(o.split(' offset')[0]) for o in ops), [])
        elif mn.startswith('buffer_load') or mn.startswith('global_load'):
            islds = bool(re.search(r'\blds\b', t)) or 'load_lds' in mn
            if islds:
                k = 'dma'; rd = sum((regs_of(o) for o in ops), []) + ['m0']
            else:
                k = 'vld'; wr = regs_of(ops[0]); rd = sum((regs_of(o) for o in ops[1:]), [])
        elif mn.startswith('buffer_store') or mn.startswith('global_store'):
            k = 'vst'; rd = sum((regs_of(o) for o in ops), [])
        elif mn.startswith('buffer_atomic') or mn.startswith('global_atomic'):
            k = 'vst'; rd = sum((regs_of(o) for o in ops), [])
            if 'sc0' in t: wr = regs_of(ops[0]); k = 'vld'
        elif mn.startswith('s_load') or mn.startswith('s_buffer_load') or mn.startswith('s_memtime') or mn.startswith('s_memrealtime'):
            k = 'smem'; wr = regs_of(ops[0]); rd = sum((regs_of(o) for o in ops[1:]), [])
        elif mn == 's_waitcnt':
            k = 'wait'
        elif mn == 's_nop':
            k = 'nop'
        elif mn == 's_barrier':
            k = 'bar'
        elif mn == 's_endpgm':
            k = 'end'
        elif mn in ('s_branch',) or mn.startswith('s_cbranch'):
            k = 'br'; self.target = ops[0]
            if 'scc' in mn: rd = ['scc']
            if 'vcc' in mn: rd = ['vcc']
            if 'exec' in mn: rd = ['exec']
        elif mn.startswith('s_cmp') or mn.startswith('s_bitcmp'):
            k = 'salu'; wr = ['scc']; rd = sum((regs_of(o) for o in ops), [])
        elif mn in ('s_setprio', 's_sleep', 'buffer_inv', 'buffer_wbl2', 's_sethalt'):
            k = 'salu'
        elif mn.startswith('s_'):
            k = 'salu'
            wr = regs_of(ops[0]); rd = sum((regs_of(o) for o in ops[1:]), [])
            if mn.startswith('s_and_saveexec') or mn.startswith('s_or_saveexec'):
                wr += ['exec', 'scc']; rd += ['exec']
            if mn.startswith('s_cselect'): rd.append('scc')
            if mn.startswith('s_addc'): rd.append('scc')
            if mn in ('s_addk_i32', 's_mulk_i32'): rd += wr
            if re.match(r's_(add|sub|and|or|xor|lshl|lshr|ashr|min|max|bfe|andn2|addk|addc|not|mul_hi|abs)', mn) and not mn.startswith('s_mul'):
                wr.append('scc')
        else:
            raise ValueError('unknown instr: ' + text)
        self.kind = k
        def ex(l):
            return l
        self.rd = ex(rd); self.wr = ex(wr)

    def isvalu(self): return self.kind in ('valu', 'trans')
    def states(self):
        if self.kind == 'nop':
            return int(self.ops[0], 0) + 1
        if self.kind in ('label', 'dir'): return 0
        return 1

class Prog:
    def __init__(self):
        self.ins = []
    def __call__(self, text, needs=(), gives=()):
        for line in text.split('\n'):
            line = line.strip()
            if not line or line.startswith(';'): continue
            self.ins.append(Ins(line, needs, gives))
    def add(self, ins_list):
        for i in ins_list:
            if isinstance(i, str): self(i)
            else: self.ins.append(i)
    def label(self, l): self.ins.append(Ins(l + ':'))

def I(text, needs=(), gives=()):
    return Ins(text, needs, gives)

def build_cfg(ins):
    lab = {x.label: i for i, x in enumerate(ins) if x.kind == 'label'}
    succ = [[] for _ in ins]
    for i, x in enumerate(ins):
        if x.kind == 'end': continue
        if x.kind == 'br':
            if x.target not in lab: raise ValueError('unknown label ' + x.target)
            succ[i].append(lab[x.target])
            if x.mn != 's_branch' and i + 1 < len(ins): succ[i].append(i + 1)
        elif i + 1 < len(ins):
            succ[i].append(i + 1)
    pred = [[] for _ in ins]
    for i, s in enumerate(succ):
        for j in s: pred[j].append(i)
    return succ, pred

LG_MAX, VM_MAX = 15, 63

def parse_wait(x):
    lg = vm = None
    t = x.text
    m = re.search(r'lgkmcnt\((\d+)\)', t); lg = int(m.group(1)) if m else None
    m = re.search(r'vmcnt\((\d+)\)', t); vm = int(m.group(1)) if m else None
    return lg, vm

def insert_waits(ins, entries):
    n = len(ins)
    succ, pred = build_cfg(ins)
    need_lg = [None] * n
    need_vm = [None] * n
    def merge(a, b):
        if a is None: return b
        out = dict(a); ch = False
        for k, v in b.items():
            if k not in out or v < out[k]: out[k] = v
        return out
    changed_any = True
    while changed_any:
        changed_any = False
        st_in = [None] * n
        work = []
        for e in entries:
            st_in[e] = ({}, {}); work.append(e)
        while work:
            i = work.pop()
            lg, vm = dict(st_in[i][0]), dict(st_in[i][1])
            x = ins[i]
            res = set(x.rd) | set(x.wr) | set(x.needs)
            rl = min([lg[r] for r in res if r in lg], default=None)
            rv = min([vm[r] for r in res if r in vm], default=None)
            if x.kind == 'smem' or x.kind == 'end': pass
            if rl is not None:
                rl = min(rl, LG_MAX)
                if need_lg[i] is None or rl < need_lg[i]:
                    need_lg[i] = rl; changed_any = True
            if rv is not None:
                rv = min(rv, VM_MAX)
                if need_vm[i] is None or rv < need_vm[i]:
                    need_vm[i] = rv; changed_any = True
            wl, wv = need_lg[i], need_vm[i]
            if x.kind == 'wait':
                a, b = parse_wait(x)
                if a is not None: wl = a if wl is None else min(wl, a)
                if b is not None: wv = b if wv is None else min(wv, b)
            if wl is not None: lg = {k: v for k, v in lg.items() if v < wl}
            if wv is not None: vm = {k: v for k, v in vm.items() if v < wv}
            if x.kind in ('dsr', 'dsw'):
                lg = {k: v + 1 for k, v in lg.items()}
                for r in x.wr + x.gives: lg[r] = 0
            elif x.kind == 'smem':
                lg = {k: 0 for k in lg}
                for r in x.wr + x.gives: lg[r] = -1000
            elif x.kind in ('vld', 'vst', 'dma'):
                vm = {k: v + 1 for k, v in vm.items()}
                for r in x.wr + x.gives: vm[r] = 0
            if any(v < -500 for v in lg.values()) and x.kind in ('dsr', 'dsw'):
                pass
            for j in succ[i]:
                if st_in[j] is None:
                    st_in[j] = (lg, vm); work.append(j)
                else:
                    nl, nv = merge(st_in[j][0], lg), merge(st_in[j][1], vm)
                    if nl != st_in[j][0] or nv != st_in[j][1]:
                        st_in[j] = (nl, nv); work.append(j)
    out = []
    for i, x in enumerate(ins):
        l, v = need_lg[i], need_vm[i]
        if l is not None and l < 0: l = 0
        if l is not None or v is not None:
            parts = []
            if v is not None: parts.append('vmcnt(%d)' % v)
            if l is not None: parts.append('lgkmcnt(%d)' % l)
            w = Ins('s_waitcnt ' + ' '.join(parts)); w.auto = True
            out.append(w)
        out.append(x)
    return out

def isv(r): return r[0] == 'v' and r != 'vcc' or (r[0] == 'a' and r[1:].isdigit())
def iss(r): return (r[0] == 's' and r[1:].isdigit()) or r in ('vcc',)

def hazard_need(p, c):
    need = 0
    pw, cr, cw = set(p.wr), set(c.rd), set(c.wr)
    if p.isvalu():
        vw = {r for r in pw if isv(r)}
        sw = {r for r in pw if iss(r)}
        if c.kind == 'mfma' and vw & cr: need = max(need, 2)
        if c.mn.startswith('v_readfirstlane') or c.mn.startswith('v_readlane'):
            if vw & cr: need = max(need, 1)
        if c.mn.startswith('v_permlane') and vw & cr: need = max(need, 2)
        if c.isvalu() and ('dpp' in c.text or 'quad_perm' in c.text or 'row_' in c.text) and vw & cr: need = max(need, 2)
        if p.kind == 'trans' and c.kind in ('valu',) and vw & cr: need = max(need, 1)
        if p.kind == 'trans' and c.kind == 'mfma' and vw & cr: need = max(need, 2)
        if sw:
            if (c.isvalu() or c.kind == 'mfma') and sw & cr: need = max(need, 2)
            if c.kind in ('vld', 'vst', 'dma') and sw & cr: need = max(need, 5)
            if c.kind in ('salu', 'br') and sw & cr: need = max(need, 1)
        if ('sdwa' in p.mn or 'op_sel' in p.text) and c.isvalu() and vw & (cr | cw): need = max(need, 1)
    if p.mn.startswith('v_dot2'):
        if c.mn == p.mn:
            ab = set(sum((regs_of(o) for o in c.ops[1:3]), []))
            if pw & ab: need = max(need, 3)
        elif pw & (cr | cw): need = max(need, 3)
    if p.kind == 'mfma':
        d = pw
        small = '4x4x4' in p.mn
        mid = '16x16x' in p.mn
        n_rd, n_ov, n_same, n_war = (5, 4, 2, 1) if small else ((8, 6, 0, 3) if mid else (12, 10, 0, 7))
        if c.kind == 'mfma':
            ab = set(regs_of(c.ops[1]) + regs_of(c.ops[2]))
            cc = set(c.srcC)
            if d & ab: need = max(need, n_rd)
            if d & cc:
                if c.ops[3] == p.ops[0] and c.mn == p.mn: need = max(need, n_same)
                else: need = max(need, n_ov)
            if d & set(c.wr) and not (c.ops[0] == p.ops[0]) and not (d & cc): need = max(need, n_ov)
        elif c.kind in ('valu', 'trans', 'dsr', 'dsw', 'vld', 'vst', 'dma'):
            if d & (cr | cw): need = max(need, n_rd)
        if c.isvalu() and set(p.srcC) & cw: need = max(need, n_war)
    if p.kind == 'salu' and 'm0' in pw and c.kind == 'dma': need = max(need, 1)
    if p.kind == 'salu' and 'exec' in pw and c.kind == 'mfma': need = max(need, 4)
    if p.kind == 'vst' and ('x4' in p.mn or 'x3' in p.mn) and c.isvalu():
        data = set(regs_of(p.ops[0])) if p.mn.startswith('buffer') else set(regs_of(p.ops[1]))
        if data & cw: need = max(need, 2)
    return need

def pad_hazards(ins, entries, verbose=False):
    MAXW = 13
    while True:
        succ, pred = build_cfg(ins)
        fix = {}
        for i, c in enumerate(ins):
            if c.kind in ('label', 'dir', 'nop', 'wait'): continue
            stack = [(p, 0) for p in pred[i]]
            seen = {}
            while stack:
                j, d = stack.pop()
                if j in seen and seen[j] <= d: continue
                seen[j] = d
                pj = ins[j]
                nd = hazard_need(pj, c) if pj.kind not in ('label', 'dir') else 0
                if nd > d:
                    fix[i] = max(fix.get(i, 0), nd - d)
                d2 = d + pj.states()
                if d2 < MAXW:
                    for q in pred[j]: stack.append((q, d2))
        if not fix: return ins
        keep = {}; last = -100
        for i in sorted(fix):
            if i - last > 16:
                keep[i] = fix[i]; last = i
        fix = keep
        out = []
        for i, x in enumerate(ins):
            if i in fix:
                k = fix[i]
                if verbose: print('pad %d before: %s' % (k, x.text))
                while k > 0:
                    m = min(k, 16)
                    nn = Ins('s_nop %d' % (m - 1)); nn.auto = True
                    out.append(nn); k -= m
            out.append(x)
        ins = out

def finalize(prog, entry_labels, verbose=False):
    ins = prog.ins
    lab = {x.label: i for i, x in enumerate(ins) if x.kind == 'label'}
    ins = insert_waits(ins, [lab[l] for l in entry_labels])
    lab = {x.label: i for i, x in enumerate(ins) if x.kind == 'label'}
    ins = pad_hazards(ins, [lab[l] for l in entry_labels], verbose)
    return ins

def render(ins):
    out = []
    for x in ins:
        if x.kind == 'label': out.append(x.text)
        else: out.append('    ' + x.text)
    return '\n'.join(out) + '\n'

def interleave(main, fillers, start=0, end=None):
    end = len(main) if end is None else end
    n = end - start
    out = []
    k = 0
    for s, slot in enumerate(main):
        out += slot
        if start <= s < end:
            upto = (len(fillers) * (s - start + 1) + n - 1) // n
            out += fillers[k:upto]; k = upto
    out += fillers[k:]
    return out
```

```python
from asmlib import *
import k1
from k1 import WS_SIZE, WS_FLAG, hexf, stamp, stamp_store
WS_XN = 18 << 20

def ln_code(p, L, S_X, S_WS, s_w, s_row0, vb, sb, lds_base, sc1=False):
    lane, off = vb, vb + 1
    X = vb + 4
    F = vb + 8
    t0, t1, t2 = vb + 16, vb + 17, vb + 18
    p(f'v_and_b32 v{lane}, 63, v0')
    p(f'v_lshlrev_b32 v{off}, 4, v{lane}')
    p(f's_add_u32 s{sb}, s{s_row0}, s{s_w}')
    p(f's_mul_i32 s{sb}, s{sb}, 896')
    p(f's_mov_b32 exec_hi, 0x00ffffff')
    p(f'buffer_load_dwordx4 v[{X}:{X+3}], v{off}, s[{S_X}:{S_X+3}], s{sb} offen')
    p('s_mov_b64 exec, -1')
    return dict(lane=lane, off=off, X=X, F=F, t0=t0, t1=t1, t2=t2)

def wave_sum(p, v, tmp):
    for ctrl in ('quad_perm:[1,0,3,2]', 'quad_perm:[2,3,0,1]', 'row_half_mirror', 'row_mirror'):
        p(f'v_add_f32_dpp v{v}, v{v}, v{v} {ctrl} row_mask:0xf bank_mask:0xf')
    p(f'v_mov_b32 v{tmp}, v{v}')
    p(f'v_permlane16_swap_b32 v{v}, v{tmp}')
    p(f'v_add_f32 v{v}, v{v}, v{tmp}')
    p(f'v_mov_b32 v{tmp}, v{v}')
    p(f'v_permlane32_swap_b32 v{v}, v{tmp}')
    p(f'v_add_f32 v{v}, v{v}, v{tmp}')

def rbf(p, v, tmp):
    p(f'v_cvt_pk_bf16_f32 v{v}, v{v}, v{v}')
    p(f'v_lshlrev_b32 v{v}, 16, v{v}')

def ln_finish(p, L, r, S_WS, s_w, s_row0, sb, lds_base, sc1=False):
    lane, off, X, F, t0, t1, t2 = (r[k] for k in ('lane', 'off', 'X', 'F', 't0', 't1', 't2'))
    p(f'v_cmp_gt_u32 vcc, 56, v{lane}')
    for i in range(4):
        p(f'v_cndmask_b32 v{X+i}, 0, v{X+i}, vcc')
    for i in range(4):
        p(f'v_lshlrev_b32 v{F+2*i}, 16, v{X+i}')
        p(f'v_and_b32 v{F+2*i+1}, 0xffff0000, v{X+i}')
    p(f'v_add_f32 v{t0}, v{F}, v{F+1}')
    for i in range(2, 8): p(f'v_add_f32 v{t0}, v{t0}, v{F+i}')
    wave_sum(p, t0, t1)
    p(f'v_mul_f32 v{t0}, {hexf(1/448)}, v{t0}')
    D = F + 12
    p(f'v_mov_b32 v{t2}, 0')
    for i in range(8):
        p(f'v_sub_f32 v{t1}, v{F+i}, v{t0}')
        p(f'v_fmac_f32 v{t2}, v{t1}, v{t1}')
    p(f'v_cndmask_b32 v{t2}, 0, v{t2}, vcc')
    wave_sum(p, t2, t1)
    p(f'v_mul_f32 v{t2}, {hexf(1/448)}, v{t2}')
    rbf(p, t0, t1)
    rbf(p, t2, t1)
    p(f'v_add_f32 v{t2}, {hexf(1e-5)}, v{t2}')
    rbf(p, t2, t1)
    p(f'v_sqrt_f32 v{t2}, v{t2}')
    p('s_nop 0')
    rbf(p, t2, t1)
    p(f'v_rcp_f32 v{t2}, v{t2}')
    for i in range(8): p(f'v_sub_f32 v{F+i}, v{F+i}, v{t0}')
    for i in range(4):
        p(f'v_cvt_pk_bf16_f32 v{X+i}, v{F+2*i}, v{F+2*i+1}')
    for i in range(4):
        p(f'v_lshlrev_b32 v{F+2*i}, 16, v{X+i}')
        p(f'v_and_b32 v{F+2*i+1}, 0xffff0000, v{X+i}')
    for i in range(8): p(f'v_mul_f32 v{F+i}, v{F+i}, v{t2}')
    for i in range(4):
        p(f'v_cvt_pk_bf16_f32 v{X+i}, v{F+2*i}, v{F+2*i+1}')
    p(f'v_lshlrev_b32 v{t0}, 7, v{lane}')
    p(f's_lshl_b32 s{sb}, s{s_w}, 4')
    p(f's_add_u32 s{sb}, s{sb}, {lds_base}')
    p(f'v_add_u32 v{t0}, s{sb}, v{t0}')
    p('s_mov_b32 exec_hi, 0x00ffffff')
    p.add([I(f'ds_write_b128 v{t0}, v[{X}:{X+3}]', gives=['lds:ln'])])
    p('s_mov_b64 exec, -1')
    p.add([I('s_barrier', needs=['lds:ln'])])
    p(f's_cmp_eq_u32 s{s_w}, 7')
    p(f's_cbranch_scc1 {L("ln_done")}')
    p(f's_lshl_b32 s{sb}, s{s_w}, 10')
    p(f's_add_u32 s{sb}, s{sb}, {lds_base}')
    p(f'v_add_u32 v{t0}, s{sb}, v{off}')
    p(f'ds_read_b128 v[{X}:{X+3}], v{t0}')
    p(f'v_lshrrev_b32 v{t1}, 4, v{lane}')
    p(f'v_lshlrev_b32 v{t1}, 10, v{t1}')
    p(f'v_bfe_u32 v{t2}, v{lane}, 3, 1')
    p(f'v_lshlrev_b32 v{t2}, 9, v{t2}')
    p(f'v_add_u32 v{t1}, v{t1}, v{t2}')
    p(f'v_and_b32 v{t2}, 7, v{lane}')
    p(f'v_lshlrev_b32 v{t2}, 4, v{t2}')
    p(f'v_add_u32 v{t1}, v{t1}, v{t2}')
    p(f's_lshr_b32 s{sb}, s{s_row0}, 5')
    p(f's_mul_i32 s{sb}, s{sb}, 28')
    p(f's_lshl_b32 s{sb+1}, s{s_w}, 2')
    p(f's_add_u32 s{sb}, s{sb}, s{sb+1}')
    p(f's_lshl_b32 s{sb}, s{sb}, 10')
    p(f's_and_b32 s{sb+1}, s{s_row0}, 31')
    p(f's_lshl_b32 s{sb+1}, s{sb+1}, 4')
    p(f's_add_u32 s{sb}, s{sb}, s{sb+1}')
    p(f's_add_u32 s{sb}, s{sb}, {WS_XN}')
    p(f'buffer_store_dwordx4 v[{X}:{X+3}], v{t1}, s[{S_WS}:{S_WS+3}], s{sb} offen' + (' sc1' if sc1 else ''))
    p.label(L('ln_done'))

def gen_k0(name):
    p = Prog()
    L = lambda s: name + '_' + s
    S_X, S_WS = 8, 12
    s_w, s_row0 = 30, 31
    p.label(name)
    p('s_cmp_ge_u32 s2, 256')
    p(f's_cbranch_scc1 {L("end")}')
    p('s_load_dwordx4 s[4:7], s[0:1], 0')
    p('s_load_dwordx2 s[16:17], s[0:1], 16')
    p('s_load_dwordx4 s[20:23], s[0:1], 32')
    p('s_load_dwordx2 s[24:25], s[0:1], 48')
    p('s_load_dwordx2 s[28:29], s[0:1], 72')
    p('v_lshrrev_b32 v1, 6, v0')
    p(f'v_readfirstlane_b32 s{s_w}, v1')
    p(f's_lshl_b32 s{s_row0}, s2, 3')
    p('s_waitcnt lgkmcnt(0)')
    for (Sd, lo, hi, size) in ((S_X, 4, 5, 2048 * 896), (S_WS, 28, 29, k1.WS_SIZE)):
        p(f's_mov_b32 s{Sd}, s{lo}')
        p(f's_mov_b32 s{Sd+1}, s{hi}')
        p(f's_mov_b32 s{Sd+2}, {size}')
        p(f's_mov_b32 s{Sd+3}, 0x20000')
    r = ln_code(p, L, S_X, S_WS, s_w, s_row0, 8, 40, 0)
    sizes = [(6, 7, 448 * 2688), (20, 21, 448 * 3584), (22, 23, 448 * 3584), (24, 25, 1792 * 896), (16, 17, 448 * 896)]
    p('v_and_b32 v2, 63, v0')
    p('v_lshlrev_b32 v2, 7, v2')
    for i, (lo, hi, size) in enumerate(sizes):
        sl = (size // 256 + 127) // 128 * 128
        p(f's_cmp_eq_u32 s{s_w}, {i}')
        p(f's_cbranch_scc0 {L("t%d" % i)}')
        p(f's_mov_b32 s44, s{lo}')
        p(f's_mov_b32 s45, s{hi}')
        p(f's_mov_b32 s46, {size}')
        p('s_mov_b32 s47, 0x20000')
        p(f's_mul_i32 s41, s2, {sl}')
        p('buffer_load_dword v3, v2, s[44:47], s41 offen')
        p.label(L('t%d' % i))
    p(f's_cmp_eq_u32 s{s_w}, 5')
    p(f's_cbranch_scc0 {L("nf")}')
    p('s_lshl_b32 s41, s2, 2')
    p(f's_add_u32 s41, s41, {WS_FLAG}')
    p('v_mov_b32 v4, 0')
    p(f'buffer_store_dword v4, v4, s[{S_WS}:{S_WS+3}], s41 offen')
    p.label(L('nf'))
    ln_finish(p, L, r, S_WS, s_w, s_row0, 40, 0)
    p('s_waitcnt vmcnt(0)')
    p.label(L('end'))
    p('s_endpgm')
    desc = f"""
.amdhsa_kernel {name}
  .amdhsa_next_free_vgpr 48
  .amdhsa_next_free_sgpr 64
  .amdhsa_accum_offset 48
  .amdhsa_group_segment_fixed_size 0
  .amdhsa_kernarg_size 80
  .amdhsa_user_sgpr_count 2
  .amdhsa_user_sgpr_kernarg_segment_ptr 1
  .amdhsa_system_sgpr_workgroup_id_x 1
  .amdhsa_float_denorm_mode_32 3
.end_amdhsa_kernel
"""
    return p, desc
```

```python
from asmlib import *

WS_QF = 0
WS_KV = 2 << 20
WS_HF = 6 << 20
WS_OF = 14 << 20
WS_FLAG = 16 << 20
WS_SIZE = (18 << 20)

SLOT = 14336
NSLOT = 11
RING = SLOT * NSLOT
L_CSP = RING
L_CSF = L_CSP + 2048
L_STAT = L_CSF + 1024
L_TOK = L_STAT + 1024
LDS_BYTES = L_TOK + 2048

LOG2E = 1.4426950408889634
CQ = (28 ** -0.5) * LOG2E
import struct
def f2u(f): return struct.unpack('<I', struct.pack('<f', f))[0]
def hexf(f): return '0x%08x' % f2u(f)

def vr(b, n=1): return 'v%d' % b if n == 1 else 'v[%d:%d]' % (b, b + n - 1)
def sr(b, n=1): return 's%d' % b if n == 1 else 's[%d:%d]' % (b, b + n - 1)

def flat(l):
    o = []
    for x in l:
        if isinstance(x, list): o += flat(x)
        else: o.append(x)
    return o

STAMP = False
EXP = set()
WS_STAMP = (17 << 20)
def stamp(p, idx):
    if not STAMP: return
    p.add([I('s_memtime s[94:95]'), I('s_waitcnt lgkmcnt(0)'), I(f's_mov_b32 s{80+idx}, s94')])
def stamp_store(p, S_WS, s_w, kern, tmpv=(0,)):
    if not STAMP: return
    p(f's_lshl_b32 s94, s2, 3')
    p(f's_add_u32 s94, s94, s{s_w}')
    p(f's_lshl_b32 s94, s94, 6')
    p(f's_add_u32 s94, s94, {WS_STAMP + kern*256*8*64}')
    p('v_mov_b32 v3, 0')
    for i in range(14):
        p(f'v_mov_b32 v2, s{80+i}')
        p(f'buffer_store_dword v2, v3, s[{S_WS}:{S_WS+3}], s94 offen offset:{4*i}')
    p('s_waitcnt vmcnt(0)')

def gen_k1(name, code_bytes_hint=16384):
    p = Prog()
    S_X, S_W, S_GU, S_WS = 8, 12, 16, 20
    s_w, s_r4, s_ch, s_rb, s_g, s_pr, s_tb, s_sub, s_reg = 30, 31, 32, 33, 34, 35, 36, 37, 38
    s_lead = 39
    s_q = 40
    s_qk = 45
    s_qn = 46
    s_dslot = 47
    s_rslot = 48
    s_cslot = 49
    s_hi = 50
    s_pad = 52
    s_ones = 54
    s_t0, s_t1, s_t2, s_t3 = 55, 56, 57, 58
    s_soff, s_str = 59, 60
    s_dsrd = 64
    s_par = 61
    s_stq, s_stkv, s_sth = 62, 63, 68
    s_scq = 69
    s_padk = 70
    s_cnt = 71
    s_sthi = 72
    v_lane16 = 1
    v_patq, v_patg = 2, 3
    v_wa = [4, 5]
    v_ca = 6
    v_dq, v_dg = 7, 8
    v_dsel = 9
    v_csp_r, v_csp_w, v_csf_w, v_csf_r = 10, 11, 12, 13
    v_nmean, v_kk, v_vv, v_sc = 14, 15, 16, 17
    v_t = 18
    v_cacc = [26, 27]
    v_padv = 28
    v_tokr = 29
    CB = [32, 36]
    WF = [40, 44, 48, 52]
    ACCA, ACCB = 56, 72
    TP = 88
    XF = 128
    v_pf = 240

    L = lambda s: name + '_' + s

    p.label(name)
    p(f's_cmp_ge_u32 s2, 256')
    p(f's_cbranch_scc1 {L("end")}')
    stamp(p, 0)
    p('s_load_dwordx4 s[4:7], s[0:1], 0')
    p('s_load_dwordx4 s[24:27], s[0:1], 32')
    p('s_load_dwordx2 s[28:29], s[0:1], 72')
    p('s_getpc_b64 s[74:75]')
    p(f'v_and_b32 v{v_t}, 63, v0')
    p(f'v_lshlrev_b32 v{v_t}, 6, v{v_t}')
    p(f'v_lshrrev_b32 v{v_t+1}, 6, v0')
    p(f'v_readfirstlane_b32 s{s_w}, v{v_t+1}')
    p(f'v_lshlrev_b32 v{v_t+1}, 12, v{v_t+1}')
    p(f'v_add_u32 v{v_t}, v{v_t}, v{v_t+1}')
    p(f'global_load_dword v{v_pf}, v{v_t}, s[74:75]')
    p(f's_and_b32 s{s_g}, s2, 15')
    p(f's_lshr_b32 s{s_rb}, s2, 4')
    p(f's_lshr_b32 s{s_pr}, s{s_g}, 1')
    p(f's_and_b32 s{s_tb}, s{s_g}, 1')
    p(f's_and_b32 s{s_r4}, s{s_w}, 3')
    p(f's_lshr_b32 s{s_ch}, s{s_w}, 2')
    p(f's_lshr_b32 s{s_sub}, s{s_w}, 1')
    p(f's_and_b32 s{s_reg}, s{s_w}, 1')
    p(f's_mov_b32 s{s_ones}, 0x3f803f80')
    p(f's_mov_b32 s{s_hi}, 0')
    p(f's_mov_b32 s{s_hi+1}, -1')
    p(f's_mov_b32 s{s_pad}, 0xf0000000')
    p(f's_mov_b32 s{s_pad+1}, 0xf0000000')
    lane, m, hh = v_t + 2, v_t + 3, v_t + 4
    p(f'v_and_b32 v{lane}, 63, v0')
    p(f'v_lshlrev_b32 v{v_lane16}, 4, v{lane}')
    p(f'v_and_b32 v{m}, 31, v0')
    p(f'v_bfe_u32 v{hh}, v0, 5, 1')
    xa, xb = TP, TP + 1
    p(f'v_lshrrev_b32 v{v_t}, 3, v{lane}')
    p(f'v_mul_u32_u24 v{v_t}, 896, v{v_t}')
    p(f'v_lshrrev_b32 v{v_t+1}, 4, v{lane}')
    p(f'v_and_b32 v{v_t+5}, 7, v{lane}')
    p(f'v_xor_b32 v{v_t+1}, v{v_t+1}, v{v_t+5}')
    p(f'v_lshlrev_b32 v{v_t+1}, 4, v{v_t+1}')
    p(f'v_add_u32 v{xa}, v{v_t}, v{v_t+1}')
    p(f'v_xor_b32 v{v_t+1}, 64, v{v_t+1}')
    p(f'v_add_u32 v{xb}, v{v_t}, v{v_t+1}')
    p('s_waitcnt lgkmcnt(0)')
    p(f's_mov_b32 s{S_X}, s4')
    p(f's_mov_b32 s{S_X+1}, s5')
    p(f's_mov_b32 s{S_X+2}, {2048*896}')
    p(f's_mov_b32 s{S_X+3}, 0x20000')
    p(f's_mov_b32 s{S_W}, s6')
    p(f's_mov_b32 s{S_W+1}, s7')
    p(f's_mov_b32 s{S_W+2}, {448*2688}')
    p(f's_mov_b32 s{S_W+3}, 0x20000')
    p(f's_cmp_eq_u32 s{s_reg}, 0')
    p(f's_cselect_b32 s{S_GU}, s24, s26')
    p(f's_cselect_b32 s{S_GU+1}, s25, s27')
    p(f's_mov_b32 s{S_GU+2}, {448*3584}')
    p(f's_mov_b32 s{S_GU+3}, 0x20000')
    p(f's_mov_b32 s{S_WS}, s28')
    p(f's_mov_b32 s{S_WS+1}, s29')
    p(f's_mov_b32 s{S_WS+2}, {WS_SIZE}')
    p(f's_mov_b32 s{S_WS+3}, 0x20000')
    p(f's_lshl_b32 s{s_t0}, s{s_rb}, 7')
    p(f's_lshl_b32 s{s_t1}, s{s_w}, 4')
    p(f's_add_u32 s{s_t0}, s{s_t0}, s{s_t1}')
    p(f's_mul_i32 s{s_t0}, s{s_t0}, 896')
    p(f's_add_u32 s{s_t1}, s{s_t0}, {8*896}')
    p(f's_lshl_b32 s{s_t2}, s{s_w}, 11')
    p(f's_mov_b32 m0, s{s_t2}')
    for a in range(7):
        p(f'buffer_load_dwordx4 v{xa}, s[{S_X}:{S_X+3}], s{s_t0} offen lds')
        p(f's_addk_i32 m0, 1024')
        p(f's_addk_i32 s{s_t0}, 128')
        p(f'buffer_load_dwordx4 v{xb}, s[{S_X}:{S_X+3}], s{s_t1} offen lds')
        if a < 6:
            p(f's_addk_i32 m0, {16384-1024}')
            p(f's_addk_i32 s{s_t1}, 128')
    p(f'v_lshrrev_b32 v{v_t}, 2, v{lane}')
    p(f'v_and_b32 v{v_t+1}, 3, v{lane}')
    p(f'v_mul_u32_u24 v{v_dq}, 2688, v{v_t}')
    p(f'v_lshlrev_b32 v{v_t+5}, 4, v{v_t+1}')
    p(f'v_add_u32 v{v_dq}, v{v_dq}, v{v_t+5}')
    p(f's_lshl_b32 s{s_t0}, s{s_reg}, 5')
    p(f'v_xor_b32 v{v_t+5}, s{s_t0}, v{v_t+5}')
    p(f'v_mul_u32_u24 v{v_dg}, 3584, v{v_t}')
    p(f'v_add_u32 v{v_dg}, v{v_dg}, v{v_t+5}')
    p(f's_mul_i32 s{s_t0}, s{s_sub}, {112*2688}')
    p(f's_mul_i32 s{s_t1}, s{s_sub}, {112*3584}')
    p(f's_lshl_b32 s{s_t2}, s{s_pr}, 1')
    p(f's_add_u32 s{s_t3}, s{s_t2}, s{s_tb}')
    p(f's_mul_i32 s{s_q}, s{s_t3}, 56')
    p(f's_mul_i32 s{s_soff}, s{s_reg}, 896')
    p(f's_add_u32 s{s_q}, s{s_q}, s{s_soff}')
    p(f's_add_u32 s{s_q}, s{s_q}, s{s_t0}')
    p(f's_lshl_b32 s{s_cnt}, s{s_rb}, 2')
    p(f's_add_u32 s{s_cnt}, s{s_cnt}, s{s_r4}')
    p(f's_lshl_b32 s{s_stq}, s{s_t3}, 6')
    p(f's_add_u32 s{s_stq}, s{s_stq}, s{s_cnt}')
    p(f's_add_u32 s{s_str}, s{s_ch}, 11')
    p(f's_lshl_b32 s{s_stq}, s{s_stq}, s{s_str}')
    p(f's_mul_i32 s{s_str}, s{s_ch}, {WS_KV}')
    p(f's_add_u32 s{s_stq}, s{s_stq}, s{s_str}')
    p(f's_add_u32 s{s_stkv}, s{s_t2}, s{s_ch}')
    p(f's_lshl_b32 s{s_stkv}, s{s_stkv}, 6')
    p(f's_add_u32 s{s_stkv}, s{s_stkv}, s{s_cnt}')
    p(f's_lshl_b32 s{s_stkv}, s{s_stkv}, 12')
    p(f's_add_u32 s{s_stkv}, s{s_stkv}, {WS_KV + 2048}')
    p(f's_mul_i32 s{s_str}, s{s_pr}, 7')
    p(f's_mul_i32 s{s_soff}, s{s_tb}, 3')
    p(f's_add_u32 s{s_str}, s{s_str}, s{s_soff}')
    p(f's_mul_i32 s{s_sth}, s{s_cnt}, 112')
    p(f's_lshl_b32 s{s_soff}, s{s_str}, 1')
    p(f's_add_u32 s{s_sth}, s{s_sth}, s{s_soff}')
    p(f's_add_u32 s{s_sth}, s{s_sth}, s{s_ch}')
    p(f's_lshl_b32 s{s_sth}, s{s_sth}, 10')
    p(f's_add_u32 s{s_sth}, s{s_sth}, {WS_HF}')
    p(f's_lshl_b32 s{s_str}, s{s_str}, 6')
    p(f's_add_u32 s{s_str}, s{s_str}, s{s_t1}')
    p(f's_add_u32 s{s_soff}, s{s_t2}, s{s_reg}')
    p(f's_mul_i32 s{s_soff}, s{s_soff}, 56')
    p(f's_add_u32 s{s_soff}, s{s_soff}, 1792')
    p(f's_add_u32 s{s_soff}, s{s_soff}, s{s_t0}')
    p(f's_add_u32 s{s_t0}, s{s_str}, 64')
    p(f's_add_u32 s{s_t1}, s{s_str}, 128')
    p(f's_add_u32 s{s_t2}, s{s_str}, 192')
    p(f's_cmp_eq_u32 s{s_tb}, 0')
    p(f's_cselect_b32 s{s_q+1}, s{s_soff}, s{s_str}')
    p(f's_cselect_b32 s{s_q+2}, s{s_str}, s{s_t0}')
    p(f's_cselect_b32 s{s_q+3}, s{s_t0}, s{s_t1}')
    p(f's_cselect_b32 s{s_q+4}, s{s_t1}, s{s_t2}')
    p(f's_cselect_b32 s{s_qk}, 2, 1')
    p(f's_mov_b32 s{s_qn}, 5')
    p(f's_add_u32 s{s_t0}, s{s_sub}, 8')
    p(f's_cmp_ge_u32 s{s_t0}, 11')
    p(f's_cselect_b32 s{s_t1}, 11, 0')
    p(f's_sub_u32 s{s_t0}, s{s_t0}, s{s_t1}')
    p(f's_mul_i32 s{s_dslot}, s{s_t0}, {SLOT}')
    p(f's_mul_i32 s{s_t0}, s{s_reg}, 7168')
    p(f's_add_u32 s{s_dslot}, s{s_dslot}, s{s_t0}')
    p(f's_cmp_ge_u32 s{s_w}, 6')
    p(f's_cselect_b32 s{s_lead}, 1, 0')

    uid = [0]
    def issue():
        uid[0] += 1
        u = uid[0]
        o = []
        if 'nodma' in EXP and u > 3: return []
        o.append(I(f's_cmp_eq_u32 s{s_qn}, 0'))
        o.append(I(f's_cbranch_scc1 {L("iss_done%d" % u)}'))
        o.append(I(f's_cmp_lg_u32 s{s_qk}, 0'))
        o.append(I(f's_cselect_b64 s[{s_dsrd}:{s_dsrd+1}], s[{S_W}:{S_W+1}], s[{S_GU}:{S_GU+1}]'))
        o.append(I(f's_cselect_b32 s{s_dsrd+2}, s{S_W+2}, s{S_GU+2}'))
        o.append(I(f's_mov_b32 s{s_dsrd+3}, 0x20000'))
        o.append(I(f's_cselect_b32 s{s_str}, {16*2688}, {16*3584}') if False else I(f's_movk_i32 s{s_str}, 0'))
        o[-1] = I(f's_cselect_b32 s{s_str}, s{s_c2688}, s{s_c3584}')
        o.append(I(f's_cbranch_scc1 {L("iss_q%d" % u)}'))
        o.append(I(f'v_mov_b32 v{v_dsel}, v{v_dg}'))
        o.append(I(f's_branch {L("iss_c%d" % u)}'))
        o.append(I(f'{L("iss_q%d" % u)}:'))
        o.append(I(f'v_mov_b32 v{v_dsel}, v{v_dq}'))
        o.append(I(f's_sub_u32 s{s_qk}, s{s_qk}, 1'))
        o.append(I(f'{L("iss_c%d" % u)}:'))
        o.append(I(f's_mov_b32 m0, s{s_dslot}'))
        o.append(I(f's_mov_b32 s{s_soff}, s{s_q}'))
        for i in range(7):
            o.append(I(f'buffer_load_dwordx4 v{v_dsel}, s[{s_dsrd}:{s_dsrd+3}], s{s_soff} offen lds'))
            if i < 6:
                o.append(I(f's_addk_i32 m0, 1024'))
                o.append(I(f's_add_u32 s{s_soff}, s{s_soff}, s{s_str}'))
        for i in range(4):
            o.append(I(f's_mov_b32 s{s_q+i}, s{s_q+i+1}'))
        o.append(I(f's_sub_u32 s{s_qn}, s{s_qn}, 1'))
        o.append(I(f's_add_u32 s{s_dslot}, s{s_dslot}, {4*SLOT}'))
        o.append(I(f's_cmp_ge_u32 s{s_dslot}, {RING}'))
        o.append(I(f's_cselect_b32 s{s_t0}, {RING}, 0'))
        o.append(I(f's_sub_u32 s{s_dslot}, s{s_dslot}, s{s_t0}'))
        o.append(I(f'{L("iss_done%d" % u)}:'))
        return o
    s_c2688, s_c3584 = 76, 77
    p(f's_mov_b32 s{s_c2688}, {16*2688}')
    p(f's_mov_b32 s{s_c3584}, {16*3584}')
    p(f's_cmp_lg_u32 s{s_lead}, 0')
    p(f's_cbranch_scc1 {L("pro_skip")}')
    p.add(issue())
    p.label(L('pro_skip'))

    p(f'v_bfe_u32 v{v_t}, v{lane}, 2, 2')
    p(f'v_lshlrev_b32 v{v_t+1}, 3, v{hh}')
    p(f'v_add_u32 v{v_t}, v{v_t}, v{v_t+1}')
    p(f'v_lshlrev_b32 v{v_t}, 6, v{v_t}')
    p(f'v_and_b32 v{v_t+1}, 3, v{lane}')
    p(f'v_lshlrev_b32 v{v_t+1}, 3, v{v_t+1}')
    p(f'v_add_u32 v{v_t}, v{v_t}, v{v_t+1}')
    p(f'v_bfe_u32 v{v_t+1}, v{lane}, 4, 1')
    p(f's_mul_i32 s{s_t0}, s{s_ch}, 7168')
    p(f'v_lshlrev_b32 v{v_t+5}, 5, v{v_t+1}')
    p(f'v_add_u32 v{v_patq}, v{v_t}, v{v_t+5}')
    p(f'v_add_u32 v{v_patq}, s{s_t0}, v{v_patq}')
    p(f'v_mul_u32_u24 v{v_patg}, 7168, v{v_t+1}')
    p(f'v_add_u32 v{v_patg}, v{v_patg}, v{v_t}')
    p(f'v_xor_b32 v{v_t+5}, s{s_ch}, v{v_t+1}')
    p(f'v_lshlrev_b32 v{v_t+5}, 5, v{v_t+5}')
    p(f'v_add_u32 v{v_patg}, v{v_patg}, v{v_t+5}')
    p(f's_lshl_b32 s{s_t0}, s{s_ch}, 9')
    p(f's_add_u32 s{s_t0}, s{s_t0}, {L_CSP}')
    p(f'v_lshlrev_b32 v{v_csp_r}, 4, v{m}')
    p(f'v_add_u32 v{v_csp_r}, s{s_t0}, v{v_csp_r}')
    p(f's_lshl_b32 s{s_t1}, s{s_r4}, 2')
    p(f'v_add_u32 v{v_csp_w}, s{s_t1}, v{v_csp_r}')
    p(f's_lshl_b32 s{s_t0}, s{s_w}, 7')
    p(f's_add_u32 s{s_t0}, s{s_t0}, {L_CSF}')
    p(f'v_lshlrev_b32 v{v_csf_w}, 2, v{m}')
    p(f'v_add_u32 v{v_csf_w}, s{s_t0}, v{v_csf_w}')
    p(f'v_lshlrev_b32 v{v_csf_r}, 4, v{hh}')
    p(f'v_add_u32 v{v_csf_r}, s{s_t0}, v{v_csf_r}')
    p(f's_lshl_b32 s{s_t0}, s{s_w}, 8')
    p(f's_add_u32 s{s_t0}, s{s_t0}, {L_TOK}')
    p(f'v_lshlrev_b32 v{v_tokr}, 4, v{hh}')
    p(f'v_add_u32 v{v_tokr}, s{s_t0}, v{v_tokr}')
    p(f'v_cmp_eq_u32 vcc, 28, v{m}')
    p(f'v_mov_b32 v{v_padv}, 0')
    p(f'v_mov_b32 v{v_t}, s{s_ones}')
    p(f'v_cndmask_b32 v{v_padv}, v{v_padv}, v{v_t}, vcc')
    p(f's_cmp_eq_u32 s{s_ch}, 0')
    p(f's_cselect_b32 s{s_scq}, {hexf(CQ)}, 1.0')
    p(f's_cselect_b32 s{s_padk}, 0, 0x3f80')
    xr = [TP + 2 + u for u in range(4)]
    p(f's_lshl_b32 s{s_t0}, s{s_r4}, 12')
    p(f'v_lshlrev_b32 v{v_t}, 7, v{m}')
    p(f'v_add_u32 v{v_t}, s{s_t0}, v{v_t}')
    p(f'v_bfe_u32 v{v_t+1}, v{m}, 1, 3')
    p(f'v_xor_b32 v{v_t+1}, v{v_t+1}, v{hh}')
    for u in range(4):
        p(f'v_xor_b32 v{v_t+5}, {2*u}, v{v_t+1}')
        p(f'v_lshlrev_b32 v{v_t+5}, 4, v{v_t+5}')
        p(f'v_add_u32 v{xr[u]}, v{v_t}, v{v_t+5}')
    v_stw, v_str = 30, 31
    p(f's_lshl_b32 s{s_t0}, s{s_r4}, 7')
    p(f's_add_u32 s{s_t0}, s{s_t0}, {L_STAT}')
    p(f'v_lshlrev_b32 v{v_str}, 2, v{m}')
    p(f'v_add_u32 v{v_str}, s{s_t0}, v{v_str}')
    p(f's_lshl_b32 s{s_t0}, s{s_ch}, 9')
    p(f'v_add_u32 v{v_stw}, s{s_t0}, v{v_str}')
    p(f's_mov_b32 s{s_rslot}, {8*SLOT}')
    p(f's_add_u32 s{s_t0}, s{s_r4}, 8')
    p(f's_cmp_ge_u32 s{s_t0}, 11')
    p(f's_cselect_b32 s{s_t1}, 11, 0')
    p(f's_sub_u32 s{s_t0}, s{s_t0}, s{s_t1}')
    p(f's_mul_i32 s{s_cslot}, s{s_t0}, {SLOT}')
    p(f's_mov_b32 s{s_par}, 0')
    p(f's_cmp_lg_u32 s{s_w}, 0')
    p(f's_cbranch_scc1 {L("noflag")}')
    p(f's_lshl_b32 s{s_t0}, s2, 2')
    p(f's_add_u32 s{s_t0}, s{s_t0}, {WS_FLAG}')
    p(f'v_mov_b32 v{v_t}, 0')
    p(f'v_mov_b32 v{v_t+1}, 0')
    p(f'buffer_store_dword v{v_t}, v{v_t+1}, s[{S_WS}:{S_WS+3}], s{s_t0} offen')
    p.label(L('noflag'))

    stamp(p, 1)
    p('s_waitcnt vmcnt(0)')
    p('s_barrier')
    stamp(p, 2)
    for t in range(28):
        a, u = t >> 2, t & 3
        if t == 16:
            for uu in range(4): p(f'v_add_u32 v{xr[uu]}, 0x10000, v{xr[uu]}')
        off = (a * 16384) & 0xffff
        p(f'ds_read_b128 v[{XF+4*t}:{XF+4*t+3}], v{xr[u]} offset:{off}', gives=['lds:x'])
    p('s_waitcnt lgkmcnt(0)')
    p('s_barrier')
    stamp(p, 3)
    p.add(issue())
    p.add(issue())
    stamp(p, 4)

    def ring_adv(s):
        return [I(f's_add_u32 s{s}, s{s}, {SLOT}'),
                I(f's_cmp_ge_u32 s{s}, {RING}'),
                I(f's_cselect_b32 s{s_t1}, {RING}, 0'),
                I(f's_sub_u32 s{s}, s{s}, s{s_t1}')]

    def wread(t, pat_cur, pat_next):
        o = []
        tt = t % 28
        sub, ks = tt // 7, tt % 7
        gsub = t // 7
        va = v_wa[gsub & 1]
        if ks == 0:
            pat = pat_cur if t < 28 else pat_next
            o.append(I(f'v_add_u32 v{va}, s{s_rslot}, v{pat}'))
            o += ring_adv(s_rslot)
        b = WF[t & 3]
        o.append(I(f'ds_read_b64_tr_b16 v[{b}:{b+1}], v{va} offset:{ks*1024}', gives=['rd:ring']))
        o.append(I(f'ds_read_b64_tr_b16 v[{b+2}:{b+3}], v{va} offset:{ks*1024+256}', gives=['rd:ring']))
        return o

    def mstream(w_is_a, pat_cur, pat_next, midbar=None):
        slots = []
        for t in range(28):
            s = []
            if midbar is not None and t == midbar:
                s += [I('s_waitcnt vmcnt(7)'), I('s_barrier')]
            s += wread(t + 3, pat_cur, pat_next)
            b = WF[t & 3]
            x = XF + 4 * t
            d = ACCB if t == 27 else ACCA
            c = '0' if t == 0 else f'v[{ACCA}:{ACCA+15}]'
            if w_is_a:
                s.append(I(f'v_mfma_f32_32x32x16_bf16 v[{d}:{d+15}], v[{b}:{b+3}], v[{x}:{x+3}], {c}'))
            else:
                s.append(I(f'v_mfma_f32_32x32x16_bf16 v[{d}:{d+15}], v[{x}:{x+3}], v[{b}:{b+3}], {c}'))
            slots.append(s)
        return slots

    def cs_stream(pat):
        o = []
        o.append(I(f'v_add_u32 v{v_ca}, s{s_cslot}, v{pat}'))
        o.append(I(f'v_mov_b32 v{v_cacc[0]}, 0'))
        o.append(I(f'v_mov_b32 v{v_cacc[1]}, 0'))
        def rd(f):
            b = CB[f & 1]
            return [I(f'ds_read_b64_tr_b16 v[{b}:{b+1}], v{v_ca} offset:{f*1024}', gives=['rd:ring']),
                    I(f'ds_read_b64_tr_b16 v[{b+2}:{b+3}], v{v_ca} offset:{f*1024+256}', gives=['rd:ring'])]
        o += rd(0) + rd(1)
        for f in range(7):
            b = CB[f & 1]
            for r in range(4):
                o.append(I(f'v_dot2c_f32_bf16 v{v_cacc[r&1]}, s{s_ones}, v{b+r}'))
            if f + 2 < 7: o += rd(f + 2)
        o.append(I(f'v_add_f32 v{v_cacc[0]}, v{v_cacc[0]}, v{v_cacc[1]}'))
        o.append(I(f'v_mov_b32 v{v_cacc[1]}, v{v_cacc[0]}'))
        o.append(I(f'v_permlane32_swap_b32 v{v_cacc[0]}, v{v_cacc[1]}'))
        o.append(I(f'v_add_f32 v{v_cacc[0]}, v{v_cacc[0]}, v{v_cacc[1]}'))
        o.append(I(f'v_add_u32 v{v_cacc[1]}, s{s_par}, v{v_csp_w}'))
        o.append(I(f'ds_write_b32 v{v_cacc[1]}, v{v_cacc[0]}', gives=['lds:cs']))
        o.append([I(f's_add_u32 s{s_cslot}, s{s_cslot}, {4*SLOT}'),
                  I(f's_cmp_ge_u32 s{s_cslot}, {RING}'),
                  I(f's_cselect_b32 s{s_t2}, {RING}, 0'),
                  I(f's_sub_u32 s{s_cslot}, s{s_cslot}, s{s_t2}'),
                  I(f's_xor_b32 s{s_par}, s{s_par}, 1024')])
        return o

    CS = TP
    T2 = TP + 16
    def cs_fetch(bcast=True):
        o = []
        o.append(I(f's_xor_b32 s{s_t3}, s{s_par}, 1024'))
        o.append(I(f'v_add_u32 v{T2}, s{s_t3}, v{v_csp_r}'))
        o.append(I(f'ds_read_b128 v[{T2+4}:{T2+7}], v{T2}'))
        gap = []
        o2 = []
        o2.append(I(f'v_add_f32 v{T2+4}, v{T2+4}, v{T2+5}'))
        o2.append(I(f'v_add_f32 v{T2+6}, v{T2+6}, v{T2+7}'))
        o2.append(I(f'v_add_f32 v{T2+4}, v{T2+4}, v{T2+6}'))
        if bcast:
            o2.append(I(f'ds_write_b32 v{v_csf_w}, v{T2+4}'))
            for i in range(4):
                o2.append(I(f'ds_read_b128 v[{CS+4*i}:{CS+4*i+3}], v{v_csf_r} offset:{32*i}'))
        return o, o2

    def e_gu():
        a, b = cs_fetch()
        o = a + [I('s_nop 0')] * 0
        body = []
        G, U = ACCB, ACCB + 8
        for half in range(2):
            r0 = 4 * half
            tg = [T2 + i for i in range(4)]
            tu = [T2 + 4 + i for i in range(4)]
            ee = [T2 + 8 + i for i in range(4)]
            for i in range(4):
                body.append(I(f'v_fma_f32 v{tg[i]}, v{v_nmean}, v{CS+r0+i}, v{G+r0+i}'))
            for i in range(4):
                body.append(I(f'v_mul_f32 v{ee[i]}, v{tg[i]}, v{v_kk}'))
            for i in range(4):
                body.append(I(f'v_exp_f32 v{ee[i]}, v{ee[i]}'))
                body.append(I(f'v_fma_f32 v{tu[i]}, v{v_nmean}, v{CS+8+r0+i}, v{U+r0+i}'))
            for i in range(4):
                body.append(I(f'v_fma_f32 v{ee[i]}, v{ee[i]}, v{v_vv}, v{v_vv}'))
                body.append(I(f'v_mul_f32 v{tg[i]}, v{tg[i]}, v{tu[i]}'))
            for i in range(4):
                body.append(I(f'v_rcp_f32 v{ee[i]}, v{ee[i]}'))
            for i in range(4):
                body.append(I(f'v_mul_f32 v{tg[i]}, v{tg[i]}, v{ee[i]}'))
            hp = T2 + 12 + 2 * half
            body.append(I(f'v_cvt_pk_bf16_f32 v{hp}, v{tg[0]}, v{tg[1]}'))
            body.append(I(f'v_cvt_pk_bf16_f32 v{hp+1}, v{tg[2]}, v{tg[3]}'))
        body.append(I(f'buffer_store_dwordx4 v[{T2+12}:{T2+15}], v{v_lane16}, s[{S_WS}:{S_WS+3}], s{s_sth} offen'))
        body.append(I(f's_add_u32 s{s_sth}, s{s_sth}, 2048'))
        return a, b, body

    def stats_final(need_tok):
        o = []
        t0, t1, t2 = v_t, v_t + 1, v_t + 2
        o.append(I(f'ds_read_b32 v{t0}, v{v_str}'))
        o.append(I(f'ds_read_b32 v{t1}, v{v_str} offset:512'))
        o2 = []
        o2.append(I(f'v_mul_f32 v{t0}, {hexf(1/448)}, v{t0}'))
        o2.append(I(f'v_mul_f32 v{t1}, {hexf(1/448)}, v{t1}'))
        o2.append(I(f'v_fma_f32 v{t1}, -v{t0}, v{t0}, v{t1}'))
        o2.append(I(f'v_max_f32 v{t1}, 0, v{t1}'))
        o2.append(I(f'v_add_f32 v{v_vv}, {hexf(1e-5)}, v{t1}'))
        o2.append(I(f'v_rsq_f32 v{t2}, v{v_vv}'))
        o2.append(I(f'v_sub_f32 v{v_nmean}, 0, v{t0}'))
        o2.append(I(f'v_mul_f32 v{v_kk}, {hexf(-LOG2E)}, v{t2}'))
        o2.append(I(f'v_mul_f32 v{v_sc}, s{s_scq}, v{t2}'))
        if need_tok:
            o2.append(I(f'v_mul_f32 v{t0}, v{v_nmean}, v{t2}'))
            o2.append(I(f's_lshl_b32 s{s_t3}, s{s_w}, 7'))
            o2.append(I(f's_add_u32 s{s_t3}, s{s_t3}, {L_TOK - L_CSF}'))
            o2.append(I(f'v_add_u32 v{t1}, s{s_t3}, v{v_csf_w}'))
            o2.append(I(f'ds_write_b32 v{t1}, v{t2}'))
            o2.append(I(f'ds_write_b32 v{t1}, v{t0} offset:128'))
        return o, o2

    def e_qk():
        a, b = cs_fetch()
        body = []
        for r in range(16):
            body.append(I(f'v_fma_f32 v{T2+r}, v{v_nmean}, v{CS+r}, v{ACCB+r}'))
        for r in range(16):
            body.append(I(f'v_mul_f32 v{T2+r}, v{T2+r}, v{v_sc}'))
        for d in range(8):
            body.append(I(f'v_cvt_pk_bf16_f32 v{CS+d}, v{T2+2*d}, v{T2+2*d+1}'))
        body.append(I(f'v_mov_b32 v{T2}, s{s_padk}'))
        body.append(I(f'v_mov_b32 v{T2+1}, 0'))
        body.append(I(f'v_cndmask_b32 v{CS+6}, v{CS+6}, v{T2}, s[{s_hi}:{s_hi+1}]'))
        body.append(I(f'v_cndmask_b32 v{CS+7}, v{CS+7}, v{T2+1}, s[{s_hi}:{s_hi+1}]'))
        body.append(I(f'buffer_store_dwordx4 v[{CS}:{CS+3}], v{v_lane16}, s[{S_WS}:{S_WS+3}], s{s_stq} offen'))
        body.append(I(f'buffer_store_dwordx4 v[{CS+4}:{CS+7}], v{v_lane16}, s[{S_WS}:{S_WS+3}], s{s_stq} offen offset:1024'))
        return a, b, body

    def e_vv():
        a, b = cs_fetch(bcast=False)
        RS, MR = TP, TP + 24
        MR = TP + 16
        b = b + [I(f'v_mov_b32 v{v_t+5}, v{T2+4}')]
        rd = []
        for i in range(4):
            rd.append(I(f'ds_read_b128 v[{RS+4*i}:{RS+4*i+3}], v{v_tokr} offset:{32*i}'))
        for i in range(4):
            rd.append(I(f'ds_read_b128 v[{MR+4*i}:{MR+4*i+3}], v{v_tokr} offset:{128+32*i}'))
        body = []
        for r in range(16):
            body.append(I(f'v_mul_f32 v{RS+r}, v{RS+r}, v{ACCB+r}'))
        for r in range(16):
            body.append(I(f'v_fma_f32 v{RS+r}, v{MR+r}, v{v_t+5}, v{RS+r}'))
        O = TP + 32
        for d in range(8):
            body.append(I(f'v_cvt_pk_bf16_f32 v{O+d}, v{RS+2*d}, v{RS+2*d+1}'))
        for d in range(8):
            body.append(I(f'v_cndmask_b32 v{O+d}, v{O+d}, v{v_padv}, s[{s_pad}:{s_pad+1}]'))
        body.append(I(f'buffer_store_dwordx4 v[{O}:{O+3}], v{v_lane16}, s[{S_WS}:{S_WS+3}], s{s_stkv} offen'))
        body.append(I(f'buffer_store_dwordx4 v[{O+4}:{O+7}], v{v_lane16}, s[{S_WS}:{S_WS+3}], s{s_stkv} offen offset:1024'))
        return a, b + rd, body

    def stage(w_is_a, pat_cur, pat_next, pre, epi, nstores, midbar=None, cs_start=2, bar=True):
        slots = mstream(w_is_a, pat_cur, pat_next, midbar)
        fill_by_slot = [[] for _ in range(28)]
        cs = cs_stream(pat_cur)
        if 'nocs' in EXP: cs = []
        if 'noepi' in EXP: epi = None
        sl = 0
        for part in pre:
            fill_by_slot[sl] += part; sl += 2
        if epi is not None:
            a, b, body = epi
            fill_by_slot[sl] += a
            fill_by_slot[sl + 2] += b
            st, en = sl + 5, 26
            n = en - st
            for k in range(n):
                fill_by_slot[st + k] += body[len(body) * k // n: len(body) * (k + 1) // n]
        st, en = cs_start, 25
        n = en - st
        for k in range(n):
            fill_by_slot[st + k] += cs[len(cs) * k // n: len(cs) * (k + 1) // n]
        out = []
        for t in range(28):
            out += slots[t] + flat(fill_by_slot[t])
        if bar:
            out.append(I(f's_waitcnt vmcnt({nstores})'))
            out.append(I('s_barrier', needs=['lds:cs', 'lds:stat', 'rd:ringX']))
        return out

    for t in range(3):
        p.add(wread(t, v_patq, v_patq))
    SA = [v_t, v_t + 1, v_t + 2, v_t + 3]
    def stats(sq):
        o = []
        for i in range(4): o.append(I(f'v_mov_b32 v{SA[i]}, 0'))
        for k in range(112):
            if sq: o.append(I(f'v_dot2c_f32_bf16 v{SA[k&3]}, v{XF+k}, v{XF+k}'))
            else: o.append(I(f'v_dot2c_f32_bf16 v{SA[k&3]}, s{s_ones}, v{XF+k}'))
        o.append(I(f'v_add_f32 v{SA[0]}, v{SA[0]}, v{SA[1]}'))
        o.append(I(f'v_add_f32 v{SA[2]}, v{SA[2]}, v{SA[3]}'))
        o.append(I(f'v_add_f32 v{SA[0]}, v{SA[0]}, v{SA[2]}'))
        o.append(I(f'v_mov_b32 v{SA[1]}, v{SA[0]}'))
        o.append(I(f'v_permlane32_swap_b32 v{SA[0]}, v{SA[1]}'))
        o.append(I(f'v_add_f32 v{SA[0]}, v{SA[0]}, v{SA[1]}'))
        o.append(I(f'ds_write_b32 v{v_stw}, v{SA[0]}', gives=['lds:stat']))
        return o
    p(f's_cmp_lg_u32 s{s_ch}, 0')
    p(f's_cbranch_scc1 {L("st_nosum")}')
    p.add(stats(False))
    p.label(L('st_nosum'))
    v_patn = v_dsel + 0
    v_patn = 241
    p(f's_cmp_eq_u32 s{s_tb}, 0')
    p(f's_cbranch_scc1 {L("pn_a")}')
    p(f'v_mov_b32 v{v_patn}, v{v_patg}')
    p(f's_branch {L("pn_c")}')
    p.label(L('pn_a'))
    p(f'v_mov_b32 v{v_patn}, v{v_patq}')
    p.label(L('pn_c'))
    st0 = stage(True, v_patq, v_patn, [], None, 0, midbar=18, cs_start=19, bar=False)
    p.add(st0)
    p(f's_cmp_eq_u32 s{s_ch}, 0')
    p(f's_cbranch_scc1 {L("st_nosq")}')
    p.add(stats(True))
    p.label(L('st_nosq'))
    stamp(p, 5)
    p.add([I('s_waitcnt vmcnt(0)'), I('s_barrier', needs=['lds:cs', 'lds:stat'])])
    stamp(p, 6)

    p(f's_cmp_eq_u32 s{s_tb}, 0')
    p(f's_cbranch_scc0 {L("typeB")}')
    p.add(issue())
    p.add(stage(False, v_patq, v_patg, list(stats_final(True)), e_qk(), 2))
    p.add(issue())
    p.add(stage(True, v_patg, v_patg, [], e_vv(), 2))
    p(f's_mov_b32 s{s_cnt}, 2')
    stamp(p, 7)
    p(f's_branch {L("guloop")}')
    p.label(L('typeB'))
    p.add(issue())
    p.add(stage(True, v_patg, v_patg, list(stats_final(False)), e_qk(), 2))
    p(f's_mov_b32 s{s_cnt}, 3')
    stamp(p, 7)
    p.label(L('guloop'))
    p.add(issue())
    p.add(stage(True, v_patg, v_patg, [], e_gu(), 1))
    p(f's_sub_u32 s{s_cnt}, s{s_cnt}, 1')
    p(f's_cmp_lg_u32 s{s_cnt}, 0')
    p(f's_cbranch_scc1 {L("guloop")}')
    stamp(p, 8)
    a, b, body = e_gu()
    p.add(a + b + body)
    p('s_waitcnt vmcnt(0) lgkmcnt(0)')
    stamp(p, 9)
    stamp_store(p, S_WS, s_w, 0)
    p.label(L('end'))
    p('s_endpgm')
    desc = f"""
.amdhsa_kernel {name}
  .amdhsa_next_free_vgpr 248
  .amdhsa_next_free_sgpr 100
  .amdhsa_accum_offset 248
  .amdhsa_group_segment_fixed_size 0
  .amdhsa_kernarg_size 80
  .amdhsa_user_sgpr_count 2
  .amdhsa_user_sgpr_kernarg_segment_ptr 1
  .amdhsa_system_sgpr_workgroup_id_x 1
  .amdhsa_float_denorm_mode_32 3
.end_amdhsa_kernel
"""
    return p, desc
```

```python
from asmlib import *
import k1
from k1 import (WS_QF, WS_KV, WS_HF, WS_OF, WS_FLAG, WS_SIZE, SLOT, NSLOT, RING,
                LOG2E, CQ, hexf, flat, stamp, stamp_store)
L_CSP = RING
L_CSF = L_CSP + 2048
L_STAT = L_CSF + 1024
L_TOK = L_STAT + 2048

def gen_k1(name):
    p = Prog()
    EXP = k1.EXP
    S_X, S_W, S_GU, S_WS = 8, 12, 16, 20
    s_w, s_r4, s_ch, s_rb, s_g, s_pr, s_tb, s_p0, s_reg = 30, 31, 32, 33, 34, 35, 36, 37, 38
    s_two = 39
    s_q = 40
    s_qk = 45
    s_left = 46
    s_dslot = 47
    s_rslot = 48
    s_cslot = 49
    s_hi = 50
    s_pad = 52
    s_t0, s_t1, s_t2, s_t3 = 55, 56, 57, 58
    s_so, s_s64, s_s112 = 59, 60, 54
    s_par = 61
    s_stq, s_stkv = 62, 63
    s_dsrd = 64
    s_sth = 68
    s_scq, s_padk, s_cnt = 69, 70, 71
    s_mo = 72
    s_j3 = 73
    v_lane16 = 1
    v_patq, v_patg = 2, 3
    v_wa = [4, 5]
    v_ca = 6
    v_dq, v_dg, v_dsel = 7, 8, 9
    v_csp_r, v_csp_w, v_csf_w, v_csf_r = 10, 11, 12, 13
    v_nmean, v_kk, v_vv, v_sc = 14, 15, 16, 17
    v_t = 18
    v_one = 26
    v_padv, v_tokr, v_stw, v_str = 28, 29, 30, 31
    CB = [32, 36]
    WF = [40, 44, 48, 52]
    ACCA, ACCB = 56, 72
    TP = 88
    XF = 128
    CA = [240, 244]
    v_patn = 248
    v_pf = 249
    xr = [250, 251, 252, 253]
    xa, xb = 254, 255
    L = lambda s: name + '_' + s

    p.label(name)
    p(f's_cmp_ge_u32 s2, 256')
    p(f's_cbranch_scc1 {L("end")}')
    stamp(p, 0)
    p('s_load_dwordx4 s[4:7], s[0:1], 0')
    p('s_load_dwordx4 s[24:27], s[0:1], 32')
    p('s_load_dwordx2 s[28:29], s[0:1], 72')
    p('s_getpc_b64 s[74:75]')
    lane, m, hh = v_t + 2, v_t + 3, v_t + 4
    p(f'v_and_b32 v{lane}, 63, v0')
    p(f'v_lshlrev_b32 v{v_t}, 6, v{lane}')
    p(f'v_lshrrev_b32 v{v_t+1}, 6, v0')
    p(f'v_readfirstlane_b32 s{s_w}, v{v_t+1}')
    p(f'v_lshlrev_b32 v{v_t+1}, 12, v{v_t+1}')
    p(f'v_add_u32 v{v_t}, v{v_t}, v{v_t+1}')
    p(f'global_load_dword v{v_pf}, v{v_t}, s[74:75]')
    p(f's_and_b32 s{s_t0}, s2, 1')
    p(f's_lshl_b32 s{s_t0}, s{s_t0}, 3')
    p(f's_bfe_u32 s{s_t1}, s2, 0x30003')
    p(f's_add_u32 s{s_rb}, s{s_t0}, s{s_t1}')
    p(f's_bfe_u32 s{s_t0}, s2, 0x20001')
    p(f's_lshl_b32 s{s_t0}, s{s_t0}, 2')
    p(f's_lshr_b32 s{s_t1}, s2, 6')
    p(f's_add_u32 s{s_g}, s{s_t0}, s{s_t1}')
    p(f's_lshr_b32 s{s_pr}, s{s_g}, 1')
    p(f's_and_b32 s{s_tb}, s{s_g}, 1')
    p(f's_and_b32 s{s_r4}, s{s_w}, 3')
    p(f's_lshr_b32 s{s_ch}, s{s_w}, 2')
    p(f's_lshr_b32 s{s_p0}, s{s_w}, 1')
    p(f's_and_b32 s{s_reg}, s{s_w}, 1')
    p(f'v_lshlrev_b32 v{v_lane16}, 4, v{lane}')
    p(f'v_and_b32 v{m}, 31, v0')
    p(f'v_bfe_u32 v{hh}, v0, 5, 1')
    p(f'v_lshrrev_b32 v{v_t}, 3, v{lane}')
    p(f'v_mul_u32_u24 v{v_t}, 896, v{v_t}')
    p(f'v_lshrrev_b32 v{v_t+1}, 4, v{lane}')
    p(f'v_and_b32 v{v_t+5}, 7, v{lane}')
    p(f'v_xor_b32 v{v_t+1}, v{v_t+1}, v{v_t+5}')
    p(f'v_lshlrev_b32 v{v_t+1}, 4, v{v_t+1}')
    p(f'v_add_u32 v{xa}, v{v_t}, v{v_t+1}')
    p(f'v_xor_b32 v{v_t+1}, 64, v{v_t+1}')
    p(f'v_add_u32 v{xb}, v{v_t}, v{v_t+1}')
    p(f'v_lshrrev_b32 v{v_t}, 2, v{lane}')
    p(f'v_and_b32 v{v_t+1}, 3, v{lane}')
    p(f'v_mul_u32_u24 v{v_dq}, 2688, v{v_t}')
    p(f'v_lshlrev_b32 v{v_t+5}, 4, v{v_t+1}')
    p(f'v_add_u32 v{v_dq}, v{v_dq}, v{v_t+5}')
    p(f's_lshl_b32 s{s_t0}, s{s_reg}, 5')
    p(f'v_xor_b32 v{v_t+5}, s{s_t0}, v{v_t+5}')
    p(f'v_mul_u32_u24 v{v_dg}, 3584, v{v_t}')
    p(f'v_add_u32 v{v_dg}, v{v_dg}, v{v_t+5}')
    p(f's_lshl_b32 s{s_t2}, s{s_pr}, 1')
    p(f's_add_u32 s{s_t3}, s{s_t2}, s{s_tb}')
    p(f's_mul_i32 s{s_q}, s{s_t3}, 56')
    p(f's_mul_i32 s{s_t0}, s{s_reg}, 896')
    p(f's_add_u32 s{s_q}, s{s_q}, s{s_t0}')
    p(f's_mul_i32 s{s_t0}, s{s_pr}, 7')
    p(f's_mul_i32 s{s_t1}, s{s_tb}, 3')
    p(f's_add_u32 s{s_t0}, s{s_t0}, s{s_t1}')
    p(f's_mov_b32 s{s_cnt}, s{s_t0}')
    p(f's_lshl_b32 s{s_t0}, s{s_t0}, 6')
    p(f's_add_u32 s{s_t1}, s{s_t2}, s{s_reg}')
    p(f's_mul_i32 s{s_t1}, s{s_t1}, 56')
    p(f's_add_u32 s{s_t1}, s{s_t1}, 1792')
    p(f's_add_u32 s{s_so}, s{s_t0}, 64')
    p(f's_add_u32 s{s_s64}, s{s_t0}, 128')
    p(f's_add_u32 s{s_s112}, s{s_t0}, 192')
    p(f's_cmp_eq_u32 s{s_tb}, 0')
    p(f's_cselect_b32 s{s_q+1}, s{s_t1}, s{s_t0}')
    p(f's_cselect_b32 s{s_q+2}, s{s_t0}, s{s_so}')
    p(f's_cselect_b32 s{s_q+3}, s{s_so}, s{s_s64}')
    p(f's_cselect_b32 s{s_q+4}, s{s_s64}, s{s_s112}')
    p(f's_cselect_b32 s{s_qk}, 2, 1')
    p(f's_cmp_lt_u32 s{s_w}, 6')
    p(f's_cselect_b32 s{s_two}, 1, 0')
    p(f's_mul_i32 s{s_mo}, s{s_reg}, 7168')
    p(f's_lshl_b32 s{s_t0}, s{s_p0}, 10')
    p(f's_add_u32 s{s_mo}, s{s_mo}, s{s_t0}')
    p('s_waitcnt lgkmcnt(0)')
    stamp(p, 2)
    p(f's_mov_b32 s{S_X}, s4')
    p(f's_mov_b32 s{S_X+1}, s5')
    p(f's_mov_b32 s{S_X+2}, {2048*896}')
    p(f's_mov_b32 s{S_X+3}, 0x20000')
    p(f's_mov_b32 s{S_W}, s6')
    p(f's_mov_b32 s{S_W+1}, s7')
    p(f's_mov_b32 s{S_W+2}, {448*2688}')
    p(f's_mov_b32 s{S_W+3}, 0x20000')
    p(f's_cmp_eq_u32 s{s_reg}, 0')
    p(f's_cselect_b32 s{S_GU}, s24, s26')
    p(f's_cselect_b32 s{S_GU+1}, s25, s27')
    p(f's_mov_b32 s{S_GU+2}, {448*3584}')
    p(f's_mov_b32 s{S_GU+3}, 0x20000')
    p(f's_mov_b32 s{S_WS}, s28')
    p(f's_mov_b32 s{S_WS+1}, s29')
    p(f's_mov_b32 s{S_WS+2}, {WS_SIZE}')
    p(f's_mov_b32 s{S_WS+3}, 0x20000')

    s_x0, s_x1, s_xm = 76, 77, 78
    p(f's_lshl_b32 s{s_t0}, s{s_rb}, 7')
    p(f's_lshl_b32 s{s_t1}, s{s_w}, 4')
    p(f's_add_u32 s{s_t0}, s{s_t0}, s{s_t1}')
    p(f's_mul_i32 s{s_x0}, s{s_t0}, 896')
    p(f's_add_u32 s{s_x1}, s{s_x0}, {8*896}')
    p(f's_lshl_b32 s{s_xm}, s{s_w}, 11')
    def x_issue(a, g):
        return [I(f's_mov_b32 m0, s{s_xm}'),
                I(f's_addk_i32 s{s_xm}, 16384'),
                I(f'buffer_load_dwordx4 v{xa}, s[{S_X}:{S_X+3}], s{s_x0} offen lds', gives=[g]),
                I('s_addk_i32 m0, 1024'),
                I(f's_addk_i32 s{s_x0}, 128'),
                I(f'buffer_load_dwordx4 v{xb}, s[{S_X}:{S_X+3}], s{s_x1} offen lds', gives=[g]),
                I(f's_addk_i32 s{s_x1}, 128')]
    uid = [0]
    def ctx_switch():
        uid[0] += 1; u = uid[0]
        o = [I(f's_cmp_lg_u32 s{s_qk}, 0'),
             I(f's_cselect_b64 s[{s_dsrd}:{s_dsrd+1}], s[{S_W}:{S_W+1}], s[{S_GU}:{S_GU+1}]'),
             I(f's_cselect_b32 s{s_dsrd+2}, s{S_W+2}, s{S_GU+2}'),
             I(f's_mov_b32 s{s_dsrd+3}, 0x20000'),
             I(f's_movk_i32 s{s_t0}, 3584'),
             I(f's_cselect_b32 s{s_t0}, 2688, s{s_t0}'),
             I(f's_cbranch_scc1 {L("cx_q%d" % u)}'),
             I(f'v_mov_b32 v{v_dsel}, v{v_dg}'),
             I(f's_branch {L("cx_c%d" % u)}'),
             I(f'{L("cx_q%d" % u)}:'),
             I(f'v_mov_b32 v{v_dsel}, v{v_dq}'),
             I(f's_sub_u32 s{s_qk}, s{s_qk}, 1'),
             I(f'{L("cx_c%d" % u)}:'),
             I(f's_lshl_b32 s{s_s64}, s{s_t0}, 6'),
             I(f's_mul_i32 s{s_s112}, s{s_t0}, 112'),
             I(f's_mul_i32 s{s_so}, s{s_p0}, s{s_t0}'),
             I(f's_lshl_b32 s{s_so}, s{s_so}, 4'),
             I(f's_add_u32 s{s_so}, s{s_so}, s{s_q}')]
        for i in range(4):
            o.append(I(f's_mov_b32 s{s_q+i}, s{s_q+i+1}'))
        return o
    def b_issue(g, check=False):
        uid[0] += 1; u = uid[0]
        o = []
        if 'nodma' in EXP and check: return []
        if check:
            o += [I(f's_cmp_eq_u32 s{s_left}, 0'), I(f's_cbranch_scc1 {L("bi_d%d" % u)}'),
                  I(f's_sub_u32 s{s_left}, s{s_left}, 1')]
        o += [I(f's_add_u32 m0, s{s_dslot}, s{s_mo}'),
              I(f's_add_u32 s{s_dslot}, s{s_dslot}, {SLOT}'),
              I(f'buffer_load_dwordx4 v{v_dsel}, s[{s_dsrd}:{s_dsrd+3}], s{s_so} offen lds', gives=[g]),
              I(f's_cmp_eq_u32 s{s_two}, 0'),
              I(f's_cbranch_scc1 {L("bi_s%d" % u)}'),
              I('s_addk_i32 m0, 4096'),
              I(f's_add_u32 s{s_t0}, s{s_so}, s{s_s64}'),
              I(f'buffer_load_dwordx4 v{v_dsel}, s[{s_dsrd}:{s_dsrd+3}], s{s_t0} offen lds', gives=[g]),
              I(f'{L("bi_s%d" % u)}:'),
              I(f's_add_u32 s{s_so}, s{s_so}, s{s_s112}'),
              I(f's_cmp_ge_u32 s{s_dslot}, {RING}'),
              I(f's_cselect_b32 s{s_t0}, {RING}, 0'),
              I(f's_sub_u32 s{s_dslot}, s{s_dslot}, s{s_t0}')]
        if check: o.append(I(f'{L("bi_d%d" % u)}:'))
        return o

    s_j = 79
    p(f's_lshr_b32 s{s_j}, s2, 3')
    if 'pgt' in EXP:
        p(f'v_lshlrev_b32 v{v_t}, 12, v{lane}')
        p(f's_cmp_gt_u32 s{s_w}, 2')
        p(f's_cbranch_scc1 {L("pg_d")}')
        p(f's_mul_i32 s{s_t0}, s{s_j}, {13*4096}')
        p('s_mov_b32 exec_lo, 0x1fff')
        p('s_mov_b32 exec_hi, 0')
        p(f's_cmp_eq_u32 s{s_w}, 0')
        p(f's_cbranch_scc0 {L("pg_g")}')
        p(f's_mul_i32 s{s_t0}, s{s_j}, {10*4096}')
        p(f'buffer_load_dword v{TP+14}, v{v_t}, s[{S_W}:{S_W+3}], s{s_t0} offen')
        p(f's_branch {L("pg_e")}')
        p.label(L('pg_g'))
        p(f'buffer_load_dword v{TP+14}, v{v_t}, s[{S_GU}:{S_GU+3}], s{s_t0} offen')
        p.label(L('pg_e'))
        p('s_mov_b64 exec, -1')
        p.label(L('pg_d'))
    if 'xt' in EXP:
        p(f'v_lshlrev_b32 v{v_t}, 7, v{lane}')
        p(f's_and_b32 s{s_t0}, s{s_g}, 3')
        p(f's_lshl_b32 s{s_t0}, s{s_t0}, 5')
        p(f's_lshl_b32 s{s_t1}, s{s_w}, 2')
        p(f's_add_u32 s{s_t0}, s{s_t0}, s{s_t1}')
        p(f's_lshl_b32 s{s_t1}, s{s_rb}, 7')
        p(f's_add_u32 s{s_t0}, s{s_t0}, s{s_t1}')
        p(f's_mul_i32 s{s_t0}, s{s_t0}, 896')
        p('s_mov_b32 exec_lo, 0x0fffffff')
        p('s_mov_b32 exec_hi, 0')
        p(f'buffer_load_dword v{TP+8}, v{v_t}, s[{S_X}:{S_X+3}], s{s_t0} offen', gives=['touch'])
        p('s_mov_b64 exec, -1')
    stamp(p, 3)
    p(f's_mov_b32 s{s_dslot}, {8*SLOT}')
    p(f's_mov_b32 s{s_left}, 9')
    p.add(ctx_switch())
    p.add(x_issue(0, 'g0') + x_issue(1, 'g0') + b_issue('g0'))
    stamp(p, 4)
    p.add(x_issue(2, 'g1') + x_issue(3, 'g1') + b_issue('g1'))
    stamp(p, 1)

    p(f's_mov_b32 s{s_hi}, 0')
    p(f's_mov_b32 s{s_hi+1}, -1')
    p(f's_mov_b32 s{s_pad}, 0xf0000000')
    p(f's_mov_b32 s{s_pad+1}, 0xf0000000')
    p(f'v_mov_b32 v{v_one}, 0x3f803f80')
    p(f'v_mov_b32 v{v_one+1}, 0x3f803f80')
    p(f's_lshl_b32 s{s_t0}, s{s_rb}, 2')
    p(f's_add_u32 s{s_t0}, s{s_t0}, s{s_r4}')
    p(f's_lshl_b32 s{s_stq}, s{s_g}, 6')
    p(f's_add_u32 s{s_stq}, s{s_stq}, s{s_t0}')
    p(f's_add_u32 s{s_t1}, s{s_ch}, 11')
    p(f's_lshl_b32 s{s_stq}, s{s_stq}, s{s_t1}')
    p(f's_mul_i32 s{s_t1}, s{s_ch}, {WS_KV}')
    p(f's_add_u32 s{s_stq}, s{s_stq}, s{s_t1}')
    p(f's_lshl_b32 s{s_stkv}, s{s_pr}, 1')
    p(f's_add_u32 s{s_stkv}, s{s_stkv}, s{s_ch}')
    p(f's_lshl_b32 s{s_stkv}, s{s_stkv}, 6')
    p(f's_add_u32 s{s_stkv}, s{s_stkv}, s{s_t0}')
    p(f's_lshl_b32 s{s_stkv}, s{s_stkv}, 12')
    p(f's_add_u32 s{s_stkv}, s{s_stkv}, {WS_KV + 2048}')
    p(f's_mul_i32 s{s_sth}, s{s_t0}, 112')
    p(f's_lshl_b32 s{s_t1}, s{s_cnt}, 1')
    p(f's_add_u32 s{s_sth}, s{s_sth}, s{s_t1}')
    p(f's_add_u32 s{s_sth}, s{s_sth}, s{s_ch}')
    p(f's_lshl_b32 s{s_sth}, s{s_sth}, 10')
    p(f's_add_u32 s{s_sth}, s{s_sth}, {WS_HF}')
    p(f'v_bfe_u32 v{v_t}, v{lane}, 2, 2')
    p(f'v_lshlrev_b32 v{v_t+1}, 3, v{hh}')
    p(f'v_add_u32 v{v_t}, v{v_t}, v{v_t+1}')
    p(f'v_lshlrev_b32 v{v_t}, 6, v{v_t}')
    p(f'v_and_b32 v{v_t+1}, 3, v{lane}')
    p(f'v_lshlrev_b32 v{v_t+1}, 3, v{v_t+1}')
    p(f'v_add_u32 v{v_t}, v{v_t}, v{v_t+1}')
    p(f'v_bfe_u32 v{v_t+1}, v{lane}, 4, 1')
    p(f's_mul_i32 s{s_t0}, s{s_ch}, 7168')
    p(f'v_lshlrev_b32 v{v_t+5}, 5, v{v_t+1}')
    p(f'v_add_u32 v{v_patq}, v{v_t}, v{v_t+5}')
    p(f'v_add_u32 v{v_patq}, s{s_t0}, v{v_patq}')
    p(f'v_mul_u32_u24 v{v_patg}, 7168, v{v_t+1}')
    p(f'v_add_u32 v{v_patg}, v{v_patg}, v{v_t}')
    p(f'v_xor_b32 v{v_t+5}, s{s_ch}, v{v_t+1}')
    p(f'v_lshlrev_b32 v{v_t+5}, 5, v{v_t+5}')
    p(f'v_add_u32 v{v_patg}, v{v_patg}, v{v_t+5}')
    p(f's_lshl_b32 s{s_t0}, s{s_ch}, 9')
    p(f's_add_u32 s{s_t0}, s{s_t0}, {L_CSP}')
    p(f'v_lshlrev_b32 v{v_csp_r}, 4, v{m}')
    p(f'v_add_u32 v{v_csp_r}, s{s_t0}, v{v_csp_r}')
    p(f's_lshl_b32 s{s_t1}, s{s_r4}, 2')
    p(f's_add_u32 s{s_t0}, s{s_t0}, s{s_t1}')
    p(f'v_lshrrev_b32 v{v_csp_w}, 2, v{m}')
    p(f'v_lshlrev_b32 v{v_csp_w}, 6, v{v_csp_w}')
    p(f'v_add_u32 v{v_csp_w}, s{s_t0}, v{v_csp_w}')
    p(f's_lshl_b32 s{s_t0}, s{s_w}, 7')
    p(f's_add_u32 s{s_t0}, s{s_t0}, {L_CSF}')
    p(f'v_lshlrev_b32 v{v_csf_w}, 2, v{m}')
    p(f'v_add_u32 v{v_csf_w}, s{s_t0}, v{v_csf_w}')
    p(f'v_lshlrev_b32 v{v_csf_r}, 4, v{hh}')
    p(f'v_add_u32 v{v_csf_r}, s{s_t0}, v{v_csf_r}')
    p(f's_lshl_b32 s{s_t0}, s{s_r4}, 8')
    p(f's_add_u32 s{s_t0}, s{s_t0}, {L_TOK}')
    p(f'v_lshlrev_b32 v{v_tokr}, 4, v{hh}')
    p(f'v_add_u32 v{v_tokr}, s{s_t0}, v{v_tokr}')
    p(f'v_cmp_eq_u32 vcc, 28, v{m}')
    p(f'v_mov_b32 v{v_padv}, 0')
    p(f'v_cndmask_b32 v{v_padv}, v{v_padv}, v{v_one}, vcc')
    p(f's_cmp_eq_u32 s{s_ch}, 0')
    p(f's_cselect_b32 s{s_scq}, {hexf(CQ)}, 1.0')
    p(f's_cselect_b32 s{s_padk}, 0, 0x3f80')
    p(f's_lshl_b32 s{s_t0}, s{s_r4}, 12')
    p(f'v_lshlrev_b32 v{v_t}, 7, v{m}')
    p(f'v_add_u32 v{v_t}, s{s_t0}, v{v_t}')
    p(f'v_bfe_u32 v{v_t+1}, v{m}, 1, 3')
    p(f'v_xor_b32 v{v_t+1}, v{v_t+1}, v{hh}')
    for u in range(4):
        p(f'v_xor_b32 v{v_t+5}, {2*u}, v{v_t+1}')
        p(f'v_lshlrev_b32 v{v_t+5}, 4, v{v_t+5}')
        p(f'v_add_u32 v{xr[u]}, v{v_t}, v{v_t+5}')
    p(f's_lshl_b32 s{s_t0}, s{s_r4}, 8')
    p(f's_add_u32 s{s_t0}, s{s_t0}, {L_STAT}')
    p(f'v_lshlrev_b32 v{v_str}, 2, v{m}')
    p(f'v_add_u32 v{v_str}, s{s_t0}, v{v_str}')
    p(f's_lshl_b32 s{s_t1}, s{s_ch}, 10')
    p(f's_add_u32 s{s_t0}, s{s_t0}, s{s_t1}')
    p(f'v_lshlrev_b32 v{v_stw}, 2, v{lane}')
    p(f's_cmp_eq_u32 s{s_ch}, 0')
    p(f's_cbranch_scc0 {L("stw1")}')
    p(f'v_and_b32 v{v_stw}, 0xf0, v{v_stw}')
    p.label(L('stw1'))
    p(f'v_add_u32 v{v_stw}, s{s_t0}, v{v_stw}')
    p(f's_mov_b32 s{s_rslot}, {8*SLOT}')
    p(f's_add_u32 s{s_t0}, s{s_r4}, 8')
    p(f's_cmp_ge_u32 s{s_t0}, 11')
    p(f's_cselect_b32 s{s_t1}, 11, 0')
    p(f's_sub_u32 s{s_t0}, s{s_t0}, s{s_t1}')
    p(f's_mul_i32 s{s_cslot}, s{s_t0}, {SLOT}')
    p(f's_mov_b32 s{s_par}, 0')
    p(f's_cmp_lg_u32 s{s_w}, 0')
    p(f's_cbranch_scc1 {L("noflag")}')
    p(f's_lshl_b32 s{s_t0}, s2, 2')
    p(f's_add_u32 s{s_t0}, s{s_t0}, {WS_FLAG}')
    p(f'v_mov_b32 v{v_t}, 0')
    p(f'buffer_store_dword v{v_t}, v{v_t}, s[{S_WS}:{S_WS+3}], s{s_t0} offen')
    p.label(L('noflag'))

    def ring_adv(s):
        return [I(f's_add_u32 s{s}, s{s}, {SLOT}'),
                I(f's_cmp_ge_u32 s{s}, {RING}'),
                I(f's_cselect_b32 s{s_t1}, {RING}, 0'),
                I(f's_sub_u32 s{s}, s{s}, s{s_t1}')]
    def wread(t, pat_cur, pat_next):
        o = []
        tt = t % 28
        ks = tt % 7
        gsub = t // 7
        va = v_wa[gsub & 1]
        if ks == 0:
            pat = pat_cur if t < 28 else pat_next
            o.append(I(f'v_add_u32 v{va}, s{s_rslot}, v{pat}'))
            o += ring_adv(s_rslot)
        b = WF[t & 3]
        o.append(I(f'ds_read_b64_tr_b16 v[{b}:{b+1}], v{va} offset:{ks*1024}'))
        o.append(I(f'ds_read_b64_tr_b16 v[{b+2}:{b+3}], v{va} offset:{ks*1024+256}'))
        return o
    def mf(t, w_is_a):
        b = WF[t & 3]; x = XF + 4 * t
        d = ACCB if t == 27 else ACCA
        c = '0' if t == 0 else f'v[{ACCA}:{ACCA+15}]'
        if w_is_a: return I(f'v_mfma_f32_32x32x16_bf16 v[{d}:{d+15}], v[{b}:{b+3}], v[{x}:{x+3}], {c}')
        return I(f'v_mfma_f32_32x32x16_bf16 v[{d}:{d+15}], v[{x}:{x+3}], v[{b}:{b+3}], {c}')
    def m44(d, a, b, first=False):
        c = '0' if first else f'v[{d}:{d+3}]'
        return I(f'v_mfma_f32_4x4x4_16b_bf16 v[{d}:{d+3}], v[{a}:{a+1}], v[{b}:{b+1}], {c}')

    def cs_stream(pat):
        o = [I(f'v_add_u32 v{v_ca}, s{s_cslot}, v{pat}')]
        def rd(f):
            b = CB[f & 1]
            return [I(f'ds_read_b64_tr_b16 v[{b}:{b+1}], v{v_ca} offset:{f*1024}'),
                    I(f'ds_read_b64_tr_b16 v[{b+2}:{b+3}], v{v_ca} offset:{f*1024+256}')]
        o += rd(0) + rd(1)
        o.append(I('s_nop 0'))
        for f in range(7):
            b = CB[f & 1]
            o.append(m44(CA[0], b, v_one, f == 0))
            o.append(m44(CA[1], b + 2, v_one, f == 0))
            if f + 2 < 7: o += rd(f + 2)
        fin = []
        for i in range(4):
            fin.append(I(f'v_add_f32 v{CA[0]+i}, v{CA[0]+i}, v{CA[1]+i}'))
        for i in range(4):
            fin.append(I(f'v_mov_b32 v{CA[1]+i}, v{CA[0]+i}'))
        for i in range(4):
            fin.append(I(f'v_permlane32_swap_b32 v{CA[0]+i}, v{CA[1]+i}'))
        for i in range(4):
            fin.append(I(f'v_add_f32 v{CA[0]+i}, v{CA[0]+i}, v{CA[1]+i}'))
        fin.append(I(f'v_add_u32 v{CA[1]}, s{s_par}, v{v_csp_w}'))
        for i in range(4):
            fin.append(I(f'ds_write_b32 v{CA[1]}, v{CA[0]+i} offset:{16*i}', gives=['lds:cs']))
        fin.append([I(f's_add_u32 s{s_cslot}, s{s_cslot}, {4*SLOT}'),
                    I(f's_cmp_ge_u32 s{s_cslot}, {RING}'),
                    I(f's_cselect_b32 s{s_t2}, {RING}, 0'),
                    I(f's_sub_u32 s{s_cslot}, s{s_cslot}, s{s_t2}'),
                    I(f's_xor_b32 s{s_par}, s{s_par}, 1024')])
        return o, fin

    CS = TP
    T2 = TP + 16
    def cs_fetch(bcast=True):
        o = [I(f's_xor_b32 s{s_t3}, s{s_par}, 1024'),
             I(f'v_add_u32 v{T2}, s{s_t3}, v{v_csp_r}'),
             I(f'ds_read_b128 v[{T2+4}:{T2+7}], v{T2}')]
        o2 = [I(f'v_add_f32 v{T2+4}, v{T2+4}, v{T2+5}'),
              I(f'v_add_f32 v{T2+6}, v{T2+6}, v{T2+7}'),
              I(f'v_add_f32 v{T2+4}, v{T2+4}, v{T2+6}')]
        if bcast:
            o2.append(I(f'ds_write_b32 v{v_csf_w}, v{T2+4}'))
            for i in range(4):
                o2.append(I(f'ds_read_b128 v[{CS+4*i}:{CS+4*i+3}], v{v_csf_r} offset:{32*i}'))
        return o, o2

    def e_gu():
        a, b = cs_fetch()
        body = []
        G, U = ACCB, ACCB + 8
        for half in range(2):
            r0 = 4 * half
            tg = [T2 + i for i in range(4)]
            tu = [T2 + 4 + i for i in range(4)]
            ee = [T2 + 8 + i for i in range(4)]
            for i in range(4):
                body.append(I(f'v_fma_f32 v{tg[i]}, v{v_nmean}, v{CS+r0+i}, v{G+r0+i}'))
            for i in range(4):
                body.append(I(f'v_mul_f32 v{ee[i]}, v{tg[i]}, v{v_kk}'))
            for i in range(4):
                body.append(I(f'v_exp_f32 v{ee[i]}, v{ee[i]}'))
                body.append(I(f'v_fma_f32 v{tu[i]}, v{v_nmean}, v{CS+8+r0+i}, v{U+r0+i}'))
            for i in range(4):
                body.append(I(f'v_fma_f32 v{ee[i]}, v{ee[i]}, v{v_vv}, v{v_vv}'))
                body.append(I(f'v_mul_f32 v{tg[i]}, v{tg[i]}, v{tu[i]}'))
            for i in range(4):
                body.append(I(f'v_rcp_f32 v{ee[i]}, v{ee[i]}'))
            for i in range(4):
                body.append(I(f'v_mul_f32 v{tg[i]}, v{tg[i]}, v{ee[i]}'))
            hp = T2 + 12 + 2 * half
            body.append(I(f'v_cvt_pk_bf16_f32 v{hp}, v{tg[0]}, v{tg[1]}'))
            body.append(I(f'v_cvt_pk_bf16_f32 v{hp+1}, v{tg[2]}, v{tg[3]}'))
        body.append(I(f'buffer_store_dwordx4 v[{T2+12}:{T2+15}], v{v_lane16}, s[{S_WS}:{S_WS+3}], s{s_sth} offen'))
        body.append(I(f's_add_u32 s{s_sth}, s{s_sth}, 2048'))
        return a, b, body

    def stats_final(need_tok):
        t0, t1, t2, t3 = v_t, v_t + 1, v_t + 2, v_t + 3
        o = [I(f'ds_read_b32 v{t0}, v{v_str}'),
             I(f'ds_read_b32 v{t2}, v{v_str} offset:128'),
             I(f'ds_read_b32 v{t1}, v{v_str} offset:1024'),
             I(f'ds_read_b32 v{t3}, v{v_str} offset:1152')]
        o2 = [I(f'v_add_f32 v{t0}, v{t0}, v{t2}'),
              I(f'v_add_f32 v{t1}, v{t1}, v{t3}'),
              I(f'v_mul_f32 v{t0}, {hexf(1/448)}, v{t0}'),
              I(f'v_mul_f32 v{t1}, {hexf(1/448)}, v{t1}'),
              I(f'v_fma_f32 v{t1}, -v{t0}, v{t0}, v{t1}'),
              I(f'v_max_f32 v{t1}, 0, v{t1}'),
              I(f'v_add_f32 v{v_vv}, {hexf(1e-5)}, v{t1}'),
              I(f'v_rsq_f32 v{t2}, v{v_vv}'),
              I(f'v_sub_f32 v{v_nmean}, 0, v{t0}'),
              I(f'v_mul_f32 v{v_kk}, {hexf(-LOG2E)}, v{t2}'),
              I(f'v_mul_f32 v{v_sc}, s{s_scq}, v{t2}')]
        if need_tok:
            o2 += [I(f'v_mul_f32 v{t0}, v{v_nmean}, v{t2}'),
                   I(f'ds_write_b32 v{v_str}, v{t2} offset:{L_TOK - L_STAT}'),
                   I(f'ds_write_b32 v{v_str}, v{t0} offset:{L_TOK - L_STAT + 128}')]
        return o, o2

    def e_qk():
        a, b = cs_fetch()
        body = []
        for r in range(16):
            body.append(I(f'v_fma_f32 v{T2+r}, v{v_nmean}, v{CS+r}, v{ACCB+r}'))
        for r in range(16):
            body.append(I(f'v_mul_f32 v{T2+r}, v{T2+r}, v{v_sc}'))
        for d in range(8):
            body.append(I(f'v_cvt_pk_bf16_f32 v{CS+d}, v{T2+2*d}, v{T2+2*d+1}'))
        body.append(I(f'v_mov_b32 v{T2}, s{s_padk}'))
        body.append(I(f'v_mov_b32 v{T2+1}, 0'))
        body.append(I(f'v_cndmask_b32 v{CS+6}, v{CS+6}, v{T2}, s[{s_hi}:{s_hi+1}]'))
        body.append(I(f'v_cndmask_b32 v{CS+7}, v{CS+7}, v{T2+1}, s[{s_hi}:{s_hi+1}]'))
        body.append(I(f'buffer_store_dwordx4 v[{CS}:{CS+3}], v{v_lane16}, s[{S_WS}:{S_WS+3}], s{s_stq} offen'))
        body.append(I(f'buffer_store_dwordx4 v[{CS+4}:{CS+7}], v{v_lane16}, s[{S_WS}:{S_WS+3}], s{s_stq} offen offset:1024'))
        return a, b, body

    def e_vv():
        a, b = cs_fetch(bcast=False)
        RS, MR, O = TP, TP + 16, TP + 32
        b = b + [I(f'v_mov_b32 v{v_t+5}, v{T2+4}')]
        rd = []
        for i in range(4):
            rd.append(I(f'ds_read_b128 v[{RS+4*i}:{RS+4*i+3}], v{v_tokr} offset:{32*i}'))
        for i in range(4):
            rd.append(I(f'ds_read_b128 v[{MR+4*i}:{MR+4*i+3}], v{v_tokr} offset:{128+32*i}'))
        body = []
        for r in range(16):
            body.append(I(f'v_mul_f32 v{RS+r}, v{RS+r}, v{ACCB+r}'))
        for r in range(16):
            body.append(I(f'v_fma_f32 v{RS+r}, v{MR+r}, v{v_t+5}, v{RS+r}'))
        for d in range(8):
            body.append(I(f'v_cvt_pk_bf16_f32 v{O+d}, v{RS+2*d}, v{RS+2*d+1}'))
        for d in range(8):
            body.append(I(f'v_cndmask_b32 v{O+d}, v{O+d}, v{v_padv}, s[{s_pad}:{s_pad+1}]'))
        body.append(I(f'buffer_store_dwordx4 v[{O}:{O+3}], v{v_lane16}, s[{S_WS}:{S_WS+3}], s{s_stkv} offen'))
        body.append(I(f'buffer_store_dwordx4 v[{O+4}:{O+7}], v{v_lane16}, s[{S_WS}:{S_WS+3}], s{s_stkv} offen offset:1024'))
        return a, b + rd, body

    def spread(fill, items, st, en):
        n = en - st
        for k in range(n):
            fill[st + k] += items[len(items) * k // n: len(items) * (k + 1) // n]

    def stage(w_is_a, pat_cur, pat_next, pre, epi, extra0=()):
        fill = [[] for _ in range(28)]
        head = [[] for _ in range(28)]
        head[0] += list(extra0) + b_issue('dma:i0', True)
        head[7] += ctx_switch() + b_issue('dma:i1', True)
        head[14] += b_issue('dma:i2', True)
        head[21] += b_issue('dma:i3', True)
        cs, fin = cs_stream(pat_cur)
        if 'nocs' in EXP: cs, fin = [], []
        if 'noepi' in EXP: epi = None
        sl = 0
        for part in pre:
            fill[sl] += part; sl += 2
        if epi is not None:
            a, b, body = epi
            fill[sl] += a
            fill[sl + 2] += b
            spread(fill, body, sl + 5, 26)
        spread(fill, cs, 1, 16)
        spread(fill, fin, 18, 25)
        out = []
        for t in range(28):
            out += wread(t + 3, pat_cur, pat_next) + [mf(t, w_is_a)] + flat(head[t]) + flat(fill[t])
        out.append(I('s_barrier', needs=['lds:cs', 'dma:i0', 'dma:i1']))
        return out

    SA = [TP, TP + 4]
    def xread(t0, t1, g):
        o = []
        for t in range(t0, t1):
            a, u = t >> 2, t & 3
            if t == 16:
                for uu in range(4): o.append(I(f'v_add_u32 v{xr[uu]}, 0x10000, v{xr[uu]}'))
            off = (a * 16384) & 0xffff
            o.append(I(f'ds_read_b128 v[{XF+4*t}:{XF+4*t+3}], v{xr[u]} offset:{off}', gives=[g]))
        return o
    def stage0(ch):
        o = []
        groups = [
            (['g0'], xread(0, 8, 'rd:x0'), x_issue(4, 'g2') + x_issue(5, 'g2') + b_issue('g2')),
            (['g1', 'rd:x0'], xread(8, 16, 'rd:x1'), x_issue(6, 'g3') + b_issue('g3') + ctx_switch() + b_issue('g4')),
            (['g2', 'rd:x1'], xread(16, 24, 'rd:x2'), b_issue('g5') + b_issue('g5')),
            (['g3', 'g4', 'rd:x2'], xread(24, 28, 'rd:x3'), b_issue('g7') + ctx_switch() + b_issue('g8')),
        ]
        for j, (needs, xr_, iss) in enumerate(groups):
            o.append(I('s_barrier', needs=needs))
            if k1.STAMP and j in (0, 1, 2, 3):
                idx = {0: 5, 1: 10, 2: 11, 3: 12}[j]
                o += [I('s_memtime s[94:95]'), I('s_waitcnt lgkmcnt(0)'), I(f's_mov_b32 s{80+idx}, s94')]
            o += xr_
            for t in range(7 * j, 7 * j + 3): o += wread(t, v_patq, v_patn)
            o += iss
            cs, fin = (cs_stream(v_patq) if j == 3 else ([], []))
            if 'nocs' in EXP: cs, fin = [], []
            fill = [[] for _ in range(7)]
            if j == 3:
                spread(fill, cs, 0, 6)
            for k in range(7):
                t = 7 * j + k
                if k + 3 < 7: o += wread(t + 3, v_patq, v_patn)
                elif j == 3: o += wread(t + 3, v_patq, v_patn)
                o.append(mf(t, True))
                x = XF + 4 * t
                if 'nostat' not in EXP:
                    o.append(m44(SA[0], x, v_one if ch == 0 else x, t == 0))
                    o.append(m44(SA[1], x + 2, v_one if ch == 0 else x + 2, t == 0))
                o += flat(fill[k])
            o += flat(fin)
        for i in range(4):
            o.append(I(f'v_add_f32 v{SA[0]+i}, v{SA[0]+i}, v{SA[1]+i}'))
        if ch == 0:
            o.append(I(f'ds_write_b128 v{v_stw}, v[{SA[0]}:{SA[0]+3}]', gives=['lds:stat']))
        else:
            for i, msk in ((1, 0x22222222), (2, 0x44444444), (3, 0x88888888)):
                o.append(I(f's_mov_b32 s76, 0x{msk:08x}'))
                o.append(I(f's_mov_b32 s77, 0x{msk:08x}'))
                o.append(I(f'v_cndmask_b32 v{SA[0]}, v{SA[0]}, v{SA[0]+i}, s[76:77]'))
            o.append(I(f'ds_write_b32 v{v_stw}, v{SA[0]}', gives=['lds:stat']))
        o.append(I('s_barrier', needs=['lds:cs', 'lds:stat', 'g8', 'rd:x3']))
        return o

    p(f's_cmp_eq_u32 s{s_tb}, 0')
    p(f's_cbranch_scc1 {L("pn_a")}')
    p(f'v_mov_b32 v{v_patn}, v{v_patg}')
    p(f's_branch {L("pn_c")}')
    p.label(L('pn_a'))
    p(f'v_mov_b32 v{v_patn}, v{v_patq}')
    p.label(L('pn_c'))
    p(f's_cmp_eq_u32 s{s_ch}, 0')
    p(f's_cbranch_scc0 {L("st0b")}')
    p.add(stage0(0))
    p(f's_branch {L("st0c")}')
    p.label(L('st0b'))
    p.add(stage0(1))
    p.label(L('st0c'))
    stamp(p, 6)

    catchup = lambda: (b_issue('dma:c') + b_issue('dma:c')) if 'nodma' not in EXP else []
    p(f's_cmp_eq_u32 s{s_tb}, 0')
    p(f's_cbranch_scc0 {L("typeB")}')
    p.add(stage(False, v_patq, v_patg, list(stats_final(True)), e_qk(), catchup()))
    p.add(stage(True, v_patg, v_patg, [], e_vv()))
    p(f's_mov_b32 s{s_cnt}, 2')
    stamp(p, 7)
    p(f's_branch {L("guloop")}')
    p.label(L('typeB'))
    p.add(stage(True, v_patg, v_patg, list(stats_final(False)), e_qk(), catchup()))
    p(f's_mov_b32 s{s_cnt}, 3')
    stamp(p, 7)
    p.label(L('guloop'))
    p.add(stage(True, v_patg, v_patg, [], e_gu()))
    p(f's_sub_u32 s{s_cnt}, s{s_cnt}, 1')
    p(f's_cmp_lg_u32 s{s_cnt}, 0')
    p(f's_cbranch_scc1 {L("guloop")}')
    stamp(p, 8)
    a, b, body = e_gu()
    p.add(a + b + body)
    p('s_waitcnt vmcnt(0) lgkmcnt(0)')
    stamp(p, 9)
    stamp_store(p, S_WS, s_w, 0)
    p.label(L('end'))
    p('s_endpgm')
    desc = f"""
.amdhsa_kernel {name}
  .amdhsa_next_free_vgpr 256
  .amdhsa_next_free_sgpr 100
  .amdhsa_accum_offset 256
  .amdhsa_group_segment_fixed_size 0
  .amdhsa_kernarg_size 80
  .amdhsa_user_sgpr_count 2
  .amdhsa_user_sgpr_kernarg_segment_ptr 1
  .amdhsa_system_sgpr_workgroup_id_x 1
  .amdhsa_float_denorm_mode_32 3
.end_amdhsa_kernel
"""
    return p, desc
```

```python
from asmlib import *
import k1
from k1 import (WS_QF, WS_KV, WS_HF, WS_OF, WS_FLAG, WS_SIZE, SLOT, NSLOT, RING,
                LOG2E, CQ, hexf, flat, stamp, stamp_store)
from k0 import WS_XN
L_CSP = RING
L_CSF = L_CSP + 2048
L_STAT = L_CSF + 1024
L_TOK = L_STAT + 2048

def gen_k1(name):
    p = Prog()
    EXP = k1.EXP
    S_X, S_W, S_GU, S_WS = 8, 12, 16, 20
    s_w, s_r4, s_ch, s_rb, s_g, s_pr, s_tb, s_p0, s_reg = 30, 31, 32, 33, 34, 35, 36, 37, 38
    s_two = 39
    s_q = 40
    s_qk = 45
    s_left = 46
    s_dslot = 47
    s_rslot = 48
    s_cslot = 49
    s_hi = 50
    s_pad = 52
    s_t0, s_t1, s_t2, s_t3 = 55, 56, 57, 58
    s_so, s_s64, s_s112 = 59, 60, 54
    s_par = 61
    s_stq, s_stkv = 62, 63
    s_dsrd = 64
    s_sth = 68
    s_scq, s_padk, s_cnt = 69, 70, 71
    s_mo = 72
    s_j3 = 73
    v_lane16 = 1
    v_patq, v_patg = 2, 3
    v_wa = [4, 5]
    v_ca = 6
    v_dq, v_dg, v_dsel = 7, 8, 9
    v_csp_r, v_csp_w, v_csf_w, v_csf_r = 10, 11, 12, 13
    v_nmean, v_kk, v_vv, v_sc = 14, 15, 16, 17
    v_t = 18
    v_one = 26
    v_padv, v_tokr, v_stw, v_str = 28, 29, 30, 31
    CB = [32, 36]
    WF = [40, 44, 48, 52]
    ACCA, ACCB = 56, 72
    TP = 88
    XF = 128
    CA = [240, 244]
    v_patn = 248
    v_pf = 249
    xr = [250, 251, 252, 253]
    xa, xb = 254, 255
    L = lambda s: name + '_' + s
    uid = [0]

    p.label(name)
    p(f's_cmp_ge_u32 s2, 256')
    p(f's_cbranch_scc1 {L("end")}')
    stamp(p, 0)
    p('s_load_dwordx4 s[4:7], s[0:1], 0')
    p('s_load_dwordx4 s[24:27], s[0:1], 32')
    p('s_load_dwordx2 s[28:29], s[0:1], 72')
    p('s_getpc_b64 s[74:75]')
    lane, m, hh = v_t + 2, v_t + 3, v_t + 4
    p(f'v_and_b32 v{lane}, 63, v0')
    p(f'v_lshlrev_b32 v{v_t}, 6, v{lane}')
    p(f'v_lshrrev_b32 v{v_t+1}, 6, v0')
    p(f'v_readfirstlane_b32 s{s_w}, v{v_t+1}')
    p(f'v_lshlrev_b32 v{v_t+1}, 12, v{v_t+1}')
    p(f'v_add_u32 v{v_t}, v{v_t}, v{v_t+1}')
    p(f'global_load_dword v{v_pf}, v{v_t}, s[74:75]')
    p(f's_and_b32 s{s_t0}, s2, 1')
    p(f's_lshl_b32 s{s_t0}, s{s_t0}, 3')
    p(f's_bfe_u32 s{s_t1}, s2, 0x30003')
    p(f's_add_u32 s{s_rb}, s{s_t0}, s{s_t1}')
    p(f's_bfe_u32 s{s_t0}, s2, 0x20001')
    p(f's_lshl_b32 s{s_t0}, s{s_t0}, 2')
    p(f's_lshr_b32 s{s_t1}, s2, 6')
    p(f's_add_u32 s{s_g}, s{s_t0}, s{s_t1}')
    p(f's_lshr_b32 s{s_pr}, s{s_g}, 1')
    p(f's_and_b32 s{s_tb}, s{s_g}, 1')
    p(f's_and_b32 s{s_r4}, s{s_w}, 3')
    p(f's_lshr_b32 s{s_ch}, s{s_w}, 2')
    p(f's_lshr_b32 s{s_p0}, s{s_w}, 1')
    p(f's_and_b32 s{s_reg}, s{s_w}, 1')
    p(f'v_lshlrev_b32 v{v_lane16}, 4, v{lane}')
    p(f'v_and_b32 v{m}, 31, v0')
    p(f'v_bfe_u32 v{hh}, v0, 5, 1')
    p(f'v_lshrrev_b32 v{v_t}, 2, v{lane}')
    p(f'v_and_b32 v{v_t+1}, 3, v{lane}')
    p(f'v_mul_u32_u24 v{v_dq}, 2688, v{v_t}')
    p(f'v_lshlrev_b32 v{v_t+5}, 4, v{v_t+1}')
    p(f'v_add_u32 v{v_dq}, v{v_dq}, v{v_t+5}')
    p(f's_lshl_b32 s{s_t0}, s{s_reg}, 5')
    p(f'v_xor_b32 v{v_t+5}, s{s_t0}, v{v_t+5}')
    p(f'v_mul_u32_u24 v{v_dg}, 3584, v{v_t}')
    p(f'v_add_u32 v{v_dg}, v{v_dg}, v{v_t+5}')
    p(f's_lshl_b32 s{s_t2}, s{s_pr}, 1')
    p(f's_add_u32 s{s_t3}, s{s_t2}, s{s_tb}')
    p(f's_mul_i32 s{s_q}, s{s_t3}, 56')
    p(f's_mul_i32 s{s_t0}, s{s_reg}, 896')
    p(f's_add_u32 s{s_q}, s{s_q}, s{s_t0}')
    p(f's_mul_i32 s{s_t0}, s{s_pr}, 7')
    p(f's_mul_i32 s{s_t1}, s{s_tb}, 3')
    p(f's_add_u32 s{s_t0}, s{s_t0}, s{s_t1}')
    p(f's_mov_b32 s{s_cnt}, s{s_t0}')
    p(f's_lshl_b32 s{s_t0}, s{s_t0}, 6')
    p(f's_add_u32 s{s_t1}, s{s_t2}, s{s_reg}')
    p(f's_mul_i32 s{s_t1}, s{s_t1}, 56')
    p(f's_add_u32 s{s_t1}, s{s_t1}, 1792')
    p(f's_add_u32 s{s_so}, s{s_t0}, 64')
    p(f's_add_u32 s{s_s64}, s{s_t0}, 128')
    p(f's_add_u32 s{s_s112}, s{s_t0}, 192')
    p(f's_cmp_eq_u32 s{s_tb}, 0')
    p(f's_cselect_b32 s{s_q+1}, s{s_t1}, s{s_t0}')
    p(f's_cselect_b32 s{s_q+2}, s{s_t0}, s{s_so}')
    p(f's_cselect_b32 s{s_q+3}, s{s_so}, s{s_s64}')
    p(f's_cselect_b32 s{s_q+4}, s{s_s64}, s{s_s112}')
    p(f's_cselect_b32 s{s_qk}, 2, 1')
    p(f's_cmp_lt_u32 s{s_w}, 6')
    p(f's_cselect_b32 s{s_two}, 1, 0')
    p(f's_mul_i32 s{s_mo}, s{s_reg}, 7168')
    p(f's_lshl_b32 s{s_t0}, s{s_p0}, 10')
    p(f's_add_u32 s{s_mo}, s{s_mo}, s{s_t0}')
    p('s_waitcnt lgkmcnt(0)')
    stamp(p, 2)
    p(f's_mov_b32 s{S_X}, s4')
    p(f's_mov_b32 s{S_X+1}, s5')
    p(f's_mov_b32 s{S_X+2}, {2048*896}')
    p(f's_mov_b32 s{S_X+3}, 0x20000')
    p(f's_mov_b32 s{S_W}, s6')
    p(f's_mov_b32 s{S_W+1}, s7')
    p(f's_mov_b32 s{S_W+2}, {448*2688}')
    p(f's_mov_b32 s{S_W+3}, 0x20000')
    p(f's_cmp_eq_u32 s{s_reg}, 0')
    p(f's_cselect_b32 s{S_GU}, s24, s26')
    p(f's_cselect_b32 s{S_GU+1}, s25, s27')
    p(f's_mov_b32 s{S_GU+2}, {448*3584}')
    p(f's_mov_b32 s{S_GU+3}, 0x20000')
    p(f's_mov_b32 s{S_WS}, s28')
    p(f's_mov_b32 s{S_WS+1}, s29')
    p(f's_mov_b32 s{S_WS+2}, {WS_SIZE}')
    p(f's_mov_b32 s{S_WS+3}, 0x20000')

    s_x0, s_xm = 76, 78
    p(f's_lshl_b32 s{s_t0}, s{s_rb}, 2')
    p(f's_add_u32 s{s_t0}, s{s_t0}, s{s_r4}')
    p(f's_mul_i32 s{s_x0}, s{s_t0}, {28*1024}')
    p(f's_lshl_b32 s{s_t1}, s{s_ch}, 12')
    p(f's_add_u32 s{s_x0}, s{s_x0}, s{s_t1}')
    p(f's_add_u32 s{s_x0}, s{s_x0}, {WS_XN}')
    p(f's_mul_i32 s{s_xm}, s{s_r4}, 7168')
    p(f's_add_u32 s{s_xm}, s{s_xm}, s{s_t1}')
    def x_issue(j, g):
        if 'nox' in EXP: return []
        uid[0] += 1; u = uid[0]
        o = [I(f's_mov_b32 m0, s{s_xm}'),
             I(f's_add_u32 s{s_xm}, s{s_xm}, {2*SLOT}')]
        for q in range(3):
            o.append(I(f'buffer_load_dwordx4 v{v_lane16}, s[{S_WS}:{S_WS+3}], s{s_x0} offen offset:{q*1024} lds', gives=[g]))
        o += [I(f's_cmp_lg_u32 s{s_ch}, 0'),
              I(f's_cbranch_scc1 {L("xi%d" % u)}'),
              I(f'buffer_load_dwordx4 v{v_lane16}, s[{S_WS}:{S_WS+3}], s{s_x0} offen offset:3072 lds', gives=[g]),
              I(f'{L("xi%d" % u)}:'),
              I(f's_add_u32 s{s_x0}, s{s_x0}, 7168')]
        return o
    def ctx_switch():
        uid[0] += 1; u = uid[0]
        o = [I(f's_cmp_lg_u32 s{s_qk}, 0'),
             I(f's_cselect_b64 s[{s_dsrd}:{s_dsrd+1}], s[{S_W}:{S_W+1}], s[{S_GU}:{S_GU+1}]'),
             I(f's_cselect_b32 s{s_dsrd+2}, s{S_W+2}, s{S_GU+2}'),
             I(f's_mov_b32 s{s_dsrd+3}, 0x20000'),
             I(f's_movk_i32 s{s_t0}, 3584'),
             I(f's_cselect_b32 s{s_t0}, 2688, s{s_t0}'),
             I(f's_cbranch_scc1 {L("cx_q%d" % u)}'),
             I(f'v_mov_b32 v{v_dsel}, v{v_dg}'),
             I(f's_branch {L("cx_c%d" % u)}'),
             I(f'{L("cx_q%d" % u)}:'),
             I(f'v_mov_b32 v{v_dsel}, v{v_dq}'),
             I(f's_sub_u32 s{s_qk}, s{s_qk}, 1'),
             I(f'{L("cx_c%d" % u)}:'),
             I(f's_lshl_b32 s{s_s64}, s{s_t0}, 6'),
             I(f's_mul_i32 s{s_s112}, s{s_t0}, 112'),
             I(f's_mul_i32 s{s_so}, s{s_p0}, s{s_t0}'),
             I(f's_lshl_b32 s{s_so}, s{s_so}, 4'),
             I(f's_add_u32 s{s_so}, s{s_so}, s{s_q}')]
        for i in range(4):
            o.append(I(f's_mov_b32 s{s_q+i}, s{s_q+i+1}'))
        return o
    def b_issue(g, check=False):
        uid[0] += 1; u = uid[0]
        o = []
        if 'nodma' in EXP and check: return []
        if 'now' in EXP: return []
        if check:
            o += [I(f's_cmp_eq_u32 s{s_left}, 0'), I(f's_cbranch_scc1 {L("bi_d%d" % u)}'),
                  I(f's_sub_u32 s{s_left}, s{s_left}, 1')]
        o += [I(f's_add_u32 m0, s{s_dslot}, s{s_mo}'),
              I(f's_add_u32 s{s_dslot}, s{s_dslot}, {SLOT}'),
              I(f'buffer_load_dwordx4 v{v_dsel}, s[{s_dsrd}:{s_dsrd+3}], s{s_so} offen lds', gives=[g]),
              I(f's_cmp_eq_u32 s{s_two}, 0'),
              I(f's_cbranch_scc1 {L("bi_s%d" % u)}'),
              I('s_addk_i32 m0, 4096'),
              I(f's_add_u32 s{s_t0}, s{s_so}, s{s_s64}'),
              I(f'buffer_load_dwordx4 v{v_dsel}, s[{s_dsrd}:{s_dsrd+3}], s{s_t0} offen lds', gives=[g]),
              I(f'{L("bi_s%d" % u)}:'),
              I(f's_add_u32 s{s_so}, s{s_so}, s{s_s112}'),
              I(f's_cmp_ge_u32 s{s_dslot}, {RING}'),
              I(f's_cselect_b32 s{s_t0}, {RING}, 0'),
              I(f's_sub_u32 s{s_dslot}, s{s_dslot}, s{s_t0}')]
        if check: o.append(I(f'{L("bi_d%d" % u)}:'))
        return o

    stamp(p, 3)
    p(f's_mov_b32 s{s_dslot}, {8*SLOT}')
    p(f's_mov_b32 s{s_left}, 9')
    p.add(ctx_switch())
    p.add(x_issue(0, 'g0') + b_issue('g0'))
    stamp(p, 4)
    p.add(x_issue(1, 'g1') + b_issue('g1'))
    stamp(p, 1)

    p(f's_mov_b32 s{s_hi}, 0')
    p(f's_mov_b32 s{s_hi+1}, -1')
    p(f's_mov_b32 s{s_pad}, 0xf0000000')
    p(f's_mov_b32 s{s_pad+1}, 0xf0000000')
    p(f'v_mov_b32 v{v_one}, 0x3f803f80')
    p(f'v_mov_b32 v{v_one+1}, 0x3f803f80')
    p(f's_lshl_b32 s{s_t0}, s{s_rb}, 2')
    p(f's_add_u32 s{s_t0}, s{s_t0}, s{s_r4}')
    p(f's_lshl_b32 s{s_stq}, s{s_g}, 6')
    p(f's_add_u32 s{s_stq}, s{s_stq}, s{s_t0}')
    p(f's_add_u32 s{s_t1}, s{s_ch}, 11')
    p(f's_lshl_b32 s{s_stq}, s{s_stq}, s{s_t1}')
    p(f's_mul_i32 s{s_t1}, s{s_ch}, {WS_KV}')
    p(f's_add_u32 s{s_stq}, s{s_stq}, s{s_t1}')
    p(f's_lshl_b32 s{s_stkv}, s{s_pr}, 1')
    p(f's_add_u32 s{s_stkv}, s{s_stkv}, s{s_ch}')
    p(f's_lshl_b32 s{s_stkv}, s{s_stkv}, 6')
    p(f's_add_u32 s{s_stkv}, s{s_stkv}, s{s_t0}')
    p(f's_lshl_b32 s{s_stkv}, s{s_stkv}, 12')
    p(f's_add_u32 s{s_stkv}, s{s_stkv}, {WS_KV + 2048}')
    p(f's_mul_i32 s{s_sth}, s{s_t0}, 112')
    p(f's_lshl_b32 s{s_t1}, s{s_cnt}, 1')
    p(f's_add_u32 s{s_sth}, s{s_sth}, s{s_t1}')
    p(f's_add_u32 s{s_sth}, s{s_sth}, s{s_ch}')
    p(f's_lshl_b32 s{s_sth}, s{s_sth}, 10')
    p(f's_add_u32 s{s_sth}, s{s_sth}, {WS_HF}')
    p(f'v_bfe_u32 v{v_t}, v{lane}, 2, 2')
    p(f'v_lshlrev_b32 v{v_t+1}, 3, v{hh}')
    p(f'v_add_u32 v{v_t}, v{v_t}, v{v_t+1}')
    p(f'v_lshlrev_b32 v{v_t}, 6, v{v_t}')
    p(f'v_and_b32 v{v_t+1}, 3, v{lane}')
    p(f'v_lshlrev_b32 v{v_t+1}, 3, v{v_t+1}')
    p(f'v_add_u32 v{v_t}, v{v_t}, v{v_t+1}')
    p(f'v_bfe_u32 v{v_t+1}, v{lane}, 4, 1')
    p(f's_mul_i32 s{s_t0}, s{s_ch}, 7168')
    p(f'v_lshlrev_b32 v{v_t+5}, 5, v{v_t+1}')
    p(f'v_add_u32 v{v_patq}, v{v_t}, v{v_t+5}')
    p(f'v_add_u32 v{v_patq}, s{s_t0}, v{v_patq}')
    p(f'v_mul_u32_u24 v{v_patg}, 7168, v{v_t+1}')
    p(f'v_add_u32 v{v_patg}, v{v_patg}, v{v_t}')
    p(f'v_xor_b32 v{v_t+5}, s{s_ch}, v{v_t+1}')
    p(f'v_lshlrev_b32 v{v_t+5}, 5, v{v_t+5}')
    p(f'v_add_u32 v{v_patg}, v{v_patg}, v{v_t+5}')
    p(f'v_cmp_eq_u32 vcc, 28, v{m}')
    p(f'v_mov_b32 v{v_padv}, 0')
    p(f'v_cndmask_b32 v{v_padv}, v{v_padv}, v{v_one}, vcc')
    p(f's_cmp_eq_u32 s{s_ch}, 0')
    p(f's_cselect_b32 s{s_scq}, {hexf(CQ)}, 1.0')
    p(f's_cselect_b32 s{s_padk}, 0, 0x3f80')
    p(f's_mul_i32 s{s_t0}, s{s_r4}, 7168')
    p(f'v_add_u32 v{xr[0]}, s{s_t0}, v{v_lane16}')
    p(f'v_add_u32 v{xr[1]}, {4*SLOT}, v{xr[0]}')
    p(f's_mov_b32 s{s_rslot}, {8*SLOT}')
    def ring_adv(s):
        return [I(f's_add_u32 s{s}, s{s}, {SLOT}'),
                I(f's_cmp_ge_u32 s{s}, {RING}'),
                I(f's_cselect_b32 s{s_t1}, {RING}, 0'),
                I(f's_sub_u32 s{s}, s{s}, s{s_t1}')]
    def wread(t, pat_cur, pat_next):
        o = []
        tt = t % 28
        ks = tt % 7
        gsub = t // 7
        va = v_wa[gsub & 1]
        if ks == 0:
            pat = pat_cur if t < 28 else pat_next
            o.append(I(f'v_add_u32 v{va}, s{s_rslot}, v{pat}'))
            o += ring_adv(s_rslot)
        b = WF[t & 3]
        o.append(I(f'ds_read_b64_tr_b16 v[{b}:{b+1}], v{va} offset:{ks*1024}'))
        o.append(I(f'ds_read_b64_tr_b16 v[{b+2}:{b+3}], v{va} offset:{ks*1024+256}'))
        return o
    def mf(t, w_is_a):
        b = WF[t & 3]; x = XF + 4 * t
        d = ACCB if t == 27 else ACCA
        c = '0' if t == 0 else f'v[{ACCA}:{ACCA+15}]'
        if w_is_a: return I(f'v_mfma_f32_32x32x16_bf16 v[{d}:{d+15}], v[{b}:{b+3}], v[{x}:{x+3}], {c}')
        return I(f'v_mfma_f32_32x32x16_bf16 v[{d}:{d+15}], v[{x}:{x+3}], v[{b}:{b+3}], {c}')
    T2 = TP
    def e_gu():
        body = []
        G, U = ACCB, ACCB + 8
        for half in range(2):
            r0 = 4 * half
            ee = [T2 + i for i in range(4)]
            pp = [T2 + 4 + i for i in range(4)]
            for i in range(4):
                body.append(I(f'v_mul_f32 v{ee[i]}, {hexf(-LOG2E)}, v{G+r0+i}'))
            for i in range(4):
                body.append(I(f'v_exp_f32 v{ee[i]}, v{ee[i]}'))
                body.append(I(f'v_mul_f32 v{pp[i]}, v{G+r0+i}, v{U+r0+i}'))
            for i in range(4):
                body.append(I(f'v_add_f32 v{ee[i]}, 1.0, v{ee[i]}'))
            for i in range(4):
                body.append(I(f'v_rcp_f32 v{ee[i]}, v{ee[i]}'))
            for i in range(4):
                body.append(I(f'v_mul_f32 v{pp[i]}, v{pp[i]}, v{ee[i]}'))
            hp = T2 + 8 + 2 * half
            body.append(I(f'v_cvt_pk_bf16_f32 v{hp}, v{pp[0]}, v{pp[1]}'))
            body.append(I(f'v_cvt_pk_bf16_f32 v{hp+1}, v{pp[2]}, v{pp[3]}'))
        body.append(I(f'buffer_store_dwordx4 v[{T2+8}:{T2+11}], v{v_lane16}, s[{S_WS}:{S_WS+3}], s{s_sth} offen'))
        body.append(I(f's_add_u32 s{s_sth}, s{s_sth}, 2048'))
        return body

    def e_qk():
        body = []
        O = TP + 16
        for r in range(16):
            body.append(I(f'v_mul_f32 v{T2+r}, s{s_scq}, v{ACCB+r}'))
        for d in range(8):
            body.append(I(f'v_cvt_pk_bf16_f32 v{O+d}, v{T2+2*d}, v{T2+2*d+1}'))
        body.append(I(f'v_mov_b32 v{T2}, s{s_padk}'))
        body.append(I(f'v_mov_b32 v{T2+1}, 0'))
        body.append(I(f'v_cndmask_b32 v{O+6}, v{O+6}, v{T2}, s[{s_hi}:{s_hi+1}]'))
        body.append(I(f'v_cndmask_b32 v{O+7}, v{O+7}, v{T2+1}, s[{s_hi}:{s_hi+1}]'))
        body.append(I(f'buffer_store_dwordx4 v[{O}:{O+3}], v{v_lane16}, s[{S_WS}:{S_WS+3}], s{s_stq} offen'))
        body.append(I(f'buffer_store_dwordx4 v[{O+4}:{O+7}], v{v_lane16}, s[{S_WS}:{S_WS+3}], s{s_stq} offen offset:1024'))
        return body

    def e_vv():
        O = TP + 16
        body = []
        for d in range(8):
            body.append(I(f'v_cvt_pk_bf16_f32 v{O+d}, v{ACCB+2*d}, v{ACCB+2*d+1}'))
        for d in range(8):
            body.append(I(f'v_cndmask_b32 v{O+d}, v{O+d}, v{v_padv}, s[{s_pad}:{s_pad+1}]'))
        body.append(I(f'buffer_store_dwordx4 v[{O}:{O+3}], v{v_lane16}, s[{S_WS}:{S_WS+3}], s{s_stkv} offen'))
        body.append(I(f'buffer_store_dwordx4 v[{O+4}:{O+7}], v{v_lane16}, s[{S_WS}:{S_WS+3}], s{s_stkv} offen offset:1024'))
        return body

    def spread(fill, items, st, en):
        n = en - st
        for k in range(n):
            fill[st + k] += items[len(items) * k // n: len(items) * (k + 1) // n]

    def stage(w_is_a, pat_cur, pat_next, epi, extra0=()):
        fill = [[] for _ in range(28)]
        head = [[] for _ in range(28)]
        head[0] += list(extra0) + b_issue('dma:i0', True)
        head[7] += ctx_switch() + b_issue('dma:i1', True)
        head[14] += b_issue('dma:i2', True)
        head[21] += b_issue('dma:i3', True)
        if 'noepi' in EXP: epi = None
        if epi is not None: spread(fill, epi, 1, 26)
        out = []
        for t in range(28):
            out += wread(t + 3, pat_cur, pat_next) + [mf(t, w_is_a)] + flat(head[t]) + flat(fill[t])
        out.append(I('s_barrier', needs=['dma:i0', 'dma:i1']))
        return out

    def xread(j, g):
        o = []
        for k in range(7):
            t = 7 * j + k
            o.append(I(f'ds_read_b128 v[{XF+4*t}:{XF+4*t+3}], v{xr[j>>1]} offset:{(j&1)*2*SLOT + k*1024}', gives=[g]))
        return o
    def stage0():
        o = []
        groups = [
            (['g0'], xread(0, 'rd:x0'), x_issue(2, 'g2') + b_issue('g2')),
            (['g1', 'rd:x0'], xread(1, 'rd:x1'), x_issue(3, 'g3') + b_issue('g3') + ctx_switch() + b_issue('g4')),
            (['g2', 'rd:x1'], xread(2, 'rd:x2'), b_issue('g5') + b_issue('g5')),
            (['g3', 'g4', 'rd:x2'], xread(3, 'rd:x3'), b_issue('g7') + ctx_switch() + b_issue('g8')),
        ]
        for j, (needs, xr_, iss) in enumerate(groups):
            o.append(I('s_barrier', needs=needs))
            if k1.STAMP:
                idx = {0: 5, 1: 10, 2: 11, 3: 12}[j]
                o += [I('s_memtime s[94:95]'), I('s_waitcnt lgkmcnt(0)'), I(f's_mov_b32 s{80+idx}, s94')]
            for k in range(3):
                o.append(xr_[k]); o += wread(7 * j + k, v_patq, v_patn)
            o += xr_[3:]
            o += iss
            for k in range(7):
                t = 7 * j + k
                if k + 3 < 7 or j == 3: o += wread(t + 3, v_patq, v_patn)
                o.append(mf(t, True))
        o.append(I('s_barrier', needs=['g8', 'rd:x3']))
        return o

    p(f's_cmp_eq_u32 s{s_tb}, 0')
    p(f's_cbranch_scc1 {L("pn_a")}')
    p(f'v_mov_b32 v{v_patn}, v{v_patg}')
    p(f's_branch {L("pn_c")}')
    p.label(L('pn_a'))
    p(f'v_mov_b32 v{v_patn}, v{v_patq}')
    p.label(L('pn_c'))
    p.add(stage0())
    stamp(p, 6)
    catchup = lambda: (b_issue('dma:c') + b_issue('dma:c')) if 'nodma' not in EXP else []
    p(f's_cmp_eq_u32 s{s_tb}, 0')
    p(f's_cbranch_scc0 {L("typeB")}')
    p.add(stage(False, v_patq, v_patg, e_qk(), catchup()))
    p.add(stage(True, v_patg, v_patg, e_vv()))
    p(f's_mov_b32 s{s_cnt}, 2')
    stamp(p, 7)
    p(f's_branch {L("guloop")}')
    p.label(L('typeB'))
    p.add(stage(True, v_patg, v_patg, e_qk(), catchup()))
    p(f's_mov_b32 s{s_cnt}, 3')
    stamp(p, 7)
    p.label(L('guloop'))
    p.add(stage(True, v_patg, v_patg, e_gu()))
    p(f's_sub_u32 s{s_cnt}, s{s_cnt}, 1')
    p(f's_cmp_lg_u32 s{s_cnt}, 0')
    p(f's_cbranch_scc1 {L("guloop")}')
    stamp(p, 8)
    p('s_nop 7')
    p.add(e_gu())
    p('s_waitcnt vmcnt(0) lgkmcnt(0)')
    stamp(p, 9)
    stamp_store(p, S_WS, s_w, 0)
    p.label(L('end'))
    p('s_endpgm')
    desc = f"""
.amdhsa_kernel {name}
  .amdhsa_next_free_vgpr 256
  .amdhsa_next_free_sgpr 100
  .amdhsa_accum_offset 256
  .amdhsa_group_segment_fixed_size 0
  .amdhsa_kernarg_size 80
  .amdhsa_user_sgpr_count 2
  .amdhsa_user_sgpr_kernarg_segment_ptr 1
  .amdhsa_system_sgpr_workgroup_id_x 1
  .amdhsa_float_denorm_mode_32 3
.end_amdhsa_kernel
"""
    return p, desc
```

```python
from asmlib import *
import k1
from k1 import (WS_QF, WS_KV, WS_HF, WS_OF, WS_FLAG, SLOT, NSLOT, RING, LOG2E, CQ, hexf, flat, stamp, stamp_store)
from k0 import WS_XN

def gen_k1(name):
    p = Prog()
    EXP = k1.EXP
    WS_SIZE = k1.WS_SIZE
    S_W, S_G, S_U, S_WS = 8, 12, 16, 20
    s_w, s_r4, s_ch, s_rb, s_g, s_p, s_kind, s_ty = 30, 31, 32, 33, 34, 35, 36, 37
    s_two = 38
    s_q = 40
    s_qt = 45
    s_left = 50
    s_dslot, s_rslot = 51, 52
    s_hi, s_pad = 54, 56
    s_t0, s_t1, s_t2, s_t3 = 58, 59, 60, 61
    s_so, s_s64, s_s112 = 62, 63, 53
    s_dsrd = 64
    s_stq, s_stv, s_sth = 68, 69, 70
    s_scq, s_padk = 71, 72
    s_mo = 73
    s_x0, s_xm = 76, 77
    s_more = 78
    s_tso, s_tleft = 79, 39
    s_tsrd = 96
    s_ts112 = 29
    s_ri = 28
    v_lane16 = 1
    v_patq, v_patg = 2, 3
    v_wa = [4, 5]
    v_dq, v_dg, v_dsel = 7, 8, 9
    v_tq, v_tg, v_tsel = 10, 11, 12
    v_t = 18
    v_padv = 28
    v_patn = 29
    WF = [40, 44, 48, 52]
    ACCA, B1, B2 = 56, 72, 88
    TP = 104
    XF = 128
    xr = [240, 241]
    v_td = 242
    L = lambda s: name + '_' + s
    uid = [0]
    tdi = [0]
    def tdst():
        tdi[0] = (tdi[0] + 1) % 8
        return v_td + tdi[0]

    p.label(name)
    p(f's_cmp_ge_u32 s2, 256')
    p(f's_cbranch_scc1 {L("end")}')
    stamp(p, 0)
    p('s_load_dwordx2 s[6:7], s[0:1], 8')
    p('s_load_dwordx4 s[24:27], s[0:1], 32')
    p('s_load_dwordx2 s[4:5], s[0:1], 72')
    p('s_getpc_b64 s[74:75]')
    lane, m, hh = v_t + 2, v_t + 3, v_t + 4
    p(f'v_and_b32 v{lane}, 63, v0')
    p(f'v_lshrrev_b32 v{v_t+1}, 6, v0')
    p(f'v_readfirstlane_b32 s{s_w}, v{v_t+1}')
    p(f'v_lshlrev_b32 v{v_lane16}, 4, v{lane}')
    p(f'v_and_b32 v{m}, 31, v0')
    p(f'v_bfe_u32 v{hh}, v0, 5, 1')
    p(f's_bfe_u32 s{s_ri}, s2, 0x30003')
    p(f's_and_b32 s{s_t0}, s2, 1')
    p(f's_lshl_b32 s{s_t0}, s{s_t0}, 3')
    p(f's_add_u32 s{s_rb}, s{s_t0}, s{s_ri}')
    p(f's_bfe_u32 s{s_t0}, s2, 0x20001')
    p(f's_lshl_b32 s{s_t0}, s{s_t0}, 2')
    p(f's_lshr_b32 s{s_t1}, s2, 6')
    p(f's_add_u32 s{s_g}, s{s_t0}, s{s_t1}')
    p(f's_and_b32 s{s_r4}, s{s_w}, 3')
    p(f's_lshr_b32 s{s_ch}, s{s_w}, 2')
    p(f's_cmp_eq_u32 s{s_w}, 7')
    p(f's_cbranch_scc0 {L("nocp")}')
    p(f's_lshr_b32 s{s_t0}, s2, 3')
    p(f's_lshl_b32 s{s_t0}, s{s_t0}, 11')
    p(f'v_lshlrev_b32 v{v_t}, 7, v{lane}')
    p(f'v_add_u32 v{v_t}, s{s_t0}, v{v_t}')
    p('s_mov_b32 exec_lo, 0xffff')
    p('s_mov_b32 exec_hi, 0')
    p(f'global_load_dword v{tdst()}, v{v_t}, s[74:75]')
    p('s_mov_b64 exec, -1')
    p.label(L('nocp'))
    p(f's_cmp_lt_u32 s{s_g}, 4')
    p(f's_cbranch_scc0 {L("tyX")}')
    p(f's_mov_b32 s{s_ty}, 0')
    p(f's_mov_b32 s{s_p}, s{s_g}')
    p(f's_mov_b32 s{s_kind}, 0')
    p(f's_mul_i32 s{s_q}, s{s_p}, 112')
    p(f's_add_u32 s{s_q+1}, s{s_q}, 896')
    p(f's_add_u32 s{s_q+2}, s{s_q}, 1792')
    p(f's_lshl_b32 s{s_q+3}, s{s_g}, 7')
    p(f's_mov_b32 s{s_q+4}, s{s_q+3}')
    for i, k in enumerate((0, 0, 0, 1, 2)): p(f's_mov_b32 s{s_qt+i}, {k}')
    p(f's_mov_b32 s{s_t2}, s{s_g}')
    p(f's_branch {L("tyC")}')
    p.label(L('tyX'))
    p(f's_mov_b32 s{s_ty}, 1')
    p(f's_sub_u32 s{s_t0}, s{s_g}, 4')
    p(f's_mul_i32 s{s_t1}, s{s_t0}, 43')
    p(f's_lshr_b32 s{s_t1}, s{s_t1}, 7')
    p(f's_add_u32 s{s_p}, s{s_t1}, 4')
    p(f's_mul_i32 s{s_t1}, s{s_t1}, 3')
    p(f's_sub_u32 s{s_kind}, s{s_t0}, s{s_t1}')
    p(f's_mul_i32 s{s_q}, s{s_p}, 112')
    p(f's_mul_i32 s{s_t1}, s{s_kind}, 896')
    p(f's_add_u32 s{s_q}, s{s_q}, s{s_t1}')
    p(f's_lshl_b32 s{s_t2}, s{s_t0}, 1')
    p(f's_add_u32 s{s_t2}, s{s_t2}, 4')
    p(f's_lshl_b32 s{s_q+1}, s{s_t2}, 7')
    p(f's_mov_b32 s{s_q+2}, s{s_q+1}')
    p(f's_add_u32 s{s_q+3}, s{s_q+1}, 128')
    p(f's_mov_b32 s{s_q+4}, s{s_q+3}')
    for i, k in enumerate((0, 1, 2, 1, 2)): p(f's_mov_b32 s{s_qt+i}, {k}')
    p.label(L('tyC'))
    p(f's_lshl_b32 s{s_t0}, s{s_rb}, 2')
    p(f's_add_u32 s{s_t0}, s{s_t0}, s{s_r4}')
    p(f's_mul_i32 s{s_sth}, s{s_t0}, 112')
    p(f's_lshl_b32 s{s_t1}, s{s_t2}, 2')
    p(f's_add_u32 s{s_sth}, s{s_sth}, s{s_t1}')
    p(f's_lshl_b32 s{s_t1}, s{s_ch}, 1')
    p(f's_add_u32 s{s_sth}, s{s_sth}, s{s_t1}')
    p(f's_lshl_b32 s{s_sth}, s{s_sth}, 10')
    p(f's_add_u32 s{s_sth}, s{s_sth}, {WS_HF}')
    p(f's_lshl_b32 s{s_t1}, s{s_p}, 1')
    p(f's_add_u32 s{s_t1}, s{s_t1}, s{s_ch}')
    p(f's_lshl_b32 s{s_t1}, s{s_t1}, 6')
    p(f's_add_u32 s{s_t1}, s{s_t1}, s{s_t0}')
    s_stk = 95 if not k1.STAMP else 95
    s_stk = 74
    p(f's_lshl_b32 s{s_t3}, s{s_t1}, 12')
    p(f's_add_u32 s{s_stv}, s{s_t3}, {WS_KV + 2048}')
    p(f'v_bfe_u32 v{v_t}, v{lane}, 4, 1')
    p(f'v_lshlrev_b32 v{v_t}, 2, v{v_t}')
    p(f'v_and_b32 v{v_t+1}, 7, v{lane}')
    p(f'v_xor_b32 v{v_t}, v{v_t}, v{v_t+1}')
    p(f'v_lshlrev_b32 v{v_t}, 4, v{v_t}')
    p(f'v_lshrrev_b32 v{v_t+1}, 3, v{lane}')
    p(f'v_mul_u32_u24 v{v_dq}, 2688, v{v_t+1}')
    p(f'v_add_u32 v{v_dq}, v{v_dq}, v{v_t}')
    p(f'v_mul_u32_u24 v{v_dg}, 3584, v{v_t+1}')
    p(f'v_add_u32 v{v_dg}, v{v_dg}, v{v_t}')
    p(f'v_cmp_gt_u32 vcc, 14, v{lane}')
    p(f'v_subrev_u32 v{v_t}, 14, v{lane}')
    p(f'v_cndmask_b32 v{v_t}, v{v_t}, v{lane}, vcc')
    p(f'v_mul_u32_u24 v{v_tq}, 2688, v{v_t}')
    p(f'v_mov_b32 v{v_t+1}, 124')
    p(f'v_cndmask_b32 v{v_t+1}, v{v_t+1}, 0, vcc')
    p(f'v_add_u32 v{v_tq}, v{v_tq}, v{v_t+1}')
    p(f'v_mul_u32_u24 v{v_tg}, 3584, v{lane}')
    p(f's_cmp_lt_u32 s{s_w}, 6')
    p(f's_cselect_b32 s{s_two}, 1, 0')
    p(f's_lshl_b32 s{s_mo}, s{s_w}, 10')
    p('s_waitcnt lgkmcnt(0)')
    stamp(p, 2)
    for (Sd, lo, hi, size) in ((S_W, 6, 7, 448 * 2688), (S_G, 24, 25, 448 * 3584), (S_U, 26, 27, 448 * 3584), (S_WS, 4, 5, WS_SIZE)):
        p(f's_mov_b32 s{Sd}, s{lo}')
        p(f's_mov_b32 s{Sd+1}, s{hi}')
        p(f's_mov_b32 s{Sd+2}, {size}')
        p(f's_mov_b32 s{Sd+3}, 0x20000')
    p(f's_add_u32 s{s_stk}, s{s_t3}, {WS_KV}')
    p(f's_lshl_b32 s{s_stq}, s{s_t1}, 11')
    p(f's_add_u32 s{s_stq}, s{s_stq}, {WS_QF}')

    def sel_srd(kreg, dst):
        return [I(f's_cmp_eq_u32 s{kreg}, 1'),
                I(f's_cselect_b64 s[{dst}:{dst+1}], s[{S_G}:{S_G+1}], s[{S_U}:{S_U+1}]'),
                I(f's_cmp_eq_u32 s{kreg}, 0'),
                I(f's_cselect_b64 s[{dst}:{dst+1}], s[{S_W}:{S_W+1}], s[{dst}:{dst+1}]'),
                I(f's_cselect_b32 s{dst+2}, s{S_W+2}, s{S_G+2}'),
                I(f's_mov_b32 s{dst+3}, 0x20000')]
    def ctx_switch():
        uid[0] += 1; u = uid[0]
        o = sel_srd(s_qt, s_dsrd)
        o += [I(f's_movk_i32 s{s_t0}, 3584'),
              I(f's_cselect_b32 s{s_t0}, 2688, s{s_t0}'),
              I(f's_cbranch_scc1 {L("cx_q%d" % u)}'),
              I(f'v_mov_b32 v{v_dsel}, v{v_dg}'),
              I(f's_branch {L("cx_c%d" % u)}'),
              I(f'{L("cx_q%d" % u)}:'),
              I(f'v_mov_b32 v{v_dsel}, v{v_dq}'),
              I(f'{L("cx_c%d" % u)}:'),
              I(f's_lshl_b32 s{s_s64}, s{s_t0}, 6'),
              I(f's_mul_i32 s{s_s112}, s{s_t0}, 112'),
              I(f's_mul_i32 s{s_so}, s{s_w}, s{s_t0}'),
              I(f's_lshl_b32 s{s_so}, s{s_so}, 3'),
              I(f's_add_u32 s{s_so}, s{s_so}, s{s_q}')]
        for i in range(4):
            o.append(I(f's_mov_b32 s{s_q+i}, s{s_q+i+1}'))
            o.append(I(f's_mov_b32 s{s_qt+i}, s{s_qt+i+1}'))
        return o
    def b_issue(g, check=False):
        uid[0] += 1; u = uid[0]
        if 'nodma' in EXP and check: return []
        o = []
        if check:
            o += [I(f's_cmp_eq_u32 s{s_left}, 0'), I(f's_cbranch_scc1 {L("bi_d%d" % u)}'),
                  I(f's_sub_u32 s{s_left}, s{s_left}, 1')]
        o += [I(f's_add_u32 m0, s{s_dslot}, s{s_mo}'),
              I(f's_add_u32 s{s_dslot}, s{s_dslot}, {SLOT}'),
              I(f'buffer_load_dwordx4 v{v_dsel}, s[{s_dsrd}:{s_dsrd+3}], s{s_so} offen lds', gives=[g]),
              I(f's_cmp_eq_u32 s{s_two}, 0'),
              I(f's_cbranch_scc1 {L("bi_s%d" % u)}'),
              I('s_addk_i32 m0, 8192'),
              I(f's_add_u32 s{s_t0}, s{s_so}, s{s_s64}'),
              I(f'buffer_load_dwordx4 v{v_dsel}, s[{s_dsrd}:{s_dsrd+3}], s{s_t0} offen lds', gives=[g]),
              I(f'{L("bi_s%d" % u)}:'),
              I(f's_add_u32 s{s_so}, s{s_so}, s{s_s112}'),
              I(f's_cmp_ge_u32 s{s_dslot}, {RING}'),
              I(f's_cselect_b32 s{s_t0}, {RING}, 0'),
              I(f's_sub_u32 s{s_dslot}, s{s_dslot}, s{s_t0}')]
        if check: o.append(I(f'{L("bi_d%d" % u)}:'))
        return o
    def x_issue(j, g):
        uid[0] += 1; u = uid[0]
        o = [I(f's_mov_b32 m0, s{s_xm}'),
             I(f's_add_u32 s{s_xm}, s{s_xm}, {2*SLOT}')]
        for q in range(3):
            o.append(I(f'buffer_load_dwordx4 v{v_lane16}, s[{S_WS}:{S_WS+3}], s{s_x0} offen offset:{q*1024} lds', gives=[g]))
        o += [I(f's_cmp_lg_u32 s{s_ch}, 0'),
              I(f's_cbranch_scc1 {L("xi%d" % u)}'),
              I(f'buffer_load_dwordx4 v{v_lane16}, s[{S_WS}:{S_WS+3}], s{s_x0} offen offset:3072 lds', gives=[g]),
              I(f'{L("xi%d" % u)}:'),
              I(f's_add_u32 s{s_x0}, s{s_x0}, 7168')]
        return o

    s_sq = 80 if not k1.STAMP else 100
    def stage_touch(qreg, kreg, gives=()):
        uid[0] += 1; u = uid[0]
        o = sel_srd(kreg, s_tsrd)
        o += [I(f's_movk_i32 s{s_t0}, 3584'),
              I(f's_cselect_b32 s{s_t0}, 2688, s{s_t0}'),
              I(f's_mul_i32 s{s_t2}, s{s_ri}, 56'),
              I(f's_mul_i32 s{s_t3}, s{s_w}, 7'),
              I(f's_add_u32 s{s_t2}, s{s_t2}, s{s_t3}'),
              I(f's_mul_i32 s{s_t2}, s{s_t2}, s{s_t0}'),
              I(f's_add_u32 s{s_t2}, s{s_t2}, s{qreg}'),
              I(f's_cmp_eq_u32 s{kreg}, 0'),
              I(f's_cbranch_scc0 {L("tg%d" % u)}'),
              I('s_mov_b32 exec_lo, 0x1fc07f'), I('s_mov_b32 exec_hi, 0'),
              I(f'buffer_load_dword v{tdst()}, v{v_tq}, s[{s_tsrd}:{s_tsrd+3}], s{s_t2} offen', gives=gives),
              I(f's_branch {L("tc%d" % u)}'),
              I(f'{L("tg%d" % u)}:'),
              I('s_mov_b32 exec_lo, 0x7f'), I('s_mov_b32 exec_hi, 0'),
              I(f'buffer_load_dword v{tdst()}, v{v_tg}, s[{s_tsrd}:{s_tsrd+3}], s{s_t2} offen', gives=gives),
              I(f'{L("tc%d" % u)}:'),
              I('s_mov_b64 exec, -1')]
        return o

    p(f's_lshl_b32 s{s_t0}, s{s_rb}, 2')
    p(f's_add_u32 s{s_t0}, s{s_t0}, s{s_r4}')
    p(f's_mul_i32 s{s_x0}, s{s_t0}, {28*1024}')
    p(f's_lshl_b32 s{s_t1}, s{s_ch}, 12')
    p(f's_add_u32 s{s_x0}, s{s_x0}, s{s_t1}')
    p(f's_add_u32 s{s_x0}, s{s_x0}, {WS_XN}')
    p(f's_mul_i32 s{s_xm}, s{s_r4}, 7168')
    p(f's_add_u32 s{s_xm}, s{s_xm}, s{s_t1}')
    if 'notouch' not in EXP:
        p(f's_lshl_b32 s{s_t0}, s{s_rb}, 2')
        p(f's_and_b32 s{s_t1}, s{s_g}, 3')
        p(f's_add_u32 s{s_t0}, s{s_t0}, s{s_t1}')
        p(f's_mul_i32 s{s_t0}, s{s_t0}, {28*1024}')
        p(f's_mul_i32 s{s_t1}, s{s_w}, {28*128}')
        p(f's_add_u32 s{s_t0}, s{s_t0}, s{s_t1}')
        p(f's_add_u32 s{s_t0}, s{s_t0}, {WS_XN}')
        p(f'v_lshlrev_b32 v{v_t}, 7, v{lane}')
        p('s_mov_b32 exec_lo, 0x0fffffff')
        p('s_mov_b32 exec_hi, 0')
        p(f'buffer_load_dword v{tdst()}, v{v_t}, s[{S_WS}:{S_WS+3}], s{s_t0} offen', gives=['touch'])
        p('s_mov_b64 exec, -1')
        p.add(stage_touch(s_q, s_qt, ['touch']))
        stamp(p, 3)
        if 'waitpf' in EXP:
            p.add([I('s_nop 0', needs=['touch'])])
    stamp(p, 4)
    p(f's_mov_b32 s{s_dslot}, {8*SLOT}')
    p(f's_mov_b32 s{s_left}, 9')
    p.add(ctx_switch())
    p.add(x_issue(0, 'g0') + b_issue('g0'))
    p.add(x_issue(1, 'g1') + b_issue('g1'))
    if 'notouch' not in EXP:
        p.add(stage_touch(s_q, s_qt))
        if 'late2' not in EXP: p.add(stage_touch(s_q + 1, s_qt + 1))
    stamp(p, 1)

    p(f's_mov_b32 s{s_hi}, 0')
    p(f's_mov_b32 s{s_hi+1}, -1')
    p(f's_mov_b32 s{s_pad}, 0xf0000000')
    p(f's_mov_b32 s{s_pad+1}, 0xf0000000')
    def mkpat(dst, b0mul):
        p(f'v_bfe_u32 v{v_t}, v{lane}, 2, 2')
        p(f'v_lshlrev_b32 v{v_t+1}, 3, v{hh}')
        p(f'v_add_u32 v{v_t+1}, v{v_t+1}, v{v_t}')
        p(f'v_lshlrev_b32 v{dst}, 7, v{v_t+1}')
        p(f'v_bfe_u32 v{v_t+1}, v{lane}, 4, 1')
        p(f'v_lshlrev_b32 v{v_t+1}, 5, v{v_t+1}')
        p(f'v_and_b32 v{v_t+5}, 3, v{lane}')
        p(f'v_lshlrev_b32 v{v_t+5}, 3, v{v_t+5}')
        p(f'v_add_u32 v{v_t+1}, v{v_t+1}, v{v_t+5}')
        p(f's_mul_i32 s{s_t0}, s{s_ch}, {b0mul}')
        p(f'v_add_u32 v{v_t+1}, s{s_t0}, v{v_t+1}')
        p(f'v_lshrrev_b32 v{v_t}, 1, v{v_t}')
        p(f'v_lshlrev_b32 v{v_t}, 6, v{v_t}')
        p(f'v_xor_b32 v{v_t+1}, v{v_t+1}, v{v_t}')
        p(f'v_add_u32 v{dst}, v{dst}, v{v_t+1}')
    mkpat(v_patq, 56)
    mkpat(v_patg, 64)
    p(f'v_cmp_eq_u32 vcc, 28, v{m}')
    p(f'v_mov_b32 v{v_padv}, 0')
    p(f'v_mov_b32 v{v_t}, 0x3f803f80')
    p(f'v_cndmask_b32 v{v_padv}, v{v_padv}, v{v_t}, vcc')
    p(f's_mul_i32 s{s_t0}, s{s_r4}, 7168')
    p(f'v_add_u32 v{xr[0]}, s{s_t0}, v{v_lane16}')
    p(f'v_add_u32 v{xr[1]}, {4*SLOT}, v{xr[0]}')
    p(f's_mov_b32 s{s_rslot}, {8*SLOT}')

    def ring_adv(s):
        return [I(f's_add_u32 s{s}, s{s}, {SLOT}'),
                I(f's_cmp_ge_u32 s{s}, {RING}'),
                I(f's_cselect_b32 s{s_t1}, {RING}, 0'),
                I(f's_sub_u32 s{s}, s{s}, s{s_t1}')]
    def wread(t, pat_cur, pat_next):
        o = []
        ks = (t % 28) % 7
        va = v_wa[(t // 7) & 1]
        if ks == 0:
            pat = pat_cur if t < 28 else pat_next
            o.append(I(f'v_add_u32 v{va}, s{s_rslot}, v{pat}'))
            o += ring_adv(s_rslot)
        b = WF[t & 3]
        o.append(I(f'ds_read_b64_tr_b16 v[{b}:{b+1}], v{va} offset:{ks*2048}'))
        o.append(I(f'ds_read_b64_tr_b16 v[{b+2}:{b+3}], v{va} offset:{ks*2048+512}'))
        return o
    def mf(t, w_is_a, dst):
        b = WF[t & 3]; x = XF + 4 * t
        d = dst if t == 27 else ACCA
        c = '0' if t == 0 else f'v[{ACCA}:{ACCA+15}]'
        if w_is_a: return I(f'v_mfma_f32_32x32x16_bf16 v[{d}:{d+15}], v[{b}:{b+3}], v[{x}:{x+3}], {c}')
        return I(f'v_mfma_f32_32x32x16_bf16 v[{d}:{d+15}], v[{x}:{x+3}], v[{b}:{b+3}], {c}')

    def e_gu():
        body = []
        for qd in range(4):
            r0 = 4 * qd
            ee = [TP + i for i in range(4)]
            pp = [TP + 4 + i for i in range(4)]
            for i in range(4):
                body.append(I(f'v_mul_f32 v{ee[i]}, {hexf(-LOG2E)}, v{B1+r0+i}'))
            for i in range(4):
                body.append(I(f'v_exp_f32 v{ee[i]}, v{ee[i]}'))
                body.append(I(f'v_mul_f32 v{pp[i]}, v{B1+r0+i}, v{B2+r0+i}'))
            for i in range(4):
                body.append(I(f'v_add_f32 v{ee[i]}, 1.0, v{ee[i]}'))
            for i in range(4):
                body.append(I(f'v_rcp_f32 v{ee[i]}, v{ee[i]}'))
            for i in range(4):
                body.append(I(f'v_mul_f32 v{pp[i]}, v{pp[i]}, v{ee[i]}'))
            hp = TP + 8 + 2 * qd
            body.append(I(f'v_cvt_pk_bf16_f32 v{hp}, v{pp[0]}, v{pp[1]}'))
            body.append(I(f'v_cvt_pk_bf16_f32 v{hp+1}, v{pp[2]}, v{pp[3]}'))
            if qd & 1:
                body.append(I(f'buffer_store_dwordx4 v[{hp-2}:{hp+1}], v{v_lane16}, s[{S_WS}:{S_WS+3}], s{s_sth} offen offset:{(qd>>1)*1024}'))
        body.append(I(f's_add_u32 s{s_sth}, s{s_sth}, 4096'))
        return body
    def e_qk():
        body = []
        O = TP + 16
        for r in range(16):
            body.append(I(f'v_mul_f32 v{TP+r}, s{s_scq}, v{B2+r}'))
        for d in range(8):
            body.append(I(f'v_cvt_pk_bf16_f32 v{O+d}, v{TP+2*d}, v{TP+2*d+1}'))
        body.append(I(f'v_mov_b32 v{TP}, s{s_padk}'))
        body.append(I(f'v_mov_b32 v{TP+1}, 0'))
        body.append(I(f'v_cndmask_b32 v{O+6}, v{O+6}, v{TP}, s[{s_hi}:{s_hi+1}]'))
        body.append(I(f'v_cndmask_b32 v{O+7}, v{O+7}, v{TP+1}, s[{s_hi}:{s_hi+1}]'))
        body.append(I(f'buffer_store_dwordx4 v[{O}:{O+3}], v{v_lane16}, s[{S_WS}:{S_WS+3}], s{s_stq} offen'))
        body.append(I(f'buffer_store_dwordx4 v[{O+4}:{O+7}], v{v_lane16}, s[{S_WS}:{S_WS+3}], s{s_stq} offen offset:1024'))
        body.append([I(f's_mov_b32 s{s_scq}, 1.0'), I(f's_mov_b32 s{s_padk}, 0x3f80'), I(f's_mov_b32 s{s_stq}, s{s_stk}')])
        return body
    def e_vv():
        O = TP + 16
        body = []
        for d in range(8):
            body.append(I(f'v_cvt_pk_bf16_f32 v{O+d}, v{B2+2*d}, v{B2+2*d+1}'))
        for d in range(8):
            body.append(I(f'v_cndmask_b32 v{O+d}, v{O+d}, v{v_padv}, s[{s_pad}:{s_pad+1}]'))
        body.append(I(f'buffer_store_dwordx4 v[{O}:{O+3}], v{v_lane16}, s[{S_WS}:{S_WS+3}], s{s_stv} offen'))
        body.append(I(f'buffer_store_dwordx4 v[{O+4}:{O+7}], v{v_lane16}, s[{S_WS}:{S_WS+3}], s{s_stv} offen offset:1024'))
        return body
    def spread(fill, items, st, en):
        n = en - st
        for k in range(n):
            fill[st + k] += items[len(items) * k // n: len(items) * (k + 1) // n]
    def stage(w_is_a, dst, pat_cur, pat_next, epi, extra0=(), touch=()):
        fill = [[] for _ in range(28)]
        head = [[] for _ in range(28)]
        head[0] += list(extra0) + b_issue('dma:i0', True)
        head[3] += list(touch)
        head[7] += ctx_switch() + b_issue('dma:i1', True)
        head[14] += b_issue('dma:i2', True)
        head[21] += b_issue('dma:i3', True)
        if 'noepi' in EXP: epi = None
        if epi is not None: spread(fill, epi, 1, 26)
        out = []
        for t in range(28):
            out += wread(t + 3, pat_cur, pat_next) + [mf(t, w_is_a, dst)] + flat(head[t]) + flat(fill[t])
        out.append(I('s_barrier', needs=['dma:i0', 'dma:i1']))
        return out
    def xread(j, g):
        return [I(f'ds_read_b128 v[{XF+4*(7*j+k)}:{XF+4*(7*j+k)+3}], v{xr[j>>1]} offset:{(j&1)*2*SLOT + k*1024}', gives=[g]) for k in range(7)]
    def stage0(w_is_a, pat_next):
        o = []
        groups = [
            (['g0'], xread(0, 'rd:x0'), x_issue(2, 'g2') + b_issue('g2')),
            (['g1', 'rd:x0'], xread(1, 'rd:x1'), x_issue(3, 'g3') + b_issue('g3') + ctx_switch() + b_issue('g4') +
                 (stage_touch(s_q + 1, s_qt + 1) if 'notouch' not in EXP else [])),
            (['g2', 'rd:x1'], xread(2, 'rd:x2'), b_issue('g5') + b_issue('g5')),
            (['g3', 'g4', 'rd:x2'], xread(3, 'rd:x3'), b_issue('g7') + ctx_switch() + b_issue('g8') +
                 (stage_touch(s_q + 1, s_qt + 1) if 'notouch' not in EXP else [])),
        ]
        for j, (needs, xr_, iss) in enumerate(groups):
            o.append(I('s_barrier', needs=needs))
            if k1.STAMP:
                idx = {0: 5, 1: 10, 2: 11, 3: 12}[j]
                o += [I('s_memtime s[94:95]'), I('s_waitcnt lgkmcnt(0)'), I(f's_mov_b32 s{80+idx}, s94')]
            for k in range(3):
                o.append(xr_[k]); o += wread(7 * j + k, v_patq, pat_next)
            o += xr_[3:]
            o += iss
            for k in range(7):
                t = 7 * j + k
                if k + 3 < 7 or j == 3: o += wread(t + 3, v_patq, pat_next)
                o.append(mf(t, w_is_a, B2))
        o.append(I('s_barrier', needs=['g8', 'rd:x3']))
        return o

    catchup = lambda: (b_issue('dma:c') + b_issue('dma:c')) if 'nodma' not in EXP else []
    p(f's_cmp_eq_u32 s{s_kind}, 1')
    p(f's_cselect_b32 s{s_scq}, 1.0, {hexf(CQ)}')
    p(f's_cselect_b32 s{s_padk}, 0x3f80, 0')
    p(f's_cselect_b32 s{s_stq}, s{s_stk}, s{s_stq}')
    p(f's_mov_b32 s{s_more}, s{s_ty}')
    p(f's_cmp_eq_u32 s{s_ty}, 0')
    p(f's_cbranch_scc1 {L("seqY")}')
    p(f's_cmp_eq_u32 s{s_kind}, 2')
    p(f's_cbranch_scc1 {L("seqXV")}')
    p.add(stage0(True, v_patg))
    stamp(p, 6)
    p.add(stage(True, B1, v_patg, v_patg, e_qk(), catchup()))
    p(f's_branch {L("bU")}')
    p.label(L('seqXV'))
    p.add(stage0(False, v_patg))
    stamp(p, 6)
    p.add(stage(True, B1, v_patg, v_patg, e_vv(), catchup()))
    p(f's_branch {L("bU")}')
    p.label(L('seqY'))
    p.add(stage0(True, v_patq))
    stamp(p, 6)
    p.add(stage(True, B2, v_patq, v_patq, e_qk(), catchup()))
    p.add(stage(False, B2, v_patq, v_patg, e_qk()))
    p.add(stage(True, B1, v_patg, v_patg, e_vv()))
    p.label(L('bU'))
    p.add(stage(True, B2, v_patg, v_patg, None))
    stamp(p, 7)
    p(f's_cmp_eq_u32 s{s_more}, 0')
    p(f's_cbranch_scc1 {L("fin")}')
    p(f's_mov_b32 s{s_more}, 0')
    p.add(stage(True, B1, v_patg, v_patg, e_gu()))
    p(f's_branch {L("bU")}')
    p.label(L('fin'))
    stamp(p, 8)
    p('s_nop 7')
    p.add(flat(e_gu()))
    p('s_waitcnt vmcnt(0) lgkmcnt(0)')
    stamp(p, 9)
    stamp_store(p, S_WS, s_w, 0)
    p.label(L('end'))
    p('s_endpgm')
    desc = f"""
.amdhsa_kernel {name}
  .amdhsa_next_free_vgpr 256
  .amdhsa_next_free_sgpr 102
  .amdhsa_accum_offset 256
  .amdhsa_group_segment_fixed_size 0
  .amdhsa_kernarg_size 80
  .amdhsa_user_sgpr_count 2
  .amdhsa_user_sgpr_kernarg_segment_ptr 1
  .amdhsa_system_sgpr_workgroup_id_x 1
  .amdhsa_float_denorm_mode_32 3
.end_amdhsa_kernel
"""
    return p, desc
```

```python
from asmlib import *
import k1
from k1 import stamp, stamp_store
from k1 import WS_QF, WS_KV, WS_HF, WS_OF, WS_FLAG, WS_SIZE, hexf, flat

KVSLOT = 16384
KVN = 4
G0 = KVSLOT * KVN
KPI = 6
GA = 2 * KPI * 1024
GSLOT = GA + KPI * 2048
GN = 3
NG = 16
REST = 112 - NG * KPI
MARGIN = 64.0
T_A = 0
T_B = 32768
T_WO = 65536
T_OX = G0 + GN * GSLOT
T_CNT = T_OX + 16384
T_O = 0

def gen_k2(name):
    p = Prog()
    L = lambda s: name + '_' + s
    S_WS, S_WD, S_WO, S_X, S_OUT = 8, 12, 16, 20, 24
    s_w, s_hd, s_qb, s_tm, s_tn, s_wm, s_wn, s_qt, s_kh = 30, 31, 32, 33, 34, 35, 36, 37, 67
    s_hi = 38
    s_t0, s_t1, s_t2, s_t3 = 40, 41, 42, 43
    s_i = 44
    s_kvs, s_kvn, s_kvg = 45, 46, 47
    s_gs, s_gd, s_gg, s_gstep, s_gadv = 48, 49, 50, 51, 52
    s_soff, s_ost, s_flag = 53, 54, 55
    s_dsrd = 56
    s_gring, s_xo, s_gem = 64, 65, 66
    v_a, v_b, v_ha, v_wa, v_db = 2, 3, 4, 5, 6
    Q, KB, VB, S, P, O = 8, [16, 24], [32, 40], [48, 64], 80, 96
    HB = [88, 92]
    ACC = 112
    WB = [128, 132, 136]
    XR = 140
    T = 148
    v_pw, v_hb, v_xa, v_bp = 160, 161, 162, 163
    OFR = 164

    p.label(name)
    p('s_cmp_ge_u32 s2, 256')
    p(f's_cbranch_scc1 {L("end")}')
    stamp(p, 0)
    p('s_load_dwordx2 s[4:5], s[0:1], 0')
    p('s_load_dwordx2 s[6:7], s[0:1], 16')
    p('s_load_dwordx4 s[60:63], s[0:1], 48')
    p('s_load_dwordx2 s[28:29], s[0:1], 72')
    p('s_getpc_b64 s[74:75]')
    p(f'v_and_b32 v{T}, 63, v0')
    p(f'v_lshrrev_b32 v{T+2}, 6, v0')
    p(f'v_readfirstlane_b32 s{s_w}, v{T+2}')
    p(f's_cmp_eq_u32 s{s_w}, 7')
    p(f's_cbranch_scc0 {L("nocp")}')
    p(f's_lshr_b32 s{s_t0}, s2, 3')
    p(f's_lshl_b32 s{s_t0}, s{s_t0}, 11')
    p(f'v_lshlrev_b32 v{T+1}, 7, v{T}')
    p(f'v_add_u32 v{T+1}, s{s_t0}, v{T+1}')
    p('s_mov_b32 exec_lo, 0xffff')
    p('s_mov_b32 exec_hi, 0')
    p(f'global_load_dword v{T+3}, v{T+1}, s[74:75]')
    p('s_mov_b64 exec, -1')
    p.label(L('nocp'))
    p(f'v_lshlrev_b32 v1, 4, v{T}')
    p(f's_and_b32 s{s_hd}, s2, 15')
    p(f's_lshr_b32 s{s_qb}, s2, 4')
    p(f's_and_b32 s{s_qt}, s{s_w}, 3')
    p(f's_lshr_b32 s{s_kh}, s{s_w}, 2')
    p(f's_lshr_b32 s{s_wm}, s{s_qt}, 1')
    p(f's_and_b32 s{s_wn}, s{s_qt}, 1')
    p(f's_mov_b32 s{s_hi}, 0')
    p(f's_mov_b32 s{s_hi+1}, -1')
    p(f's_lshr_b32 s{s_t0}, s2, 3')
    p(f's_mul_i32 s{s_t1}, s{s_t0}, 37')
    p(f's_lshr_b32 s{s_t1}, s{s_t1}, 8')
    p(f's_mul_i32 s{s_t2}, s{s_t1}, 7')
    p(f's_sub_u32 s{s_tn}, s{s_t0}, s{s_t2}')
    p(f's_and_b32 s{s_tm}, s2, 7')
    p(f's_lshl_b32 s{s_tm}, s{s_tm}, 2')
    p(f's_add_u32 s{s_tm}, s{s_tm}, s{s_t1}')
    p('s_cmp_lt_u32 s2, 224')
    p(f's_cselect_b32 s{s_gem}, 1, 0')
    p('s_waitcnt lgkmcnt(0)')
    for (Sd, lo, hi, size) in ((S_WS, 28, 29, WS_SIZE), (S_WD, 60, 61, 1792 * 896), (S_WO, 6, 7, 448 * 896), (S_X, 4, 5, 2048 * 896), (S_OUT, 62, 63, 2048 * 896)):
        p(f's_mov_b32 s{Sd}, s{lo}')
        p(f's_mov_b32 s{Sd+1}, s{hi}')
        p(f's_mov_b32 s{Sd+2}, {size}')
        p(f's_mov_b32 s{Sd+3}, 0x20000')
    p(f's_lshl_b32 s{s_kvg}, s{s_hd}, 18')
    p(f's_lshl_b32 s{s_kvs}, s{s_w}, 11')
    p(f's_add_u32 s{s_kvg}, s{s_kvg}, s{s_kvs}')
    p(f's_add_u32 s{s_kvg}, s{s_kvg}, {WS_KV}')
    def kv_issue():
        return [[I(f's_mov_b32 m0, s{s_kvs}'),
                 I(f's_add_u32 s{s_kvs}, s{s_kvs}, {KVSLOT}'),
                 I(f'buffer_load_dwordx4 v1, s[{S_WS}:{S_WS+3}], s{s_kvg} offen lds')],
                [I(f'buffer_load_dwordx4 v1, s[{S_WS}:{S_WS+3}], s{s_kvg} offen offset:1024 lds'),
                 I(f's_add_u32 s{s_kvg}, s{s_kvg}, {KVSLOT}'),
                 I(f's_and_b32 s{s_kvs}, s{s_kvs}, {KVSLOT*KVN-1}')]]
    kv0, kv1 = kv_issue(), kv_issue()
    for a in kv0:
        for x in a:
            if x.kind == 'dma': x.gives = ['kv0']
    p.add(flat(kv0))
    p(f's_lshl_b32 s{s_t0}, s{s_hd}, 6')
    p(f's_lshl_b32 s{s_t1}, s{s_qb}, 2')
    p(f's_add_u32 s{s_t1}, s{s_t1}, s{s_qt}')
    p(f's_add_u32 s{s_t0}, s{s_t0}, s{s_t1}')
    p(f's_lshl_b32 s{s_t0}, s{s_t0}, 11')
    p(f'buffer_load_dwordx4 v[{Q}:{Q+3}], v1, s[{S_WS}:{S_WS+3}], s{s_t0} offen')
    p(f'buffer_load_dwordx4 v[{Q+4}:{Q+7}], v1, s[{S_WS}:{S_WS+3}], s{s_t0} offen offset:1024')
    p.add(flat(kv1))
    s_oo = 68
    p(f's_lshl_b32 s{s_oo}, s{s_t1}, 5')
    p(f's_lshl_b32 s{s_t2}, s{s_hd}, 1')
    p(f's_add_u32 s{s_oo}, s{s_oo}, s{s_t2}')
    p(f's_lshl_b32 s{s_oo}, s{s_oo}, 10')
    p(f's_add_u32 s{s_oo}, s{s_oo}, {WS_OF}')
    p(f's_cmp_eq_u32 s{s_gem}, 0')
    p(f's_cbranch_scc1 {L("nogsetup")}')
    lane, m, hh = T, T + 4, T + 5
    p(f'v_and_b32 v{m}, 31, v0')
    p(f'v_bfe_u32 v{hh}, v0, 5, 1')
    p(f'v_lshrrev_b32 v{T+6}, 3, v{lane}')
    p(f'v_mul_u32_u24 v{T+6}, 896, v{T+6}')
    p(f'v_bfe_u32 v{T+7}, v{lane}, 4, 1')
    p(f'v_lshlrev_b32 v{T+7}, 2, v{T+7}')
    p(f'v_and_b32 v{T+8}, 7, v{lane}')
    p(f'v_xor_b32 v{T+7}, v{T+7}, v{T+8}')
    p(f'v_lshlrev_b32 v{T+7}, 4, v{T+7}')
    p(f'v_add_u32 v{v_bp}, v{T+6}, v{T+7}')
    p(f's_cmp_ge_u32 s{s_w}, 4')
    p(f's_cbranch_scc1 {L("setB")}')
    p(f'v_mov_b32 v{v_db}, v1')
    p(f's_lshr_b32 s{s_t2}, s{s_w}, 1')
    p(f's_lshl_b32 s{s_t0}, s{s_tm}, 1')
    p(f's_add_u32 s{s_t0}, s{s_t0}, s{s_t2}')
    p(f's_mul_i32 s{s_gg}, s{s_t0}, {112*1024}')
    p(f's_and_b32 s{s_t3}, s{s_w}, 1')
    p(f's_mul_i32 s{s_t3}, s{s_t3}, {KPI//2*1024}')
    p(f's_add_u32 s{s_gg}, s{s_gg}, s{s_t3}')
    p(f's_add_u32 s{s_gg}, s{s_gg}, {WS_HF}')
    p(f's_mov_b32 s{s_gstep}, 1024')
    p(f's_mov_b32 s{s_gadv}, {KPI*1024}')
    p(f's_mul_i32 s{s_gd}, s{s_t2}, {KPI*1024}')
    p(f's_add_u32 s{s_gd}, s{s_gd}, s{s_t3}')
    p(f's_mov_b64 s[{s_dsrd}:{s_dsrd+1}], s[{S_WS}:{S_WS+1}]')
    p(f's_mov_b32 s{s_dsrd+2}, {WS_SIZE}')
    p(f's_branch {L("setC")}')
    p.label(L('setB'))
    p(f'v_mov_b32 v{v_db}, v{v_bp}')
    p(f's_sub_u32 s{s_t0}, s{s_w}, 4')
    p(f's_mul_i32 s{s_gg}, s{s_t0}, {KPI*4*896}')
    p(f's_lshl_b32 s{s_t1}, s{s_tn}, 7')
    p(f's_add_u32 s{s_gg}, s{s_gg}, s{s_t1}')
    p(f's_mov_b32 s{s_gstep}, {8*896}')
    p(f's_mov_b32 s{s_gadv}, {KPI*16*896}')
    p(f's_mul_i32 s{s_gd}, s{s_t0}, {KPI*4*128}')
    p(f's_add_u32 s{s_gd}, s{s_gd}, {GA}')
    p(f's_mov_b64 s[{s_dsrd}:{s_dsrd+1}], s[{S_WD}:{S_WD+1}]')
    p(f's_mov_b32 s{s_dsrd+2}, {1792*896}')
    p.label(L('setC'))
    p(f's_mov_b32 s{s_dsrd+3}, 0x20000')
    p(f's_add_u32 s{s_gd}, s{s_gd}, {G0}')
    p(f's_mov_b32 s{s_gring}, {GSLOT}')
    NGI = KPI // 2
    def g_issue():
        o = []
        for q in range(NGI):
            a = []
            if q == 0:
                a += [I(f's_add_u32 m0, s{s_gd}, s{s_gring}'), I(f's_mov_b32 s{s_soff}, s{s_gg}')]
            else:
                a += [I('s_addk_i32 m0, 1024'), I(f's_add_u32 s{s_soff}, s{s_soff}, s{s_gstep}')]
            a.append(I(f'buffer_load_dwordx4 v{v_db}, s[{s_dsrd}:{s_dsrd+3}], s{s_soff} offen lds'))
            if q == NGI - 1:
                a += [I(f's_add_u32 s{s_gg}, s{s_gg}, s{s_gadv}'),
                      I(f's_add_u32 s{s_gring}, s{s_gring}, {GSLOT}'),
                      I(f's_cmp_eq_u32 s{s_gring}, {GN*GSLOT}'),
                      I(f's_cselect_b32 s{s_gring}, 0, s{s_gring}')]
            o.append(a)
        return o
    p(f's_lshl_b32 s{s_t0}, s{s_tm}, 6')
    p(f's_lshl_b32 s{s_t1}, s{s_wm}, 5')
    p(f's_add_u32 s{s_t0}, s{s_t0}, s{s_t1}')
    p(f's_mul_i32 s{s_t0}, s{s_t0}, 896')
    p(f's_lshl_b32 s{s_t1}, s{s_tn}, 7')
    p(f's_lshl_b32 s{s_t2}, s{s_wn}, 6')
    p(f's_add_u32 s{s_t0}, s{s_t0}, s{s_t1}')
    p(f's_add_u32 s{s_ost}, s{s_t0}, s{s_t2}')
    p(f'v_mul_u32_u24 v{v_xa}, 896, v{m}')
    p(f'v_lshlrev_b32 v{T+6}, 3, v{hh}')
    p(f'v_add_u32 v{v_xa}, v{v_xa}, v{T+6}')
    p(f's_lshl_b32 s{s_t0}, s{s_kh}, 5')
    p(f's_add_u32 s{s_ost}, s{s_ost}, s{s_t0}')
    p(f'v_bfe_u32 v{T+6}, v{lane}, 2, 2')
    p(f'v_lshlrev_b32 v{T+7}, 2, v{hh}')
    p(f'v_add_u32 v{T+7}, v{T+7}, v{T+6}')
    p(f'v_lshlrev_b32 v{v_pw}, 7, v{T+7}')
    p(f'v_lshrrev_b32 v{T+6}, 1, v{T+6}')
    p(f'v_xor_b32 v{T+6}, s{s_wn}, v{T+6}')
    p(f'v_lshlrev_b32 v{T+6}, 6, v{T+6}')
    p(f'v_add_u32 v{v_pw}, v{v_pw}, v{T+6}')
    p(f'v_bfe_u32 v{T+6}, v{lane}, 4, 1')
    p(f'v_lshlrev_b32 v{T+6}, 5, v{T+6}')
    p(f'v_add_u32 v{v_pw}, v{v_pw}, v{T+6}')
    p(f'v_and_b32 v{T+6}, 3, v{lane}')
    p(f'v_lshlrev_b32 v{T+6}, 3, v{T+6}')
    p(f'v_add_u32 v{v_pw}, v{v_pw}, v{T+6}')
    p(f's_mul_i32 s{s_t0}, s{s_wm}, {KPI*1024}')
    p(f's_mul_i32 s{s_t1}, s{s_kh}, {KPI//2*1024}')
    p(f's_add_u32 s{s_t0}, s{s_t0}, s{s_t1}')
    p(f'v_add_u32 v{v_hb}, s{s_t0}, v1')
    for r in range(16): p(f'v_mov_b32 v{ACC+r}, 0')
    p(f's_mov_b32 s{s_gs}, {G0 + GSLOT}')
    p.label(L('nogsetup'))

    for r in range(16): p(f'v_mov_b32 v{O+r}, 0')
    for r in range(4): p(f'v_mov_b32 v{P+4+r}, 0')
    for r in range(4): p(f'v_mov_b32 v{VB[1]+4+r}, 0')
    p(f's_lshl_b32 s{s_t0}, s{s_kh}, 13')
    p(f'v_add_u32 v{v_a}, s{s_t0}, v1')
    p(f'v_add_u32 v{v_b}, {KVSLOT}, v{v_a}')
    p(f's_add_u32 s{s_kvn}, s{s_t0}, {2*KVSLOT}')
    stamp(p, 1)
    p.add([I('s_barrier', needs=['kv0'])])
    stamp(p, 2)
    def rdK(buf, va, off):
        return [I(f'ds_read_b128 v[{buf}:{buf+3}], v{va} offset:{off}'),
                I(f'ds_read_b128 v[{buf+4}:{buf+7}], v{va} offset:{off+1024}')]
    def rdV(buf, va, off, g=()):
        return [I(f'ds_read_b128 v[{buf}:{buf+3}], v{va} offset:{off+2048}', gives=g),
                I(f'ds_read_b128 v[{buf+4}:{buf+7}], v{va} offset:{off+3072}', gives=g)]
    KT = WB[0]
    p.add(rdK(KT, 1, 0) + rdK(KB[0], v_a, 0) + rdK(KB[1], v_a, 4096) + rdV(VB[0], v_a, 0))
    p(f's_cmp_eq_u32 s{s_gem}, 0')
    p(f's_cbranch_scc1 {L("nog1")}')
    p.add(flat(g_issue()))
    for i in range(2):
        p(f'buffer_load_dwordx2 v[{XR+2*i}:{XR+2*i+1}], v{v_xa}, s[{S_X}:{S_X+3}], s{s_ost} offen offset:{16*i}')
    p.label(L('nog1'))
    p.add(flat(kv_issue()))
    p(f's_cmp_eq_u32 s{s_gem}, 0')
    p(f's_cbranch_scc1 {L("nog2")}')
    p.add(flat(g_issue()))
    p.label(L('nog2'))
    def mS(dst, kb, part):
        c = '0' if part == 0 else f'v[{dst}:{dst+15}]'
        return I(f'v_mfma_f32_32x32x16_bf16 v[{dst}:{dst+15}], v[{kb+4*part}:{kb+4*part+3}], v[{Q+4*part}:{Q+4*part+3}], {c}')
    def mPV(vb, part):
        return I(f'v_mfma_f32_32x32x16_bf16 v[{O}:{O+15}], v[{vb+4*part}:{vb+4*part+3}], v[{P+4*part}:{P+4*part+3}], v[{O}:{O+15}]')
    p.add([mS(S[1], KT, 0), mS(S[1], KT, 1)])
    s0 = S[1]
    p(f'v_max3_f32 v{T}, v{s0}, v{s0+1}, v{s0+2}')
    p(f'v_max3_f32 v{T+1}, v{s0+3}, v{s0+4}, v{s0+5}')
    p(f'v_max3_f32 v{T+2}, v{s0+6}, v{s0+7}, v{s0+8}')
    p(f'v_max3_f32 v{T+3}, v{s0+9}, v{s0+10}, v{s0+11}')
    p(f'v_max3_f32 v{T}, v{T}, v{s0+12}, v{s0+13}')
    p(f'v_max3_f32 v{T+1}, v{T+1}, v{s0+14}, v{s0+15}')
    p(f'v_max3_f32 v{T}, v{T}, v{T+1}, v{T+2}')
    p(f'v_max_f32 v{T}, v{T}, v{T+3}')
    p(f'v_mov_b32 v{T+1}, v{T}')
    p(f'v_permlane32_swap_b32 v{T}, v{T+1}')
    p(f'v_max_f32 v{T}, v{T}, v{T+1}')
    p(f'v_add_f32 v{T}, {hexf(MARGIN)}, v{T}')
    p(f'v_sub_f32 v{T}, 0, v{T}')
    p(f'v_mov_b32 v{T+1}, 0')
    p(f'v_cvt_pk_bf16_f32 v{T}, v{T}, v{T+1}')
    p(f'v_cndmask_b32 v{Q+6}, v{Q+6}, v{T}, s[{s_hi}:{s_hi+1}]')
    p.add([mS(S[0], KB[0], 0), mS(S[0], KB[0], 1)])
    p('s_nop 12')

    def period(t, rk, rv, do_s=True, x1=(), x2=(), x3=(), x4=()):
        cur, nxt = S[t & 1], S[(t + 1) & 1]
        E = lambda r: I(f'v_exp_f32 v{cur+r}, v{cur+r}')
        C = lambda d: I(f'v_cvt_pk_bf16_f32 v{P+d}, v{cur+2*d}, v{cur+2*d+1}')
        o = []
        o += [E(0), E(1)]
        o += [mPV(VB[(t - 1) & 1], 1)]
        o += rk[:1] + [E(2), E(3)] + rk[1:] + [C(0), C(1)] + flat(list(x1))
        if do_s: o += [mS(nxt, KB[(t + 1) & 1], 0)]
        o += [E(4), E(5)] + rv[:1] + [E(6), E(7)] + rv[1:] + [C(2), C(3)] + flat(list(x2))
        if do_s: o += [mS(nxt, KB[(t + 1) & 1], 1)]
        o += [E(8), E(9), E(10), E(11), C(4), C(5)] + flat(list(x3))
        o += [mPV(VB[t & 1], 0)]
        o += [E(12), E(13), E(14), E(15), C(6), C(7)] + flat(list(x4))
        return o

    def g_reads(q):
        hb, wb = HB[q & 1], WB[q % 3]
        return [I(f'ds_read_b128 v[{hb}:{hb+3}], v{v_ha} offset:{q*1024}'),
                I(f'ds_read_b64_tr_b16 v[{wb}:{wb+1}], v{v_wa} offset:{q*2048}'),
                I(f'ds_read_b64_tr_b16 v[{wb+2}:{wb+3}], v{v_wa} offset:{q*2048+1024}')]
    def g_mfma(q):
        hb, wb = HB[q & 1], WB[q % 3]
        return I(f'v_mfma_f32_32x32x16_bf16 v[{ACC}:{ACC+15}], v[{wb}:{wb+3}], v[{hb}:{hb+3}], v[{ACC}:{ACC+15}]')
    def g_addr():
        return [I(f'v_add_u32 v{v_ha}, s{s_gs}, v{v_hb}'),
                I(f's_mul_i32 s{s_t0}, s{s_kh}, {KPI//2*2048}'),
                I(f's_add_u32 s{s_t0}, s{s_t0}, s{s_gs}'),
                I(f's_add_u32 s{s_t0}, s{s_t0}, {GA}'),
                I(f'v_add_u32 v{v_wa}, s{s_t0}, v{v_pw}'),
                I(f's_add_u32 s{s_gs}, s{s_gs}, {GSLOT}'),
                I(f's_cmp_ge_u32 s{s_gs}, {G0 + GN*GSLOT}'),
                I(f's_cselect_b32 s{s_gs}, {G0}, s{s_gs}')]

    def body(gem, kvi, gi, last):
        kv = kv_issue() if kvi else [[], []]
        gs = g_issue() if (gem and gi) else [[], [], []]
        o = []
        if gem: o += g_addr() + g_reads(0) + g_reads(1)
        if not last:
            o += period(0, rdK(KB[0], v_b, 0), rdV(VB[1], v_a, 4096, ['rd:old']),
                        x1=kv[0], x2=([g_mfma(0)] + g_reads(2) if gem else []) + kv[1], x3=gs[0], x4=([g_mfma(1)] if gem else []) + gs[1])
            o += period(1, rdK(KB[1], v_b, 4096), rdV(VB[0], v_b, 0),
                        x1=gs[2], x2=[g_mfma(2)] if gem else [])
            o += [I(f'v_mov_b32 v{v_a}, v{v_b}'),
                  I(f'v_add_u32 v{v_b}, s{s_kvn}, v1'),
                  I(f's_add_u32 s{s_kvn}, s{s_kvn}, {KVSLOT}'),
                  I(f's_and_b32 s{s_t1}, s{s_kvn}, {KVSLOT*KVN}'),
                  I(f's_sub_u32 s{s_kvn}, s{s_kvn}, s{s_t1}')]
        else:
            o += period(0, [], rdV(VB[1], v_a, 4096), x2=([g_mfma(0)] + g_reads(2) if gem else []), x4=([g_mfma(1)] if gem else []))
            o += period(1, [], [], do_s=False, x2=[g_mfma(2)] if gem else [])
            o += [mPV(VB[1], 1)]
        return o

    for gem in (1, 0):
        sfx = 'g' if gem else 'n'
        if gem:
            p(f's_cmp_eq_u32 s{s_gem}, 0')
            p(f's_cbranch_scc1 {L("loop_pre_n")}')
        else:
            p.label(L('loop_pre_n'))
        nb = (2 + NGI) if gem else 2
        p(f's_mov_b32 s{s_i}, 13')
        stamp(p, 3)
        p.label(L('aloop' + sfx))
        p(f's_waitcnt vmcnt({nb})')
        p.add([I('s_barrier', needs=['rd:old'])])
        p.add(body(gem, True, True, False))
        p(f's_sub_u32 s{s_i}, s{s_i}, 1')
        p(f's_cmp_lg_u32 s{s_i}, 0')
        p(f's_cbranch_scc1 {L("aloop" + sfx)}')
        p(f's_waitcnt vmcnt({nb})')
        p.add([I('s_barrier', needs=['rd:old'])])
        p.add(body(gem, False, True, False))
        p(f's_waitcnt vmcnt({NGI if gem else 0})')
        p.add([I('s_barrier')])
        p.add(body(gem, False, False, False))
        p('s_waitcnt vmcnt(0)')
        p.add([I('s_barrier')])
        p.add(body(gem, False, False, True))
        stamp(p, 4)
        if gem: p(f's_branch {L("tail")}')
    p.label(L('tail'))
    p(f's_lshl_b32 s{s_t0}, s{s_qt}, 12')
    p(f's_add_u32 s{s_xo}, s{s_t0}, {T_OX}')
    p(f'v_add_u32 v{T+8}, s{s_xo}, v1')
    p(f's_cmp_eq_u32 s{s_kh}, 0')
    p(f's_cbranch_scc1 {L("k0a")}')
    for i in range(4):
        p.add([I(f'ds_write_b128 v{T+8}, v[{O+4*i}:{O+4*i+3}] offset:{i*1024}', gives=['lds:ox'])])
    p(f's_branch {L("k0b")}')
    p.label(L('k0a'))
    p(f'v_mov_b32 v{T}, {T_CNT}')
    p(f'v_mov_b32 v{T+1}, 0')
    p.add([I(f'ds_write_b32 v{T}, v{T+1}', gives=['lds:ox'])])
    p.label(L('k0b'))
    p('s_waitcnt lgkmcnt(0)')
    p.add([I('s_barrier')])
    p(f's_cmp_eq_u32 s{s_kh}, 0')
    p(f's_cbranch_scc1 {L("epi0")}')
    p(f's_cmp_eq_u32 s{s_gem}, 0')
    p(f's_cbranch_scc1 {L("fin")}')
    p(f's_lshl_b32 s{s_t0}, s{s_tm}, 1')
    p(f's_add_u32 s{s_t0}, s{s_t0}, s{s_wm}')
    p(f's_mul_i32 s{s_soff}, s{s_t0}, {112*1024}')
    p(f's_lshl_b32 s{s_t1}, s{s_wn}, 13')
    p(f's_add_u32 s{s_soff}, s{s_soff}, s{s_t1}')
    p(f's_add_u32 s{s_soff}, s{s_soff}, {WS_HF + NG*KPI*1024}')
    p(f's_lshl_b32 s{s_t0}, s{s_qt}, 13')
    p(f's_add_u32 m0, s{s_t0}, {T_A}')
    for q in range(8):
        if q == 4:
            p('s_addk_i32 m0, 4096')
            p(f's_add_u32 s{s_soff}, s{s_soff}, 4096')
        p(f'buffer_load_dwordx4 v1, s[{S_WS}:{S_WS+3}], s{s_soff} offen offset:{(q&3)*1024} lds')
    p(f's_mul_i32 s{s_soff}, s{s_qt}, {64*896}')
    p(f's_lshl_b32 s{s_t1}, s{s_tn}, 7')
    p(f's_add_u32 s{s_soff}, s{s_soff}, s{s_t1}')
    p(f's_add_u32 s{s_soff}, s{s_soff}, {NG*KPI*16*896}')
    p(f's_add_u32 m0, s{s_t0}, {T_B}')
    for q in range(8):
        p(f'buffer_load_dwordx4 v{v_bp}, s[{S_WD}:{S_WD+3}], s{s_soff} offen lds')
        if q < 7:
            p('s_addk_i32 m0, 1024')
            p(f's_add_u32 s{s_soff}, s{s_soff}, {8*896}')
    p(f's_mul_i32 s{s_soff}, s{s_qt}, {112*896}')
    p(f's_add_u32 s{s_soff}, s{s_soff}, s{s_t1}')
    p(f's_mul_i32 s{s_t0}, s{s_qt}, 14336')
    p(f's_add_u32 m0, s{s_t0}, {T_WO}')
    for q in range(15):
        if q == 14:
            p(f's_cmp_eq_u32 s{s_qt}, 3')
            p(f's_cbranch_scc0 {L("gtail")}')
        p(f'buffer_load_dwordx4 v{v_bp}, s[{S_WO}:{S_WO+3}], s{s_soff} offen lds')
        if q < 14:
            p('s_addk_i32 m0, 1024')
            p(f's_add_u32 s{s_soff}, s{s_soff}, {8*896}')
    p(f's_branch {L("gtail")}')
    p.label(L('epi0'))
    for i in range(4):
        p(f'ds_read_b128 v[{S[0]+4*i}:{S[0]+4*i+3}], v{T+8} offset:{i*1024}')
    for r in range(16):
        p(f'v_add_f32 v{O+r}, v{O+r}, v{S[0]+r}')
    stamp(p, 5)
    def get_l():
        return [I(f'v_mov_b32 v{T}, v{O+12}'), I(f'v_mov_b32 v{T+1}, v{O+12}'),
                I(f'v_permlane32_swap_b32 v{T}, v{T+1}')]
    p.add(get_l())
    p(f'v_mul_f32 v{T+2}, 0, v{O}')
    for r in range(1, 16):
        p(f'v_fma_f32 v{T+2}, v{O+r}, 0, v{T+2}')
    p(f'v_add_f32 v{T+2}, v{T+2}, v{T+1}')
    p(f'v_mov_b32 v{T+3}, {hexf(2.0**-80)}')
    p(f'v_mov_b32 v{T+4}, 0x7f800000')
    p(f'v_cmp_ge_f32 s[{s_t0}:{s_t0+1}], v{T+2}, v{T+3}')
    p(f'v_cmp_lt_f32 vcc, v{T+2}, v{T+4}')
    p(f's_and_b64 vcc, vcc, s[{s_t0}:{s_t0+1}]')
    p(f's_cmp_eq_u64 vcc, -1')
    p(f's_cbranch_scc0 {L("slow")}')
    p.label(L('astore'))
    p(f'v_rcp_f32 v{T+2}, v{T+1}')
    for r in range(16):
        p(f'v_mul_f32 v{O+r}, v{O+r}, v{T+2}')
    for d in range(8):
        p(f'v_cvt_pk_bf16_f32 v{P+d}, v{O+2*d}, v{O+2*d+1}')
    p(f'v_mov_b32 v{T}, 0')
    p(f'v_cndmask_b32 v{P+6}, v{P+6}, v{T}, s[{s_hi}:{s_hi+1}]')
    p(f'v_cndmask_b32 v{P+7}, v{P+7}, v{T}, s[{s_hi}:{s_hi+1}]')
    p(f'buffer_store_dwordx4 v[{P}:{P+3}], v1, s[{S_WS}:{S_WS+3}], s{s_oo} offen sc1')
    p(f'buffer_store_dwordx4 v[{P+4}:{P+7}], v1, s[{S_WS}:{S_WS+3}], s{s_oo} offen offset:1024 sc1')
    p('s_waitcnt vmcnt(0)')
    stamp(p, 6)
    p(f'v_mov_b32 v{T}, {T_CNT}')
    p(f'v_mov_b32 v{T+1}, 1')
    p(f's_mov_b64 s[{s_t0}:{s_t0+1}], exec')
    p('s_mov_b64 exec, 1')
    p(f'ds_add_rtn_u32 v{T+2}, v{T}, v{T+1}')
    p('s_waitcnt lgkmcnt(0)')
    p(f'v_readfirstlane_b32 s{s_t2}, v{T+2}')
    p(f's_cmp_eq_u32 s{s_t2}, 3')
    p(f's_cbranch_scc0 {L("noflag")}')
    p(f's_lshl_b32 s{s_t2}, s2, 2')
    p(f's_add_u32 s{s_t2}, s{s_t2}, {WS_FLAG}')
    p(f'v_mov_b32 v{T}, 0')
    p(f'buffer_store_dword v{T+1}, v{T}, s[{S_WS}:{S_WS+3}], s{s_t2} offen sc1')
    p.label(L('noflag'))
    p(f's_mov_b64 exec, s[{s_t0}:{s_t0+1}]')
    p(f's_cmp_eq_u32 s{s_gem}, 0')
    p(f's_cbranch_scc1 {L("fin")}')

    p.label(L('gtail'))
    p('s_waitcnt vmcnt(0)')
    p.add([I('s_barrier')])
    stamp(p, 7)
    HR = REST // 2
    p(f's_mul_i32 s{s_t0}, s{s_wm}, {REST*1024}')
    p(f's_mul_i32 s{s_t1}, s{s_kh}, {HR*1024}')
    p(f's_add_u32 s{s_t0}, s{s_t0}, s{s_t1}')
    p(f's_add_u32 s{s_t0}, s{s_t0}, {T_A}')
    p(f'v_add_u32 v{v_ha}, s{s_t0}, v1')
    p(f's_mul_i32 s{s_t1}, s{s_kh}, {HR*2048}')
    p(f's_add_u32 s{s_t1}, s{s_t1}, {T_B}')
    p(f'v_add_u32 v{v_wa}, s{s_t1}, v{v_pw}')
    p(f's_lshr_b32 s{s_t0}, s{s_tm}, 1')
    p(f's_lshl_b32 s{s_t0}, s{s_t0}, 6')
    p(f's_add_u32 s{s_flag}, s{s_t0}, {WS_FLAG}')
    p(f'v_and_b32 v{T}, 15, v0')
    p(f'v_lshlrev_b32 v{T}, 2, v{T}')
    p(f'buffer_load_dword v{T+1}, v{T}, s[{S_WS}:{S_WS+3}], s{s_flag} offen sc1')
    p.add(g_reads(0) + g_reads(1))
    for q in range(HR):
        p.add([g_mfma(q)])
        if q + 2 < HR: p.add(g_reads(q + 2))
    p(f's_mov_b32 s{s_i}, 0x200000')
    p.label(L('poll'))
    p('s_waitcnt vmcnt(0)')
    p(f'v_cmp_eq_u32 vcc, 1, v{T+1}')
    p('s_cmp_eq_u64 vcc, -1')
    p(f's_cbranch_scc1 {L("polled")}')
    p(f'buffer_load_dword v{T+1}, v{T}, s[{S_WS}:{S_WS+3}], s{s_flag} offen sc1')
    p(f's_sub_u32 s{s_i}, s{s_i}, 1')
    p(f's_cmp_lg_u32 s{s_i}, 0')
    p(f's_cbranch_scc1 {L("poll")}')
    p.label(L('polled'))
    stamp(p, 8)
    p(f's_lshl_b32 s{s_t0}, s{s_tm}, 1')
    p(f's_add_u32 s{s_t0}, s{s_t0}, s{s_wm}')
    p(f's_lshl_b32 s{s_t0}, s{s_t0}, 15')
    p(f's_lshl_b32 s{s_t1}, s{s_kh}, 14')
    p(f's_add_u32 s{s_t0}, s{s_t0}, s{s_t1}')
    p(f's_add_u32 s{s_t0}, s{s_t0}, {WS_OF}')
    for ks in range(16):
        p(f'buffer_load_dwordx4 v[{OFR+4*ks}:{OFR+4*ks+3}], v1, s[{S_WS}:{S_WS+3}], s{s_t0} offen offset:{(ks&3)*1024} sc1')
        if ks & 3 == 3: p(f's_add_u32 s{s_t0}, s{s_t0}, 4096')
    p(f's_mul_i32 s{s_t1}, s{s_kh}, {8*28*128}')
    p(f's_add_u32 s{s_t1}, s{s_t1}, {T_WO}')
    p(f'v_add_u32 v{v_wa}, s{s_t1}, v{v_pw}')
    def rdw(ks):
        h, t = ks >> 1, ks & 1
        row = 28 * h + 16 * t
        wb = WB[ks % 3]
        return [I(f'ds_read_b64_tr_b16 v[{wb}:{wb+1}], v{v_wa} offset:{row*128}'),
                I(f'ds_read_b64_tr_b16 v[{wb+2}:{wb+3}], v{v_wa} offset:{row*128+1024}')]
    p.add(rdw(0) + rdw(1))
    for ks in range(16):
        wb = WB[ks % 3]
        p.add([I(f'v_mfma_f32_32x32x16_bf16 v[{ACC}:{ACC+15}], v[{wb}:{wb+3}], v[{OFR+4*ks}:{OFR+4*ks+3}], v[{ACC}:{ACC+15}]')])
        if ks + 2 < 16: p.add(rdw(ks + 2))
    stamp(p, 9)
    p(f's_lshl_b32 s{s_t0}, s{s_kh}, 11')
    p(f'v_add_u32 v{T+9}, s{s_t0}, v{T+8}')
    p(f's_xor_b32 s{s_t0}, s{s_t0}, 2048')
    p(f'v_add_u32 v{T+10}, s{s_t0}, v{T+8}')
    p(f's_cmp_eq_u32 s{s_kh}, 0')
    p(f's_cbranch_scc1 {L("x0")}')
    p.add([I(f'ds_write_b128 v{T+9}, v[{ACC}:{ACC+3}]', gives=['lds:ax']), I(f'ds_write_b128 v{T+9}, v[{ACC+4}:{ACC+7}] offset:1024', gives=['lds:ax'])])
    p('s_waitcnt lgkmcnt(0)')
    for r in range(8): p(f'v_mov_b32 v{ACC+r}, v{ACC+8+r}')
    p(f's_branch {L("x1")}')
    p.label(L('x0'))
    p.add([I(f'ds_write_b128 v{T+9}, v[{ACC+8}:{ACC+11}]', gives=['lds:ax']), I(f'ds_write_b128 v{T+9}, v[{ACC+12}:{ACC+15}] offset:1024', gives=['lds:ax'])])
    p.label(L('x1'))
    p.add([I('s_barrier', needs=['lds:ax'])])
    p(f'ds_read_b128 v[{S[0]}:{S[0]+3}], v{T+10}')
    p(f'ds_read_b128 v[{S[0]+4}:{S[0]+7}], v{T+10} offset:1024')
    for r in range(8):
        p(f'v_add_f32 v{ACC+r}, v{ACC+r}, v{S[0]+r}')
    for i in range(2):
        for hlf in range(2):
            xr = XR + 2 * i + hlf
            p(f'v_lshlrev_b32 v{T+2*hlf}, 16, v{xr}')
            p(f'v_and_b32 v{T+1+2*hlf}, 0xffff0000, v{xr}')
            p(f'v_add_f32 v{T+2*hlf}, v{T+2*hlf}, v{ACC+4*i+2*hlf}')
            p(f'v_add_f32 v{T+1+2*hlf}, v{T+1+2*hlf}, v{ACC+4*i+2*hlf+1}')
            p(f'v_cvt_pk_bf16_f32 v{xr}, v{T+2*hlf}, v{T+1+2*hlf}')
        p(f'buffer_store_dwordx2 v[{XR+2*i}:{XR+2*i+1}], v{v_xa}, s[{S_OUT}:{S_OUT+3}], s{s_ost} offen offset:{16*i}')
    p.label(L('fin'))
    if k1.STAMP: p('s_waitcnt vmcnt(0)')
    stamp(p, 10)
    stamp_store(p, S_WS, s_w, 1)
    p('s_endpgm')

    p.label(L('slow'))
    M = T + 5
    s0 = S[0]
    p(f'v_mov_b32 v{T}, 0')
    p(f'v_cndmask_b32 v{Q+6}, v{Q+6}, v{T}, s[{s_hi}:{s_hi+1}]')
    for r in range(16): p(f'v_mov_b32 v{O+r}, 0')
    p(f'v_mov_b32 v{M}, 0xff800000')
    p(f's_lshl_b32 s{s_t2}, s{s_hd}, 18')
    p(f's_add_u32 s{s_t2}, s{s_t2}, {WS_KV}')
    p(f's_mov_b32 s{s_i}, 64')
    p.label(L('sloop'))
    p(f'buffer_load_dwordx4 v[{KB[0]}:{KB[0]+3}], v1, s[{S_WS}:{S_WS+3}], s{s_t2} offen')
    p(f'buffer_load_dwordx4 v[{KB[0]+4}:{KB[0]+7}], v1, s[{S_WS}:{S_WS+3}], s{s_t2} offen offset:1024')
    p(f'buffer_load_dwordx4 v[{VB[0]}:{VB[0]+3}], v1, s[{S_WS}:{S_WS+3}], s{s_t2} offen offset:2048')
    p(f'buffer_load_dwordx4 v[{VB[0]+4}:{VB[0]+7}], v1, s[{S_WS}:{S_WS+3}], s{s_t2} offen offset:3072')
    p.add([mS(S[0], KB[0], 0), mS(S[0], KB[0], 1)])
    p(f'v_max3_f32 v{T}, v{s0}, v{s0+1}, v{s0+2}')
    for r in range(3, 15, 2):
        p(f'v_max3_f32 v{T}, v{T}, v{s0+r}, v{s0+r+1}')
    p(f'v_max_f32 v{T}, v{T}, v{s0+15}')
    p(f'v_mov_b32 v{T+1}, v{T}')
    p(f'v_permlane32_swap_b32 v{T}, v{T+1}')
    p(f'v_max3_f32 v{T}, v{T}, v{T+1}, v{M}')
    p(f'v_sub_f32 v{T+1}, v{M}, v{T}')
    p(f'v_exp_f32 v{T+1}, v{T+1}')
    p(f'v_mov_b32 v{M}, v{T}')
    for r in range(16):
        p(f'v_sub_f32 v{s0+r}, v{s0+r}, v{M}')
    for r in range(16):
        p(f'v_exp_f32 v{s0+r}, v{s0+r}')
    for r in range(16):
        p(f'v_mul_f32 v{O+r}, v{O+r}, v{T+1}')
    for d in range(8):
        p(f'v_cvt_pk_bf16_f32 v{P+d}, v{s0+2*d}, v{s0+2*d+1}')
    p.add([mPV(VB[0], 0), mPV(VB[0], 1)])
    p(f's_add_u32 s{s_t2}, s{s_t2}, 4096')
    p(f's_sub_u32 s{s_i}, s{s_i}, 1')
    p(f's_cmp_lg_u32 s{s_i}, 0')
    p(f's_cbranch_scc1 {L("sloop")}')
    p.add(get_l())
    p(f's_branch {L("astore")}')
    p.label(L('end'))
    p('s_endpgm')
    desc = f"""
.amdhsa_kernel {name}
  .amdhsa_next_free_vgpr 232
  .amdhsa_next_free_sgpr 100
  .amdhsa_accum_offset 232
  .amdhsa_group_segment_fixed_size 0
  .amdhsa_kernarg_size 80
  .amdhsa_user_sgpr_count 2
  .amdhsa_user_sgpr_kernarg_segment_ptr 1
  .amdhsa_system_sgpr_workgroup_id_x 1
  .amdhsa_float_denorm_mode_32 3
.end_amdhsa_kernel
"""
    return p, desc
```

```python
import sys
from asmlib import *
import k1
import k1b, k1c, k1d, k0
import k2u as k2
HEAD = """; parallel_sum(softmax MHA, SwiGLU FFN) on layernormed input -- hand-written gfx950 assembly (generated by my own scripts)
; @launch kernel=psum_k0_kernel grid=(256,1,1) block=(512,1,1) lds=8192
; @launch kernel=psum_k1_kernel grid=(256,1,1) block=(512,1,1) lds=163840
; @launch kernel=psum_k2_kernel grid=(256,1,1) block=(512,1,1) lds=163840
.amdgcn_target "amdgcn-amd-amdhsa--gfx950"
.text
"""
def build(path, verbose=False):
    out = HEAD
    descs = ''
    for name, gen in (('psum_k0_kernel', k0.gen_k0), ('psum_k1_kernel', k1d.gen_k1), ('psum_k2_kernel', k2.gen_k2)):
        p, d = gen(name)
        ins = finalize(p, [name], verbose)
        out += f'.globl {name}\n.p2align 8\n.type {name},@function\n' + render(ins)
        descs += d
    out += '.section .rodata,"a"\n.p2align 6\n' + descs.replace('\n.amdhsa_kernel', '\n.p2align 6\n.amdhsa_kernel')
    open(path, 'w').write(out)
if __name__ == '__main__':
    if len(sys.argv) > 2 and sys.argv[2] == 'stamp': k1.STAMP = True
    if len(sys.argv) > 3: k1.EXP = set(sys.argv[3].split(','))
    build(sys.argv[1] if len(sys.argv) > 1 else 'parallel_sum__softmax_full_mha__swiglu_ffn__prompt.s', verbose=True)
```

```python
from asmlib import *
import k1
from k1 import (WS_QF, WS_KV, WS_HF, WS_OF, WS_FLAG, SLOT, NSLOT, RING, LOG2E, CQ, hexf, flat, stamp, stamp_store)
from k0 import WS_XN, wave_sum, rbf
WS_FL = (16 << 20) + 4096

def gen_k1(name):
    return gen(name)

L_TAG = RING + 64
def gen(name):
    p = Prog()
    EXP = k1.EXP
    WS_SIZE = k1.WS_SIZE
    S_W, S_G, S_U, S_WS = 8, 12, 16, 20
    s_w, s_r4, s_ch, s_rb, s_g, s_p, s_kind, s_ty = 30, 31, 32, 33, 34, 35, 36, 37
    s_two = 38
    s_q = 40
    s_qt = 45
    s_left = 50
    s_dslot, s_rslot = 51, 52
    s_hi, s_pad = 54, 56
    s_t0, s_t1, s_t2, s_t3 = 58, 59, 60, 61
    s_so, s_s64, s_s112 = 62, 63, 53
    s_dsrd = 64
    s_stq, s_stv, s_sth = 68, 69, 70
    s_scq, s_padk = 71, 72
    s_mo = 73
    s_x0, s_xm = 76, 77
    s_more = 78
    s_tso, s_tleft = 79, 39
    s_tsrd = 96
    s_ts112 = 29
    s_ri = 28
    v_lane16 = 1
    v_patq, v_patg = 2, 3
    v_wa = [4, 5]
    v_dq, v_dg, v_dsel = 7, 8, 9
    v_tq, v_tg, v_tsel = 10, 11, 12
    v_t = 18
    v_padv = 28
    v_patn = 29
    WF = [40, 44, 48, 52]
    ACCA, B1, B2 = 56, 72, 88
    TP = 104
    XF = 128
    xr = [240, 241]
    v_td = 242
    L = lambda s: name + '_' + s
    uid = [0]
    tdi = [0]
    def tdst():
        tdi[0] = (tdi[0] + 1) % 8
        return v_td + tdi[0]

    p.label(name)
    p(f's_cmp_ge_u32 s2, 256')
    p(f's_cbranch_scc1 {L("end")}')
    stamp(p, 0)
    p('s_load_dwordx2 s[6:7], s[0:1], 8')
    p('s_load_dwordx4 s[24:27], s[0:1], 32')
    p('s_load_dwordx2 s[4:5], s[0:1], 72')
    p('s_load_dwordx2 s[96:97], s[0:1], 0')
    p('s_load_dwordx2 s[100:101], s[0:1], 64')
    p('s_getpc_b64 s[74:75]')
    lane, m, hh = v_t + 2, v_t + 3, v_t + 4
    p(f'v_and_b32 v{lane}, 63, v0')
    p(f'v_lshrrev_b32 v{v_t+1}, 6, v0')
    p(f'v_readfirstlane_b32 s{s_w}, v{v_t+1}')
    p(f'v_lshlrev_b32 v{v_lane16}, 4, v{lane}')
    p(f'v_and_b32 v{m}, 31, v0')
    p(f'v_bfe_u32 v{hh}, v0, 5, 1')
    p(f's_bfe_u32 s{s_ri}, s2, 0x30003')
    p(f's_and_b32 s{s_t0}, s2, 1')
    p(f's_lshl_b32 s{s_t0}, s{s_t0}, 3')
    p(f's_add_u32 s{s_rb}, s{s_t0}, s{s_ri}')
    p(f's_bfe_u32 s{s_t0}, s2, 0x20001')
    p(f's_lshl_b32 s{s_t0}, s{s_t0}, 2')
    p(f's_lshr_b32 s{s_t1}, s2, 6')
    p(f's_add_u32 s{s_g}, s{s_t0}, s{s_t1}')
    p(f's_and_b32 s{s_r4}, s{s_w}, 3')
    p(f's_lshr_b32 s{s_ch}, s{s_w}, 2')
    p(f's_cmp_eq_u32 s{s_w}, 7')
    p(f's_cbranch_scc0 {L("nocp")}')
    p(f's_lshr_b32 s{s_t0}, s2, 3')
    p(f's_lshl_b32 s{s_t0}, s{s_t0}, 11')
    p(f'v_lshlrev_b32 v{v_t}, 7, v{lane}')
    p(f'v_add_u32 v{v_t}, s{s_t0}, v{v_t}')
    p('s_mov_b32 exec_lo, 0xffff')
    p('s_mov_b32 exec_hi, 0')
    p(f'global_load_dword v{tdst()}, v{v_t}, s[74:75]')
    p('s_mov_b64 exec, -1')
    p.label(L('nocp'))
    p(f's_cmp_lt_u32 s{s_g}, 4')
    p(f's_cbranch_scc0 {L("tyX")}')
    p(f's_mov_b32 s{s_ty}, 0')
    p(f's_mov_b32 s{s_p}, s{s_g}')
    p(f's_mov_b32 s{s_kind}, 0')
    p(f's_mul_i32 s{s_q}, s{s_p}, 112')
    p(f's_add_u32 s{s_q+1}, s{s_q}, 896')
    p(f's_add_u32 s{s_q+2}, s{s_q}, 1792')
    p(f's_lshl_b32 s{s_q+3}, s{s_g}, 7')
    p(f's_mov_b32 s{s_q+4}, s{s_q+3}')
    for i, k in enumerate((0, 0, 0, 1, 2)): p(f's_mov_b32 s{s_qt+i}, {k}')
    p(f's_mov_b32 s{s_t2}, s{s_g}')
    p(f's_branch {L("tyC")}')
    p.label(L('tyX'))
    p(f's_mov_b32 s{s_ty}, 1')
    p(f's_sub_u32 s{s_t0}, s{s_g}, 4')
    p(f's_mul_i32 s{s_t1}, s{s_t0}, 43')
    p(f's_lshr_b32 s{s_t1}, s{s_t1}, 7')
    p(f's_add_u32 s{s_p}, s{s_t1}, 4')
    p(f's_mul_i32 s{s_t1}, s{s_t1}, 3')
    p(f's_sub_u32 s{s_kind}, s{s_t0}, s{s_t1}')
    p(f's_mul_i32 s{s_q}, s{s_p}, 112')
    p(f's_mul_i32 s{s_t1}, s{s_kind}, 896')
    p(f's_add_u32 s{s_q}, s{s_q}, s{s_t1}')
    p(f's_lshl_b32 s{s_t2}, s{s_t0}, 1')
    p(f's_add_u32 s{s_t2}, s{s_t2}, 4')
    p(f's_lshl_b32 s{s_q+1}, s{s_t2}, 7')
    p(f's_mov_b32 s{s_q+2}, s{s_q+1}')
    p(f's_add_u32 s{s_q+3}, s{s_q+1}, 128')
    p(f's_mov_b32 s{s_q+4}, s{s_q+3}')
    for i, k in enumerate((0, 1, 2, 1, 2)): p(f's_mov_b32 s{s_qt+i}, {k}')
    p.label(L('tyC'))
    p(f's_lshl_b32 s{s_t0}, s{s_rb}, 2')
    p(f's_add_u32 s{s_t0}, s{s_t0}, s{s_r4}')
    p(f's_mul_i32 s{s_sth}, s{s_t0}, 112')
    p(f's_lshl_b32 s{s_t1}, s{s_t2}, 2')
    p(f's_add_u32 s{s_sth}, s{s_sth}, s{s_t1}')
    p(f's_lshl_b32 s{s_t1}, s{s_ch}, 1')
    p(f's_add_u32 s{s_sth}, s{s_sth}, s{s_t1}')
    p(f's_lshl_b32 s{s_sth}, s{s_sth}, 10')
    p(f's_add_u32 s{s_sth}, s{s_sth}, {WS_HF}')
    p(f's_lshl_b32 s{s_t1}, s{s_p}, 1')
    p(f's_add_u32 s{s_t1}, s{s_t1}, s{s_ch}')
    p(f's_lshl_b32 s{s_t1}, s{s_t1}, 6')
    p(f's_add_u32 s{s_t1}, s{s_t1}, s{s_t0}')
    s_stk = 95 if not k1.STAMP else 95
    s_stk = 74
    p(f's_lshl_b32 s{s_t3}, s{s_t1}, 12')
    p(f's_add_u32 s{s_stv}, s{s_t3}, {WS_KV + 2048}')
    p(f'v_bfe_u32 v{v_t}, v{lane}, 4, 1')
    p(f'v_lshlrev_b32 v{v_t}, 2, v{v_t}')
    p(f'v_and_b32 v{v_t+1}, 7, v{lane}')
    p(f'v_xor_b32 v{v_t}, v{v_t}, v{v_t+1}')
    p(f'v_lshlrev_b32 v{v_t}, 4, v{v_t}')
    p(f'v_lshrrev_b32 v{v_t+1}, 3, v{lane}')
    p(f'v_mul_u32_u24 v{v_dq}, 2688, v{v_t+1}')
    p(f'v_add_u32 v{v_dq}, v{v_dq}, v{v_t}')
    p(f'v_mul_u32_u24 v{v_dg}, 3584, v{v_t+1}')
    p(f'v_add_u32 v{v_dg}, v{v_dg}, v{v_t}')
    p(f's_cmp_lt_u32 s{s_w}, 6')
    p(f's_cselect_b32 s{s_two}, 1, 0')
    p(f's_lshl_b32 s{s_mo}, s{s_w}, 10')
    p('s_waitcnt lgkmcnt(0)')
    stamp(p, 2)
    for (Sd, lo, hi, size) in ((S_W, 6, 7, 448 * 2688), (S_G, 24, 25, 448 * 3584), (S_U, 26, 27, 448 * 3584), (S_WS, 4, 5, WS_SIZE)):
        p(f's_mov_b32 s{Sd}, s{lo}')
        p(f's_mov_b32 s{Sd+1}, s{hi}')
        p(f's_mov_b32 s{Sd+2}, {size}')
        p(f's_mov_b32 s{Sd+3}, 0x20000')
    p(f's_add_u32 s{s_stk}, s{s_t3}, {WS_KV}')
    p(f's_lshl_b32 s{s_stq}, s{s_t1}, 11')
    p(f's_add_u32 s{s_stq}, s{s_stq}, {WS_QF}')

    def sel_srd(kreg, dst):
        return [I(f's_cmp_eq_u32 s{kreg}, 1'),
                I(f's_cselect_b64 s[{dst}:{dst+1}], s[{S_G}:{S_G+1}], s[{S_U}:{S_U+1}]'),
                I(f's_cmp_eq_u32 s{kreg}, 0'),
                I(f's_cselect_b64 s[{dst}:{dst+1}], s[{S_W}:{S_W+1}], s[{dst}:{dst+1}]'),
                I(f's_cselect_b32 s{dst+2}, s{S_W+2}, s{S_G+2}'),
                I(f's_mov_b32 s{dst+3}, 0x20000')]
    def ctx_switch():
        uid[0] += 1; u = uid[0]
        o = sel_srd(s_qt, s_dsrd)
        o += [I(f's_movk_i32 s{s_t0}, 3584'),
              I(f's_cselect_b32 s{s_t0}, 2688, s{s_t0}'),
              I(f's_cbranch_scc1 {L("cx_q%d" % u)}'),
              I(f'v_mov_b32 v{v_dsel}, v{v_dg}'),
              I(f's_branch {L("cx_c%d" % u)}'),
              I(f'{L("cx_q%d" % u)}:'),
              I(f'v_mov_b32 v{v_dsel}, v{v_dq}'),
              I(f'{L("cx_c%d" % u)}:'),
              I(f's_lshl_b32 s{s_s64}, s{s_t0}, 6'),
              I(f's_mul_i32 s{s_s112}, s{s_t0}, 112'),
              I(f's_mul_i32 s{s_so}, s{s_w}, s{s_t0}'),
              I(f's_lshl_b32 s{s_so}, s{s_so}, 3'),
              I(f's_add_u32 s{s_so}, s{s_so}, s{s_q}')]
        for i in range(4):
            o.append(I(f's_mov_b32 s{s_q+i}, s{s_q+i+1}'))
            o.append(I(f's_mov_b32 s{s_qt+i}, s{s_qt+i+1}'))
        return o
    def b_issue(g, check=False):
        uid[0] += 1; u = uid[0]
        if 'nodma' in EXP and check: return []
        o = []
        if check:
            o += [I(f's_cmp_eq_u32 s{s_left}, 0'), I(f's_cbranch_scc1 {L("bi_d%d" % u)}'),
                  I(f's_sub_u32 s{s_left}, s{s_left}, 1')]
        o += [I(f's_add_u32 m0, s{s_dslot}, s{s_mo}'),
              I(f's_add_u32 s{s_dslot}, s{s_dslot}, {SLOT}'),
              I(f'buffer_load_dwordx4 v{v_dsel}, s[{s_dsrd}:{s_dsrd+3}], s{s_so} offen lds', gives=[g]),
              I(f's_cmp_eq_u32 s{s_two}, 0'),
              I(f's_cbranch_scc1 {L("bi_s%d" % u)}'),
              I('s_addk_i32 m0, 8192'),
              I(f's_add_u32 s{s_t0}, s{s_so}, s{s_s64}'),
              I(f'buffer_load_dwordx4 v{v_dsel}, s[{s_dsrd}:{s_dsrd+3}], s{s_t0} offen lds', gives=[g]),
              I(f'{L("bi_s%d" % u)}:'),
              I(f's_add_u32 s{s_so}, s{s_so}, s{s_s112}'),
              I(f's_cmp_ge_u32 s{s_dslot}, {RING}'),
              I(f's_cselect_b32 s{s_t0}, {RING}, 0'),
              I(f's_sub_u32 s{s_dslot}, s{s_dslot}, s{s_t0}')]
        if check: o.append(I(f'{L("bi_d%d" % u)}:'))
        return o
    def x_issue(j, g):
        uid[0] += 1; u = uid[0]
        o = [I(f's_mov_b32 m0, s{s_xm}'),
             I(f's_add_u32 s{s_xm}, s{s_xm}, {2*SLOT}')]
        for q in range(3):
            o.append(I(f'buffer_load_dwordx4 v{v_lane16}, s[{S_WS}:{S_WS+3}], s{s_x0} offen offset:{q*1024} sc1 lds', gives=[g]))
        o += [I(f's_cmp_lg_u32 s{s_ch}, 0'),
              I(f's_cbranch_scc1 {L("xi%d" % u)}'),
              I(f'buffer_load_dwordx4 v{v_lane16}, s[{S_WS}:{S_WS+3}], s{s_x0} offen offset:3072 sc1 lds', gives=[g]),
              I(f'{L("xi%d" % u)}:'),
              I(f's_add_u32 s{s_x0}, s{s_x0}, 7168')]
        return o

    p(f's_lshl_b32 s{s_t0}, s{s_rb}, 2')
    p(f's_add_u32 s{s_t0}, s{s_t0}, s{s_r4}')
    p(f's_mul_i32 s{s_x0}, s{s_t0}, {28*1024}')
    p(f's_lshl_b32 s{s_t1}, s{s_ch}, 12')
    p(f's_add_u32 s{s_x0}, s{s_x0}, s{s_t1}')
    p(f's_add_u32 s{s_x0}, s{s_x0}, {WS_XN}')
    p(f's_mul_i32 s{s_xm}, s{s_r4}, 7168')
    p(f's_add_u32 s{s_xm}, s{s_xm}, s{s_t1}')
    S_X = 96
    s_tag = 3
    p(f's_mov_b32 s{S_X+2}, {2048*896}')
    p(f's_mov_b32 s{S_X+3}, 0x20000')
    LV = TP
    X, F, t0, t1, t2 = LV, LV + 4, LV + 12, LV + 13, LV + 14
    p(f's_lshl_b32 s{s_t0}, s2, 3')
    p(f's_add_u32 s{s_t0}, s{s_t0}, s{s_w}')
    p(f's_mul_i32 s{s_t0}, s{s_t0}, 896')
    p('s_mov_b32 exec_hi, 0x00ffffff')
    p(f'buffer_load_dwordx4 v[{X}:{X+3}], v{v_lane16}, s[{S_X}:{S_X+3}], s{s_t0} offen')
    p('s_mov_b64 exec, -1')
    p(f's_add_u32 s{s_t0}, s2, s{s_w}')
    p(f's_cmp_eq_u32 s{s_t0}, 0')
    p(f's_cbranch_scc0 {L("notag")}')
    p('s_memrealtime s[60:61]')
    p('s_waitcnt lgkmcnt(0)')
    p('s_or_b32 s60, s60, 1')
    p(f'v_mov_b32 v{v_t}, s60')
    p(f'v_mov_b32 v{v_t+1}, 0')
    p(f'global_store_dword v{v_t+1}, v{v_t}, s[100:101] sc1')
    p.label(L('notag'))
    p(f's_mov_b32 s{s_dslot}, {8*SLOT}')
    p(f's_mov_b32 s{s_left}, 9')
    p.add(ctx_switch())
    p.add(b_issue('g0') + b_issue('g1') + b_issue('g2'))
    stamp(p, 3)
    p(f's_cmp_eq_u32 s{s_w}, 5')
    p(f's_cbranch_scc0 {L("nzf")}')
    p(f's_lshl_b32 s{s_t0}, s2, 2')
    p(f's_add_u32 s{s_t0}, s{s_t0}, {WS_FLAG}')
    p(f'v_mov_b32 v{v_t}, 0')
    p(f'buffer_store_dword v{v_t}, v{v_t}, s[{S_WS}:{S_WS+3}], s{s_t0} offen')
    p.label(L('nzf'))
    p(f's_cmp_eq_u32 s{s_w}, 7')
    p(f's_cbranch_scc0 {L("notp")}')
    p(f'v_mov_b32 v{v_t+1}, 0')
    p(f's_mov_b32 s{s_t0}, 0x100000')
    p.label(L('tagpoll'))
    p(f'global_load_dword v{v_t}, v{v_t+1}, s[100:101] sc1')
    p('s_waitcnt vmcnt(0)')
    p(f'v_readfirstlane_b32 s{s_tag}, v{v_t}')
    p(f's_cmp_lg_u32 s{s_tag}, 0')
    p(f's_cbranch_scc1 {L("taggot")}')
    p(f's_sub_u32 s{s_t0}, s{s_t0}, 1')
    p(f's_cmp_lg_u32 s{s_t0}, 0')
    p(f's_cbranch_scc1 {L("tagpoll")}')
    p.label(L('taggot'))
    p(f'v_mov_b32 v{v_t+1}, {L_TAG}')
    p.add([I(f'ds_write_b32 v{v_t+1}, v{v_t}', gives=['lds:ln'])])
    p.label(L('notp'))
    p(f'v_cmp_gt_u32 vcc, 56, v{lane}')
    for i in range(4):
        p(f'v_cndmask_b32 v{X+i}, 0, v{X+i}, vcc')
    for i in range(4):
        p(f'v_lshlrev_b32 v{F+2*i}, 16, v{X+i}')
        p(f'v_and_b32 v{F+2*i+1}, 0xffff0000, v{X+i}')
    p(f'v_add_f32 v{t0}, v{F}, v{F+1}')
    for i in range(2, 8): p(f'v_add_f32 v{t0}, v{t0}, v{F+i}')
    wave_sum(p, t0, t1)
    p(f'v_mul_f32 v{t0}, {hexf(1/448)}, v{t0}')
    p(f'v_mov_b32 v{t2}, 0')
    for i in range(8):
        p(f'v_sub_f32 v{t1}, v{F+i}, v{t0}')
        p(f'v_fmac_f32 v{t2}, v{t1}, v{t1}')
    p(f'v_cndmask_b32 v{t2}, 0, v{t2}, vcc')
    wave_sum(p, t2, t1)
    p(f'v_mul_f32 v{t2}, {hexf(1/448)}, v{t2}')
    rbf(p, t0, t1); rbf(p, t2, t1)
    p(f'v_add_f32 v{t2}, {hexf(1e-5)}, v{t2}')
    rbf(p, t2, t1)
    p(f'v_sqrt_f32 v{t2}, v{t2}')
    p('s_nop 0')
    rbf(p, t2, t1)
    p(f'v_rcp_f32 v{t2}, v{t2}')
    for i in range(8): p(f'v_sub_f32 v{F+i}, v{F+i}, v{t0}')
    for i in range(4): p(f'v_cvt_pk_bf16_f32 v{X+i}, v{F+2*i}, v{F+2*i+1}')
    for i in range(4):
        p(f'v_lshlrev_b32 v{F+2*i}, 16, v{X+i}')
        p(f'v_and_b32 v{F+2*i+1}, 0xffff0000, v{X+i}')
    for i in range(8): p(f'v_mul_f32 v{F+i}, v{F+i}, v{t2}')
    for i in range(4): p(f'v_cvt_pk_bf16_f32 v{X+i}, v{F+2*i}, v{F+2*i+1}')
    p(f'v_lshlrev_b32 v{t0}, 7, v{lane}')
    p(f's_lshl_b32 s{s_t0}, s{s_w}, 4')
    p(f'v_add_u32 v{t0}, s{s_t0}, v{t0}')
    p('s_mov_b32 exec_hi, 0x00ffffff')
    p.add([I(f'ds_write_b128 v{t0}, v[{X}:{X+3}]', gives=['lds:ln'])])
    p('s_mov_b64 exec, -1')
    p.add([I('s_barrier', needs=['lds:ln'])])
    stamp(p, 4)
    p(f'v_mov_b32 v{t1}, {L_TAG}')
    p(f'ds_read_b32 v{t2}, v{t1}')
    p(f's_cmp_eq_u32 s{s_w}, 7')
    p(f's_cbranch_scc1 {L("ln_done")}')
    p(f's_lshl_b32 s{s_t0}, s{s_w}, 10')
    p(f'v_add_u32 v{t0}, s{s_t0}, v{v_lane16}')
    p(f'ds_read_b128 v[{X}:{X+3}], v{t0}')
    p(f'v_lshrrev_b32 v{t1}, 4, v{lane}')
    p(f'v_lshlrev_b32 v{t1}, 10, v{t1}')
    p(f'v_bfe_u32 v{F}, v{lane}, 3, 1')
    p(f'v_lshlrev_b32 v{F}, 9, v{F}')
    p(f'v_add_u32 v{t1}, v{t1}, v{F}')
    p(f'v_and_b32 v{F}, 7, v{lane}')
    p(f'v_lshlrev_b32 v{F}, 4, v{F}')
    p(f'v_add_u32 v{t1}, v{t1}, v{F}')
    p(f's_lshr_b32 s{s_t0}, s2, 2')
    p(f's_mul_i32 s{s_t0}, s{s_t0}, 28')
    p(f's_lshl_b32 s{s_t1}, s{s_w}, 2')
    p(f's_add_u32 s{s_t0}, s{s_t0}, s{s_t1}')
    p(f's_lshl_b32 s{s_t0}, s{s_t0}, 10')
    p(f's_and_b32 s{s_t1}, s2, 3')
    p(f's_lshl_b32 s{s_t1}, s{s_t1}, 7')
    p(f's_add_u32 s{s_t0}, s{s_t0}, s{s_t1}')
    p(f's_add_u32 s{s_t0}, s{s_t0}, {WS_XN}')
    p(f'buffer_store_dwordx4 v[{X}:{X+3}], v{t1}, s[{S_WS}:{S_WS+3}], s{s_t0} offen sc1')
    p.label(L('ln_done'))
    p(f'v_readfirstlane_b32 s{s_tag}, v{t2}')
    p('s_waitcnt vmcnt(0)')
    p('s_barrier')
    p(f's_cmp_eq_u32 s{s_w}, 0')
    p(f's_cbranch_scc0 {L("x_go")}')
    p(f'v_mov_b32 v{t0}, s{s_tag}')
    p(f'v_mov_b32 v{t1}, 0')
    p(f's_lshl_b32 s{s_t0}, s2, 2')
    p(f's_add_u32 s{s_t0}, s{s_t0}, {WS_FL}')
    p(f'buffer_store_dword v{t0}, v{t1}, s[{S_WS}:{S_WS+3}], s{s_t0} offen sc1')
    p(f'v_and_b32 v{t1}, 15, v{lane}')
    p(f'v_lshlrev_b32 v{t1}, 2, v{t1}')
    p(f's_lshl_b32 s{s_t0}, s{s_rb}, 6')
    p(f's_add_u32 s{s_t0}, s{s_t0}, {WS_FL}')
    p(f's_mov_b32 s{s_t1}, 0x100000')
    p.label(L('f1poll'))
    p(f'buffer_load_dword v{t2}, v{t1}, s[{S_WS}:{S_WS+3}], s{s_t0} offen sc1')
    p('s_waitcnt vmcnt(0)')
    p(f'v_cmp_eq_u32 vcc, s{s_tag}, v{t2}')
    p('s_cmp_eq_u64 vcc, -1')
    p(f's_cbranch_scc1 {L("x_go")}')
    p(f's_sub_u32 s{s_t1}, s{s_t1}, 1')
    p(f's_cmp_lg_u32 s{s_t1}, 0')
    p(f's_cbranch_scc1 {L("f1poll")}')
    p.label(L('x_go'))
    p('s_barrier')
    stamp(p, 1)
    p.add(x_issue(0, 'g0') + x_issue(1, 'g1') + x_issue(2, 'g2') + x_issue(3, 'g3'))

    p(f's_mov_b32 s{s_hi}, 0')
    p(f's_mov_b32 s{s_hi+1}, -1')
    p(f's_mov_b32 s{s_pad}, 0xf0000000')
    p(f's_mov_b32 s{s_pad+1}, 0xf0000000')
    def mkpat(dst, b0mul):
        p(f'v_bfe_u32 v{v_t}, v{lane}, 2, 2')
        p(f'v_lshlrev_b32 v{v_t+1}, 3, v{hh}')
        p(f'v_add_u32 v{v_t+1}, v{v_t+1}, v{v_t}')
        p(f'v_lshlrev_b32 v{dst}, 7, v{v_t+1}')
        p(f'v_bfe_u32 v{v_t+1}, v{lane}, 4, 1')
        p(f'v_lshlrev_b32 v{v_t+1}, 5, v{v_t+1}')
        p(f'v_and_b32 v{v_t+5}, 3, v{lane}')
        p(f'v_lshlrev_b32 v{v_t+5}, 3, v{v_t+5}')
        p(f'v_add_u32 v{v_t+1}, v{v_t+1}, v{v_t+5}')
        p(f's_mul_i32 s{s_t0}, s{s_ch}, {b0mul}')
        p(f'v_add_u32 v{v_t+1}, s{s_t0}, v{v_t+1}')
        p(f'v_lshrrev_b32 v{v_t}, 1, v{v_t}')
        p(f'v_lshlrev_b32 v{v_t}, 6, v{v_t}')
        p(f'v_xor_b32 v{v_t+1}, v{v_t+1}, v{v_t}')
        p(f'v_add_u32 v{dst}, v{dst}, v{v_t+1}')
    mkpat(v_patq, 56)
    mkpat(v_patg, 64)
    p(f'v_cmp_eq_u32 vcc, 28, v{m}')
    p(f'v_mov_b32 v{v_padv}, 0')
    p(f'v_mov_b32 v{v_t}, 0x3f803f80')
    p(f'v_cndmask_b32 v{v_padv}, v{v_padv}, v{v_t}, vcc')
    p(f's_mul_i32 s{s_t0}, s{s_r4}, 7168')
    p(f'v_add_u32 v{xr[0]}, s{s_t0}, v{v_lane16}')
    p(f'v_add_u32 v{xr[1]}, {4*SLOT}, v{xr[0]}')
    p(f's_mov_b32 s{s_rslot}, {8*SLOT}')

    def ring_adv(s):
        return [I(f's_add_u32 s{s}, s{s}, {SLOT}'),
                I(f's_cmp_ge_u32 s{s}, {RING}'),
                I(f's_cselect_b32 s{s_t1}, {RING}, 0'),
                I(f's_sub_u32 s{s}, s{s}, s{s_t1}')]
    def wread(t, pat_cur, pat_next):
        o = []
        ks = (t % 28) % 7
        va = v_wa[(t // 7) & 1]
        if ks == 0:
            pat = pat_cur if t < 28 else pat_next
            o.append(I(f'v_add_u32 v{va}, s{s_rslot}, v{pat}'))
            o += ring_adv(s_rslot)
        b = WF[t & 3]
        o.append(I(f'ds_read_b64_tr_b16 v[{b}:{b+1}], v{va} offset:{ks*2048}'))
        o.append(I(f'ds_read_b64_tr_b16 v[{b+2}:{b+3}], v{va} offset:{ks*2048+512}'))
        return o
    def mf(t, w_is_a, dst):
        b = WF[t & 3]; x = XF + 4 * t
        d = dst if t == 27 else ACCA
        c = '0' if t == 0 else f'v[{ACCA}:{ACCA+15}]'
        if w_is_a: return I(f'v_mfma_f32_32x32x16_bf16 v[{d}:{d+15}], v[{b}:{b+3}], v[{x}:{x+3}], {c}')
        return I(f'v_mfma_f32_32x32x16_bf16 v[{d}:{d+15}], v[{x}:{x+3}], v[{b}:{b+3}], {c}')

    def e_gu():
        body = []
        for qd in range(4):
            r0 = 4 * qd
            ee = [TP + i for i in range(4)]
            pp = [TP + 4 + i for i in range(4)]
            for i in range(4):
                body.append(I(f'v_mul_f32 v{ee[i]}, {hexf(-LOG2E)}, v{B1+r0+i}'))
            for i in range(4):
                body.append(I(f'v_exp_f32 v{ee[i]}, v{ee[i]}'))
                body.append(I(f'v_mul_f32 v{pp[i]}, v{B1+r0+i}, v{B2+r0+i}'))
            for i in range(4):
                body.append(I(f'v_add_f32 v{ee[i]}, 1.0, v{ee[i]}'))
            for i in range(4):
                body.append(I(f'v_rcp_f32 v{ee[i]}, v{ee[i]}'))
            for i in range(4):
                body.append(I(f'v_mul_f32 v{pp[i]}, v{pp[i]}, v{ee[i]}'))
            hp = TP + 8 + 2 * qd
            body.append(I(f'v_cvt_pk_bf16_f32 v{hp}, v{pp[0]}, v{pp[1]}'))
            body.append(I(f'v_cvt_pk_bf16_f32 v{hp+1}, v{pp[2]}, v{pp[3]}'))
            if qd & 1:
                body.append(I(f'buffer_store_dwordx4 v[{hp-2}:{hp+1}], v{v_lane16}, s[{S_WS}:{S_WS+3}], s{s_sth} offen offset:{(qd>>1)*1024}'))
        body.append(I(f's_add_u32 s{s_sth}, s{s_sth}, 4096'))
        return body
    def e_qk():
        body = []
        O = TP + 16
        for r in range(16):
            body.append(I(f'v_mul_f32 v{TP+r}, s{s_scq}, v{B2+r}'))
        for d in range(8):
            body.append(I(f'v_cvt_pk_bf16_f32 v{O+d}, v{TP+2*d}, v{TP+2*d+1}'))
        body.append(I(f'v_mov_b32 v{TP}, s{s_padk}'))
        body.append(I(f'v_mov_b32 v{TP+1}, 0'))
        body.append(I(f'v_cndmask_b32 v{O+6}, v{O+6}, v{TP}, s[{s_hi}:{s_hi+1}]'))
        body.append(I(f'v_cndmask_b32 v{O+7}, v{O+7}, v{TP+1}, s[{s_hi}:{s_hi+1}]'))
        body.append(I(f'buffer_store_dwordx4 v[{O}:{O+3}], v{v_lane16}, s[{S_WS}:{S_WS+3}], s{s_stq} offen'))
        body.append(I(f'buffer_store_dwordx4 v[{O+4}:{O+7}], v{v_lane16}, s[{S_WS}:{S_WS+3}], s{s_stq} offen offset:1024'))
        body.append([I(f's_mov_b32 s{s_scq}, 1.0'), I(f's_mov_b32 s{s_padk}, 0x3f80'), I(f's_mov_b32 s{s_stq}, s{s_stk}')])
        return body
    def e_vv():
        O = TP + 16
        body = []
        for d in range(8):
            body.append(I(f'v_cvt_pk_bf16_f32 v{O+d}, v{B2+2*d}, v{B2+2*d+1}'))
        for d in range(8):
            body.append(I(f'v_cndmask_b32 v{O+d}, v{O+d}, v{v_padv}, s[{s_pad}:{s_pad+1}]'))
        body.append(I(f'buffer_store_dwordx4 v[{O}:{O+3}], v{v_lane16}, s[{S_WS}:{S_WS+3}], s{s_stv} offen'))
        body.append(I(f'buffer_store_dwordx4 v[{O+4}:{O+7}], v{v_lane16}, s[{S_WS}:{S_WS+3}], s{s_stv} offen offset:1024'))
        return body
    def spread(fill, items, st, en):
        n = en - st
        for k in range(n):
            fill[st + k] += items[len(items) * k // n: len(items) * (k + 1) // n]
    def stage(w_is_a, dst, pat_cur, pat_next, epi, extra0=(), touch=()):
        fill = [[] for _ in range(28)]
        head = [[] for _ in range(28)]
        head[0] += list(extra0) + b_issue('dma:i0', True)
        head[3] += list(touch)
        head[7] += ctx_switch() + b_issue('dma:i1', True)
        head[14] += b_issue('dma:i2', True)
        head[21] += b_issue('dma:i3', True)
        if 'noepi' in EXP: epi = None
        if epi is not None: spread(fill, epi, 1, 26)
        out = []
        for t in range(28):
            out += wread(t + 3, pat_cur, pat_next) + [mf(t, w_is_a, dst)] + flat(head[t]) + flat(fill[t])
        out.append(I('s_barrier', needs=['dma:i0', 'dma:i1']))
        return out
    def xread(j, g):
        return [I(f'ds_read_b128 v[{XF+4*(7*j+k)}:{XF+4*(7*j+k)+3}], v{xr[j>>1]} offset:{(j&1)*2*SLOT + k*1024}', gives=[g]) for k in range(7)]
    def stage0(w_is_a, pat_next):
        o = []
        groups = [
            (['g0'], xread(0, 'rd:x0'), []),
            (['g1', 'rd:x0'], xread(1, 'rd:x1'), b_issue('g3b') + ctx_switch() + b_issue('g4')),
            (['g2', 'rd:x1'], xread(2, 'rd:x2'), b_issue('g5') + b_issue('g5')),
            (['g3', 'g3b', 'g4', 'rd:x2'], xread(3, 'rd:x3'), b_issue('g7') + ctx_switch() + b_issue('g8')),
        ]
        for j, (needs, xr_, iss) in enumerate(groups):
            o.append(I('s_barrier', needs=needs))
            if k1.STAMP:
                idx = {0: 5, 1: 10, 2: 11, 3: 12}[j]
                o += [I('s_memtime s[94:95]'), I('s_waitcnt lgkmcnt(0)'), I(f's_mov_b32 s{80+idx}, s94')]
            for k in range(3):
                o.append(xr_[k]); o += wread(7 * j + k, v_patq, pat_next)
            o += xr_[3:]
            o += iss
            for k in range(7):
                t = 7 * j + k
                if k + 3 < 7 or j == 3: o += wread(t + 3, v_patq, pat_next)
                o.append(mf(t, w_is_a, B2))
        o.append(I('s_barrier', needs=['g8', 'rd:x3']))
        return o

    catchup = lambda: (b_issue('dma:c') + b_issue('dma:c')) if 'nodma' not in EXP else []
    p(f's_cmp_eq_u32 s{s_kind}, 1')
    p(f's_cselect_b32 s{s_scq}, 1.0, {hexf(CQ)}')
    p(f's_cselect_b32 s{s_padk}, 0x3f80, 0')
    p(f's_cselect_b32 s{s_stq}, s{s_stk}, s{s_stq}')
    p(f's_mov_b32 s{s_more}, s{s_ty}')
    p(f's_cmp_eq_u32 s{s_ty}, 0')
    p(f's_cbranch_scc1 {L("seqY")}')
    p(f's_cmp_eq_u32 s{s_kind}, 2')
    p(f's_cbranch_scc1 {L("seqXV")}')
    p.add(stage0(True, v_patg))
    stamp(p, 6)
    p.add(stage(True, B1, v_patg, v_patg, e_qk(), catchup()))
    p(f's_branch {L("bU")}')
    p.label(L('seqXV'))
    p.add(stage0(False, v_patg))
    stamp(p, 6)
    p.add(stage(True, B1, v_patg, v_patg, e_vv(), catchup()))
    p(f's_branch {L("bU")}')
    p.label(L('seqY'))
    p.add(stage0(True, v_patq))
    stamp(p, 6)
    p.add(stage(True, B2, v_patq, v_patq, e_qk(), catchup()))
    p.add(stage(False, B2, v_patq, v_patg, e_qk()))
    p.add(stage(True, B1, v_patg, v_patg, e_vv()))
    p.label(L('bU'))
    p.add(stage(True, B2, v_patg, v_patg, None))
    stamp(p, 7)
    p(f's_cmp_eq_u32 s{s_more}, 0')
    p(f's_cbranch_scc1 {L("fin")}')
    p(f's_mov_b32 s{s_more}, 0')
    p.add(stage(True, B1, v_patg, v_patg, e_gu()))
    p(f's_branch {L("bU")}')
    p.label(L('fin'))
    stamp(p, 8)
    p('s_nop 7')
    p.add(flat(e_gu()))
    p('s_waitcnt vmcnt(0) lgkmcnt(0)')
    stamp(p, 9)
    stamp_store(p, S_WS, s_w, 0)
    p.label(L('end'))
    p('s_endpgm')
    desc = f"""
.amdhsa_kernel {name}
  .amdhsa_next_free_vgpr 256
  .amdhsa_next_free_sgpr 102
  .amdhsa_accum_offset 256
  .amdhsa_group_segment_fixed_size 0
  .amdhsa_kernarg_size 80
  .amdhsa_user_sgpr_count 2
  .amdhsa_user_sgpr_kernarg_segment_ptr 1
  .amdhsa_system_sgpr_workgroup_id_x 1
  .amdhsa_float_denorm_mode_32 3
.end_amdhsa_kernel
"""
    return p, desc
```

```python
from asmlib import *
import k1
from k1 import (WS_QF, WS_KV, WS_HF, WS_OF, WS_FLAG, SLOT, NSLOT, RING, LOG2E, CQ, hexf, flat, stamp, stamp_store)
from k0 import WS_XN, wave_sum, rbf
WS_FL = (16 << 20) + 4096

def gen_k1(name):
    return gen(name)

L_TAG = RING + 64
def gen(name):
    p = Prog()
    EXP = k1.EXP
    WS_SIZE = k1.WS_SIZE
    S_W, S_G, S_U, S_WS = 8, 12, 16, 20
    s_w, s_r4, s_ch, s_rb, s_g, s_p, s_kind, s_ty = 30, 31, 32, 33, 34, 35, 36, 37
    s_two = 38
    s_q = 40
    s_qt = 45
    s_left = 50
    s_dslot, s_rslot = 51, 52
    s_hi, s_pad = 54, 56
    s_t0, s_t1, s_t2, s_t3 = 58, 59, 60, 61
    s_so, s_s64, s_s112 = 62, 63, 53
    s_dsrd = 64
    s_stq, s_stv, s_sth = 68, 69, 70
    s_scq, s_padk = 71, 72
    s_mo = 73
    s_x0, s_xm = 76, 77
    s_more = 78
    s_tso, s_tleft = 79, 39
    s_tsrd = 96
    s_ts112 = 29
    s_ri = 28
    v_lane16 = 1
    v_patq, v_patg = 2, 3
    v_wa = [4, 5]
    v_dq, v_dg, v_dsel = 7, 8, 9
    v_tq, v_tg, v_tsel = 10, 11, 12
    v_t = 18
    v_padv = 28
    v_patn = 29
    WF = [40, 44, 48, 52]
    ACCA, B1, B2 = 56, 72, 88
    TP = 104
    XF = 128
    xr = [240, 241]
    v_td = 242
    L = lambda s: name + '_' + s
    uid = [0]
    tdi = [0]
    def tdst():
        tdi[0] = (tdi[0] + 1) % 8
        return v_td + tdi[0]

    p.label(name)
    p(f's_cmp_ge_u32 s2, 256')
    p(f's_cbranch_scc1 {L("end")}')
    stamp(p, 0)
    p('s_load_dwordx2 s[6:7], s[0:1], 8')
    p('s_load_dwordx4 s[24:27], s[0:1], 32')
    p('s_load_dwordx2 s[4:5], s[0:1], 72')
    p('s_load_dwordx2 s[96:97], s[0:1], 0')
    p('s_load_dwordx2 s[100:101], s[0:1], 64')
    p('s_getpc_b64 s[74:75]')
    lane, m, hh = v_t + 2, v_t + 3, v_t + 4
    p(f'v_and_b32 v{lane}, 63, v0')
    p(f'v_lshrrev_b32 v{v_t+1}, 6, v0')
    p(f'v_readfirstlane_b32 s{s_w}, v{v_t+1}')
    p(f'v_lshlrev_b32 v{v_lane16}, 4, v{lane}')
    p(f'v_and_b32 v{m}, 31, v0')
    p(f'v_bfe_u32 v{hh}, v0, 5, 1')
    p(f's_bfe_u32 s{s_ri}, s2, 0x30003')
    p(f's_and_b32 s{s_t0}, s2, 1')
    p(f's_lshl_b32 s{s_t0}, s{s_t0}, 3')
    p(f's_add_u32 s{s_rb}, s{s_t0}, s{s_ri}')
    p(f's_bfe_u32 s{s_t0}, s2, 0x20001')
    p(f's_lshl_b32 s{s_t0}, s{s_t0}, 2')
    p(f's_lshr_b32 s{s_t1}, s2, 6')
    p(f's_add_u32 s{s_g}, s{s_t0}, s{s_t1}')
    p(f's_and_b32 s{s_r4}, s{s_w}, 3')
    p(f's_lshr_b32 s{s_ch}, s{s_w}, 2')
    p(f's_cmp_eq_u32 s{s_w}, 7')
    p(f's_cbranch_scc0 {L("nocp")}')
    p(f's_lshr_b32 s{s_t0}, s2, 3')
    p(f's_lshl_b32 s{s_t0}, s{s_t0}, 11')
    p(f'v_lshlrev_b32 v{v_t}, 7, v{lane}')
    p(f'v_add_u32 v{v_t}, s{s_t0}, v{v_t}')
    p('s_mov_b32 exec_lo, 0xffff')
    p('s_mov_b32 exec_hi, 0')
    p(f'global_load_dword v{tdst()}, v{v_t}, s[74:75]')
    p('s_mov_b64 exec, -1')
    p.label(L('nocp'))
    p(f's_cmp_lt_u32 s{s_g}, 4')
    p(f's_cbranch_scc0 {L("tyX")}')
    p(f's_mov_b32 s{s_ty}, 0')
    p(f's_mov_b32 s{s_p}, s{s_g}')
    p(f's_mov_b32 s{s_kind}, 0')
    p(f's_mul_i32 s{s_q}, s{s_p}, 112')
    p(f's_add_u32 s{s_q+1}, s{s_q}, 896')
    p(f's_add_u32 s{s_q+2}, s{s_q}, 1792')
    p(f's_lshl_b32 s{s_q+3}, s{s_g}, 7')
    p(f's_mov_b32 s{s_q+4}, s{s_q+3}')
    for i, k in enumerate((0, 0, 0, 1, 2)): p(f's_mov_b32 s{s_qt+i}, {k}')
    p(f's_mov_b32 s{s_t2}, s{s_g}')
    p(f's_branch {L("tyC")}')
    p.label(L('tyX'))
    p(f's_mov_b32 s{s_ty}, 1')
    p(f's_sub_u32 s{s_t0}, s{s_g}, 4')
    p(f's_mul_i32 s{s_t1}, s{s_t0}, 43')
    p(f's_lshr_b32 s{s_t1}, s{s_t1}, 7')
    p(f's_add_u32 s{s_p}, s{s_t1}, 4')
    p(f's_mul_i32 s{s_t1}, s{s_t1}, 3')
    p(f's_sub_u32 s{s_kind}, s{s_t0}, s{s_t1}')
    p(f's_mul_i32 s{s_q}, s{s_p}, 112')
    p(f's_mul_i32 s{s_t1}, s{s_kind}, 896')
    p(f's_add_u32 s{s_q}, s{s_q}, s{s_t1}')
    p(f's_lshl_b32 s{s_t2}, s{s_t0}, 1')
    p(f's_add_u32 s{s_t2}, s{s_t2}, 4')
    p(f's_lshl_b32 s{s_q+1}, s{s_t2}, 7')
    p(f's_mov_b32 s{s_q+2}, s{s_q+1}')
    p(f's_add_u32 s{s_q+3}, s{s_q+1}, 128')
    p(f's_mov_b32 s{s_q+4}, s{s_q+3}')
    for i, k in enumerate((0, 1, 2, 1, 2)): p(f's_mov_b32 s{s_qt+i}, {k}')
    p.label(L('tyC'))
    p(f's_lshl_b32 s{s_t0}, s{s_rb}, 2')
    p(f's_add_u32 s{s_t0}, s{s_t0}, s{s_r4}')
    p(f's_mul_i32 s{s_sth}, s{s_t0}, 112')
    p(f's_lshl_b32 s{s_t1}, s{s_t2}, 2')
    p(f's_add_u32 s{s_sth}, s{s_sth}, s{s_t1}')
    p(f's_lshl_b32 s{s_t1}, s{s_ch}, 1')
    p(f's_add_u32 s{s_sth}, s{s_sth}, s{s_t1}')
    p(f's_lshl_b32 s{s_sth}, s{s_sth}, 10')
    p(f's_add_u32 s{s_sth}, s{s_sth}, {WS_HF}')
    p(f's_lshl_b32 s{s_t1}, s{s_p}, 1')
    p(f's_add_u32 s{s_t1}, s{s_t1}, s{s_ch}')
    p(f's_lshl_b32 s{s_t1}, s{s_t1}, 6')
    p(f's_add_u32 s{s_t1}, s{s_t1}, s{s_t0}')
    s_stk = 95 if not k1.STAMP else 95
    s_stk = 74
    p(f's_lshl_b32 s{s_t3}, s{s_t1}, 12')
    p(f's_add_u32 s{s_stv}, s{s_t3}, {WS_KV + 2048}')
    p(f'v_bfe_u32 v{v_t}, v{lane}, 4, 1')
    p(f'v_lshlrev_b32 v{v_t}, 2, v{v_t}')
    p(f'v_and_b32 v{v_t+1}, 7, v{lane}')
    p(f'v_xor_b32 v{v_t}, v{v_t}, v{v_t+1}')
    p(f'v_lshlrev_b32 v{v_t}, 4, v{v_t}')
    p(f'v_lshrrev_b32 v{v_t+1}, 3, v{lane}')
    p(f'v_mul_u32_u24 v{v_dq}, 2688, v{v_t+1}')
    p(f'v_add_u32 v{v_dq}, v{v_dq}, v{v_t}')
    p(f'v_mul_u32_u24 v{v_dg}, 3584, v{v_t+1}')
    p(f'v_add_u32 v{v_dg}, v{v_dg}, v{v_t}')
    p(f's_cmp_lt_u32 s{s_w}, 6')
    p(f's_cselect_b32 s{s_two}, 1, 0')
    p(f's_lshl_b32 s{s_mo}, s{s_w}, 10')
    p('s_waitcnt lgkmcnt(0)')
    stamp(p, 2)
    for (Sd, lo, hi, size) in ((S_W, 6, 7, 448 * 2688), (S_G, 24, 25, 448 * 3584), (S_U, 26, 27, 448 * 3584), (S_WS, 4, 5, WS_SIZE)):
        p(f's_mov_b32 s{Sd}, s{lo}')
        p(f's_mov_b32 s{Sd+1}, s{hi}')
        p(f's_mov_b32 s{Sd+2}, {size}')
        p(f's_mov_b32 s{Sd+3}, 0x20000')
    p(f's_add_u32 s{s_stk}, s{s_t3}, {WS_KV}')
    p(f's_lshl_b32 s{s_stq}, s{s_t1}, 11')
    p(f's_add_u32 s{s_stq}, s{s_stq}, {WS_QF}')

    def sel_srd(kreg, dst):
        return [I(f's_cmp_eq_u32 s{kreg}, 1'),
                I(f's_cselect_b64 s[{dst}:{dst+1}], s[{S_G}:{S_G+1}], s[{S_U}:{S_U+1}]'),
                I(f's_cmp_eq_u32 s{kreg}, 0'),
                I(f's_cselect_b64 s[{dst}:{dst+1}], s[{S_W}:{S_W+1}], s[{dst}:{dst+1}]'),
                I(f's_cselect_b32 s{dst+2}, s{S_W+2}, s{S_G+2}'),
                I(f's_mov_b32 s{dst+3}, 0x20000')]
    def ctx_switch():
        uid[0] += 1; u = uid[0]
        o = sel_srd(s_qt, s_dsrd)
        o += [I(f's_movk_i32 s{s_t0}, 3584'),
              I(f's_cselect_b32 s{s_t0}, 2688, s{s_t0}'),
              I(f's_cbranch_scc1 {L("cx_q%d" % u)}'),
              I(f'v_mov_b32 v{v_dsel}, v{v_dg}'),
              I(f's_branch {L("cx_c%d" % u)}'),
              I(f'{L("cx_q%d" % u)}:'),
              I(f'v_mov_b32 v{v_dsel}, v{v_dq}'),
              I(f'{L("cx_c%d" % u)}:'),
              I(f's_lshl_b32 s{s_s64}, s{s_t0}, 6'),
              I(f's_mul_i32 s{s_s112}, s{s_t0}, 112'),
              I(f's_mul_i32 s{s_so}, s{s_w}, s{s_t0}'),
              I(f's_lshl_b32 s{s_so}, s{s_so}, 3'),
              I(f's_add_u32 s{s_so}, s{s_so}, s{s_q}')]
        for i in range(4):
            o.append(I(f's_mov_b32 s{s_q+i}, s{s_q+i+1}'))
            o.append(I(f's_mov_b32 s{s_qt+i}, s{s_qt+i+1}'))
        return o
    def b_issue(g, check=False):
        uid[0] += 1; u = uid[0]
        if 'nodma' in EXP and check: return []
        o = []
        if check:
            o += [I(f's_cmp_eq_u32 s{s_left}, 0'), I(f's_cbranch_scc1 {L("bi_d%d" % u)}'),
                  I(f's_sub_u32 s{s_left}, s{s_left}, 1')]
        o += [I(f's_add_u32 m0, s{s_dslot}, s{s_mo}'),
              I(f's_add_u32 s{s_dslot}, s{s_dslot}, {SLOT}'),
              I(f'buffer_load_dwordx4 v{v_dsel}, s[{s_dsrd}:{s_dsrd+3}], s{s_so} offen lds', gives=[g]),
              I(f's_cmp_eq_u32 s{s_two}, 0'),
              I(f's_cbranch_scc1 {L("bi_s%d" % u)}'),
              I('s_addk_i32 m0, 8192'),
              I(f's_add_u32 s{s_t0}, s{s_so}, s{s_s64}'),
              I(f'buffer_load_dwordx4 v{v_dsel}, s[{s_dsrd}:{s_dsrd+3}], s{s_t0} offen lds', gives=[g]),
              I(f'{L("bi_s%d" % u)}:'),
              I(f's_add_u32 s{s_so}, s{s_so}, s{s_s112}'),
              I(f's_cmp_ge_u32 s{s_dslot}, {RING}'),
              I(f's_cselect_b32 s{s_t0}, {RING}, 0'),
              I(f's_sub_u32 s{s_dslot}, s{s_dslot}, s{s_t0}')]
        if check: o.append(I(f'{L("bi_d%d" % u)}:'))
        return o
    def x_issue(a, g):
        return [I(f's_mov_b32 m0, s{s_xm}'),
                I(f's_addk_i32 s{s_xm}, 16384'),
                I(f'buffer_load_dwordx4 v{xa}, s[{S_X}:{S_X+3}], s{s_x0} offen lds', gives=[g]),
                I('s_addk_i32 m0, 1024'),
                I(f's_addk_i32 s{s_x0}, 128'),
                I(f'buffer_load_dwordx4 v{xb}, s[{S_X}:{S_X+3}], s{s_x1} offen lds', gives=[g]),
                I(f's_addk_i32 s{s_x1}, 128')]

    S_X = 96
    s_x1 = 79
    xa, xb = 250, 251
    p(f's_mov_b32 s{S_X+2}, {2048*896}')
    p(f's_mov_b32 s{S_X+3}, 0x20000')
    p(f's_lshl_b32 s{s_t0}, s{s_rb}, 7')
    p(f's_lshl_b32 s{s_t1}, s{s_w}, 4')
    p(f's_add_u32 s{s_t0}, s{s_t0}, s{s_t1}')
    p(f's_mul_i32 s{s_x0}, s{s_t0}, 896')
    p(f's_add_u32 s{s_x1}, s{s_x0}, {8*896}')
    p(f's_lshl_b32 s{s_xm}, s{s_w}, 11')
    p(f'v_lshrrev_b32 v{v_t}, 3, v{lane}')
    p(f'v_mul_u32_u24 v{v_t}, 896, v{v_t}')
    p(f'v_lshrrev_b32 v{v_t+1}, 4, v{lane}')
    p(f'v_and_b32 v{v_t+5}, 7, v{lane}')
    p(f'v_xor_b32 v{v_t+1}, v{v_t+1}, v{v_t+5}')
    p(f'v_lshlrev_b32 v{v_t+1}, 4, v{v_t+1}')
    p(f'v_add_u32 v{xa}, v{v_t}, v{v_t+1}')
    p(f'v_xor_b32 v{v_t+1}, 64, v{v_t+1}')
    p(f'v_add_u32 v{xb}, v{v_t}, v{v_t+1}')
    for a in range(7): p.add(x_issue(a, 'x'))
    p(f's_mov_b32 s{s_dslot}, {8*SLOT}')
    p(f's_mov_b32 s{s_left}, 9')
    p.add(ctx_switch())
    p.add(b_issue('g0') + b_issue('g1') + b_issue('g2'))
    stamp(p, 3)
    p(f's_cmp_eq_u32 s{s_w}, 5')
    p(f's_cbranch_scc0 {L("nzf")}')
    p(f's_lshl_b32 s{s_t0}, s2, 2')
    p(f's_add_u32 s{s_t0}, s{s_t0}, {WS_FLAG}')
    p(f'v_mov_b32 v{v_t}, 0')
    p(f'buffer_store_dword v{v_t}, v{v_t}, s[{S_WS}:{S_WS+3}], s{s_t0} offen')
    p.label(L('nzf'))

    p(f's_mov_b32 s{s_hi}, 0')
    p(f's_mov_b32 s{s_hi+1}, -1')
    p(f's_mov_b32 s{s_pad}, 0xf0000000')
    p(f's_mov_b32 s{s_pad+1}, 0xf0000000')
    def mkpat(dst, b0mul):
        p(f'v_bfe_u32 v{v_t}, v{lane}, 2, 2')
        p(f'v_lshlrev_b32 v{v_t+1}, 3, v{hh}')
        p(f'v_add_u32 v{v_t+1}, v{v_t+1}, v{v_t}')
        p(f'v_lshlrev_b32 v{dst}, 7, v{v_t+1}')
        p(f'v_bfe_u32 v{v_t+1}, v{lane}, 4, 1')
        p(f'v_lshlrev_b32 v{v_t+1}, 5, v{v_t+1}')
        p(f'v_and_b32 v{v_t+5}, 3, v{lane}')
        p(f'v_lshlrev_b32 v{v_t+5}, 3, v{v_t+5}')
        p(f'v_add_u32 v{v_t+1}, v{v_t+1}, v{v_t+5}')
        p(f's_mul_i32 s{s_t0}, s{s_ch}, {b0mul}')
        p(f'v_add_u32 v{v_t+1}, s{s_t0}, v{v_t+1}')
        p(f'v_lshrrev_b32 v{v_t}, 1, v{v_t}')
        p(f'v_lshlrev_b32 v{v_t}, 6, v{v_t}')
        p(f'v_xor_b32 v{v_t+1}, v{v_t+1}, v{v_t}')
        p(f'v_add_u32 v{dst}, v{dst}, v{v_t+1}')
    mkpat(v_patq, 56)
    mkpat(v_patg, 64)
    p(f'v_cmp_eq_u32 vcc, 28, v{m}')
    p(f'v_mov_b32 v{v_padv}, 0')
    p(f'v_mov_b32 v{v_t}, 0x3f803f80')
    p(f'v_cndmask_b32 v{v_padv}, v{v_padv}, v{v_t}, vcc')
    xr = [240, 241, 242, 243]
    p(f's_lshl_b32 s{s_t0}, s{s_r4}, 12')
    p(f'v_lshlrev_b32 v{v_t}, 7, v{m}')
    p(f'v_add_u32 v{v_t}, s{s_t0}, v{v_t}')
    p(f'v_bfe_u32 v{v_t+1}, v{m}, 1, 3')
    p(f'v_xor_b32 v{v_t+1}, v{v_t+1}, v{hh}')
    for u in range(4):
        p(f'v_xor_b32 v{v_t+5}, {2*u}, v{v_t+1}')
        p(f'v_lshlrev_b32 v{v_t+5}, 4, v{v_t+5}')
        p(f'v_add_u32 v{xr[u]}, v{v_t}, v{v_t+5}')
    def layernorm():
        va, vb = 244, 245
        p(f's_lshl_b32 s{s_t0}, s{s_w}, 11')
        p(f'v_add_u32 v{va}, s{s_t0}, v{v_lane16}')
        p(f'v_add_u32 v{vb}, 0x10000, v{va}')
        RAW = ACCA
        RAW = 40
        def addr(a, g):
            base = va if a < 4 else vb
            return base, ((a * 16384) & 0xffff) + g * 1024
        p.add([I('s_nop 0', needs=['x'])])
        stamp(p, 4)
        for g in range(2):
            for a in range(7):
                b, off = addr(a, g)
                r = RAW + 4 * (g * 7 + a)
                p(f'ds_read_b128 v[{r}:{r+3}], v{b} offset:{off}')
        sm = [v_t, v_t + 1]; sq = [v_t + 2 + 4, v_t + 3 + 4]
        sq = [246, 247]
        for g in range(2):
            for a in range(7):
                r = RAW + 4 * (g * 7 + a); f = XF + 8 * (g * 7 + a)
                for i in range(4):
                    p(f'v_lshlrev_b32 v{f+2*i}, 16, v{r+i}')
                    p(f'v_and_b32 v{f+2*i+1}, 0xffff0000, v{r+i}')
                for i in range(8):
                    if a == 0 and i == 0:
                        p(f'v_mov_b32 v{sm[g]}, v{f}')
                        p(f'v_mul_f32 v{sq[g]}, v{f}, v{f}')
                    else:
                        p(f'v_add_f32 v{sm[g]}, v{sm[g]}, v{f+i}')
                        p(f'v_fmac_f32 v{sq[g]}, v{f+i}, v{f+i}')
        for ctrl in ('quad_perm:[1,0,3,2]', 'quad_perm:[2,3,0,1]', 'row_half_mirror'):
            for v in sm + sq:
                p(f'v_add_f32_dpp v{v}, v{v}, v{v} {ctrl} row_mask:0xf bank_mask:0xf')
        for g in range(2):
            p(f'v_mul_f32 v{sm[g]}, {hexf(1/448)}, v{sm[g]}')
            p(f'v_mul_f32 v{sq[g]}, {hexf(1/448)}, v{sq[g]}')
            p(f'v_fma_f32 v{sq[g]}, -v{sm[g]}, v{sm[g]}, v{sq[g]}')
            p(f'v_max_f32 v{sq[g]}, 0, v{sq[g]}')
            p(f'v_add_f32 v{sq[g]}, {hexf(1e-5)}, v{sq[g]}')
            p(f'v_rsq_f32 v{sq[g]}, v{sq[g]}')
        for g in range(2):
            p(f'v_mul_f32 v{sm[g]}, v{sm[g]}, v{sq[g]}')
            p(f'v_sub_f32 v{sm[g]}, 0, v{sm[g]}')
        for g in range(2):
            for a in range(7):
                r = RAW + 4 * (g * 7 + a); f = XF + 8 * (g * 7 + a)
                for i in range(8):
                    p(f'v_fma_f32 v{f+i}, v{f+i}, v{sq[g]}, v{sm[g]}')
                for i in range(4):
                    p(f'v_cvt_pk_bf16_f32 v{r+i}, v{f+2*i}, v{f+2*i+1}')
                b, off = addr(a, g)
                p.add([I(f'ds_write_b128 v{b}, v[{r}:{r+3}] offset:{off}', gives=['lds:xn'])])
    p(f's_mov_b32 s{s_rslot}, {8*SLOT}')

    def ring_adv(s):
        return [I(f's_add_u32 s{s}, s{s}, {SLOT}'),
                I(f's_cmp_ge_u32 s{s}, {RING}'),
                I(f's_cselect_b32 s{s_t1}, {RING}, 0'),
                I(f's_sub_u32 s{s}, s{s}, s{s_t1}')]
    def wread(t, pat_cur, pat_next):
        o = []
        ks = (t % 28) % 7
        va = v_wa[(t // 7) & 1]
        if ks == 0:
            pat = pat_cur if t < 28 else pat_next
            o.append(I(f'v_add_u32 v{va}, s{s_rslot}, v{pat}'))
            o += ring_adv(s_rslot)
        b = WF[t & 3]
        o.append(I(f'ds_read_b64_tr_b16 v[{b}:{b+1}], v{va} offset:{ks*2048}'))
        o.append(I(f'ds_read_b64_tr_b16 v[{b+2}:{b+3}], v{va} offset:{ks*2048+512}'))
        return o
    def mf(t, w_is_a, dst):
        b = WF[t & 3]; x = XF + 4 * t
        d = dst if t == 27 else ACCA
        c = '0' if t == 0 else f'v[{ACCA}:{ACCA+15}]'
        if w_is_a: return I(f'v_mfma_f32_32x32x16_bf16 v[{d}:{d+15}], v[{b}:{b+3}], v[{x}:{x+3}], {c}')
        return I(f'v_mfma_f32_32x32x16_bf16 v[{d}:{d+15}], v[{x}:{x+3}], v[{b}:{b+3}], {c}')

    def e_gu():
        body = []
        for qd in range(4):
            r0 = 4 * qd
            ee = [TP + i for i in range(4)]
            pp = [TP + 4 + i for i in range(4)]
            for i in range(4):
                body.append(I(f'v_mul_f32 v{ee[i]}, {hexf(-LOG2E)}, v{B1+r0+i}'))
            for i in range(4):
                body.append(I(f'v_exp_f32 v{ee[i]}, v{ee[i]}'))
                body.append(I(f'v_mul_f32 v{pp[i]}, v{B1+r0+i}, v{B2+r0+i}'))
            for i in range(4):
                body.append(I(f'v_add_f32 v{ee[i]}, 1.0, v{ee[i]}'))
            for i in range(4):
                body.append(I(f'v_rcp_f32 v{ee[i]}, v{ee[i]}'))
            for i in range(4):
                body.append(I(f'v_mul_f32 v{pp[i]}, v{pp[i]}, v{ee[i]}'))
            hp = TP + 8 + 2 * qd
            body.append(I(f'v_cvt_pk_bf16_f32 v{hp}, v{pp[0]}, v{pp[1]}'))
            body.append(I(f'v_cvt_pk_bf16_f32 v{hp+1}, v{pp[2]}, v{pp[3]}'))
            if qd & 1:
                body.append(I(f'buffer_store_dwordx4 v[{hp-2}:{hp+1}], v{v_lane16}, s[{S_WS}:{S_WS+3}], s{s_sth} offen offset:{(qd>>1)*1024}'))
        body.append(I(f's_add_u32 s{s_sth}, s{s_sth}, 4096'))
        return body
    def e_qk():
        body = []
        O = TP + 16
        for r in range(16):
            body.append(I(f'v_mul_f32 v{TP+r}, s{s_scq}, v{B2+r}'))
        for d in range(8):
            body.append(I(f'v_cvt_pk_bf16_f32 v{O+d}, v{TP+2*d}, v{TP+2*d+1}'))
        body.append(I(f'v_mov_b32 v{TP}, s{s_padk}'))
        body.append(I(f'v_mov_b32 v{TP+1}, 0'))
        body.append(I(f'v_cndmask_b32 v{O+6}, v{O+6}, v{TP}, s[{s_hi}:{s_hi+1}]'))
        body.append(I(f'v_cndmask_b32 v{O+7}, v{O+7}, v{TP+1}, s[{s_hi}:{s_hi+1}]'))
        body.append(I(f'buffer_store_dwordx4 v[{O}:{O+3}], v{v_lane16}, s[{S_WS}:{S_WS+3}], s{s_stq} offen'))
        body.append(I(f'buffer_store_dwordx4 v[{O+4}:{O+7}], v{v_lane16}, s[{S_WS}:{S_WS+3}], s{s_stq} offen offset:1024'))
        body.append([I(f's_mov_b32 s{s_scq}, 1.0'), I(f's_mov_b32 s{s_padk}, 0x3f80'), I(f's_mov_b32 s{s_stq}, s{s_stk}')])
        return body
    def e_vv():
        O = TP + 16
        body = []
        for d in range(8):
            body.append(I(f'v_cvt_pk_bf16_f32 v{O+d}, v{B2+2*d}, v{B2+2*d+1}'))
        for d in range(8):
            body.append(I(f'v_cndmask_b32 v{O+d}, v{O+d}, v{v_padv}, s[{s_pad}:{s_pad+1}]'))
        body.append(I(f'buffer_store_dwordx4 v[{O}:{O+3}], v{v_lane16}, s[{S_WS}:{S_WS+3}], s{s_stv} offen'))
        body.append(I(f'buffer_store_dwordx4 v[{O+4}:{O+7}], v{v_lane16}, s[{S_WS}:{S_WS+3}], s{s_stv} offen offset:1024'))
        return body
    def spread(fill, items, st, en):
        n = en - st
        for k in range(n):
            fill[st + k] += items[len(items) * k // n: len(items) * (k + 1) // n]
    def stage(w_is_a, dst, pat_cur, pat_next, epi, extra0=(), touch=()):
        fill = [[] for _ in range(28)]
        head = [[] for _ in range(28)]
        head[0] += list(extra0) + b_issue('dma:i0', True)
        head[3] += list(touch)
        head[7] += ctx_switch() + b_issue('dma:i1', True)
        head[14] += b_issue('dma:i2', True)
        head[21] += b_issue('dma:i3', True)
        if 'noepi' in EXP: epi = None
        if epi is not None: spread(fill, epi, 1, 26)
        out = []
        for t in range(28):
            out += wread(t + 3, pat_cur, pat_next) + [mf(t, w_is_a, dst)] + flat(head[t]) + flat(fill[t])
        out.append(I('s_barrier', needs=['dma:i0', 'dma:i1']))
        return out
    def xread(t0, t1, g):
        o = []
        for t in range(t0, t1):
            a, u = t >> 2, t & 3
            if t == 16:
                for uu in range(4): o.append(I(f'v_add_u32 v{xr[uu]}, 0x10000, v{xr[uu]}'))
            off = (a * 16384) & 0xffff
            o.append(I(f'ds_read_b128 v[{XF+4*t}:{XF+4*t+3}], v{xr[u]} offset:{off}', gives=[g]))
        return o
    def stage0(w_is_a, pat_next):
        o = []
        groups = [
            (['g0', 'lds:xn'], xread(0, 8, 'rd:x0'), []),
            (['g1', 'rd:x0'], xread(8, 16, 'rd:x1'), b_issue('g3b') + ctx_switch() + b_issue('g4')),
            (['g2', 'rd:x1'], xread(16, 24, 'rd:x2'), b_issue('g5') + b_issue('g5')),
            (['g3b', 'g4', 'rd:x2'], xread(24, 28, 'rd:x3'), b_issue('g7') + ctx_switch() + b_issue('g8')),
        ]
        for j, (needs, xr_, iss) in enumerate(groups):
            o.append(I('s_barrier', needs=needs))
            if k1.STAMP:
                idx = {0: 5, 1: 10, 2: 11, 3: 12}[j]
                o += [I('s_memtime s[94:95]'), I('s_waitcnt lgkmcnt(0)'), I(f's_mov_b32 s{80+idx}, s94')]
            o += xr_[:3]
            for k in range(3): o += wread(7 * j + k, v_patq, pat_next)
            o += xr_[3:]
            o += iss
            for k in range(7):
                t = 7 * j + k
                if k + 3 < 7 or j == 3: o += wread(t + 3, v_patq, pat_next)
                o.append(mf(t, w_is_a, B2))
        o.append(I('s_barrier', needs=['g8', 'rd:x3']))
        return o

    catchup = lambda: (b_issue('dma:c') + b_issue('dma:c')) if 'nodma' not in EXP else []
    layernorm()
    stamp(p, 1)
    p(f's_cmp_eq_u32 s{s_kind}, 1')
    p(f's_cselect_b32 s{s_scq}, 1.0, {hexf(CQ)}')
    p(f's_cselect_b32 s{s_padk}, 0x3f80, 0')
    p(f's_cselect_b32 s{s_stq}, s{s_stk}, s{s_stq}')
    p(f's_mov_b32 s{s_more}, s{s_ty}')
    p(f's_cmp_eq_u32 s{s_ty}, 0')
    p(f's_cbranch_scc1 {L("seqY")}')
    p(f's_cmp_eq_u32 s{s_kind}, 2')
    p(f's_cbranch_scc1 {L("seqXV")}')
    p.add(stage0(True, v_patg))
    stamp(p, 6)
    p.add(stage(True, B1, v_patg, v_patg, e_qk(), catchup()))
    p(f's_branch {L("bU")}')
    p.label(L('seqXV'))
    p.add(stage0(False, v_patg))
    stamp(p, 6)
    p.add(stage(True, B1, v_patg, v_patg, e_vv(), catchup()))
    p(f's_branch {L("bU")}')
    p.label(L('seqY'))
    p.add(stage0(True, v_patq))
    stamp(p, 6)
    p.add(stage(True, B2, v_patq, v_patq, e_qk(), catchup()))
    p.add(stage(False, B2, v_patq, v_patg, e_qk()))
    p.add(stage(True, B1, v_patg, v_patg, e_vv()))
    p.label(L('bU'))
    p.add(stage(True, B2, v_patg, v_patg, None))
    stamp(p, 7)
    p(f's_cmp_eq_u32 s{s_more}, 0')
    p(f's_cbranch_scc1 {L("fin")}')
    p(f's_mov_b32 s{s_more}, 0')
    p.add(stage(True, B1, v_patg, v_patg, e_gu()))
    p(f's_branch {L("bU")}')
    p.label(L('fin'))
    stamp(p, 8)
    p('s_nop 7')
    p.add(flat(e_gu()))
    p('s_waitcnt vmcnt(0) lgkmcnt(0)')
    stamp(p, 9)
    stamp_store(p, S_WS, s_w, 0)
    p.label(L('end'))
    p('s_endpgm')
    desc = f"""
.amdhsa_kernel {name}
  .amdhsa_next_free_vgpr 256
  .amdhsa_next_free_sgpr 102
  .amdhsa_accum_offset 256
  .amdhsa_group_segment_fixed_size 0
  .amdhsa_kernarg_size 80
  .amdhsa_user_sgpr_count 2
  .amdhsa_user_sgpr_kernarg_segment_ptr 1
  .amdhsa_system_sgpr_workgroup_id_x 1
  .amdhsa_float_denorm_mode_32 3
.end_amdhsa_kernel
"""
    return p, desc
```

```python
from asmlib import *
import k1, ph1, ph2
from k1 import stamp
from ph1 import WS_FL

def gen(name):
    p = Prog()
    L = lambda s: name + '_' + s
    r = ph1.regmap()
    S_WS, s_w, s_tag = r.S_WS, r.s_w, r.s_tag
    s_t0, s_t1 = r.s_t0, r.s_t1
    cnt = [0]
    def flag_store(level):
        cnt[0] += 1; u = cnt[0]
        return [I(f's_cmp_eq_u32 s{s_w}, 0'), I(f's_cbranch_scc0 {L("fs%d" % u)}'),
                I(f's_lshl_b32 s{s_t0}, s{r.s_rb}, 4'), I(f's_add_u32 s{s_t0}, s{s_t0}, s{r.s_g}'),
                I(f's_lshl_b32 s{s_t0}, s{s_t0}, 2'), I(f's_add_u32 s{s_t0}, s{s_t0}, {WS_FL + level*1024}'),
                I(f'v_mov_b32 v26, s{s_tag}'), I('v_mov_b32 v27, 0'),
                I(f'buffer_store_dword v26, v27, s[{S_WS}:{S_WS+3}], s{s_t0} offen sc1'),
                I(f'{L("fs%d" % u)}:')]
    def hook(pt):
        if pt in ('qkvX', 'qkvY'): return flag_store(1)
        return []
    r.hook = hook
    p.label(name)
    p('s_cmp_ge_u32 s2, 256')
    p(f's_cbranch_scc1 {L("end")}')
    stamp(p, 0)
    ph1.phase1(p, lambda s: L('a_' + s), r, True)
    p(f's_lshl_b32 s72, s{r.s_rb}, 4')
    p(f's_add_u32 s72, s72, s{r.s_g}')
    if k1.STAMP: k1.stamp_store(p, S_WS, s_w, 0)
    L2 = lambda s: L('b_' + s)
    def pre():
        s_hd, s_qb = 31, 32
        o = [I(f's_lshr_b32 s40, s{s_hd}, 1'),
             I('s_sub_u32 s41, s40, 4'), I('s_mul_i32 s41, s41, 3'), I('s_add_u32 s41, s41, 4'),
             I('s_cmp_lt_u32 s40, 4'),
             I('s_cselect_b32 s41, s40, s41'),
             I('s_cselect_b32 s42, 0, 1'),
             I('s_add_u32 s43, s41, s42'),
             I('s_add_u32 s42, s43, s42'),
             I('v_and_b32 v240, 63, v0'),
             I('v_and_b32 v241, 15, v240'), I('v_lshlrev_b32 v241, 4, v241'),
             I('v_add_u32 v242, s43, v241'), I('v_add_u32 v243, s42, v241'),
             I('v_cmp_gt_u32 vcc, 16, v240'), I('v_cndmask_b32 v242, v243, v242, vcc'),
             I(f's_lshl_b32 s40, s{s_qb}, 4'), I('s_add_u32 s40, s40, s41'), I('v_mov_b32 v243, s40'),
             I('v_cmp_gt_u32 vcc, 32, v240'), I('v_cndmask_b32 v242, v243, v242, vcc'),
             I('v_lshlrev_b32 v242, 2, v242'),
             I(f's_mov_b32 s40, {WS_FL + 1*1024}'), I('s_mov_b32 s41, 0x200000'),
             I(f'{L2("kvpoll")}:'),
             I(f'buffer_load_dword v243, v242, s[{S_WS}:{S_WS+3}], s40 offen sc1'),
             I('s_waitcnt vmcnt(0)'),
             I(f'v_cmp_eq_u32 vcc, s{s_tag}, v243'),
             I('s_cmp_eq_u64 vcc, -1'), I(f's_cbranch_scc1 {L2("kvok")}'),
             I('s_sub_u32 s41, s41, 1'), I('s_cmp_lg_u32 s41, 0'), I(f's_cbranch_scc1 {L2("kvpoll")}'),
             I(f'{L2("kvok")}:')]
        return o
    def after_beta0():
        return [I(f's_cmp_eq_u32 s{s_w}, 0'), I(f's_cbranch_scc0 {L2("hf")}'),
                I('s_lshl_b32 s40, s72, 2'), I(f's_add_u32 s40, s40, {WS_FL + 2*1024}'),
                I(f'v_mov_b32 v248, s{s_tag}'), I('v_mov_b32 v249, 0'),
                I(f'buffer_store_dword v248, v249, s[{S_WS}:{S_WS+3}], s40 offen sc1'),
                I(f'{L2("hf")}:')]
    def beta_hook(beta, gem):
        o = []
        if gem and beta == ph2.GFIRST - 2:
            o += [I('s_lshr_b32 s40, s33, 1'), I('s_lshl_b32 s40, s40, 6'), I(f's_add_u32 s40, s40, {WS_FL + 2*1024}'),
                  I('v_and_b32 v240, 15, v0'), I('v_lshlrev_b32 v240, 2, v240'), I('s_mov_b32 s41, 0x200000'),
                  I(f'{L2("hpoll")}:'),
                  I(f'buffer_load_dword v241, v240, s[{S_WS}:{S_WS+3}], s40 offen sc1'),
                  I('s_waitcnt vmcnt(0)'),
                  I(f'v_cmp_eq_u32 vcc, s{s_tag}, v241'),
                  I('s_cmp_eq_u64 vcc, -1'), I(f's_cbranch_scc1 {L2("hok")}'),
                  I('s_sub_u32 s41, s41, 1'), I('s_cmp_lg_u32 s41, 0'), I(f's_cbranch_scc1 {L2("hpoll")}'),
                  I(f'{L2("hok")}:')]
        return o
    ph2.phase2.after_beta0 = after_beta0
    ph2.phase2.pre_hook = pre
    ph2.phase2.beta_hook = beta_hook
    ph2.phase2(p, L2, True, S_WS, s_w, s_tag)
    p.label(L('end'))
    p('s_endpgm')
    desc = f"""
.amdhsa_kernel {name}
  .amdhsa_next_free_vgpr 256
  .amdhsa_next_free_sgpr 102
  .amdhsa_accum_offset 256
  .amdhsa_group_segment_fixed_size 0
  .amdhsa_kernarg_size 80
  .amdhsa_user_sgpr_count 2
  .amdhsa_user_sgpr_kernarg_segment_ptr 1
  .amdhsa_system_sgpr_workgroup_id_x 1
  .amdhsa_float_denorm_mode_32 3
.end_amdhsa_kernel
"""
    return p, desc
```

```python
from asmlib import *
import k1
from k1 import (WS_QF, WS_KV, WS_HF, WS_OF, WS_FLAG, SLOT, NSLOT, RING, LOG2E, CQ, hexf, flat, stamp)
from k0 import wave_sum
WS_FL = (16 << 20) + 4096

class R: pass

def regmap():
    r = R()
    r.S_W, r.S_G, r.S_U, r.S_WS, r.S_X = 8, 12, 16, 20, 96
    r.s_w, r.s_r4, r.s_ch, r.s_rb, r.s_g, r.s_p, r.s_kind, r.s_ty = 30, 31, 32, 33, 34, 35, 36, 37
    r.s_q = 40
    r.s_w8q, r.s_w8g = 45, 46
    r.s_so, r.s_so2 = 47, 48
    r.s_mo, r.s_mo2 = 49, 50
    r.s_d64q, r.s_d64g = 51, 52
    r.s_hi, r.s_pad = 54, 56
    r.s_t0, r.s_t1, r.s_t2, r.s_t3 = 58, 59, 60, 61
    r.s_stq, r.s_stk, r.s_stv, r.s_sth = 62, 63, 64, 65
    r.s_scq, r.s_padk = 66, 67
    r.s_x0, r.s_x1, r.s_xm = 68, 69, 70
    r.s_tag = 3
    return r

def slot_of(G): return (8 + G) % NSLOT

def phase1(p, L, r, merged, stamp_base=0):
    EXP = k1.EXP
    S_W, S_G, S_U, S_WS, S_X = r.S_W, r.S_G, r.S_U, r.S_WS, r.S_X
    s_w, s_r4, s_ch, s_rb, s_g, s_p, s_kind, s_ty = r.s_w, r.s_r4, r.s_ch, r.s_rb, r.s_g, r.s_p, r.s_kind, r.s_ty
    s_q, s_t0, s_t1, s_t2, s_t3 = r.s_q, r.s_t0, r.s_t1, r.s_t2, r.s_t3
    s_hi, s_pad = r.s_hi, r.s_pad
    SC = ' sc1' if merged else ''
    v_lane16 = 1
    v_pq, v_pg = [2, 3, 4], [5, 6, 7]
    v_dq, v_dg = 8, 9
    v_t = 18
    v_padv = 28
    WF = [40, 44, 48, 52]
    ACCA, B1, B2 = 56, 72, 88
    TP = 104
    XF = 128
    xr = [240, 241, 242, 243]
    xa, xb = 250, 251
    lane, m, hh = v_t + 2, v_t + 3, v_t + 4

    p('s_load_dwordx2 s[6:7], s[0:1], 8')
    p('s_load_dwordx4 s[24:27], s[0:1], 32')
    p('s_load_dwordx2 s[4:5], s[0:1], 72')
    p(f's_load_dwordx2 s[{S_X}:{S_X+1}], s[0:1], 0')
    if merged: p('s_load_dwordx2 s[100:101], s[0:1], 64')
    p('s_getpc_b64 s[74:75]')
    p(f'v_and_b32 v{lane}, 63, v0')
    p(f'v_lshrrev_b32 v{v_t+1}, 6, v0')
    p(f'v_readfirstlane_b32 s{s_w}, v{v_t+1}')
    p(f'v_lshlrev_b32 v{v_lane16}, 4, v{lane}')
    p(f'v_and_b32 v{m}, 31, v0')
    p(f'v_bfe_u32 v{hh}, v0, 5, 1')
    GN = 4
    for e in EXP:
        if e.startswith('gn'): GN = int(e[2:])
    RR = 32 // GN
    nxr = 16 // RR
    lr, lg = RR.bit_length() - 1, GN.bit_length() - 1
    lxr = nxr.bit_length() - 1
    p(f's_and_b32 s{s_t0}, s2, {nxr-1}')
    p(f's_lshl_b32 s{s_t0}, s{s_t0}, {lr}')
    p(f's_lshr_b32 s{s_t1}, s2, 3')
    p(f's_and_b32 s{s_t2}, s{s_t1}, {RR-1}')
    p(f's_add_u32 s{s_rb}, s{s_t0}, s{s_t2}')
    p(f's_and_b32 s{s_t0}, s2, 7')
    p(f's_lshr_b32 s{s_t0}, s{s_t0}, {lxr}')
    p(f's_lshl_b32 s{s_t0}, s{s_t0}, {lg}')
    p(f's_lshr_b32 s{s_t1}, s{s_t1}, {lr}')
    p(f's_add_u32 s{s_g}, s{s_t0}, s{s_t1}')
    p(f's_lshl_b32 s{s_t0}, s{s_rb}, 7')
    p(f's_lshl_b32 s{s_t1}, s{s_w}, 4')
    p(f's_add_u32 s{s_t0}, s{s_t0}, s{s_t1}')
    p(f's_mul_i32 s{r.s_x0}, s{s_t0}, 896')
    p(f's_add_u32 s{r.s_x1}, s{r.s_x0}, {8*896}')
    p(f's_lshl_b32 s{r.s_xm}, s{s_w}, 11')
    p(f'v_lshrrev_b32 v{v_t}, 3, v{lane}')
    p(f'v_mul_u32_u24 v{v_t}, 896, v{v_t}')
    p(f'v_and_b32 v{v_t+5}, 7, v{lane}')
    p(f'v_lshlrev_b32 v{v_t+1}, 4, v{v_t+5}')
    p(f'v_add_u32 v{xa}, v{v_t}, v{v_t+1}')
    p(f's_mov_b32 s{S_X+2}, {2048*896}')
    p(f's_mov_b32 s{S_X+3}, 0x20000')
    p('s_waitcnt lgkmcnt(0)')
    stamp(p, 2)
    if k1.STAMP: p('s_getreg_b32 s93, hwreg(HW_REG_XCC_ID)')
    def x_issue(g):
        return [I(f's_mov_b32 m0, s{r.s_xm}'),
                I(f's_addk_i32 s{r.s_xm}, 16384'),
                I(f'buffer_load_dwordx4 v{xa}, s[{S_X}:{S_X+3}], s{r.s_x0} offen lds', gives=[g]),
                I('s_addk_i32 m0, 1024'),
                I(f's_addk_i32 s{r.s_x0}, 128'),
                I(f'buffer_load_dwordx4 v{xa}, s[{S_X}:{S_X+3}], s{r.s_x1} offen lds', gives=[g]),
                I(f's_addk_i32 s{r.s_x1}, 128')]
    if 'xt' in EXP:
        per = 896 // GN // 8
        p(f's_and_b32 s{s_t0}, s{s_g}, {GN-1}')
        p(f's_lshl_b32 s{s_t0}, s{s_t0}, 3')
        p(f's_add_u32 s{s_t0}, s{s_t0}, s{s_w}')
        p(f's_mul_i32 s{s_t0}, s{s_t0}, {per*128}')
        p(f's_mul_i32 s{s_t1}, s{s_rb}, {128*896}')
        p(f's_add_u32 s{s_t0}, s{s_t0}, s{s_t1}')
        p(f'v_lshlrev_b32 v{v_t}, 7, v{lane}')
        p(f's_mov_b32 exec_lo, {(1 << per) - 1}')
        p('s_mov_b32 exec_hi, 0')
        p(f'buffer_load_dword v253, v{v_t}, s[{S_X}:{S_X+3}], s{s_t0} offen', gives=['xt'])
        p('s_mov_b64 exec, -1')
        if 'xw' in EXP: p.add([I('s_nop 0', needs=['xt'])])
    if 'xfull' in EXP:
        p(f'v_lshlrev_b32 v{v_t}, 7, v{lane}')
        p(f'buffer_load_dword v253, v{v_t}, s[{S_X}:{S_X+3}], s{r.s_x0} offen', gives=['xt'])
        p(f's_add_u32 s{s_t0}, s{r.s_x0}, 8192')
        p('s_mov_b32 exec_hi, 0x0000ffff')
        p(f'buffer_load_dword v254, v{v_t}, s[{S_X}:{S_X+3}], s{s_t0} offen', gives=['xt'])
        p('s_mov_b64 exec, -1')
        p.add([I('s_nop 0', needs=['xt'])])
        stamp(p, 7)
    if merged:
        p(f's_add_u32 s{s_t0}, s2, s{s_w}')
        p(f's_cmp_eq_u32 s{s_t0}, 0')
        p(f's_cbranch_scc0 {L("notag")}')
        p('s_memrealtime s[60:61]')
        p('s_waitcnt lgkmcnt(0)')
        p('s_or_b32 s60, s60, 1')
        p(f'v_mov_b32 v{v_t}, s60')
        p(f'v_mov_b32 v{v_t+1}, 0')
        p(f'global_store_dword v{v_t+1}, v{v_t}, s[100:101] sc1')
        p.label(L('notag'))
    for a in range(7): p.add(x_issue('x'))
    if merged:
        p('v_mov_b32 v27, 0')
        p.add([I('global_load_dword v26, v27, s[100:101] sc1', gives=['x'])])
    for (Sd, lo, hi, size) in ((S_W, 6, 7, 448 * 2688), (S_G, 24, 25, 448 * 3584), (S_U, 26, 27, 448 * 3584), (S_WS, 4, 5, k1.WS_SIZE)):
        p(f's_mov_b32 s{Sd}, s{lo}')
        p(f's_mov_b32 s{Sd+1}, s{hi}')
        p(f's_mov_b32 s{Sd+2}, {size}')
        p(f's_mov_b32 s{Sd+3}, 0x20000')
    if 'nowarm' not in EXP:
        p(f'v_lshlrev_b32 v{v_t}, 7, v{lane}')
        for i, (Sd, size) in enumerate(((S_W, 448 * 2688), (S_G, 448 * 3584), (S_U, 448 * 3584))):
            sl = (size // 256 + 127) // 128 * 128
            p(f's_cmp_eq_u32 s{s_w}, {i}')
            p(f's_cbranch_scc0 {L("wu%d" % i)}')
            p(f's_mul_i32 s{s_t0}, s2, {sl}')
            p('s_mov_b32 exec_hi, 0x0000ffff' if sl > 4096 + 768 else 's_mov_b32 exec_hi, 0x000000ff')
            p(f'buffer_load_dword v{252+i}, v{v_t}, s[{Sd}:{Sd+3}], s{s_t0} offen')
            p('s_mov_b64 exec, -1')
            p.label(L('wu%d' % i))
    p(f's_cmp_eq_u32 s{s_w}, 7')
    p(f's_cbranch_scc0 {L("nocp")}')
    p(f's_lshr_b32 s{s_t0}, s2, 3')
    p(f's_lshl_b32 s{s_t0}, s{s_t0}, 11')
    p(f'v_lshlrev_b32 v{v_t}, 7, v{lane}')
    p(f'v_add_u32 v{v_t}, s{s_t0}, v{v_t}')
    p('s_mov_b32 exec_lo, 0xffff')
    p('s_mov_b32 exec_hi, 0')
    p(f'global_load_dword v255, v{v_t}, s[74:75]')
    p('s_mov_b64 exec, -1')
    p.label(L('nocp'))
    stamp(p, 3)
    p(f's_and_b32 s{s_r4}, s{s_w}, 3')
    p(f's_lshr_b32 s{s_ch}, s{s_w}, 2')
    p(f's_cmp_lt_u32 s{s_g}, 4')
    p(f's_cbranch_scc0 {L("tyX")}')
    p(f's_mov_b32 s{s_ty}, 0')
    p(f's_mov_b32 s{s_p}, s{s_g}')
    p(f's_mov_b32 s{s_kind}, 0')
    p(f's_mul_i32 s{s_q}, s{s_p}, 112')
    p(f's_add_u32 s{s_q+1}, s{s_q}, 896')
    p(f's_add_u32 s{s_q+2}, s{s_q}, 1792')
    p(f's_lshl_b32 s{s_q+3}, s{s_g}, 7')
    p(f's_mov_b32 s{s_q+4}, s{s_q+3}')
    p(f's_mov_b32 s{s_t2}, s{s_g}')
    p(f's_branch {L("tyC")}')
    p.label(L('tyX'))
    p(f's_mov_b32 s{s_ty}, 1')
    p(f's_sub_u32 s{s_t0}, s{s_g}, 4')
    p(f's_mul_i32 s{s_t1}, s{s_t0}, 43')
    p(f's_lshr_b32 s{s_t1}, s{s_t1}, 7')
    p(f's_add_u32 s{s_p}, s{s_t1}, 4')
    p(f's_mul_i32 s{s_t1}, s{s_t1}, 3')
    p(f's_sub_u32 s{s_kind}, s{s_t0}, s{s_t1}')
    p(f's_mul_i32 s{s_q}, s{s_p}, 112')
    p(f's_mul_i32 s{s_t1}, s{s_kind}, 896')
    p(f's_add_u32 s{s_q}, s{s_q}, s{s_t1}')
    p(f's_lshl_b32 s{s_t2}, s{s_t0}, 1')
    p(f's_add_u32 s{s_t2}, s{s_t2}, 4')
    p(f's_lshl_b32 s{s_q+1}, s{s_t2}, 7')
    p(f's_mov_b32 s{s_q+2}, s{s_q+1}')
    p(f's_add_u32 s{s_q+3}, s{s_q+1}, 128')
    p(f's_mov_b32 s{s_q+4}, s{s_q+3}')
    p.label(L('tyC'))
    p(f's_lshl_b32 s{s_t0}, s{s_rb}, 2')
    p(f's_add_u32 s{s_t0}, s{s_t0}, s{s_r4}')
    p(f's_mul_i32 s{r.s_sth}, s{s_t0}, 112')
    p(f's_lshl_b32 s{s_t1}, s{s_t2}, 2')
    p(f's_add_u32 s{r.s_sth}, s{r.s_sth}, s{s_t1}')
    p(f's_lshl_b32 s{s_t1}, s{s_ch}, 1')
    p(f's_add_u32 s{r.s_sth}, s{r.s_sth}, s{s_t1}')
    p(f's_lshl_b32 s{r.s_sth}, s{r.s_sth}, 10')
    p(f's_add_u32 s{r.s_sth}, s{r.s_sth}, {WS_HF}')
    p(f's_lshl_b32 s{s_t1}, s{s_p}, 1')
    p(f's_add_u32 s{s_t1}, s{s_t1}, s{s_ch}')
    p(f's_lshl_b32 s{s_t1}, s{s_t1}, 6')
    p(f's_add_u32 s{s_t1}, s{s_t1}, s{s_t0}')
    p(f's_lshl_b32 s{s_t3}, s{s_t1}, 12')
    p(f's_add_u32 s{r.s_stv}, s{s_t3}, {WS_KV + 2048}')
    p(f's_add_u32 s{r.s_stk}, s{s_t3}, {WS_KV}')
    p(f's_lshl_b32 s{r.s_stq}, s{s_t1}, 11')
    p(f's_add_u32 s{r.s_stq}, s{r.s_stq}, {WS_QF}')
    p(f's_cmp_eq_u32 s{s_kind}, 1')
    p(f's_cselect_b32 s{r.s_scq}, 1.0, {hexf(CQ)}')
    p(f's_cselect_b32 s{r.s_padk}, 0x3f80, 0')
    p(f's_cselect_b32 s{r.s_stq}, s{r.s_stk}, s{r.s_stq}')
    p(f's_mul_i32 s{r.s_w8q}, s{s_w}, {8*2688}')
    p(f's_mul_i32 s{r.s_w8g}, s{s_w}, {8*3584}')
    p(f's_lshl_b32 s{r.s_mo}, s{s_w}, 10')
    p(f's_cmp_lt_u32 s{s_w}, 6')
    p(f's_cselect_b32 s{r.s_d64q}, {64*2688}, 0')
    p(f's_cselect_b32 s{r.s_d64g}, {64*3584}, 0')
    p(f's_cselect_b32 s{s_t0}, 8192, 0')
    p(f's_add_u32 s{r.s_mo2}, s{r.s_mo}, s{s_t0}')
    p(f'v_bfe_u32 v{v_t}, v{lane}, 4, 1')
    p(f'v_lshlrev_b32 v{v_t}, 2, v{v_t}')
    p(f'v_and_b32 v{v_t+1}, 7, v{lane}')
    p(f'v_xor_b32 v{v_t}, v{v_t}, v{v_t+1}')
    p(f'v_lshlrev_b32 v{v_t}, 4, v{v_t}')
    p(f'v_lshrrev_b32 v{v_t+1}, 3, v{lane}')
    p(f'v_mul_u32_u24 v{v_dq}, 2688, v{v_t+1}')
    p(f'v_add_u32 v{v_dq}, v{v_dq}, v{v_t}')
    p(f'v_mul_u32_u24 v{v_dg}, 3584, v{v_t+1}')
    p(f'v_add_u32 v{v_dg}, v{v_dg}, v{v_t}')
    p(f's_mov_b32 s{s_hi}, 0')
    p(f's_mov_b32 s{s_hi+1}, -1')
    p(f's_mov_b32 s{s_pad}, 0xf0000000')
    p(f's_mov_b32 s{s_pad+1}, 0xf0000000')
    def mkpat(dst, b0mul):
        p(f'v_bfe_u32 v{v_t}, v{lane}, 2, 2')
        p(f'v_lshlrev_b32 v{v_t+1}, 3, v{hh}')
        p(f'v_add_u32 v{v_t+1}, v{v_t+1}, v{v_t}')
        p(f'v_lshlrev_b32 v{dst[0]}, 7, v{v_t+1}')
        p(f'v_bfe_u32 v{v_t+1}, v{lane}, 4, 1')
        p(f'v_lshlrev_b32 v{v_t+1}, 5, v{v_t+1}')
        p(f'v_and_b32 v{v_t+5}, 3, v{lane}')
        p(f'v_lshlrev_b32 v{v_t+5}, 3, v{v_t+5}')
        p(f'v_add_u32 v{v_t+1}, v{v_t+1}, v{v_t+5}')
        p(f's_mul_i32 s{s_t0}, s{s_ch}, {b0mul}')
        p(f'v_add_u32 v{v_t+1}, s{s_t0}, v{v_t+1}')
        p(f'v_lshrrev_b32 v{v_t}, 1, v{v_t}')
        p(f'v_lshlrev_b32 v{v_t}, 6, v{v_t}')
        p(f'v_xor_b32 v{v_t+1}, v{v_t+1}, v{v_t}')
        p(f'v_add_u32 v{dst[0]}, v{dst[0]}, v{v_t+1}')
        p(f'v_add_u32 v{dst[1]}, {4*SLOT}, v{dst[0]}')
        p(f'v_add_u32 v{dst[2]}, {8*SLOT}, v{dst[0]}')
    mkpat(v_pq, 56)
    mkpat(v_pg, 64)
    p(f'v_cmp_eq_u32 vcc, 28, v{m}')
    p(f'v_mov_b32 v{v_padv}, 0')
    p(f'v_mov_b32 v{v_t}, 0x3f803f80')
    p(f'v_cndmask_b32 v{v_padv}, v{v_padv}, v{v_t}, vcc')
    p(f's_lshl_b32 s{s_t0}, s{s_r4}, 12')
    p(f'v_lshlrev_b32 v{v_t}, 7, v{m}')
    p(f'v_add_u32 v{v_t}, s{s_t0}, v{v_t}')
    p(f'v_bfe_u32 v{v_t+1}, v{m}, 1, 3')
    p(f'v_xor_b32 v{v_t+1}, v{v_t+1}, v{hh}')
    for u in range(4):
        p(f'v_xor_b32 v{v_t+5}, {2*u}, v{v_t+1}')
        p(f'v_lshlrev_b32 v{v_t+5}, 4, v{v_t+5}')
        p(f'v_add_u32 v{xr[u]}, v{v_t}, v{v_t+5}')
    if not merged:
        p(f's_cmp_eq_u32 s{s_w}, 5')
        p(f's_cbranch_scc0 {L("nzf")}')
        p(f's_lshl_b32 s{s_t0}, s2, 2')
        p(f's_add_u32 s{s_t0}, s{s_t0}, {WS_FLAG}')
        p(f'v_mov_b32 v{v_t}, 0')
        p(f'buffer_store_dword v{v_t}, v{v_t}, s[{S_WS}:{S_WS+3}], s{s_t0} offen')
        p.label(L('nzf'))

    def b_issue(G, kinds, g):
        if G > 19: return []
        if 'nodma' in EXP and G > 10: return []
        st, j = G // 4, G % 4
        kind = kinds[st]
        srd = {0: S_W, 1: S_G, 2: S_U}[kind]
        vo = v_dq if kind == 0 else v_dg
        stride = 2688 if kind == 0 else 3584
        o = []
        if j == 0:
            o += [I(f's_add_u32 s{r.s_so}, s{s_q+st}, s{r.s_w8q if kind == 0 else r.s_w8g}'),
                  I(f's_add_u32 s{r.s_so2}, s{r.s_so}, s{r.s_d64q if kind == 0 else r.s_d64g}')]
        base = slot_of(G) * SLOT
        o += [I(f's_add_u32 m0, s{r.s_mo}, {base}'),
              I(f's_add_u32 s{s_t3}, s{r.s_mo2}, {base}'),
              I(f'buffer_load_dwordx4 v{vo}, s[{srd}:{srd+3}], s{r.s_so} offen lds', gives=[g]),
              I(f's_mov_b32 m0, s{s_t3}'),
              I(f's_add_u32 s{r.s_so}, s{r.s_so}, {112*stride}'),
              I(f'buffer_load_dwordx4 v{vo}, s[{srd}:{srd+3}], s{r.s_so2} offen lds', gives=[g]),
              I(f's_add_u32 s{r.s_so2}, s{r.s_so2}, {112*stride}')]
        return o

    def wread(T, kinds):
        st, t = T // 28, T % 28
        if st > 4: return []
        G = 4 * st + t // 7; ks = t % 7
        sl = slot_of(G)
        pat = v_pq if kinds[st] == 0 else v_pg
        b = WF[T & 3]
        off = (sl % 4) * SLOT + ks * 2048
        va = pat[sl // 4]
        return [I(f'ds_read_b64_tr_b16 v[{b}:{b+1}], v{va} offset:{off}'),
                I(f'ds_read_b64_tr_b16 v[{b+2}:{b+3}], v{va} offset:{off+512}')]
    def mf(T, w_is_a, dst):
        t = T % 28
        b = WF[T & 3]; x = XF + 4 * t
        d = dst if t == 27 else ACCA
        c = '0' if t == 0 else f'v[{ACCA}:{ACCA+15}]'
        if w_is_a: return I(f'v_mfma_f32_32x32x16_bf16 v[{d}:{d+15}], v[{b}:{b+3}], v[{x}:{x+3}], {c}')
        return I(f'v_mfma_f32_32x32x16_bf16 v[{d}:{d+15}], v[{x}:{x+3}], v[{b}:{b+3}], {c}')

    KX, KY = [0, 1, 2, 1, 2], [0, 0, 0, 1, 2]
    va, vb, ones = 244, 245, 246
    RAW = 40
    SS = [96, 100, 104, 108]
    p(f's_lshl_b32 s{s_t0}, s{s_w}, 11')
    p(f'v_add_u32 v{va}, s{s_t0}, v{v_lane16}')
    p(f'v_add_u32 v{vb}, 0x10000, v{va}')
    wa0, wa1 = 248, 249
    p(f'v_lshrrev_b32 v{v_t}, 4, v{lane}')
    p(f'v_and_b32 v{v_t+1}, 7, v{lane}')
    p(f'v_xor_b32 v{v_t}, v{v_t}, v{v_t+1}')
    p(f'v_lshlrev_b32 v{v_t}, 4, v{v_t}')
    p(f'v_lshrrev_b32 v{v_t+1}, 3, v{lane}')
    p(f'v_lshlrev_b32 v{v_t+1}, 7, v{v_t+1}')
    p(f'v_add_u32 v{v_t}, v{v_t}, v{v_t+1}')
    p(f'v_add_u32 v{wa0}, s{s_t0}, v{v_t}')
    p(f'v_xor_b32 v{wa1}, 64, v{wa0}')
    p(f'v_add_u32 v{wa1}, 1024, v{wa1}')
    p(f'v_mov_b32 v{ones}, 0x3f803f80')
    p(f'v_mov_b32 v{ones+1}, 0x3f803f80')
    for i, msk in enumerate((0x22222222, 0x44444444, 0x88888888)):
        p(f's_mov_b32 s{72+2*i if i == 0 else 74+2*i}, 0x{msk:08x}')
        p(f's_mov_b32 s{73+2*i if i == 0 else 75+2*i}, 0x{msk:08x}')
    MSK = [72, 76, 78]
    def addr(a, g): return (va if a < 4 else vb), ((a * 16384) & 0xffff) + g * 1024
    p.add([I('s_nop 0', needs=['x'])])
    if merged:
        p(f'v_readfirstlane_b32 s{r.s_tag}, v26')
        p(f's_cmp_lg_u32 s{r.s_tag}, 0')
        p(f's_cbranch_scc1 {L("taggot")}')
        p(f's_mov_b32 s{s_t0}, 0x100000')
        p.label(L('tagpoll'))
        p('global_load_dword v26, v27, s[100:101] sc1')
        p('s_waitcnt vmcnt(0)')
        p(f'v_readfirstlane_b32 s{r.s_tag}, v26')
        p(f's_cmp_lg_u32 s{r.s_tag}, 0')
        p(f's_cbranch_scc1 {L("taggot")}')
        p(f's_sub_u32 s{s_t0}, s{s_t0}, 1')
        p(f's_cmp_lg_u32 s{s_t0}, 0')
        p(f's_cbranch_scc1 {L("tagpoll")}')
        p.label(L('taggot'))
    stamp(p, 4)
    for a in range(7):
        for g in range(2):
            b, off = addr(a, g)
            rr = RAW + 4 * (g * 7 + a)
            p(f'ds_read_b128 v[{rr}:{rr+3}], v{b} offset:{off}')
    for G in range(3): p.add(b_issue(G, KX, 'g%d' % G))
    def m44(d, a, b, first):
        c = '0' if first else f'v[{d}:{d+3}]'
        return I(f'v_mfma_f32_4x4x4_16b_bf16 v[{d}:{d+3}], v[{a}:{a+1}], v[{b}:{b+1}], {c}')
    for a in range(7):
        for h in range(2):
            for g in range(2):
                rr = RAW + 4 * (g * 7 + a) + 2 * h
                p.add([m44(SS[g], rr, ones, a == 0 and h == 0), m44(SS[2 + g], rr, rr, a == 0 and h == 0)])
            g = h
            rr = RAW + 4 * (g * 7 + a); f = XF + 8 * (g * 7 + a)
            for i in range(4):
                p(f'v_lshlrev_b32 v{f+2*i}, 16, v{rr+i}')
                p(f'v_and_b32 v{f+2*i+1}, 0xffff0000, v{rr+i}')
    for k in range(4):
        for i in range(3):
            p(f'v_cndmask_b32 v{SS[k]}, v{SS[k]}, v{SS[k]+1+i}, s[{MSK[i]}:{MSK[i]+1}]')
    for ctrl in ('quad_perm:[1,0,3,2]', 'quad_perm:[2,3,0,1]', 'row_half_mirror'):
        for k in range(4):
            p(f'v_add_f32_dpp v{SS[k]}, v{SS[k]}, v{SS[k]} {ctrl} row_mask:0xf bank_mask:0xf')
    for g in range(2):
        sm, sq = SS[g], SS[2 + g]
        p(f'v_mul_f32 v{sm}, {hexf(1/448)}, v{sm}')
        p(f'v_mul_f32 v{sq}, {hexf(1/448)}, v{sq}')
        p(f'v_fma_f32 v{sq}, -v{sm}, v{sm}, v{sq}')
        p(f'v_max_f32 v{sq}, 0, v{sq}')
        p(f'v_add_f32 v{sq}, {hexf(1e-5)}, v{sq}')
        p(f'v_rsq_f32 v{sq}, v{sq}')
    for g in range(2):
        sm, sq = SS[g], SS[2 + g]
        p(f'v_mul_f32 v{sm}, v{sm}, v{sq}')
        p(f'v_sub_f32 v{sm}, 0, v{sm}')
    for a in range(7):
        for g in range(2):
            sm, sq = SS[g], SS[2 + g]
            rr = RAW + 4 * (g * 7 + a); f = XF + 8 * (g * 7 + a)
            for i in range(8): p(f'v_fma_f32 v{f+i}, v{f+i}, v{sq}, v{sm}')
            for i in range(4): p(f'v_cvt_pk_bf16_f32 v{rr+i}, v{f+2*i}, v{f+2*i+1}')
            if a == 4 and g == 0:
                p(f'v_add_u32 v{wa0}, 0x10000, v{wa0}')
                p(f'v_add_u32 v{wa1}, 0x10000, v{wa1}')
            p.add([I(f'ds_write_b128 v{(wa0, wa1)[g]}, v[{rr}:{rr+3}] offset:{(a * 16384) & 0xffff}', gives=['lds:xn'])])
    stamp(p, 1)

    def e_gu():
        body = []
        for qd in range(4):
            r0 = 4 * qd
            ee = [TP + i for i in range(4)]
            pp = [TP + 4 + i for i in range(4)]
            for i in range(4): body.append(I(f'v_mul_f32 v{ee[i]}, {hexf(-LOG2E)}, v{B1+r0+i}'))
            for i in range(4):
                body.append(I(f'v_exp_f32 v{ee[i]}, v{ee[i]}'))
                body.append(I(f'v_mul_f32 v{pp[i]}, v{B1+r0+i}, v{B2+r0+i}'))
            for i in range(4): body.append(I(f'v_add_f32 v{ee[i]}, 1.0, v{ee[i]}'))
            for i in range(4): body.append(I(f'v_rcp_f32 v{ee[i]}, v{ee[i]}'))
            for i in range(4): body.append(I(f'v_mul_f32 v{pp[i]}, v{pp[i]}, v{ee[i]}'))
            hp = TP + 8 + 2 * qd
            body.append(I(f'v_cvt_pk_bf16_f32 v{hp}, v{pp[0]}, v{pp[1]}'))
            body.append(I(f'v_cvt_pk_bf16_f32 v{hp+1}, v{pp[2]}, v{pp[3]}'))
            if qd & 1:
                body.append(I(f'buffer_store_dwordx4 v[{hp-2}:{hp+1}], v{v_lane16}, s[{S_WS}:{S_WS+3}], s{r.s_sth} offen offset:{(qd>>1)*1024}{SC}', gives=['st:h']))
        body.append(I(f's_add_u32 s{r.s_sth}, s{r.s_sth}, 4096'))
        return body
    def e_qk():
        body = []
        O = TP + 16
        for q in range(16): body.append(I(f'v_mul_f32 v{TP+q}, s{r.s_scq}, v{B2+q}'))
        for d in range(8): body.append(I(f'v_cvt_pk_bf16_f32 v{O+d}, v{TP+2*d}, v{TP+2*d+1}'))
        body.append(I(f'v_mov_b32 v{TP}, s{r.s_padk}'))
        body.append(I(f'v_mov_b32 v{TP+1}, 0'))
        body.append(I(f'v_cndmask_b32 v{O+6}, v{O+6}, v{TP}, s[{s_hi}:{s_hi+1}]'))
        body.append(I(f'v_cndmask_b32 v{O+7}, v{O+7}, v{TP+1}, s[{s_hi}:{s_hi+1}]'))
        body.append(I(f'buffer_store_dwordx4 v[{O}:{O+3}], v{v_lane16}, s[{S_WS}:{S_WS+3}], s{r.s_stq} offen{SC}', gives=['st:qkv']))
        body.append(I(f'buffer_store_dwordx4 v[{O+4}:{O+7}], v{v_lane16}, s[{S_WS}:{S_WS+3}], s{r.s_stq} offen offset:1024{SC}', gives=['st:qkv']))
        body.append([I(f's_mov_b32 s{r.s_scq}, 1.0'), I(f's_mov_b32 s{r.s_padk}, 0x3f80'), I(f's_mov_b32 s{r.s_stq}, s{r.s_stk}')])
        return body
    def e_vv():
        O = TP + 16
        body = []
        for d in range(8): body.append(I(f'v_cvt_pk_bf16_f32 v{O+d}, v{B2+2*d}, v{B2+2*d+1}'))
        for d in range(8): body.append(I(f'v_cndmask_b32 v{O+d}, v{O+d}, v{v_padv}, s[{s_pad}:{s_pad+1}]'))
        body.append(I(f'buffer_store_dwordx4 v[{O}:{O+3}], v{v_lane16}, s[{S_WS}:{S_WS+3}], s{r.s_stv} offen{SC}', gives=['st:qkv']))
        body.append(I(f'buffer_store_dwordx4 v[{O+4}:{O+7}], v{v_lane16}, s[{S_WS}:{S_WS+3}], s{r.s_stv} offen offset:1024{SC}', gives=['st:qkv']))
        return body
    def spread(fill, items, st, en):
        n = en - st
        for k in range(n): fill[st + k] += items[len(items) * k // n: len(items) * (k + 1) // n]

    def stage(st, kinds, w_is_a, dst, epi, early=False, post_needs=()):
        fill = [[] for _ in range(28)]
        head = [[] for _ in range(28)]
        if st == 1: head[0] += b_issue(9, kinds, 'c') + b_issue(10, kinds, 'c')
        head[0] += b_issue(4 * st + 7, kinds, 'i0')
        head[7] += b_issue(4 * st + 8, kinds, 'i1')
        head[14] += b_issue(4 * st + 9, kinds, 'i2')
        head[21] += b_issue(4 * st + 10, kinds, 'i3')
        if 'noepi' in EXP: epi = None
        if epi is not None: spread(fill, epi, 1, 13 if early else 26)
        out = []
        for t in range(28):
            T = 28 * st + t
            out += wread(T + 3, kinds) + [mf(T, w_is_a, dst)] + flat(head[t]) + flat(fill[t])
        out.append(I('s_barrier', needs=['i0', 'i1'] + list(post_needs)))
        return out
    def xread(t0, t1, g):
        o = []
        for t in range(t0, t1):
            a, u = t >> 2, t & 3
            if t == 16:
                for uu in range(4): o.append(I(f'v_add_u32 v{xr[uu]}, 0x10000, v{xr[uu]}'))
            o.append(I(f'ds_read_b128 v[{XF+4*t}:{XF+4*t+3}], v{xr[u]} offset:{(a * 16384) & 0xffff}', gives=[g]))
        return o
    def stage0(kinds, w_is_a):
        o = []
        groups = [
            (['g0', 'lds:xn'], xread(0, 8, 'rd:x0'), []),
            (['g1', 'rd:x0'], xread(8, 16, 'rd:x1'), b_issue(3, kinds, 'g3') + b_issue(4, kinds, 'g4')),
            (['g2', 'rd:x1'], xread(16, 24, 'rd:x2'), b_issue(5, kinds, 'g5') + b_issue(6, kinds, 'g5')),
            (['g3', 'g4', 'rd:x2'], xread(24, 28, 'rd:x3'), b_issue(7, kinds, 'g7') + b_issue(8, kinds, 'g8')),
        ]
        for j, (needs, xr_, iss) in enumerate(groups):
            o.append(I('s_barrier', needs=needs))
            if k1.STAMP:
                idx = {0: 5, 1: 10, 2: 11, 3: 12}[j]
                o += [I('s_memtime s[94:95]'), I('s_waitcnt lgkmcnt(0)'), I(f's_mov_b32 s{80+idx}, s94')]
            o += xr_[:3]
            for k in range(3): o += wread(7 * j + k, kinds)
            o += xr_[3:]
            o += iss
            for k in range(7):
                T = 7 * j + k
                if k + 3 < 7 or j == 3: o += wread(T + 3, kinds)
                o.append(mf(T, w_is_a, B2))
        o.append(I('s_barrier', needs=['g8', 'rd:x3']))
        return o
    hook = getattr(r, 'hook', None)
    H = lambda pt: (hook(pt) if hook else [])

    p(f's_cmp_eq_u32 s{s_ty}, 0')
    p(f's_cbranch_scc1 {L("seqY")}')
    p(f's_cmp_eq_u32 s{s_kind}, 2')
    p(f's_cbranch_scc1 {L("seqXV")}')
    p.add(stage0(KX, True)); stamp(p, 6)
    p.add(stage(1, KX, True, B1, e_qk(), early=True, post_needs=['st:qkv'] if merged else []))
    p(f's_branch {L("xc")}')
    p.label(L('seqXV'))
    p.add(stage0(KX, False)); stamp(p, 6)
    p.add(stage(1, KX, True, B1, e_vv(), early=True, post_needs=['st:qkv'] if merged else []))
    p.label(L('xc'))
    p.add(H('qkvX'))
    p.add(stage(2, KX, True, B2, None))
    p.add(stage(3, KX, True, B1, e_gu()))
    p.add(H('s4'))
    p.add(stage(4, KX, True, B2, None))
    p(f's_branch {L("fin")}')
    p.label(L('seqY'))
    p.add(stage0(KY, True)); stamp(p, 6)
    p.add(stage(1, KY, True, B2, e_qk(), early=True))
    p.add(stage(2, KY, False, B2, e_qk(), early=True))
    p.add(stage(3, KY, True, B1, e_vv(), early=True, post_needs=['st:qkv'] if merged else []))
    p.add(H('qkvY'))
    p.add(H('s4'))
    p.add(stage(4, KY, True, B2, None))
    p.label(L('fin'))
    stamp(p, 8)
    p.add(H('pre_fin'))
    p('s_nop 4')
    p.add(flat(e_gu()))
    stamp(p, 9)

def gen_k1(name):
    p = Prog()
    L = lambda s: name + '_' + s
    r = regmap()
    p.label(name)
    p('s_cmp_ge_u32 s2, 256')
    p(f's_cbranch_scc1 {L("end")}')
    stamp(p, 0)
    phase1(p, L, r, False)
    p('s_waitcnt vmcnt(0) lgkmcnt(0)')
    k1.stamp_store(p, r.S_WS, r.s_w, 0)
    p.label(L('end'))
    p('s_endpgm')
    desc = f"""
.amdhsa_kernel {name}
  .amdhsa_next_free_vgpr 256
  .amdhsa_next_free_sgpr 102
  .amdhsa_accum_offset 256
  .amdhsa_group_segment_fixed_size 0
  .amdhsa_kernarg_size 80
  .amdhsa_user_sgpr_count 2
  .amdhsa_user_sgpr_kernarg_segment_ptr 1
  .amdhsa_system_sgpr_workgroup_id_x 1
  .amdhsa_float_denorm_mode_32 3
.end_amdhsa_kernel
"""
    return p, desc
```

```python
from asmlib import *
import k1
from k1 import stamp, WS_QF, WS_KV, WS_HF, WS_OF, WS_FLAG, hexf, flat
WS_FL = (16 << 20) + 4096

KVS = 16384; KVN = 3
G0 = KVS * KVN
KPI = 8
GA = 2 * KPI * 1024
GS = GA + KPI * 2048
GN = 3
GFIRST = 3
NGS = 14
MARGIN = 64.0
T_OX = 0
T_WO = 105472
T_OF = 0
T_AX = 0

SCHEDS = {
 'a': dict(r0=0, r1=6, pvp=2, g00=10, pA0=14, sA0=18, g01=22, pA1=26, sA1=30, g10=34, pB0=38, sB0=42, g11=45, sB1=48),
 'b': dict(r0=8, r1=14, pvp=2, pA0=14, sA0=18, g00=22, pA1=26, sA1=30, g01=34, pB0=38, g10=41, sB0=44, g11=46, sB1=48),
 'c': dict(r0=5, r1=11, pvp=2, pA0=14, sA0=20, g00=24, pA1=27, sA1=31, g01=35, pB0=38, g10=41, sB0=44, g11=46, sB1=48),
 'd': dict(r0=10, r1=18, pvp=2, pA0=14, sA0=18, pA1=26, sA1=22, g00=30, g01=34, pB0=38, g10=41, sB0=44, g11=47, sB1=48),
}
SCHED = SCHEDS['b']
class R2: pass

def phase2(p, L, merged, S_WS, s_w, s_tag=None, ids=None):
    SC = ' sc1' if merged else ''
    S_WD, S_WO, S_X, S_OUT = 12, 16, 24, 96
    if S_WS != 8: S_WD, S_WO, S_X, S_OUT = 8, 12, 16, 96
    s_hd, s_qb, s_tm, s_tn, s_gem = 31, 32, 33, 34, 35
    s_qp, s_kq, s_wn, s_k4 = 36, 37, 36, 37
    s_hi = 38
    s_t0, s_t1, s_t2, s_t3 = 40, 41, 42, 43
    s_kvg, s_kvm = 44, 45
    s_gg, s_gm, s_gadv = 46, 47, 48
    s_soff, s_ost, s_flag, s_oo, s_i = 49, 50, 51, 52, 53
    s_dsrd = 56
    s_isA = 60
    v_kv = 2
    v_h = [3, 4, 5]
    v_wv = [6, 7, 8]
    v_gd = [9, 10, 11, 12]
    v_bp, v_pw, v_xa = 13, 14, 15
    QA, QB = 16, 24
    KB, VB = [32, 40], [48, 56]
    SA, SB = [64, 80], [96, 112]
    PA, PB = 128, 136
    OA, OB = 144, 160
    ACC = [176, 192]
    HB = [[208, 212], [216, 220]]
    WB = [224, 228]
    XR = 232
    T = 240

    p(f'v_and_b32 v{T}, 63, v0')
    p(f'v_lshlrev_b32 v1, 4, v{T}')
    p(f's_and_b32 s{s_qp}, s{s_w}, 1')
    p(f's_lshr_b32 s{s_kq}, s{s_w}, 1')
    p(f's_mov_b32 s{s_hi}, 0')
    p(f's_mov_b32 s{s_hi+1}, -1')
    p('s_load_dwordx2 s[4:5], s[0:1], 0')
    p('s_load_dwordx2 s[6:7], s[0:1], 16')
    p('s_load_dwordx4 s[60:63], s[0:1], 48')
    p(f's_and_b32 s{s_hd}, s2, 15')
    p(f's_lshr_b32 s{s_qb}, s2, 4')
    p(f's_lshr_b32 s{s_t0}, s2, 3')
    p(f's_mul_i32 s{s_t1}, s{s_t0}, 37')
    p(f's_lshr_b32 s{s_t1}, s{s_t1}, 8')
    p(f's_mul_i32 s{s_t2}, s{s_t1}, 7')
    p(f's_sub_u32 s{s_tn}, s{s_t0}, s{s_t2}')
    p(f's_and_b32 s{s_tm}, s2, 7')
    p(f's_lshl_b32 s{s_tm}, s{s_tm}, 2')
    p(f's_add_u32 s{s_tm}, s{s_tm}, s{s_t1}')
    p('s_cmp_lt_u32 s2, 224')
    p(f's_cselect_b32 s{s_gem}, 1, 0')
    p(f's_lshl_b32 s{s_kvg}, s{s_hd}, 18')
    p(f's_lshl_b32 s{s_kvm}, s{s_w}, 11')
    p(f's_add_u32 s{s_kvg}, s{s_kvg}, s{s_kvm}')
    p(f's_add_u32 s{s_kvg}, s{s_kvg}, {WS_KV}')
    def kv_issue(slot, g=()):
        pos = slot % KVN
        return [[I(f's_add_u32 m0, s{s_kvm}, {pos*KVS}'),
                 I(f's_add_u32 s{s_soff}, s{s_kvg}, {slot*KVS}'),
                 I(f'buffer_load_dwordx4 v1, s[{S_WS}:{S_WS+3}], s{s_soff} offen{SC} lds', gives=g)],
                [I(f'buffer_load_dwordx4 v1, s[{S_WS}:{S_WS+3}], s{s_soff} offen offset:1024{SC} lds', gives=g)]]
    pre = getattr(phase2, 'pre_hook', None)
    if pre: p.add(pre())
    p.add(flat(kv_issue(0, ['kv0'])))
    p(f's_lshl_b32 s{s_t0}, s{s_hd}, 6')
    p(f's_lshl_b32 s{s_t1}, s{s_qb}, 2')
    p(f's_lshl_b32 s{s_t2}, s{s_qp}, 1')
    p(f's_add_u32 s{s_t1}, s{s_t1}, s{s_t2}')
    p(f's_add_u32 s{s_t0}, s{s_t0}, s{s_t1}')
    p(f's_lshl_b32 s{s_t0}, s{s_t0}, 11')
    p(f's_add_u32 s{s_t0}, s{s_t0}, {WS_QF}')
    for i in range(4):
        p(f'buffer_load_dwordx4 v[{QA+4*i}:{QA+4*i+3}], v1, s[{S_WS}:{S_WS+3}], s{s_t0} offen offset:{i*1024}{SC}')
    p.add(flat(kv_issue(1)))
    p(f's_lshr_b32 s{s_t2}, s{s_kq}, 1')
    p(f's_add_u32 s{s_t1}, s{s_t1}, s{s_t2}')
    p(f's_lshl_b32 s{s_oo}, s{s_t1}, 5')
    p(f's_lshl_b32 s{s_t2}, s{s_hd}, 1')
    p(f's_add_u32 s{s_oo}, s{s_oo}, s{s_t2}')
    p(f's_and_b32 s{s_t2}, s{s_kq}, 1')
    p(f's_add_u32 s{s_oo}, s{s_oo}, s{s_t2}')
    p(f's_lshl_b32 s{s_oo}, s{s_oo}, 10')
    p(f's_add_u32 s{s_oo}, s{s_oo}, {WS_OF}')
    p('s_waitcnt lgkmcnt(0)')
    for (Sd, lo, hi, size) in ((S_WD, 60, 61, 1792 * 896), (S_WO, 6, 7, 448 * 896), (S_X, 4, 5, 2048 * 896), (S_OUT, 62, 63, 2048 * 896)):
        p(f's_mov_b32 s{Sd}, s{lo}')
        p(f's_mov_b32 s{Sd+1}, s{hi}')
        p(f's_mov_b32 s{Sd+2}, {size}')
        p(f's_mov_b32 s{Sd+3}, 0x20000')
    p(f's_lshl_b32 s{s_t0}, s{s_kq}, 12')
    p(f'v_add_u32 v{v_kv}, s{s_t0}, v1')
    lane, m, hh = T, T + 4, T + 5
    p(f'v_and_b32 v{m}, 31, v0')
    p(f'v_bfe_u32 v{hh}, v0, 5, 1')
    p(f'v_lshrrev_b32 v{T+6}, 3, v{lane}')
    p(f'v_mul_u32_u24 v{T+6}, 896, v{T+6}')
    p(f'v_bfe_u32 v{T+7}, v{lane}, 4, 1')
    p(f'v_lshlrev_b32 v{T+7}, 2, v{T+7}')
    p(f'v_and_b32 v{T+8}, 7, v{lane}')
    p(f'v_xor_b32 v{T+7}, v{T+7}, v{T+8}')
    p(f'v_lshlrev_b32 v{T+7}, 4, v{T+7}')
    p(f'v_add_u32 v{v_bp}, v{T+6}, v{T+7}')
    p(f's_cmp_lt_u32 s{s_w}, 4')
    p(f's_cselect_b32 s{s_isA}, 1, 0')
    p(f's_cbranch_scc0 {L("setB")}')
    for q in range(4): p(f'v_mov_b32 v{v_gd[q]}, v1')
    p(f's_lshr_b32 s{s_t2}, s{s_w}, 1')
    p(f's_lshl_b32 s{s_t0}, s{s_tm}, 1')
    p(f's_add_u32 s{s_t0}, s{s_t0}, s{s_t2}')
    p(f's_mul_i32 s{s_gg}, s{s_t0}, {112*1024}')
    p(f's_and_b32 s{s_t3}, s{s_w}, 1')
    p(f's_lshl_b32 s{s_t3}, s{s_t3}, 12')
    p(f's_add_u32 s{s_gg}, s{s_gg}, s{s_t3}')
    p(f's_add_u32 s{s_gg}, s{s_gg}, {WS_HF}')
    p(f's_mov_b32 s{s_gadv}, {KPI*1024}')
    p(f's_lshl_b32 s{s_gm}, s{s_t2}, 13')
    p(f's_add_u32 s{s_gm}, s{s_gm}, s{s_t3}')
    p(f's_mov_b64 s[{s_dsrd}:{s_dsrd+1}], s[{S_WS}:{S_WS+1}]')
    p(f's_mov_b32 s{s_dsrd+2}, {k1.WS_SIZE}')
    p(f's_branch {L("setC")}')
    p.label(L('setB'))
    for q in range(4):
        p(f'v_add_u32 v{v_gd[q]}, {q*(8*896-1024)}, v{v_bp}')
    p(f's_sub_u32 s{s_t0}, s{s_w}, 4')
    p(f's_mul_i32 s{s_gg}, s{s_t0}, {32*896}')
    p(f's_lshl_b32 s{s_t1}, s{s_tn}, 7')
    p(f's_add_u32 s{s_gg}, s{s_gg}, s{s_t1}')
    p(f's_mov_b32 s{s_gadv}, {KPI*16*896}')
    p(f's_lshl_b32 s{s_gm}, s{s_t0}, 12')
    p(f's_add_u32 s{s_gm}, s{s_gm}, {GA}')
    p(f's_mov_b64 s[{s_dsrd}:{s_dsrd+1}], s[{S_WD}:{S_WD+1}]')
    p(f's_mov_b32 s{s_dsrd+2}, {1792*896}')
    p.label(L('setC'))
    p(f's_mov_b32 s{s_dsrd+3}, 0x20000')
    p(f's_add_u32 s{s_gm}, s{s_gm}, {G0}')
    def g_issue(gs):
        pos = gs % GN
        o = []
        for q in range(4):
            a = []
            if q == 0: a.append(I(f's_add_u32 m0, s{s_gm}, {pos*GS}'))
            if q == 0: a.append(I('s_nop 0'))
            a.append(I(f'buffer_load_dwordx4 v{v_gd[q]}, s[{s_dsrd}:{s_dsrd+3}], s{s_gg} offen offset:{q*1024}{SC} lds'))
            if q == 3: a.append(I(f's_add_u32 s{s_gg}, s{s_gg}, s{s_gadv}'))
            o.append(a)
        return o
    p(f's_lshl_b32 s{s_t0}, s{s_tm}, 6')
    p(f's_lshr_b32 s{s_t1}, s{s_k4}, 1')
    p(f's_lshl_b32 s{s_t1}, s{s_t1}, 5')
    p(f's_add_u32 s{s_t0}, s{s_t0}, s{s_t1}')
    p(f's_mul_i32 s{s_t0}, s{s_t0}, 896')
    p(f's_lshl_b32 s{s_t1}, s{s_tn}, 7')
    p(f's_lshl_b32 s{s_t2}, s{s_wn}, 6')
    p(f's_add_u32 s{s_t0}, s{s_t0}, s{s_t1}')
    p(f's_add_u32 s{s_ost}, s{s_t0}, s{s_t2}')
    p(f's_and_b32 s{s_t0}, s{s_k4}, 1')
    p(f's_lshl_b32 s{s_t0}, s{s_t0}, 5')
    p(f's_add_u32 s{s_ost}, s{s_ost}, s{s_t0}')
    p(f'v_mul_u32_u24 v{v_xa}, 896, v{m}')
    p(f'v_lshlrev_b32 v{T+6}, 3, v{hh}')
    p(f'v_add_u32 v{v_xa}, v{v_xa}, v{T+6}')
    p(f'v_bfe_u32 v{T+6}, v{lane}, 2, 2')
    p(f'v_lshlrev_b32 v{T+7}, 2, v{hh}')
    p(f'v_add_u32 v{T+7}, v{T+7}, v{T+6}')
    p(f'v_lshlrev_b32 v{v_pw}, 7, v{T+7}')
    p(f'v_lshrrev_b32 v{T+6}, 1, v{T+6}')
    p(f'v_xor_b32 v{T+6}, s{s_wn}, v{T+6}')
    p(f'v_lshlrev_b32 v{T+6}, 6, v{T+6}')
    p(f'v_add_u32 v{v_pw}, v{v_pw}, v{T+6}')
    p(f'v_bfe_u32 v{T+6}, v{lane}, 4, 1')
    p(f'v_lshlrev_b32 v{T+6}, 5, v{T+6}')
    p(f'v_add_u32 v{v_pw}, v{v_pw}, v{T+6}')
    p(f'v_and_b32 v{T+6}, 3, v{lane}')
    p(f'v_lshlrev_b32 v{T+6}, 3, v{T+6}')
    p(f'v_add_u32 v{v_pw}, v{v_pw}, v{T+6}')
    p(f's_lshl_b32 s{s_t0}, s{s_k4}, 11')
    p(f's_lshl_b32 s{s_t1}, s{s_k4}, 12')
    for pos in range(GN):
        p(f's_add_u32 s{s_t2}, s{s_t0}, {G0 + pos*GS}')
        p(f'v_add_u32 v{v_h[pos]}, s{s_t2}, v1')
        p(f's_add_u32 s{s_t2}, s{s_t1}, {G0 + pos*GS + GA}')
        p(f'v_add_u32 v{v_wv[pos]}, s{s_t2}, v{v_pw}')
    def touches_kv():
        o = [I(f's_cmp_lt_u32 s{s_w}, 2'), I(f's_cbranch_scc0 {L("tk_d")}'),
             I(f's_lshl_b32 s{s_t0}, s{s_hd}, 18'), I(f's_lshl_b32 s{s_t1}, s{s_qb}, 14'), I(f's_add_u32 s{s_t0}, s{s_t0}, s{s_t1}'),
             I(f's_lshl_b32 s{s_t1}, s{s_w}, 13'), I(f's_add_u32 s{s_t0}, s{s_t0}, s{s_t1}'), I(f's_add_u32 s{s_t0}, s{s_t0}, {WS_KV}'),
             I(f'v_lshlrev_b32 v{T+9}, 3, v1'),
             I(f'buffer_load_dword v{T+10}, v{T+9}, s[{S_WS}:{S_WS+3}], s{s_t0} offen{SC}'),
             I(f'{L("tk_d")}:')]
        return o
    def touches_g():
        o = [I(f's_cmp_eq_u32 s{s_gem}, 0'), I(f's_cbranch_scc1 {L("tg_d")}'),
             I(f's_sub_u32 s{s_t0}, s{s_w}, 2'), I(f's_cmp_lt_u32 s{s_t0}, 4'), I(f's_cbranch_scc0 {L("tg_w")}'),
             I(f's_lshr_b32 s{s_t1}, s{s_t0}, 1'), I(f's_lshl_b32 s{s_t2}, s{s_tm}, 1'), I(f's_add_u32 s{s_t1}, s{s_t1}, s{s_t2}'),
             I(f's_mul_i32 s{s_t1}, s{s_t1}, {112*1024}'), I(f's_lshl_b32 s{s_t2}, s{s_tn}, 14'), I(f's_add_u32 s{s_t1}, s{s_t1}, s{s_t2}'),
             I(f's_and_b32 s{s_t0}, s{s_t0}, 1'), I(f's_lshl_b32 s{s_t0}, s{s_t0}, 13'), I(f's_add_u32 s{s_t1}, s{s_t1}, s{s_t0}'),
             I(f's_add_u32 s{s_t1}, s{s_t1}, {WS_HF}'),
             I(f'v_lshlrev_b32 v{T+9}, 3, v1'),
             I(f'buffer_load_dword v{T+11}, v{T+9}, s[{S_WS}:{S_WS+3}], s{s_t1} offen{SC}'),
             I(f'{L("tg_w")}:'),
             I(f's_cmp_lt_u32 s{s_w}, 7'), I(f's_cbranch_scc0 {L("tg_d")}'),
             I(f's_and_b32 s{s_t0}, s{s_tm}, 3'), I(f's_mul_i32 s{s_t0}, s{s_t0}, 448'), I(f's_lshl_b32 s{s_t1}, s{s_w}, 6'),
             I(f's_add_u32 s{s_t0}, s{s_t0}, s{s_t1}'), I(f's_mul_i32 s{s_t0}, s{s_t0}, 896'), I(f's_lshl_b32 s{s_t1}, s{s_tn}, 7'),
             I(f's_add_u32 s{s_t0}, s{s_t0}, s{s_t1}'),
             I(f'v_lshrrev_b32 v{T+9}, 4, v1'), I(f'v_mul_u32_u24 v{T+9}, 896, v{T+9}'),
             I(f'buffer_load_dword v{T+12}, v{T+9}, s[{S_WD}:{S_WD+3}], s{s_t0} offen'),
             I(f'{L("tg_d")}:')]
        return o
    if 'touch2' in k1.EXP and not merged:
        p.add(touches_kv() + touches_g())
    for q in range(32): p(f'v_mov_b32 v{ACC[0]+q}, 0')
    for q in range(32): p(f'v_mov_b32 v{OA+q}, 0')
    for q in range(4): p(f'v_mov_b32 v{PB+4+q}, 0')
    for q in range(4): p(f'v_mov_b32 v{VB[1]+4+q}, 0')
    stamp(p, 1)

    mm = lambda d, a, b, c: I(f'v_mfma_f32_32x32x16_bf16 v[{d}:{d+15}], v[{a}:{a+3}], v[{b}:{b+3}], {c}')
    def rdK(buf, pos, g=()):
        return [I(f'ds_read_b128 v[{buf}:{buf+3}], v{v_kv} offset:{pos*KVS}', gives=g),
                I(f'ds_read_b128 v[{buf+4}:{buf+7}], v{v_kv} offset:{pos*KVS+1024}', gives=g)]
    def rdV(buf, pos, g=()):
        return [I(f'ds_read_b128 v[{buf}:{buf+3}], v{v_kv} offset:{pos*KVS+2048}', gives=g),
                I(f'ds_read_b128 v[{buf+4}:{buf+7}], v{v_kv} offset:{pos*KVS+3072}', gives=g)]
    p.add([I('s_barrier', needs=['kv0'])])
    stamp(p, 2)
    ab0 = getattr(phase2, 'after_beta0', None)
    KT = HB[0][0]
    p(f'ds_read_b128 v[{KT}:{KT+3}], v1')
    p(f'ds_read_b128 v[{KT+4}:{KT+7}], v1 offset:1024')
    p.add(rdK(KB[0], 0) + rdV(VB[0], 0, ['rd:kv']))
    p.add(flat(kv_issue(2)))
    if ab0: p.add(ab0())
    def sS(dst, kb, Q, part):
        return mm(dst, kb + 4 * part, Q + 4 * part, '0' if part == 0 else f'v[{dst}:{dst+15}]')
    for (Sx, Q) in ((SA[1], QA), (SB[1], QB)):
        p.add([sS(Sx, KT, Q, 0), sS(Sx, KT, Q, 1)])
    for (s0, Q, tt) in ((SA[1], QA, T), (SB[1], QB, T + 4)):
        p(f'v_max3_f32 v{tt}, v{s0}, v{s0+1}, v{s0+2}')
        p(f'v_max3_f32 v{tt+1}, v{s0+3}, v{s0+4}, v{s0+5}')
        p(f'v_max3_f32 v{tt+2}, v{s0+6}, v{s0+7}, v{s0+8}')
        p(f'v_max3_f32 v{tt+3}, v{s0+9}, v{s0+10}, v{s0+11}')
        p(f'v_max3_f32 v{tt}, v{tt}, v{s0+12}, v{s0+13}')
        p(f'v_max3_f32 v{tt+1}, v{tt+1}, v{s0+14}, v{s0+15}')
        p(f'v_max3_f32 v{tt}, v{tt}, v{tt+1}, v{tt+2}')
        p(f'v_max_f32 v{tt}, v{tt}, v{tt+3}')
    for (Q, tt) in ((QA, T), (QB, T + 4)):
        p(f'v_mov_b32 v{tt+1}, v{tt}')
        p(f'v_permlane32_swap_b32 v{tt}, v{tt+1}')
        p(f'v_max_f32 v{tt}, v{tt}, v{tt+1}')
        p(f'v_add_f32 v{tt}, {hexf(MARGIN)}, v{tt}')
        p(f'v_sub_f32 v{tt}, 0, v{tt}')
        p(f'v_mov_b32 v{tt+1}, 0')
        p(f'v_cvt_pk_bf16_f32 v{tt}, v{tt}, v{tt+1}')
        p(f'v_cndmask_b32 v{Q+6}, v{Q+6}, v{tt}, s[{s_hi}:{s_hi+1}]')
    for (Sx, Q) in ((SA[0], QA), (SB[0], QB)):
        p.add([sS(Sx, KB[0], Q, 0), sS(Sx, KB[0], Q, 1)])
    p('s_nop 12')
    stamp(p, 3)

    def g_reads(gs, q):
        pos = gs % GN
        wb = WB[q]
        return [I(f'ds_read_b64_tr_b16 v[{wb}:{wb+1}], v{v_wv[pos]} offset:{q*2048}', gives=['rd:g']),
                I(f'ds_read_b64_tr_b16 v[{wb+2}:{wb+3}], v{v_wv[pos]} offset:{q*2048+1024}', gives=['rd:g']),
                I(f'ds_read_b128 v[{HB[q][0]}:{HB[q][0]+3}], v{v_h[pos]} offset:{q*1024}', gives=['rd:g']),
                I(f'ds_read_b128 v[{HB[q][1]}:{HB[q][1]+3}], v{v_h[pos]} offset:{q*1024+8192}', gives=['rd:g'])]
    def g_mfma(q, rbk): return mm(ACC[rbk], WB[q], HB[q][rbk], f'v[{ACC[rbk]}:{ACC[rbk]+15}]')

    def period(n, gem):
        i0, i1 = n & 1, (n + 1) & 1
        last = (n == 15)
        def grp(S, P, g):
            c = S[i0]
            return [I(f'v_exp_f32 v{c+4*g+k}, v{c+4*g+k}') for k in range(4)] + \
                   [I(f'v_cvt_pk_bf16_f32 v{P+2*g}, v{c+4*g}, v{c+4*g+1}'), I(f'v_cvt_pk_bf16_f32 v{P+2*g+1}, v{c+4*g+2}, v{c+4*g+3}')]
        pv = lambda O, P, part: mm(O, VB[i0] + 4 * part, P + 4 * part, f'v[{O}:{O+15}]')
        pvp = mm(OB, VB[i1] + 4, PB + 4, f'v[{OB}:{OB+15}]')
        pos = (n + 1) % KVN
        rk = [] if last else rdK(KB[i1], pos, ['rd:kv'])
        rv = [] if last else rdV(VB[i1], pos, ['rd:kv'])
        beta = n + 1
        gs = beta - GFIRST
        do_g = gem and 0 <= gs < NGS
        if 'nogc' in k1.EXP: do_g = False
        kvi = kv_issue(beta + 2) if beta + 2 <= 15 else [[], []]
        gi_slot = beta + 2 - GFIRST
        gi = g_issue(gi_slot) if (gem and 0 <= gi_slot < NGS) else [[], [], [], []]
        if 'nogd' in k1.EXP: gi = [[], [], [], []]
        if 'nokv' in k1.EXP: kvi = [[], []]
        wo = wo_issue(beta) if gem else [[]] * 8
        gr0 = g_reads(gs, 0) if do_g else []
        gr1 = g_reads(gs, 1) if do_g else []
        gm = lambda q, rb: [g_mfma(q, rb)] if do_g else []
        S_ = lambda S, Q, part: [] if last else [sS(S[i1], KB[i1], Q, part)]
        valu = []
        for g in range(4): valu += grp(SA, PA, g)
        for g in range(4): valu += grp(SB, PB, g)
        ins = {k: [] for k in range(49)}
        sched = SCHED
        for e in k1.EXP:
            if e.startswith('sch'): sched = SCHEDS[e[3:]]
        ins[0] += rk
        ins[sched['r0']] += gr0
        ins[sched['pvp']] += [pvp] + rv
        ins[sched['g00']] += gm(0, 0)
        ins[sched['pA0']] += [pv(OA, PA, 0)]
        ins[sched['sA0']] += S_(SA, QA, 0)
        ins[sched['g01']] += gm(0, 1)
        ins[sched['pA1']] += [pv(OA, PA, 1)]
        ins[sched['sA1']] += S_(SA, QA, 1)
        ins[sched['g10']] += gm(1, 0)
        ins[sched['pB0']] += [pv(OB, PB, 0)]
        ins[sched['sB0']] += S_(SB, QB, 0)
        ins[sched['g11']] += gm(1, 1)
        ins[sched['sB1']] += S_(SB, QB, 1)
        ins[sched['r1']] += gr1
        mem = [kvi[0], kvi[1], gi[0], gi[1], gi[2], gi[3]] + wo[:6]
        mem = [a for a in mem if a]
        for k, a in enumerate(mem):
            ins[4 + 4 * k if len(mem) <= 10 else 3 + 3 * k] += flat(a)
        if 'tog' in k1.EXP:
            u = '%d%d' % (n, gem)
            ins[0] = [I(f's_cmp_lt_u32 s{s_w}, 4'), I(f's_cbranch_scc1 {L("tg0_" + u)}'), I('s_setprio 2'), I(f'{L("tg0_" + u)}:')] + ins[0]
            ins[28] = [I(f's_cmp_lt_u32 s{s_w}, 4'), I(f's_cbranch_scc1 {L("tg1_" + u)}'), I('s_setprio 0'), I(f'{L("tg1_" + u)}:')] + ins[28]
        if 'mprio' in k1.EXP:
            for k in list(ins.keys()):
                nw = []
                for x in ins[k]:
                    if isinstance(x, Ins) and x.kind == 'mfma': nw += [I('s_setprio 3'), x, I('s_setprio 0')]
                    else: nw.append(x)
                ins[k] = nw
        o = []
        for k in range(48):
            o += ins[k] + [valu[k]]
        o += ins[48]
        if last: o += [mm(OB, VB[i0] + 4, PB + 4, f'v[{OB}:{OB+15}]')]
        return o

    s_wob, s_wom = 54, 55
    p(f's_lshl_b32 s{s_wob}, s{s_tn}, 7')
    p(f's_mul_i32 s{s_t0}, s{s_w}, {8*896}')
    p(f's_add_u32 s{s_wob}, s{s_wob}, s{s_t0}')
    p(f's_lshl_b32 s{s_wom}, s{s_w}, 10')
    def wo_ld(q0):
        return [I(f's_add_u32 m0, s{s_wom}, {T_WO + q0*1024}'),
                I(f's_add_u32 s{s_t1}, s{s_wob}, {q0*8*896}'),
                I(f'buffer_load_dwordx4 v{v_bp}, s[{S_WO}:{S_WO+3}], s{s_t1} offen lds')]
    def wo_issue(beta):
        if beta == 15: return [wo_ld(9 + 8 * k) for k in range(6)] + [[], []]
        return [[]] * 8

    if 'tog' in k1.EXP:
        p(f's_cmp_lt_u32 s{s_w}, 4')
        p(f's_cbranch_scc0 {L("np2")}')
        p('s_setprio 1')
        p.label(L('np2'))
    if 'prio1' in k1.EXP:
        p(f's_cmp_lt_u32 s{s_w}, 4')
        p(f's_cbranch_scc1 {L("np1")}')
        p('s_setprio 1')
        p.label(L('np1'))
    for gem in (1, 0):
        if gem:
            p(f's_cmp_eq_u32 s{s_gem}, 0')
            p(f's_cbranch_scc1 {L("loop_n")}')
            for i in range(2):
                p(f'buffer_load_dwordx2 v[{XR+2*i}:{XR+2*i+1}], v{v_xa}, s[{S_X}:{S_X+3}], s{s_ost} offen offset:{16*i}')
        else:
            p.label(L('loop_n'))
        for n in range(16):
            beta = n + 1
            if n < 15 or gem:
                prev = beta - 1
                cnt = 0
                if prev + 2 <= 15: cnt += 2
                if gem and 0 <= prev + 2 - GFIRST < NGS: cnt += 4
                if gem and prev == 0: cnt += 2
                if merged and prev <= 1: cnt = 0 if gem else cnt
                if gem and prev == 15: cnt = 6
                hk = getattr(phase2, 'beta_hook', None)
                if hk: p.add(hk(beta, gem))
                if 'nogd' in k1.EXP or 'nokv' in k1.EXP: cnt = 0 if beta in (1,) else 40
                p(f's_waitcnt vmcnt({cnt})')
                p.add([I('s_barrier', needs=['rd:kv', 'rd:g'])])
            p.add(period(n, gem))
        stamp(p, 4)
        if gem: p(f's_branch {L("tail")}')
    p.label(L('tail'))
    p(f's_lshl_b32 s{s_t0}, s{s_qp}, 2')
    p(f's_add_u32 s{s_t0}, s{s_t0}, s{s_kq}')
    p(f's_lshl_b32 s{s_t0}, s{s_t0}, 13')
    p(f'v_add_u32 v{T}, s{s_t0}, v1')
    for u, O in enumerate((OA, OB)):
        for i in range(4):
            p.add([I(f'ds_write_b128 v{T}, v[{O+4*i}:{O+4*i+3}] offset:{T_OX + u*4096 + i*1024}', gives=['lds:ox'])])
    p(f's_lshl_b32 s{s_t0}, s{s_qp}, 15')
    p(f's_lshr_b32 s{s_t1}, s{s_kq}, 1')
    p(f's_lshl_b32 s{s_t1}, s{s_t1}, 12')
    p(f's_add_u32 s{s_t0}, s{s_t0}, s{s_t1}')
    p(f's_and_b32 s{s_t2}, s{s_kq}, 1')
    p(f's_lshl_b32 s{s_t3}, s{s_t2}, 11')
    p(f's_add_u32 s{s_t3}, s{s_t3}, s{s_t0}')
    p(f'v_add_u32 v{T+1}, s{s_t3}, v1')
    p(f'v_or_b32 v{T+2}, 512, v1')
    p(f'v_add_u32 v{T+2}, s{s_t0}, v{T+2}')
    p.add([I('s_barrier', needs=['lds:ox', 'rd:g', 'rd:kv'])])
    p(f's_cmp_eq_u32 s{s_gem}, 0')
    p(f's_cbranch_scc1 {L("nowo2")}')
    p.add(wo_ld(0))
    p(f's_cmp_eq_u32 s{s_w}, 0')
    p(f's_cbranch_scc0 {L("nowo2")}')
    p.add(wo_ld(8))
    p.label(L('nowo2'))
    X = SA[0]
    for k in range(4):
        p(f'ds_read_b128 v[{X+8*k}:{X+8*k+3}], v{T+1} offset:{T_OX + k*8192}')
        p(f'ds_read_b128 v[{X+8*k+4}:{X+8*k+7}], v{T+1} offset:{T_OX + k*8192 + 1024}')
        p(f'ds_read_b32 v{T+4+k}, v{T+2} offset:{T_OX + k*8192 + 3072}')
    for q in range(8):
        p(f'v_add_f32 v{X+q}, v{X+q}, v{X+8+q}')
        p(f'v_add_f32 v{X+16+q}, v{X+16+q}, v{X+24+q}')
    p(f'v_add_f32 v{T+4}, v{T+4}, v{T+5}')
    p(f'v_add_f32 v{T+6}, v{T+6}, v{T+7}')
    for q in range(8): p(f'v_add_f32 v{X+q}, v{X+q}, v{X+16+q}')
    p(f'v_add_f32 v{T+4}, v{T+4}, v{T+6}')
    stamp(p, 5)
    p(f'v_mul_f32 v{T+5}, 0, v{X}')
    for q in range(1, 8): p(f'v_fma_f32 v{T+5}, v{X+q}, 0, v{T+5}')
    p(f'v_add_f32 v{T+5}, v{T+5}, v{T+4}')
    p(f'v_mov_b32 v{T+6}, {hexf(2.0**-80)}')
    p(f'v_mov_b32 v{T+7}, 0x7f800000')
    p(f'v_cmp_ge_f32 s[{s_t0}:{s_t0+1}], v{T+5}, v{T+6}')
    p(f'v_cmp_lt_f32 vcc, v{T+5}, v{T+7}')
    p(f's_and_b64 vcc, vcc, s[{s_t0}:{s_t0+1}]')
    p(f's_cmp_eq_u64 vcc, -1')
    p(f's_cbranch_scc0 {L("slow")}')
    p.label(L('astore'))
    p(f'v_rcp_f32 v{T+5}, v{T+4}')
    for q in range(8): p(f'v_mul_f32 v{X+q}, v{X+q}, v{T+5}')
    for d in range(4): p(f'v_cvt_pk_bf16_f32 v{PA+d}, v{X+2*d}, v{X+2*d+1}')
    p(f's_and_b32 s{s_t2}, s{s_kq}, 1')
    p(f's_cmp_eq_u32 s{s_t2}, 0')
    p(f's_cselect_b32 s{s_t1}, 0, -1')
    p(f's_mov_b32 s{s_t0}, 0')
    p(f'v_mov_b32 v{T}, 0')
    p(f'v_cndmask_b32 v{PA+2}, v{PA+2}, v{T}, s[{s_t0}:{s_t0+1}]')
    p(f'v_cndmask_b32 v{PA+3}, v{PA+3}, v{T}, s[{s_t0}:{s_t0+1}]')
    p(f'buffer_store_dwordx4 v[{PA}:{PA+3}], v1, s[{S_WS}:{S_WS+3}], s{s_oo} offen sc1')
    p('s_waitcnt vmcnt(0)')
    stamp(p, 6)
    p('s_barrier')
    p(f's_cmp_eq_u32 s{s_w}, 0')
    p(f's_cbranch_scc0 {L("noflag")}')
    if merged:
        p(f's_lshl_b32 s{s_t2}, s{s_qb}, 4')
        p(f's_add_u32 s{s_t2}, s{s_t2}, s{s_hd}')
        p(f's_lshl_b32 s{s_t2}, s{s_t2}, 2')
        p(f's_add_u32 s{s_t2}, s{s_t2}, {WS_FL + 3*1024}')
        p(f'v_mov_b32 v{T+1}, s{s_tag}')
    else:
        p(f's_lshl_b32 s{s_t2}, s2, 2')
        p(f's_add_u32 s{s_t2}, s{s_t2}, {WS_FLAG}')
        p(f'v_mov_b32 v{T+1}, 1')
    p(f'v_mov_b32 v{T}, 0')
    p(f'buffer_store_dword v{T+1}, v{T}, s[{S_WS}:{S_WS+3}], s{s_t2} offen sc1')
    p.label(L('noflag'))
    p(f's_cmp_eq_u32 s{s_gem}, 0')
    p(f's_cbranch_scc1 {L("fin")}')
    p(f's_lshr_b32 s{s_t0}, s{s_tm}, 1')
    p(f's_lshl_b32 s{s_t0}, s{s_t0}, 6')
    p(f's_add_u32 s{s_flag}, s{s_t0}, {(WS_FL + 3*1024) if merged else WS_FLAG}')
    p(f'v_and_b32 v{T}, 15, v0')
    p(f'v_lshlrev_b32 v{T}, 2, v{T}')
    p(f's_mov_b32 s{s_i}, 0x200000')
    p.label(L('poll'))
    p(f'buffer_load_dword v{T+1}, v{T}, s[{S_WS}:{S_WS+3}], s{s_flag} offen sc1')
    p('s_waitcnt vmcnt(0)')
    p(f'v_cmp_eq_u32 vcc, {"s%d" % s_tag if merged else "1"}, v{T+1}')
    p('s_cmp_eq_u64 vcc, -1')
    p(f's_cbranch_scc1 {L("polled")}')
    p(f's_sub_u32 s{s_i}, s{s_i}, 1')
    p(f's_cmp_lg_u32 s{s_i}, 0')
    p(f's_cbranch_scc1 {L("poll")}')
    p.label(L('polled'))
    stamp(p, 8)
    p(f's_lshl_b32 s{s_t0}, s{s_tm}, 16')
    p(f's_lshl_b32 s{s_t1}, s{s_w}, 13')
    p(f's_add_u32 s{s_t0}, s{s_t0}, s{s_t1}')
    p(f's_add_u32 s{s_t0}, s{s_t0}, {WS_OF}')
    p(f's_add_u32 m0, s{s_t1}, {T_OF}')
    for q in range(8):
        if q == 4:
            p('s_addk_i32 m0, 4096')
            p(f's_add_u32 s{s_t0}, s{s_t0}, 4096')
        p(f'buffer_load_dwordx4 v1, s[{S_WS}:{S_WS+3}], s{s_t0} offen offset:{(q&3)*1024} sc1 lds')
    p(f's_lshl_b32 s{s_t0}, s{s_k4}, 13')
    p(f'v_add_u32 v{v_h[0]}, s{s_t0}, v1')
    p(f's_mul_i32 s{s_t1}, s{s_k4}, {112*128}')
    p(f's_add_u32 s{s_t1}, s{s_t1}, {T_WO}')
    p(f'v_add_u32 v{v_wv[0]}, s{s_t1}, v{v_pw}')
    p('s_waitcnt vmcnt(0)')
    p('s_barrier')
    stamp(p, 7)
    def o_reads(q):
        row = 28 * (q >> 1) + 16 * (q & 1)
        wb = WB[q & 1]; hb = HB[q & 1]
        return [I(f'ds_read_b64_tr_b16 v[{wb}:{wb+1}], v{v_wv[0]} offset:{row*128}', gives=['rd:o']),
                I(f'ds_read_b64_tr_b16 v[{wb+2}:{wb+3}], v{v_wv[0]} offset:{row*128+1024}', gives=['rd:o']),
                I(f'ds_read_b128 v[{hb[0]}:{hb[0]+3}], v{v_h[0]} offset:{T_OF + q*1024}', gives=['rd:o']),
                I(f'ds_read_b128 v[{hb[1]}:{hb[1]+3}], v{v_h[0]} offset:{T_OF + 32768 + q*1024}', gives=['rd:o'])]
    p.add(o_reads(0) + o_reads(1))
    for q in range(8):
        p.add([g_mfma(q & 1, 0), g_mfma(q & 1, 1)])
        if q + 2 < 8: p.add(o_reads(q + 2))
    stamp(p, 9)
    p.add([I('s_barrier', needs=['rd:o'])])
    p(f's_lshl_b32 s{s_t0}, s{s_wn}, 2')
    p(f's_add_u32 s{s_t0}, s{s_t0}, s{s_k4}')
    p(f's_lshl_b32 s{s_t0}, s{s_t0}, 13')
    p(f'v_add_u32 v{T}, s{s_t0}, v1')
    for rbk in range(2):
        for i in range(4):
            p.add([I(f'ds_write_b128 v{T}, v[{ACC[rbk]+4*i}:{ACC[rbk]+4*i+3}] offset:{T_AX + rbk*4096 + i*1024}', gives=['lds:ax'])])
    p(f's_lshl_b32 s{s_t0}, s{s_wn}, 15')
    p(f's_lshr_b32 s{s_t1}, s{s_k4}, 1')
    p(f's_lshl_b32 s{s_t1}, s{s_t1}, 12')
    p(f's_add_u32 s{s_t0}, s{s_t0}, s{s_t1}')
    p(f's_and_b32 s{s_t2}, s{s_k4}, 1')
    p(f's_lshl_b32 s{s_t2}, s{s_t2}, 11')
    p(f's_add_u32 s{s_t0}, s{s_t0}, s{s_t2}')
    p(f'v_add_u32 v{T+1}, s{s_t0}, v1')
    p.add([I('s_barrier', needs=['lds:ax'])])
    for k in range(4):
        p(f'ds_read_b128 v[{X+8*k}:{X+8*k+3}], v{T+1} offset:{T_AX + k*8192}')
        p(f'ds_read_b128 v[{X+8*k+4}:{X+8*k+7}], v{T+1} offset:{T_AX + k*8192 + 1024}')
    for q in range(8):
        p(f'v_add_f32 v{X+q}, v{X+q}, v{X+8+q}')
        p(f'v_add_f32 v{X+16+q}, v{X+16+q}, v{X+24+q}')
    for q in range(8): p(f'v_add_f32 v{X+q}, v{X+q}, v{X+16+q}')
    for i in range(2):
        for hlf in range(2):
            xr = XR + 2 * i + hlf
            p(f'v_lshlrev_b32 v{T+2+2*hlf}, 16, v{xr}')
            p(f'v_and_b32 v{T+3+2*hlf}, 0xffff0000, v{xr}')
            p(f'v_add_f32 v{T+2+2*hlf}, v{T+2+2*hlf}, v{X+4*i+2*hlf}')
            p(f'v_add_f32 v{T+3+2*hlf}, v{T+3+2*hlf}, v{X+4*i+2*hlf+1}')
            p(f'v_cvt_pk_bf16_f32 v{xr}, v{T+2+2*hlf}, v{T+3+2*hlf}')
        p(f'buffer_store_dwordx2 v[{XR+2*i}:{XR+2*i+1}], v{v_xa}, s[{S_OUT}:{S_OUT+3}], s{s_ost} offen offset:{16*i}')
    p.label(L('fin'))
    if k1.STAMP: p('s_waitcnt vmcnt(0)')
    stamp(p, 10)
    k1.stamp_store(p, S_WS, s_w, 1)
    p('s_endpgm')

    p.label(L('slow'))
    Q = KB[1]; O = OA; M = T + 8; s0 = SB[0]
    p(f's_lshr_b32 s{s_t1}, s{s_kq}, 1')
    p(f's_cmp_eq_u32 s{s_t1}, 0')
    p(f's_cbranch_scc1 {L("sl_a")}')
    for q in range(8): p(f'v_mov_b32 v{Q+q}, v{QB+q}')
    p(f's_branch {L("sl_b")}')
    p.label(L('sl_a'))
    for q in range(8): p(f'v_mov_b32 v{Q+q}, v{QA+q}')
    p.label(L('sl_b'))
    p(f'v_mov_b32 v{T}, 0')
    p(f'v_cndmask_b32 v{Q+6}, v{Q+6}, v{T}, s[{s_hi}:{s_hi+1}]')
    for q in range(16): p(f'v_mov_b32 v{O+q}, 0')
    p(f'v_mov_b32 v{M}, 0xff800000')
    p(f's_lshl_b32 s{s_t2}, s{s_hd}, 18')
    p(f's_add_u32 s{s_t2}, s{s_t2}, {WS_KV}')
    p(f's_mov_b32 s{s_i}, 64')
    p.label(L('sloop'))
    p(f'buffer_load_dwordx4 v[{KB[0]}:{KB[0]+3}], v1, s[{S_WS}:{S_WS+3}], s{s_t2} offen{SC}')
    p(f'buffer_load_dwordx4 v[{KB[0]+4}:{KB[0]+7}], v1, s[{S_WS}:{S_WS+3}], s{s_t2} offen offset:1024{SC}')
    p(f'buffer_load_dwordx4 v[{VB[0]}:{VB[0]+3}], v1, s[{S_WS}:{S_WS+3}], s{s_t2} offen offset:2048{SC}')
    p(f'buffer_load_dwordx4 v[{VB[0]+4}:{VB[0]+7}], v1, s[{S_WS}:{S_WS+3}], s{s_t2} offen offset:3072{SC}')
    p.add([sS(s0, KB[0], Q, 0), sS(s0, KB[0], Q, 1)])
    p(f'v_max3_f32 v{T}, v{s0}, v{s0+1}, v{s0+2}')
    for q in range(3, 15, 2): p(f'v_max3_f32 v{T}, v{T}, v{s0+q}, v{s0+q+1}')
    p(f'v_max_f32 v{T}, v{T}, v{s0+15}')
    p(f'v_mov_b32 v{T+1}, v{T}')
    p(f'v_permlane32_swap_b32 v{T}, v{T+1}')
    p(f'v_max3_f32 v{T}, v{T}, v{T+1}, v{M}')
    p(f'v_sub_f32 v{T+1}, v{M}, v{T}')
    p(f'v_exp_f32 v{T+1}, v{T+1}')
    p(f'v_mov_b32 v{M}, v{T}')
    for q in range(16): p(f'v_sub_f32 v{s0+q}, v{s0+q}, v{M}')
    for q in range(16): p(f'v_exp_f32 v{s0+q}, v{s0+q}')
    for q in range(16): p(f'v_mul_f32 v{O+q}, v{O+q}, v{T+1}')
    for d in range(8): p(f'v_cvt_pk_bf16_f32 v{PA+d}, v{s0+2*d}, v{s0+2*d+1}')
    p.add([mm(O, VB[0], PA, f'v[{O}:{O+15}]'), mm(O, VB[0] + 4, PA + 4, f'v[{O}:{O+15}]')])
    p(f's_add_u32 s{s_t2}, s{s_t2}, 4096')
    p(f's_sub_u32 s{s_i}, s{s_i}, 1')
    p(f's_cmp_lg_u32 s{s_i}, 0')
    p(f's_cbranch_scc1 {L("sloop")}')
    p(f'v_mov_b32 v{T+3}, v{O+12}')
    p(f'v_mov_b32 v{T+4}, v{O+12}')
    p(f'v_permlane32_swap_b32 v{T+3}, v{T+4}')
    p(f's_and_b32 s{s_t2}, s{s_kq}, 1')
    p(f's_cmp_eq_u32 s{s_t2}, 0')
    p(f's_cbranch_scc1 {L("sl_c")}')
    for q in range(8): p(f'v_mov_b32 v{X+q}, v{O+8+q}')
    p(f's_branch {L("astore")}')
    p.label(L('sl_c'))
    for q in range(8): p(f'v_mov_b32 v{X+q}, v{O+q}')
    p(f's_branch {L("astore")}')

def gen_k2(name):
    p = Prog()
    L = lambda s: name + '_' + s
    S_WS, s_w = 8, 30
    p.label(name)
    p('s_cmp_ge_u32 s2, 256')
    p(f's_cbranch_scc1 {L("end")}')
    stamp(p, 0)
    p('s_load_dwordx2 s[28:29], s[0:1], 72')
    p('s_getpc_b64 s[74:75]')
    p('v_lshrrev_b32 v2, 6, v0')
    p(f'v_readfirstlane_b32 s{s_w}, v2')
    p(f's_cmp_eq_u32 s{s_w}, 7')
    p(f's_cbranch_scc0 {L("nocp")}')
    p('s_lshr_b32 s40, s2, 3')
    p('s_lshl_b32 s40, s40, 11')
    p('v_and_b32 v3, 63, v0')
    p('v_lshlrev_b32 v3, 7, v3')
    p('v_add_u32 v3, s40, v3')
    p('s_mov_b32 exec_lo, 0xffff')
    p('s_mov_b32 exec_hi, 0')
    p('global_load_dword v255, v3, s[74:75]')
    p('s_mov_b64 exec, -1')
    p.label(L('nocp'))
    p('s_waitcnt lgkmcnt(0)')
    p(f's_mov_b32 s{S_WS}, s28')
    p(f's_mov_b32 s{S_WS+1}, s29')
    p(f's_mov_b32 s{S_WS+2}, {k1.WS_SIZE}')
    p(f's_mov_b32 s{S_WS+3}, 0x20000')
    phase2(p, L, False, S_WS, s_w)
    p.label(L('end'))
    p('s_endpgm')
    desc = f"""
.amdhsa_kernel {name}
  .amdhsa_next_free_vgpr 256
  .amdhsa_next_free_sgpr 102
  .amdhsa_accum_offset 256
  .amdhsa_group_segment_fixed_size 0
  .amdhsa_kernarg_size 80
  .amdhsa_user_sgpr_count 2
  .amdhsa_user_sgpr_kernarg_segment_ptr 1
  .amdhsa_system_sgpr_workgroup_id_x 1
  .amdhsa_float_denorm_mode_32 3
.end_amdhsa_kernel
"""
    return p, desc
```

```python
import sys
from asmlib import *
import k1, mk
import k1b, k1c, k1d, k0, k01, k1e, ph1
import ph2
HEAD = """; parallel_sum(softmax MHA, SwiGLU FFN) on layernormed input -- hand-written gfx950 assembly (generated by my own scripts)
; @launch kernel=psum_k1_kernel grid=(256,1,1) block=(512,1,1) lds=163840
; @launch kernel=psum_k2_kernel grid=(256,1,1) block=(512,1,1) lds=163840
.amdgcn_target "amdgcn-amd-amdhsa--gfx950"
.text
"""
HEAD1 = """; parallel_sum(softmax MHA, SwiGLU FFN) on layernormed input -- hand-written gfx950 assembly (generated by my own scripts)
; @launch grid=(256,1,1) block=(512,1,1) lds=163840
.amdgcn_target "amdgcn-amd-amdhsa--gfx950"
.text
"""
NAME1 = 'parallel_sum__softmax_full_mha__swiglu_ffn__prompt_kernel'
MERGED = True
def build(path, verbose=False):
    if MERGED:
        p, d = mk.gen(NAME1)
        ins = finalize(p, [NAME1], verbose)
        out = HEAD1 + f'.globl {NAME1}\n.p2align 8\n.type {NAME1},@function\n' + render(ins)
        out += '.section .rodata,"a"\n.p2align 6\n' + d
        open(path, 'w').write(out)
        return
    out = HEAD
    descs = ''
    for name, gen in (('psum_k1_kernel', ph1.gen_k1), ('psum_k2_kernel', k2.gen_k2)):
        p, d = gen(name)
        ins = finalize(p, [name], verbose)
        out += f'.globl {name}\n.p2align 8\n.type {name},@function\n' + render(ins)
        descs += d
    out += '.section .rodata,"a"\n.p2align 6\n' + descs.replace('\n.amdhsa_kernel', '\n.p2align 6\n.amdhsa_kernel')
    open(path, 'w').write(out)
if __name__ == '__main__':
    if len(sys.argv) > 2 and sys.argv[2] == 'stamp': k1.STAMP = True
    k1.EXP = {'schg', 'earlyq', 's0v2', 'dspread', 'yw'}
    if len(sys.argv) > 3: k1.EXP |= set(sys.argv[3].split(','))
    if 'two' in k1.EXP: MERGED = False
    build(sys.argv[1] if len(sys.argv) > 1 else 'parallel_sum__softmax_full_mha__swiglu_ffn__prompt.s', verbose=True)
```

```python
from asmlib import *

WS_QF = 0
WS_KV = 2 << 20
WS_HF = 6 << 20
WS_OF = 14 << 20
WS_FLAG = 16 << 20
WS_SIZE = (18 << 20)

SLOT = 14336
NSLOT = 11
RING = SLOT * NSLOT
L_CSP = RING
L_CSF = L_CSP + 2048
L_STAT = L_CSF + 1024
L_TOK = L_STAT + 1024
LDS_BYTES = L_TOK + 2048

LOG2E = 1.4426950408889634
CQ = (28 ** -0.5) * LOG2E
import struct
def f2u(f): return struct.unpack('<I', struct.pack('<f', f))[0]
def hexf(f): return '0x%08x' % f2u(f)

def vr(b, n=1): return 'v%d' % b if n == 1 else 'v[%d:%d]' % (b, b + n - 1)
def sr(b, n=1): return 's%d' % b if n == 1 else 's[%d:%d]' % (b, b + n - 1)

def flat(l):
    o = []
    for x in l:
        if isinstance(x, list): o += flat(x)
        else: o.append(x)
    return o

STAMP = False
EXP = set()
WS_STAMP = (17 << 20)
def stamp(p, idx):
    if not STAMP: return
    p.add([I('s_memtime s[94:95]'), I('s_waitcnt lgkmcnt(0)'), I(f's_mov_b32 s{80+idx}, s94')])
def stamp_store(p, S_WS, s_w, kern, tmpv=(0,)):
    if not STAMP: return
    p(f's_lshl_b32 s94, s2, 3')
    p(f's_add_u32 s94, s94, s{s_w}')
    p(f's_lshl_b32 s94, s94, 6')
    p(f's_add_u32 s94, s94, {WS_STAMP + kern*256*8*64}')
    p('v_mov_b32 v19, 0')
    for i in range(14):
        p(f'v_mov_b32 v5, s{80+i}')
        p(f'buffer_store_dword v5, v19, s[{S_WS}:{S_WS+3}], s94 offen offset:{4*i}')
    p('s_waitcnt vmcnt(0)')

def gen_k1(name, code_bytes_hint=16384):
    p = Prog()
    S_X, S_W, S_GU, S_WS = 8, 12, 16, 20
    s_w, s_r4, s_ch, s_rb, s_g, s_pr, s_tb, s_sub, s_reg = 30, 31, 32, 33, 34, 35, 36, 37, 38
    s_lead = 39
    s_q = 40
    s_qk = 45
    s_qn = 46
    s_dslot = 47
    s_rslot = 48
    s_cslot = 49
    s_hi = 50
    s_pad = 52
    s_ones = 54
    s_t0, s_t1, s_t2, s_t3 = 55, 56, 57, 58
    s_soff, s_str = 59, 60
    s_dsrd = 64
    s_par = 61
    s_stq, s_stkv, s_sth = 62, 63, 68
    s_scq = 69
    s_padk = 70
    s_cnt = 71
    s_sthi = 72
    v_lane16 = 1
    v_patq, v_patg = 2, 3
    v_wa = [4, 5]
    v_ca = 6
    v_dq, v_dg = 7, 8
    v_dsel = 9
    v_csp_r, v_csp_w, v_csf_w, v_csf_r = 10, 11, 12, 13
    v_nmean, v_kk, v_vv, v_sc = 14, 15, 16, 17
    v_t = 18
    v_cacc = [26, 27]
    v_padv = 28
    v_tokr = 29
    CB = [32, 36]
    WF = [40, 44, 48, 52]
    ACCA, ACCB = 56, 72
    TP = 88
    XF = 128
    v_pf = 240

    L = lambda s: name + '_' + s

    p.label(name)
    p(f's_cmp_ge_u32 s2, 256')
    p(f's_cbranch_scc1 {L("end")}')
    stamp(p, 0)
    p('s_load_dwordx4 s[4:7], s[0:1], 0')
    p('s_load_dwordx4 s[24:27], s[0:1], 32')
    p('s_load_dwordx2 s[28:29], s[0:1], 72')
    p('s_getpc_b64 s[74:75]')
    p(f'v_and_b32 v{v_t}, 63, v0')
    p(f'v_lshlrev_b32 v{v_t}, 6, v{v_t}')
    p(f'v_lshrrev_b32 v{v_t+1}, 6, v0')
    p(f'v_readfirstlane_b32 s{s_w}, v{v_t+1}')
    p(f'v_lshlrev_b32 v{v_t+1}, 12, v{v_t+1}')
    p(f'v_add_u32 v{v_t}, v{v_t}, v{v_t+1}')
    p(f'global_load_dword v{v_pf}, v{v_t}, s[74:75]')
    p(f's_and_b32 s{s_g}, s2, 15')
    p(f's_lshr_b32 s{s_rb}, s2, 4')
    p(f's_lshr_b32 s{s_pr}, s{s_g}, 1')
    p(f's_and_b32 s{s_tb}, s{s_g}, 1')
    p(f's_and_b32 s{s_r4}, s{s_w}, 3')
    p(f's_lshr_b32 s{s_ch}, s{s_w}, 2')
    p(f's_lshr_b32 s{s_sub}, s{s_w}, 1')
    p(f's_and_b32 s{s_reg}, s{s_w}, 1')
    p(f's_mov_b32 s{s_ones}, 0x3f803f80')
    p(f's_mov_b32 s{s_hi}, 0')
    p(f's_mov_b32 s{s_hi+1}, -1')
    p(f's_mov_b32 s{s_pad}, 0xf0000000')
    p(f's_mov_b32 s{s_pad+1}, 0xf0000000')
    lane, m, hh = v_t + 2, v_t + 3, v_t + 4
    p(f'v_and_b32 v{lane}, 63, v0')
    p(f'v_lshlrev_b32 v{v_lane16}, 4, v{lane}')
    p(f'v_and_b32 v{m}, 31, v0')
    p(f'v_bfe_u32 v{hh}, v0, 5, 1')
    xa, xb = TP, TP + 1
    p(f'v_lshrrev_b32 v{v_t}, 3, v{lane}')
    p(f'v_mul_u32_u24 v{v_t}, 896, v{v_t}')
    p(f'v_lshrrev_b32 v{v_t+1}, 4, v{lane}')
    p(f'v_and_b32 v{v_t+5}, 7, v{lane}')
    p(f'v_xor_b32 v{v_t+1}, v{v_t+1}, v{v_t+5}')
    p(f'v_lshlrev_b32 v{v_t+1}, 4, v{v_t+1}')
    p(f'v_add_u32 v{xa}, v{v_t}, v{v_t+1}')
    p(f'v_xor_b32 v{v_t+1}, 64, v{v_t+1}')
    p(f'v_add_u32 v{xb}, v{v_t}, v{v_t+1}')
    p('s_waitcnt lgkmcnt(0)')
    p(f's_mov_b32 s{S_X}, s4')
    p(f's_mov_b32 s{S_X+1}, s5')
    p(f's_mov_b32 s{S_X+2}, {2048*896}')
    p(f's_mov_b32 s{S_X+3}, 0x20000')
    p(f's_mov_b32 s{S_W}, s6')
    p(f's_mov_b32 s{S_W+1}, s7')
    p(f's_mov_b32 s{S_W+2}, {448*2688}')
    p(f's_mov_b32 s{S_W+3}, 0x20000')
    p(f's_cmp_eq_u32 s{s_reg}, 0')
    p(f's_cselect_b32 s{S_GU}, s24, s26')
    p(f's_cselect_b32 s{S_GU+1}, s25, s27')
    p(f's_mov_b32 s{S_GU+2}, {448*3584}')
    p(f's_mov_b32 s{S_GU+3}, 0x20000')
    p(f's_mov_b32 s{S_WS}, s28')
    p(f's_mov_b32 s{S_WS+1}, s29')
    p(f's_mov_b32 s{S_WS+2}, {WS_SIZE}')
    p(f's_mov_b32 s{S_WS+3}, 0x20000')
    p(f's_lshl_b32 s{s_t0}, s{s_rb}, 7')
    p(f's_lshl_b32 s{s_t1}, s{s_w}, 4')
    p(f's_add_u32 s{s_t0}, s{s_t0}, s{s_t1}')
    p(f's_mul_i32 s{s_t0}, s{s_t0}, 896')
    p(f's_add_u32 s{s_t1}, s{s_t0}, {8*896}')
    p(f's_lshl_b32 s{s_t2}, s{s_w}, 11')
    p(f's_mov_b32 m0, s{s_t2}')
    for a in range(7):
        p(f'buffer_load_dwordx4 v{xa}, s[{S_X}:{S_X+3}], s{s_t0} offen lds')
        p(f's_addk_i32 m0, 1024')
        p(f's_addk_i32 s{s_t0}, 128')
        p(f'buffer_load_dwordx4 v{xb}, s[{S_X}:{S_X+3}], s{s_t1} offen lds')
        if a < 6:
            p(f's_addk_i32 m0, {16384-1024}')
            p(f's_addk_i32 s{s_t1}, 128')
    p(f'v_lshrrev_b32 v{v_t}, 2, v{lane}')
    p(f'v_and_b32 v{v_t+1}, 3, v{lane}')
    p(f'v_mul_u32_u24 v{v_dq}, 2688, v{v_t}')
    p(f'v_lshlrev_b32 v{v_t+5}, 4, v{v_t+1}')
    p(f'v_add_u32 v{v_dq}, v{v_dq}, v{v_t+5}')
    p(f's_lshl_b32 s{s_t0}, s{s_reg}, 5')
    p(f'v_xor_b32 v{v_t+5}, s{s_t0}, v{v_t+5}')
    p(f'v_mul_u32_u24 v{v_dg}, 3584, v{v_t}')
    p(f'v_add_u32 v{v_dg}, v{v_dg}, v{v_t+5}')
    p(f's_mul_i32 s{s_t0}, s{s_sub}, {112*2688}')
    p(f's_mul_i32 s{s_t1}, s{s_sub}, {112*3584}')
    p(f's_lshl_b32 s{s_t2}, s{s_pr}, 1')
    p(f's_add_u32 s{s_t3}, s{s_t2}, s{s_tb}')
    p(f's_mul_i32 s{s_q}, s{s_t3}, 56')
    p(f's_mul_i32 s{s_soff}, s{s_reg}, 896')
    p(f's_add_u32 s{s_q}, s{s_q}, s{s_soff}')
    p(f's_add_u32 s{s_q}, s{s_q}, s{s_t0}')
    p(f's_lshl_b32 s{s_cnt}, s{s_rb}, 2')
    p(f's_add_u32 s{s_cnt}, s{s_cnt}, s{s_r4}')
    p(f's_lshl_b32 s{s_stq}, s{s_t3}, 6')
    p(f's_add_u32 s{s_stq}, s{s_stq}, s{s_cnt}')
    p(f's_add_u32 s{s_str}, s{s_ch}, 11')
    p(f's_lshl_b32 s{s_stq}, s{s_stq}, s{s_str}')
    p(f's_mul_i32 s{s_str}, s{s_ch}, {WS_KV}')
    p(f's_add_u32 s{s_stq}, s{s_stq}, s{s_str}')
    p(f's_add_u32 s{s_stkv}, s{s_t2}, s{s_ch}')
    p(f's_lshl_b32 s{s_stkv}, s{s_stkv}, 6')
    p(f's_add_u32 s{s_stkv}, s{s_stkv}, s{s_cnt}')
    p(f's_lshl_b32 s{s_stkv}, s{s_stkv}, 12')
    p(f's_add_u32 s{s_stkv}, s{s_stkv}, {WS_KV + 2048}')
    p(f's_mul_i32 s{s_str}, s{s_pr}, 7')
    p(f's_mul_i32 s{s_soff}, s{s_tb}, 3')
    p(f's_add_u32 s{s_str}, s{s_str}, s{s_soff}')
    p(f's_mul_i32 s{s_sth}, s{s_cnt}, 112')
    p(f's_lshl_b32 s{s_soff}, s{s_str}, 1')
    p(f's_add_u32 s{s_sth}, s{s_sth}, s{s_soff}')
    p(f's_add_u32 s{s_sth}, s{s_sth}, s{s_ch}')
    p(f's_lshl_b32 s{s_sth}, s{s_sth}, 10')
    p(f's_add_u32 s{s_sth}, s{s_sth}, {WS_HF}')
    p(f's_lshl_b32 s{s_str}, s{s_str}, 6')
    p(f's_add_u32 s{s_str}, s{s_str}, s{s_t1}')
    p(f's_add_u32 s{s_soff}, s{s_t2}, s{s_reg}')
    p(f's_mul_i32 s{s_soff}, s{s_soff}, 56')
    p(f's_add_u32 s{s_soff}, s{s_soff}, 1792')
    p(f's_add_u32 s{s_soff}, s{s_soff}, s{s_t0}')
    p(f's_add_u32 s{s_t0}, s{s_str}, 64')
    p(f's_add_u32 s{s_t1}, s{s_str}, 128')
    p(f's_add_u32 s{s_t2}, s{s_str}, 192')
    p(f's_cmp_eq_u32 s{s_tb}, 0')
    p(f's_cselect_b32 s{s_q+1}, s{s_soff}, s{s_str}')
    p(f's_cselect_b32 s{s_q+2}, s{s_str}, s{s_t0}')
    p(f's_cselect_b32 s{s_q+3}, s{s_t0}, s{s_t1}')
    p(f's_cselect_b32 s{s_q+4}, s{s_t1}, s{s_t2}')
    p(f's_cselect_b32 s{s_qk}, 2, 1')
    p(f's_mov_b32 s{s_qn}, 5')
    p(f's_add_u32 s{s_t0}, s{s_sub}, 8')
    p(f's_cmp_ge_u32 s{s_t0}, 11')
    p(f's_cselect_b32 s{s_t1}, 11, 0')
    p(f's_sub_u32 s{s_t0}, s{s_t0}, s{s_t1}')
    p(f's_mul_i32 s{s_dslot}, s{s_t0}, {SLOT}')
    p(f's_mul_i32 s{s_t0}, s{s_reg}, 7168')
    p(f's_add_u32 s{s_dslot}, s{s_dslot}, s{s_t0}')
    p(f's_cmp_ge_u32 s{s_w}, 6')
    p(f's_cselect_b32 s{s_lead}, 1, 0')

    uid = [0]
    def issue():
        uid[0] += 1
        u = uid[0]
        o = []
        if 'nodma' in EXP and u > 3: return []
        o.append(I(f's_cmp_eq_u32 s{s_qn}, 0'))
        o.append(I(f's_cbranch_scc1 {L("iss_done%d" % u)}'))
        o.append(I(f's_cmp_lg_u32 s{s_qk}, 0'))
        o.append(I(f's_cselect_b64 s[{s_dsrd}:{s_dsrd+1}], s[{S_W}:{S_W+1}], s[{S_GU}:{S_GU+1}]'))
        o.append(I(f's_cselect_b32 s{s_dsrd+2}, s{S_W+2}, s{S_GU+2}'))
        o.append(I(f's_mov_b32 s{s_dsrd+3}, 0x20000'))
        o.append(I(f's_cselect_b32 s{s_str}, {16*2688}, {16*3584}') if False else I(f's_movk_i32 s{s_str}, 0'))
        o[-1] = I(f's_cselect_b32 s{s_str}, s{s_c2688}, s{s_c3584}')
        o.append(I(f's_cbranch_scc1 {L("iss_q%d" % u)}'))
        o.append(I(f'v_mov_b32 v{v_dsel}, v{v_dg}'))
        o.append(I(f's_branch {L("iss_c%d" % u)}'))
        o.append(I(f'{L("iss_q%d" % u)}:'))
        o.append(I(f'v_mov_b32 v{v_dsel}, v{v_dq}'))
        o.append(I(f's_sub_u32 s{s_qk}, s{s_qk}, 1'))
        o.append(I(f'{L("iss_c%d" % u)}:'))
        o.append(I(f's_mov_b32 m0, s{s_dslot}'))
        o.append(I(f's_mov_b32 s{s_soff}, s{s_q}'))
        for i in range(7):
            o.append(I(f'buffer_load_dwordx4 v{v_dsel}, s[{s_dsrd}:{s_dsrd+3}], s{s_soff} offen lds'))
            if i < 6:
                o.append(I(f's_addk_i32 m0, 1024'))
                o.append(I(f's_add_u32 s{s_soff}, s{s_soff}, s{s_str}'))
        for i in range(4):
            o.append(I(f's_mov_b32 s{s_q+i}, s{s_q+i+1}'))
        o.append(I(f's_sub_u32 s{s_qn}, s{s_qn}, 1'))
        o.append(I(f's_add_u32 s{s_dslot}, s{s_dslot}, {4*SLOT}'))
        o.append(I(f's_cmp_ge_u32 s{s_dslot}, {RING}'))
        o.append(I(f's_cselect_b32 s{s_t0}, {RING}, 0'))
        o.append(I(f's_sub_u32 s{s_dslot}, s{s_dslot}, s{s_t0}'))
        o.append(I(f'{L("iss_done%d" % u)}:'))
        return o
    s_c2688, s_c3584 = 76, 77
    p(f's_mov_b32 s{s_c2688}, {16*2688}')
    p(f's_mov_b32 s{s_c3584}, {16*3584}')
    p(f's_cmp_lg_u32 s{s_lead}, 0')
    p(f's_cbranch_scc1 {L("pro_skip")}')
    p.add(issue())
    p.label(L('pro_skip'))

    p(f'v_bfe_u32 v{v_t}, v{lane}, 2, 2')
    p(f'v_lshlrev_b32 v{v_t+1}, 3, v{hh}')
    p(f'v_add_u32 v{v_t}, v{v_t}, v{v_t+1}')
    p(f'v_lshlrev_b32 v{v_t}, 6, v{v_t}')
    p(f'v_and_b32 v{v_t+1}, 3, v{lane}')
    p(f'v_lshlrev_b32 v{v_t+1}, 3, v{v_t+1}')
    p(f'v_add_u32 v{v_t}, v{v_t}, v{v_t+1}')
    p(f'v_bfe_u32 v{v_t+1}, v{lane}, 4, 1')
    p(f's_mul_i32 s{s_t0}, s{s_ch}, 7168')
    p(f'v_lshlrev_b32 v{v_t+5}, 5, v{v_t+1}')
    p(f'v_add_u32 v{v_patq}, v{v_t}, v{v_t+5}')
    p(f'v_add_u32 v{v_patq}, s{s_t0}, v{v_patq}')
    p(f'v_mul_u32_u24 v{v_patg}, 7168, v{v_t+1}')
    p(f'v_add_u32 v{v_patg}, v{v_patg}, v{v_t}')
    p(f'v_xor_b32 v{v_t+5}, s{s_ch}, v{v_t+1}')
    p(f'v_lshlrev_b32 v{v_t+5}, 5, v{v_t+5}')
    p(f'v_add_u32 v{v_patg}, v{v_patg}, v{v_t+5}')
    p(f's_lshl_b32 s{s_t0}, s{s_ch}, 9')
    p(f's_add_u32 s{s_t0}, s{s_t0}, {L_CSP}')
    p(f'v_lshlrev_b32 v{v_csp_r}, 4, v{m}')
    p(f'v_add_u32 v{v_csp_r}, s{s_t0}, v{v_csp_r}')
    p(f's_lshl_b32 s{s_t1}, s{s_r4}, 2')
    p(f'v_add_u32 v{v_csp_w}, s{s_t1}, v{v_csp_r}')
    p(f's_lshl_b32 s{s_t0}, s{s_w}, 7')
    p(f's_add_u32 s{s_t0}, s{s_t0}, {L_CSF}')
    p(f'v_lshlrev_b32 v{v_csf_w}, 2, v{m}')
    p(f'v_add_u32 v{v_csf_w}, s{s_t0}, v{v_csf_w}')
    p(f'v_lshlrev_b32 v{v_csf_r}, 4, v{hh}')
    p(f'v_add_u32 v{v_csf_r}, s{s_t0}, v{v_csf_r}')
    p(f's_lshl_b32 s{s_t0}, s{s_w}, 8')
    p(f's_add_u32 s{s_t0}, s{s_t0}, {L_TOK}')
    p(f'v_lshlrev_b32 v{v_tokr}, 4, v{hh}')
    p(f'v_add_u32 v{v_tokr}, s{s_t0}, v{v_tokr}')
    p(f'v_cmp_eq_u32 vcc, 28, v{m}')
    p(f'v_mov_b32 v{v_padv}, 0')
    p(f'v_mov_b32 v{v_t}, s{s_ones}')
    p(f'v_cndmask_b32 v{v_padv}, v{v_padv}, v{v_t}, vcc')
    p(f's_cmp_eq_u32 s{s_ch}, 0')
    p(f's_cselect_b32 s{s_scq}, {hexf(CQ)}, 1.0')
    p(f's_cselect_b32 s{s_padk}, 0, 0x3f80')
    xr = [TP + 2 + u for u in range(4)]
    p(f's_lshl_b32 s{s_t0}, s{s_r4}, 12')
    p(f'v_lshlrev_b32 v{v_t}, 7, v{m}')
    p(f'v_add_u32 v{v_t}, s{s_t0}, v{v_t}')
    p(f'v_bfe_u32 v{v_t+1}, v{m}, 1, 3')
    p(f'v_xor_b32 v{v_t+1}, v{v_t+1}, v{hh}')
    for u in range(4):
        p(f'v_xor_b32 v{v_t+5}, {2*u}, v{v_t+1}')
        p(f'v_lshlrev_b32 v{v_t+5}, 4, v{v_t+5}')
        p(f'v_add_u32 v{xr[u]}, v{v_t}, v{v_t+5}')
    v_stw, v_str = 30, 31
    p(f's_lshl_b32 s{s_t0}, s{s_r4}, 7')
    p(f's_add_u32 s{s_t0}, s{s_t0}, {L_STAT}')
    p(f'v_lshlrev_b32 v{v_str}, 2, v{m}')
    p(f'v_add_u32 v{v_str}, s{s_t0}, v{v_str}')
    p(f's_lshl_b32 s{s_t0}, s{s_ch}, 9')
    p(f'v_add_u32 v{v_stw}, s{s_t0}, v{v_str}')
    p(f's_mov_b32 s{s_rslot}, {8*SLOT}')
    p(f's_add_u32 s{s_t0}, s{s_r4}, 8')
    p(f's_cmp_ge_u32 s{s_t0}, 11')
    p(f's_cselect_b32 s{s_t1}, 11, 0')
    p(f's_sub_u32 s{s_t0}, s{s_t0}, s{s_t1}')
    p(f's_mul_i32 s{s_cslot}, s{s_t0}, {SLOT}')
    p(f's_mov_b32 s{s_par}, 0')
    p(f's_cmp_lg_u32 s{s_w}, 0')
    p(f's_cbranch_scc1 {L("noflag")}')
    p(f's_lshl_b32 s{s_t0}, s2, 2')
    p(f's_add_u32 s{s_t0}, s{s_t0}, {WS_FLAG}')
    p(f'v_mov_b32 v{v_t}, 0')
    p(f'v_mov_b32 v{v_t+1}, 0')
    p(f'buffer_store_dword v{v_t}, v{v_t+1}, s[{S_WS}:{S_WS+3}], s{s_t0} offen')
    p.label(L('noflag'))

    stamp(p, 1)
    p('s_waitcnt vmcnt(0)')
    p('s_barrier')
    stamp(p, 2)
    for t in range(28):
        a, u = t >> 2, t & 3
        if t == 16:
            for uu in range(4): p(f'v_add_u32 v{xr[uu]}, 0x10000, v{xr[uu]}')
        off = (a * 16384) & 0xffff
        p(f'ds_read_b128 v[{XF+4*t}:{XF+4*t+3}], v{xr[u]} offset:{off}', gives=['lds:x'])
    p('s_waitcnt lgkmcnt(0)')
    p('s_barrier')
    stamp(p, 3)
    p.add(issue())
    p.add(issue())
    stamp(p, 4)

    def ring_adv(s):
        return [I(f's_add_u32 s{s}, s{s}, {SLOT}'),
                I(f's_cmp_ge_u32 s{s}, {RING}'),
                I(f's_cselect_b32 s{s_t1}, {RING}, 0'),
                I(f's_sub_u32 s{s}, s{s}, s{s_t1}')]

    def wread(t, pat_cur, pat_next):
        o = []
        tt = t % 28
        sub, ks = tt // 7, tt % 7
        gsub = t // 7
        va = v_wa[gsub & 1]
        if ks == 0:
            pat = pat_cur if t < 28 else pat_next
            o.append(I(f'v_add_u32 v{va}, s{s_rslot}, v{pat}'))
            o += ring_adv(s_rslot)
        b = WF[t & 3]
        o.append(I(f'ds_read_b64_tr_b16 v[{b}:{b+1}], v{va} offset:{ks*1024}', gives=['rd:ring']))
        o.append(I(f'ds_read_b64_tr_b16 v[{b+2}:{b+3}], v{va} offset:{ks*1024+256}', gives=['rd:ring']))
        return o

    def mstream(w_is_a, pat_cur, pat_next, midbar=None):
        slots = []
        for t in range(28):
            s = []
            if midbar is not None and t == midbar:
                s += [I('s_waitcnt vmcnt(7)'), I('s_barrier')]
            s += wread(t + 3, pat_cur, pat_next)
            b = WF[t & 3]
            x = XF + 4 * t
            d = ACCB if t == 27 else ACCA
            c = '0' if t == 0 else f'v[{ACCA}:{ACCA+15}]'
            if w_is_a:
                s.append(I(f'v_mfma_f32_32x32x16_bf16 v[{d}:{d+15}], v[{b}:{b+3}], v[{x}:{x+3}], {c}'))
            else:
                s.append(I(f'v_mfma_f32_32x32x16_bf16 v[{d}:{d+15}], v[{x}:{x+3}], v[{b}:{b+3}], {c}'))
            slots.append(s)
        return slots

    def cs_stream(pat):
        o = []
        o.append(I(f'v_add_u32 v{v_ca}, s{s_cslot}, v{pat}'))
        o.append(I(f'v_mov_b32 v{v_cacc[0]}, 0'))
        o.append(I(f'v_mov_b32 v{v_cacc[1]}, 0'))
        def rd(f):
            b = CB[f & 1]
            return [I(f'ds_read_b64_tr_b16 v[{b}:{b+1}], v{v_ca} offset:{f*1024}', gives=['rd:ring']),
                    I(f'ds_read_b64_tr_b16 v[{b+2}:{b+3}], v{v_ca} offset:{f*1024+256}', gives=['rd:ring'])]
        o += rd(0) + rd(1)
        for f in range(7):
            b = CB[f & 1]
            for r in range(4):
                o.append(I(f'v_dot2c_f32_bf16 v{v_cacc[r&1]}, s{s_ones}, v{b+r}'))
            if f + 2 < 7: o += rd(f + 2)
        o.append(I(f'v_add_f32 v{v_cacc[0]}, v{v_cacc[0]}, v{v_cacc[1]}'))
        o.append(I(f'v_mov_b32 v{v_cacc[1]}, v{v_cacc[0]}'))
        o.append(I(f'v_permlane32_swap_b32 v{v_cacc[0]}, v{v_cacc[1]}'))
        o.append(I(f'v_add_f32 v{v_cacc[0]}, v{v_cacc[0]}, v{v_cacc[1]}'))
        o.append(I(f'v_add_u32 v{v_cacc[1]}, s{s_par}, v{v_csp_w}'))
        o.append(I(f'ds_write_b32 v{v_cacc[1]}, v{v_cacc[0]}', gives=['lds:cs']))
        o.append([I(f's_add_u32 s{s_cslot}, s{s_cslot}, {4*SLOT}'),
                  I(f's_cmp_ge_u32 s{s_cslot}, {RING}'),
                  I(f's_cselect_b32 s{s_t2}, {RING}, 0'),
                  I(f's_sub_u32 s{s_cslot}, s{s_cslot}, s{s_t2}'),
                  I(f's_xor_b32 s{s_par}, s{s_par}, 1024')])
        return o

    CS = TP
    T2 = TP + 16
    def cs_fetch(bcast=True):
        o = []
        o.append(I(f's_xor_b32 s{s_t3}, s{s_par}, 1024'))
        o.append(I(f'v_add_u32 v{T2}, s{s_t3}, v{v_csp_r}'))
        o.append(I(f'ds_read_b128 v[{T2+4}:{T2+7}], v{T2}'))
        gap = []
        o2 = []
        o2.append(I(f'v_add_f32 v{T2+4}, v{T2+4}, v{T2+5}'))
        o2.append(I(f'v_add_f32 v{T2+6}, v{T2+6}, v{T2+7}'))
        o2.append(I(f'v_add_f32 v{T2+4}, v{T2+4}, v{T2+6}'))
        if bcast:
            o2.append(I(f'ds_write_b32 v{v_csf_w}, v{T2+4}'))
            for i in range(4):
                o2.append(I(f'ds_read_b128 v[{CS+4*i}:{CS+4*i+3}], v{v_csf_r} offset:{32*i}'))
        return o, o2

    def e_gu():
        a, b = cs_fetch()
        o = a + [I('s_nop 0')] * 0
        body = []
        G, U = ACCB, ACCB + 8
        for half in range(2):
            r0 = 4 * half
            tg = [T2 + i for i in range(4)]
            tu = [T2 + 4 + i for i in range(4)]
            ee = [T2 + 8 + i for i in range(4)]
            for i in range(4):
                body.append(I(f'v_fma_f32 v{tg[i]}, v{v_nmean}, v{CS+r0+i}, v{G+r0+i}'))
            for i in range(4):
                body.append(I(f'v_mul_f32 v{ee[i]}, v{tg[i]}, v{v_kk}'))
            for i in range(4):
                body.append(I(f'v_exp_f32 v{ee[i]}, v{ee[i]}'))
                body.append(I(f'v_fma_f32 v{tu[i]}, v{v_nmean}, v{CS+8+r0+i}, v{U+r0+i}'))
            for i in range(4):
                body.append(I(f'v_fma_f32 v{ee[i]}, v{ee[i]}, v{v_vv}, v{v_vv}'))
                body.append(I(f'v_mul_f32 v{tg[i]}, v{tg[i]}, v{tu[i]}'))
            for i in range(4):
                body.append(I(f'v_rcp_f32 v{ee[i]}, v{ee[i]}'))
            for i in range(4):
                body.append(I(f'v_mul_f32 v{tg[i]}, v{tg[i]}, v{ee[i]}'))
            hp = T2 + 12 + 2 * half
            body.append(I(f'v_cvt_pk_bf16_f32 v{hp}, v{tg[0]}, v{tg[1]}'))
            body.append(I(f'v_cvt_pk_bf16_f32 v{hp+1}, v{tg[2]}, v{tg[3]}'))
        body.append(I(f'buffer_store_dwordx4 v[{T2+12}:{T2+15}], v{v_lane16}, s[{S_WS}:{S_WS+3}], s{s_sth} offen'))
        body.append(I(f's_add_u32 s{s_sth}, s{s_sth}, 2048'))
        return a, b, body

    def stats_final(need_tok):
        o = []
        t0, t1, t2 = v_t, v_t + 1, v_t + 2
        o.append(I(f'ds_read_b32 v{t0}, v{v_str}'))
        o.append(I(f'ds_read_b32 v{t1}, v{v_str} offset:512'))
        o2 = []
        o2.append(I(f'v_mul_f32 v{t0}, {hexf(1/448)}, v{t0}'))
        o2.append(I(f'v_mul_f32 v{t1}, {hexf(1/448)}, v{t1}'))
        o2.append(I(f'v_fma_f32 v{t1}, -v{t0}, v{t0}, v{t1}'))
        o2.append(I(f'v_max_f32 v{t1}, 0, v{t1}'))
        o2.append(I(f'v_add_f32 v{v_vv}, {hexf(1e-5)}, v{t1}'))
        o2.append(I(f'v_rsq_f32 v{t2}, v{v_vv}'))
        o2.append(I(f'v_sub_f32 v{v_nmean}, 0, v{t0}'))
        o2.append(I(f'v_mul_f32 v{v_kk}, {hexf(-LOG2E)}, v{t2}'))
        o2.append(I(f'v_mul_f32 v{v_sc}, s{s_scq}, v{t2}'))
        if need_tok:
            o2.append(I(f'v_mul_f32 v{t0}, v{v_nmean}, v{t2}'))
            o2.append(I(f's_lshl_b32 s{s_t3}, s{s_w}, 7'))
            o2.append(I(f's_add_u32 s{s_t3}, s{s_t3}, {L_TOK - L_CSF}'))
            o2.append(I(f'v_add_u32 v{t1}, s{s_t3}, v{v_csf_w}'))
            o2.append(I(f'ds_write_b32 v{t1}, v{t2}'))
            o2.append(I(f'ds_write_b32 v{t1}, v{t0} offset:128'))
        return o, o2

    def e_qk():
        a, b = cs_fetch()
        body = []
        for r in range(16):
            body.append(I(f'v_fma_f32 v{T2+r}, v{v_nmean}, v{CS+r}, v{ACCB+r}'))
        for r in range(16):
            body.append(I(f'v_mul_f32 v{T2+r}, v{T2+r}, v{v_sc}'))
        for d in range(8):
            body.append(I(f'v_cvt_pk_bf16_f32 v{CS+d}, v{T2+2*d}, v{T2+2*d+1}'))
        body.append(I(f'v_mov_b32 v{T2}, s{s_padk}'))
        body.append(I(f'v_mov_b32 v{T2+1}, 0'))
        body.append(I(f'v_cndmask_b32 v{CS+6}, v{CS+6}, v{T2}, s[{s_hi}:{s_hi+1}]'))
        body.append(I(f'v_cndmask_b32 v{CS+7}, v{CS+7}, v{T2+1}, s[{s_hi}:{s_hi+1}]'))
        body.append(I(f'buffer_store_dwordx4 v[{CS}:{CS+3}], v{v_lane16}, s[{S_WS}:{S_WS+3}], s{s_stq} offen'))
        body.append(I(f'buffer_store_dwordx4 v[{CS+4}:{CS+7}], v{v_lane16}, s[{S_WS}:{S_WS+3}], s{s_stq} offen offset:1024'))
        return a, b, body

    def e_vv():
        a, b = cs_fetch(bcast=False)
        RS, MR = TP, TP + 24
        MR = TP + 16
        b = b + [I(f'v_mov_b32 v{v_t+5}, v{T2+4}')]
        rd = []
        for i in range(4):
            rd.append(I(f'ds_read_b128 v[{RS+4*i}:{RS+4*i+3}], v{v_tokr} offset:{32*i}'))
        for i in range(4):
            rd.append(I(f'ds_read_b128 v[{MR+4*i}:{MR+4*i+3}], v{v_tokr} offset:{128+32*i}'))
        body = []
        for r in range(16):
            body.append(I(f'v_mul_f32 v{RS+r}, v{RS+r}, v{ACCB+r}'))
        for r in range(16):
            body.append(I(f'v_fma_f32 v{RS+r}, v{MR+r}, v{v_t+5}, v{RS+r}'))
        O = TP + 32
        for d in range(8):
            body.append(I(f'v_cvt_pk_bf16_f32 v{O+d}, v{RS+2*d}, v{RS+2*d+1}'))
        for d in range(8):
            body.append(I(f'v_cndmask_b32 v{O+d}, v{O+d}, v{v_padv}, s[{s_pad}:{s_pad+1}]'))
        body.append(I(f'buffer_store_dwordx4 v[{O}:{O+3}], v{v_lane16}, s[{S_WS}:{S_WS+3}], s{s_stkv} offen'))
        body.append(I(f'buffer_store_dwordx4 v[{O+4}:{O+7}], v{v_lane16}, s[{S_WS}:{S_WS+3}], s{s_stkv} offen offset:1024'))
        return a, b + rd, body

    def stage(w_is_a, pat_cur, pat_next, pre, epi, nstores, midbar=None, cs_start=2, bar=True):
        slots = mstream(w_is_a, pat_cur, pat_next, midbar)
        fill_by_slot = [[] for _ in range(28)]
        cs = cs_stream(pat_cur)
        if 'nocs' in EXP: cs = []
        if 'noepi' in EXP: epi = None
        sl = 0
        for part in pre:
            fill_by_slot[sl] += part; sl += 2
        if epi is not None:
            a, b, body = epi
            fill_by_slot[sl] += a
            fill_by_slot[sl + 2] += b
            st, en = sl + 5, 26
            n = en - st
            for k in range(n):
                fill_by_slot[st + k] += body[len(body) * k // n: len(body) * (k + 1) // n]
        st, en = cs_start, 25
        n = en - st
        for k in range(n):
            fill_by_slot[st + k] += cs[len(cs) * k // n: len(cs) * (k + 1) // n]
        out = []
        for t in range(28):
            out += slots[t] + flat(fill_by_slot[t])
        if bar:
            out.append(I(f's_waitcnt vmcnt({nstores})'))
            out.append(I('s_barrier', needs=['lds:cs', 'lds:stat', 'rd:ringX']))
        return out

    for t in range(3):
        p.add(wread(t, v_patq, v_patq))
    SA = [v_t, v_t + 1, v_t + 2, v_t + 3]
    def stats(sq):
        o = []
        for i in range(4): o.append(I(f'v_mov_b32 v{SA[i]}, 0'))
        for k in range(112):
            if sq: o.append(I(f'v_dot2c_f32_bf16 v{SA[k&3]}, v{XF+k}, v{XF+k}'))
            else: o.append(I(f'v_dot2c_f32_bf16 v{SA[k&3]}, s{s_ones}, v{XF+k}'))
        o.append(I(f'v_add_f32 v{SA[0]}, v{SA[0]}, v{SA[1]}'))
        o.append(I(f'v_add_f32 v{SA[2]}, v{SA[2]}, v{SA[3]}'))
        o.append(I(f'v_add_f32 v{SA[0]}, v{SA[0]}, v{SA[2]}'))
        o.append(I(f'v_mov_b32 v{SA[1]}, v{SA[0]}'))
        o.append(I(f'v_permlane32_swap_b32 v{SA[0]}, v{SA[1]}'))
        o.append(I(f'v_add_f32 v{SA[0]}, v{SA[0]}, v{SA[1]}'))
        o.append(I(f'ds_write_b32 v{v_stw}, v{SA[0]}', gives=['lds:stat']))
        return o
    p(f's_cmp_lg_u32 s{s_ch}, 0')
    p(f's_cbranch_scc1 {L("st_nosum")}')
    p.add(stats(False))
    p.label(L('st_nosum'))
    v_patn = v_dsel + 0
    v_patn = 241
    p(f's_cmp_eq_u32 s{s_tb}, 0')
    p(f's_cbranch_scc1 {L("pn_a")}')
    p(f'v_mov_b32 v{v_patn}, v{v_patg}')
    p(f's_branch {L("pn_c")}')
    p.label(L('pn_a'))
    p(f'v_mov_b32 v{v_patn}, v{v_patq}')
    p.label(L('pn_c'))
    st0 = stage(True, v_patq, v_patn, [], None, 0, midbar=18, cs_start=19, bar=False)
    p.add(st0)
    p(f's_cmp_eq_u32 s{s_ch}, 0')
    p(f's_cbranch_scc1 {L("st_nosq")}')
    p.add(stats(True))
    p.label(L('st_nosq'))
    stamp(p, 5)
    p.add([I('s_waitcnt vmcnt(0)'), I('s_barrier', needs=['lds:cs', 'lds:stat'])])
    stamp(p, 6)

    p(f's_cmp_eq_u32 s{s_tb}, 0')
    p(f's_cbranch_scc0 {L("typeB")}')
    p.add(issue())
    p.add(stage(False, v_patq, v_patg, list(stats_final(True)), e_qk(), 2))
    p.add(issue())
    p.add(stage(True, v_patg, v_patg, [], e_vv(), 2))
    p(f's_mov_b32 s{s_cnt}, 2')
    stamp(p, 7)
    p(f's_branch {L("guloop")}')
    p.label(L('typeB'))
    p.add(issue())
    p.add(stage(True, v_patg, v_patg, list(stats_final(False)), e_qk(), 2))
    p(f's_mov_b32 s{s_cnt}, 3')
    stamp(p, 7)
    p.label(L('guloop'))
    p.add(issue())
    p.add(stage(True, v_patg, v_patg, [], e_gu(), 1))
    p(f's_sub_u32 s{s_cnt}, s{s_cnt}, 1')
    p(f's_cmp_lg_u32 s{s_cnt}, 0')
    p(f's_cbranch_scc1 {L("guloop")}')
    stamp(p, 8)
    a, b, body = e_gu()
    p.add(a + b + body)
    p('s_waitcnt vmcnt(0) lgkmcnt(0)')
    stamp(p, 9)
    stamp_store(p, S_WS, s_w, 0)
    p.label(L('end'))
    p('s_endpgm')
    desc = f"""
.amdhsa_kernel {name}
  .amdhsa_next_free_vgpr 248
  .amdhsa_next_free_sgpr 100
  .amdhsa_accum_offset 248
  .amdhsa_group_segment_fixed_size 0
  .amdhsa_kernarg_size 80
  .amdhsa_user_sgpr_count 2
  .amdhsa_user_sgpr_kernarg_segment_ptr 1
  .amdhsa_system_sgpr_workgroup_id_x 1
  .amdhsa_float_denorm_mode_32 3
.end_amdhsa_kernel
"""
    return p, desc
```

```python
from asmlib import *
import k1, ph1, ph2
from k1 import stamp
from ph1 import WS_FL

def gen(name):
    p = Prog()
    L = lambda s: name + '_' + s
    r = ph1.regmap()
    S_WS, s_w, s_tag = r.S_WS, r.s_w, r.s_tag
    s_t0, s_t1 = r.s_t0, r.s_t1
    cnt = [0]
    def flag_store(level):
        cnt[0] += 1; u = cnt[0]
        return [I(f's_cmp_eq_u32 s{s_w}, 0'), I(f's_cbranch_scc0 {L("fs%d" % u)}'),
                I(f's_lshl_b32 s{s_t0}, s{r.s_rb}, 4'), I(f's_add_u32 s{s_t0}, s{s_t0}, s{r.s_g}'),
                I(f's_lshl_b32 s{s_t0}, s{s_t0}, 2'), I(f's_add_u32 s{s_t0}, s{s_t0}, {WS_FL + level*1024}'),
                I(f'v_mov_b32 v26, s{s_tag}'), I('v_mov_b32 v27, 0'),
                I(f'buffer_store_dword v26, v27, s[{S_WS}:{S_WS+3}], s{s_t0} offen sc1'),
                I(f'{L("fs%d" % u)}:')]
    L2 = lambda s: L('b_' + s)
    Ex, first_kv, _ = ph2.make(lambda s: L('bx_' + s), S_WS, s_w, s_tag)
    Ey, first_kv2, C = ph2.make(lambda s: L('by_' + s), S_WS, s_w, s_tag)
    idsave = [I(f's_lshl_b32 s72, s{r.s_rb}, 4'), I(f's_add_u32 s72, s72, s{r.s_g}')]
    def hook(pt):
        if pt == 'qkv': return flag_store(1)
        if pt == 's4x': return [idsave] + Ex
        if pt == 's4y': return [[I(x.text) for x in idsave]] + Ey
        if pt == 'pre_fin': return first_kv
        if pt == 'pre_fin2': return first_kv2
        return []
    r.hook = hook
    p.label(name)
    p('s_cmp_ge_u32 s2, 256')
    p(f's_cbranch_scc1 {L("end")}')
    stamp(p, 0)
    ph1.phase1(p, lambda s: L('a_' + s), r, True)
    if k1.STAMP: k1.stamp_store(p, S_WS, s_w, 0)
    def after_beta0():
        return [I(f's_cmp_eq_u32 s{s_w}, 0'), I(f's_cbranch_scc0 {L2("hf")}'),
                I('s_lshl_b32 s60, s72, 2'), I(f's_add_u32 s60, s60, {WS_FL + 2*1024}'),
                I(f'v_mov_b32 v248, s{s_tag}'), I('v_mov_b32 v249, 0'),
                I(f'buffer_store_dword v248, v249, s[{S_WS}:{S_WS+3}], s60 offen sc1'),
                I(f'{L2("hf")}:')]
    def h_poll():
        issue = [I('s_lshr_b32 s52, s33, 1'), I('s_lshl_b32 s52, s52, 6'), I(f's_add_u32 s52, s52, {WS_FL + 2*1024}'),
                 I('v_and_b32 v250, 15, v0'), I('v_lshlrev_b32 v250, 2, v250'),
                 I(f'buffer_load_dword v251, v250, s[{S_WS}:{S_WS+3}], s52 offen sc1')]
        check = [I('s_mov_b32 s49, 0x200000'),
                 I(f'{L2("hchk")}:'),
                 I(f'v_cmp_eq_u32 vcc, s{s_tag}, v251'), I('s_nop 0'),
                 I('s_cmp_eq_u64 vcc, -1'), I(f's_cbranch_scc1 {L2("hok")}'),
                 I(f'buffer_load_dword v251, v250, s[{S_WS}:{S_WS+3}], s52 offen sc1'),
                 I('s_waitcnt vmcnt(0)'),
                 I('s_sub_u32 s49, s49, 1'), I('s_cmp_lg_u32 s49, 0'), I(f's_cbranch_scc1 {L2("hchk")}'),
                 I(f'{L2("hok")}:')]
        return issue, check
    ph2.phase2.h_poll = h_poll
    ph2.phase2.after_beta0 = after_beta0
    ph2.phase2(p, L2, S_WS, s_w, s_tag, C)
    p.label(L('end'))
    p('s_endpgm')
    desc = f"""
.amdhsa_kernel {name}
  .amdhsa_next_free_vgpr 256
  .amdhsa_next_free_sgpr 102
  .amdhsa_accum_offset 256
  .amdhsa_group_segment_fixed_size 0
  .amdhsa_kernarg_size 80
  .amdhsa_user_sgpr_count 2
  .amdhsa_user_sgpr_kernarg_segment_ptr 1
  .amdhsa_system_sgpr_workgroup_id_x 1
  .amdhsa_float_denorm_mode_32 3
.end_amdhsa_kernel
"""
    return p, desc
```

```python
from asmlib import *
import k1
from k1 import (WS_QF, WS_KV, WS_HF, WS_OF, WS_FLAG, SLOT, NSLOT, RING, LOG2E, CQ, hexf, flat, stamp)
from k0 import wave_sum
WS_FL = (16 << 20) + 4096

class R: pass

def regmap():
    r = R()
    r.S_W, r.S_G, r.S_U, r.S_WS, r.S_X = 8, 12, 16, 20, 96
    r.s_w, r.s_r4, r.s_ch, r.s_rb, r.s_g, r.s_p, r.s_kind, r.s_ty = 30, 31, 32, 33, 34, 35, 36, 37
    r.s_q = 40
    r.s_w8q, r.s_w8g = 45, 46
    r.s_so, r.s_so2 = 47, 48
    r.s_mo, r.s_mo2 = 49, 50
    r.s_d64q, r.s_d64g = 51, 52
    r.s_hi, r.s_pad = 54, 56
    r.s_t0, r.s_t1, r.s_t2, r.s_t3 = 58, 59, 60, 61
    r.s_stq, r.s_stk, r.s_stv, r.s_sth = 62, 63, 64, 65
    r.s_scq, r.s_padk = 66, 67
    r.s_x0, r.s_x1, r.s_xm = 68, 69, 70
    r.s_tag = 3
    r.s_sth2 = 71
    r.S_R = 24
    r.s_w3, r.s_mo3, r.s_mo32 = 53, 6, 7
    return r

def slot_of(G): return (8 + G) % NSLOT

def phase1(p, L, r, merged, stamp_base=0):
    EXP = k1.EXP
    S_W, S_G, S_U, S_WS, S_X = r.S_W, r.S_G, r.S_U, r.S_WS, r.S_X
    s_w, s_r4, s_ch, s_rb, s_g, s_p, s_kind, s_ty = r.s_w, r.s_r4, r.s_ch, r.s_rb, r.s_g, r.s_p, r.s_kind, r.s_ty
    s_q, s_t0, s_t1, s_t2, s_t3 = r.s_q, r.s_t0, r.s_t1, r.s_t2, r.s_t3
    s_hi, s_pad = r.s_hi, r.s_pad
    SC = ' sc1' if merged else ''
    v_lane16 = 1
    v_pq, v_pg = [2, 3, 4], [5, 6, 7]
    v_dq, v_dg = 8, 9
    v_t = 18
    v_padv = 28
    WF = [40, 44, 48, 52]
    ACCA, B1, B2 = 56, 72, 88
    TP = 104
    XF = 128
    xr = [240, 241, 242, 243]
    xa, xb = 250, 251
    lane, m, hh = v_t + 2, v_t + 3, v_t + 4

    p('s_load_dwordx2 s[6:7], s[0:1], 8')
    p('s_load_dwordx4 s[24:27], s[0:1], 32')
    p('s_load_dwordx2 s[4:5], s[0:1], 72')
    p(f's_load_dwordx2 s[{S_X}:{S_X+1}], s[0:1], 0')
    if merged:
        p('s_load_dwordx2 s[100:101], s[0:1], 64')
        p('s_load_dwordx2 s[28:29], s[0:1], 48')
        p('s_load_dwordx2 s[38:39], s[0:1], 56')
    p('s_getpc_b64 s[74:75]')
    p(f'v_and_b32 v{lane}, 63, v0')
    p(f'v_lshrrev_b32 v{v_t+1}, 6, v0')
    p(f'v_readfirstlane_b32 s{s_w}, v{v_t+1}')
    p(f'v_lshlrev_b32 v{v_lane16}, 4, v{lane}')
    p(f'v_and_b32 v{m}, 31, v0')
    p(f'v_bfe_u32 v{hh}, v0, 5, 1')
    GN = 4
    for e in EXP:
        if e.startswith('gn'): GN = int(e[2:])
    RR = 32 // GN
    nxr = 16 // RR
    lr, lg = RR.bit_length() - 1, GN.bit_length() - 1
    lxr = nxr.bit_length() - 1
    p(f's_and_b32 s{s_t0}, s2, {nxr-1}')
    p(f's_lshl_b32 s{s_t0}, s{s_t0}, {lr}')
    p(f's_lshr_b32 s{s_t1}, s2, 3')
    p(f's_and_b32 s{s_t2}, s{s_t1}, {RR-1}')
    p(f's_add_u32 s{s_rb}, s{s_t0}, s{s_t2}')
    p(f's_and_b32 s{s_t0}, s2, 7')
    p(f's_lshr_b32 s{s_t0}, s{s_t0}, {lxr}')
    p(f's_lshl_b32 s{s_t0}, s{s_t0}, {lg}')
    p(f's_lshr_b32 s{s_t1}, s{s_t1}, {lr}')
    p(f's_add_u32 s{s_g}, s{s_t0}, s{s_t1}')
    p(f's_lshl_b32 s{s_t0}, s{s_rb}, 7')
    p(f's_lshl_b32 s{s_t1}, s{s_w}, 4')
    p(f's_add_u32 s{s_t0}, s{s_t0}, s{s_t1}')
    p(f's_mul_i32 s{r.s_x0}, s{s_t0}, 896')
    p(f's_add_u32 s{r.s_x1}, s{r.s_x0}, {8*896}')
    p(f's_lshl_b32 s{r.s_xm}, s{s_w}, 11')
    p(f'v_lshrrev_b32 v{v_t}, 3, v{lane}')
    p(f'v_mul_u32_u24 v{v_t}, 896, v{v_t}')
    p(f'v_and_b32 v{v_t+5}, 7, v{lane}')
    p(f'v_lshlrev_b32 v{v_t+1}, 4, v{v_t+5}')
    p(f'v_add_u32 v{xa}, v{v_t}, v{v_t+1}')
    p(f's_mov_b32 s{S_X+2}, {2048*896}')
    p(f's_mov_b32 s{S_X+3}, 0x20000')
    p('s_waitcnt lgkmcnt(0)')
    stamp(p, 2)
    if k1.STAMP: p('s_getreg_b32 s93, hwreg(HW_REG_XCC_ID)')
    def x_issue(g):
        return [I(f's_mov_b32 m0, s{r.s_xm}'),
                I(f's_addk_i32 s{r.s_xm}, 16384'),
                I(f'buffer_load_dwordx4 v{xa}, s[{S_X}:{S_X+3}], s{r.s_x0} offen lds', gives=[g]),
                I('s_addk_i32 m0, 1024'),
                I(f's_addk_i32 s{r.s_x0}, 128'),
                I(f'buffer_load_dwordx4 v{xa}, s[{S_X}:{S_X+3}], s{r.s_x1} offen lds', gives=[g]),
                I(f's_addk_i32 s{r.s_x1}, 128')]
    if 'xt' in EXP:
        per = 896 // GN // 8
        p(f's_and_b32 s{s_t0}, s{s_g}, {GN-1}')
        p(f's_lshl_b32 s{s_t0}, s{s_t0}, 3')
        p(f's_add_u32 s{s_t0}, s{s_t0}, s{s_w}')
        p(f's_mul_i32 s{s_t0}, s{s_t0}, {per*128}')
        p(f's_mul_i32 s{s_t1}, s{s_rb}, {128*896}')
        p(f's_add_u32 s{s_t0}, s{s_t0}, s{s_t1}')
        p(f'v_lshlrev_b32 v{v_t}, 7, v{lane}')
        p(f's_mov_b32 exec_lo, {(1 << per) - 1}')
        p('s_mov_b32 exec_hi, 0')
        p(f'buffer_load_dword v253, v{v_t}, s[{S_X}:{S_X+3}], s{s_t0} offen', gives=['xt'])
        p('s_mov_b64 exec, -1')
        if 'xw' in EXP: p.add([I('s_nop 0', needs=['xt'])])
    if 'xfull' in EXP:
        p(f'v_lshlrev_b32 v{v_t}, 7, v{lane}')
        p(f'buffer_load_dword v253, v{v_t}, s[{S_X}:{S_X+3}], s{r.s_x0} offen', gives=['xt'])
        p(f's_add_u32 s{s_t0}, s{r.s_x0}, 8192')
        p('s_mov_b32 exec_hi, 0x0000ffff')
        p(f'buffer_load_dword v254, v{v_t}, s[{S_X}:{S_X+3}], s{s_t0} offen', gives=['xt'])
        p('s_mov_b64 exec, -1')
        p.add([I('s_nop 0', needs=['xt'])])
        stamp(p, 7)
    if merged:
        p(f's_add_u32 s{s_t0}, s2, s{s_w}')
        p(f's_cmp_eq_u32 s{s_t0}, 0')
        p(f's_cbranch_scc0 {L("notag")}')
        p('s_memrealtime s[60:61]')
        p('s_waitcnt lgkmcnt(0)')
        p('s_or_b32 s60, s60, 1')
        p(f'v_mov_b32 v{v_t}, s60')
        p(f'v_mov_b32 v{v_t+1}, 0')
        p(f'global_store_dword v{v_t+1}, v{v_t}, s[100:101] sc1')
        p.label(L('notag'))
    for a in range(7): p.add(x_issue('x'))
    if merged:
        p('v_mov_b32 v27, 0')
        p.add([I('global_load_dword v26, v27, s[100:101] sc1', gives=['x'])])
    for (Sd, lo, hi, size) in ((S_W, 6, 7, 448 * 2688), (S_G, 24, 25, 448 * 3584), (S_U, 26, 27, 448 * 3584), (S_WS, 4, 5, k1.WS_SIZE)):
        p(f's_mov_b32 s{Sd}, s{lo}')
        p(f's_mov_b32 s{Sd+1}, s{hi}')
        p(f's_mov_b32 s{Sd+2}, {size}')
        p(f's_mov_b32 s{Sd+3}, 0x20000')
    if merged:
        p('s_load_dwordx2 s[4:5], s[0:1], 16')
        p('s_waitcnt lgkmcnt(0)')
        for wv, base, size in ((3, 28, 1792 * 896), (4, 4, 448 * 896)):
            sl = size // 256
            nl = (sl + 127) // 128
            p(f's_cmp_eq_u32 s{s_w}, {wv}')
            p(f's_cbranch_scc0 {L("wd%d" % wv)}')
            p(f's_mul_i32 s{s_t0}, s2, {sl}')
            p(f'v_min_u32 v{v_t}, {nl-1}, v{lane}')
            p(f'v_lshlrev_b32 v{v_t}, 7, v{v_t}')
            p(f'v_min_u32 v{v_t}, {sl-4}, v{v_t}')
            p(f'v_add_u32 v{v_t}, s{s_t0}, v{v_t}')
            p(f's_mov_b32 exec_lo, {((1 << min(nl,32)) - 1)}')
            p(f's_mov_b32 exec_hi, {((1 << max(nl-32,0)) - 1)}')
            p(f'global_load_dword v{249+wv}, v{v_t}, s[{base}:{base+1}]')
            p('s_mov_b64 exec, -1')
            p.label(L('wd%d' % wv))
    if 'nowarm' not in EXP:
        p(f'v_lshlrev_b32 v{v_t}, 7, v{lane}')
        for i, (Sd, size) in enumerate(((S_W, 448 * 2688), (S_G, 448 * 3584), (S_U, 448 * 3584))):
            sl = (size // 256 + 127) // 128 * 128
            p(f's_cmp_eq_u32 s{s_w}, {i}')
            p(f's_cbranch_scc0 {L("wu%d" % i)}')
            p(f's_mul_i32 s{s_t0}, s2, {sl}')
            p('s_mov_b32 exec_hi, 0x0000ffff' if sl > 4096 + 768 else 's_mov_b32 exec_hi, 0x000000ff')
            p(f'buffer_load_dword v{252+i}, v{v_t}, s[{Sd}:{Sd+3}], s{s_t0} offen')
            p('s_mov_b64 exec, -1')
            p.label(L('wu%d' % i))
    p(f's_cmp_eq_u32 s{s_w}, 7')
    p(f's_cbranch_scc0 {L("nocp")}')
    p(f's_lshr_b32 s{s_t0}, s2, 3')
    p(f's_lshl_b32 s{s_t0}, s{s_t0}, 11')
    p(f'v_lshlrev_b32 v{v_t}, 7, v{lane}')
    p(f'v_add_u32 v{v_t}, s{s_t0}, v{v_t}')
    p('s_mov_b32 exec_lo, 0xffff')
    p('s_mov_b32 exec_hi, 0')
    p(f'global_load_dword v255, v{v_t}, s[74:75]')
    p('s_mov_b64 exec, -1')
    p.label(L('nocp'))
    stamp(p, 3)
    p(f's_and_b32 s{s_r4}, s{s_w}, 3')
    p(f's_lshr_b32 s{s_ch}, s{s_w}, 2')
    p(f's_lshr_b32 s{s_p}, s{s_g}, 1')
    p(f's_and_b32 s{s_ty}, s{s_g}, 1')
    p(f's_mul_i32 s{s_t0}, s{s_p}, 7')
    p(f's_and_b32 s{s_t1}, s{s_p}, 1')
    p(f's_add_u32 s{s_t2}, s{s_t0}, s{s_t1}')
    p(f's_add_u32 s{s_t3}, s{s_t0}, 6')
    p(f's_cmp_eq_u32 s{s_t1}, 0')
    p(f's_cselect_b32 s{s_t3}, s{s_t3}, s{s_t0}')
    p(f's_mul_i32 s{s_q}, s{s_p}, 112')
    p(f's_cmp_eq_u32 s{s_ty}, 0')
    p(f's_cbranch_scc0 {L("tyB")}')
    p(f's_add_u32 s{s_q+1}, s{s_q}, 896')
    p(f's_lshl_b32 s{s_q+2}, s{s_t2}, 6')
    p(f's_mov_b32 s{s_q+3}, s{s_q+2}')
    p(f's_lshl_b32 s{s_q+4}, s{s_t3}, 6')
    p(f's_mov_b32 s{s_kind}, s{s_t3}')
    p(f's_branch {L("tyC")}')
    p.label(L('tyB'))
    p(f's_add_u32 s{s_q}, s{s_q}, 1792')
    p(f's_add_u32 s{s_t2}, s{s_t2}, 2')
    p(f's_lshl_b32 s{s_q+1}, s{s_t2}, 6')
    p(f's_mov_b32 s{s_q+2}, s{s_q+1}')
    p(f's_add_u32 s{s_q+3}, s{s_q+1}, 128')
    p(f's_mov_b32 s{s_q+4}, s{s_q+3}')
    p.label(L('tyC'))
    p(f's_lshl_b32 s{s_t0}, s{s_rb}, 2')
    p(f's_add_u32 s{s_t0}, s{s_t0}, s{s_r4}')
    p(f's_mul_i32 s{r.s_sth}, s{s_t0}, 112')
    p(f's_lshl_b32 s{r.s_sth2}, s{s_kind}, 1')
    p(f's_add_u32 s{r.s_sth2}, s{r.s_sth2}, s{s_ch}')
    p(f's_add_u32 s{r.s_sth2}, s{r.s_sth2}, s{r.s_sth}')
    p(f's_lshl_b32 s{r.s_sth2}, s{r.s_sth2}, 10')
    p(f's_add_u32 s{r.s_sth2}, s{r.s_sth2}, {WS_HF}')
    p(f's_lshl_b32 s{s_t1}, s{s_t2}, 1')
    p(f's_add_u32 s{r.s_sth}, s{r.s_sth}, s{s_t1}')
    p(f's_lshl_b32 s{s_t1}, s{s_ch}, 1')
    p(f's_add_u32 s{r.s_sth}, s{r.s_sth}, s{s_t1}')
    p(f's_lshl_b32 s{r.s_sth}, s{r.s_sth}, 10')
    p(f's_add_u32 s{r.s_sth}, s{r.s_sth}, {WS_HF}')
    p(f's_lshl_b32 s{s_t1}, s{s_p}, 1')
    p(f's_add_u32 s{s_t1}, s{s_t1}, s{s_ch}')
    p(f's_lshl_b32 s{s_t1}, s{s_t1}, 6')
    p(f's_add_u32 s{s_t1}, s{s_t1}, s{s_t0}')
    p(f's_lshl_b32 s{s_t3}, s{s_t1}, 12')
    p(f's_add_u32 s{r.s_stv}, s{s_t3}, {WS_KV + 2048}')
    p(f's_add_u32 s{r.s_stk}, s{s_t3}, {WS_KV}')
    p(f's_lshl_b32 s{r.s_stq}, s{s_t1}, 11')
    p(f's_add_u32 s{r.s_stq}, s{r.s_stq}, {WS_QF}')
    p(f's_mov_b32 s{r.s_scq}, {hexf(CQ)}')
    p(f's_mov_b32 s{r.s_padk}, 0')
    p(f's_mul_i32 s{r.s_w8q}, s{s_w}, {8*2688}')
    p(f's_mul_i32 s{r.s_w8g}, s{s_w}, {8*3584}')
    p(f's_lshl_b32 s{r.s_mo}, s{s_w}, 10')
    p(f's_cmp_lt_u32 s{s_w}, 6')
    p(f's_cselect_b32 s{r.s_d64q}, {64*2688}, 0')
    p(f's_cselect_b32 s{r.s_d64g}, {64*3584}, 0')
    p(f's_cselect_b32 s{s_t0}, 8192, 0')
    p(f's_add_u32 s{r.s_mo2}, s{r.s_mo}, s{s_t0}')
    v_p3, v_d3 = [36, 37, 38], 39
    p(f's_and_b32 s{s_t1}, s{s_w}, 1')
    p(f's_cmp_eq_u32 s{s_t1}, 0')
    p(f's_cselect_b32 s{r.S_R}, s{S_G}, s{S_U}')
    p(f's_cselect_b32 s{r.S_R+1}, s{S_G+1}, s{S_U+1}')
    p(f's_mov_b32 s{r.S_R+2}, {448*3584}')
    p(f's_mov_b32 s{r.S_R+3}, 0x20000')
    p(f's_lshr_b32 s{s_t2}, s{s_w}, 1')
    p(f's_mul_i32 s{r.s_w3}, s{s_t2}, {16*3584}')
    p(f's_mul_i32 s{r.s_mo3}, s{s_t1}, 7168')
    p(f's_lshl_b32 s{s_t2}, s{s_t2}, 10')
    p(f's_add_u32 s{r.s_mo3}, s{r.s_mo3}, s{s_t2}')
    p(f's_lshr_b32 s{s_t0}, s{s_t0}, 1')
    p(f's_add_u32 s{r.s_mo32}, s{r.s_mo3}, s{s_t0}')
    p(f'v_lshrrev_b32 v{v_t}, 2, v{lane}')
    p(f'v_mul_u32_u24 v{v_d3}, 3584, v{v_t}')
    p(f'v_and_b32 v{v_t}, 3, v{lane}')
    p(f'v_lshlrev_b32 v{v_t}, 4, v{v_t}')
    p(f's_lshl_b32 s{s_t1}, s{s_t1}, 5')
    p(f'v_xor_b32 v{v_t}, s{s_t1}, v{v_t}')
    p(f'v_add_u32 v{v_d3}, v{v_d3}, v{v_t}')
    p(f'v_bfe_u32 v{v_t}, v{lane}, 2, 2')
    p(f'v_lshlrev_b32 v{v_t+1}, 3, v{hh}')
    p(f'v_add_u32 v{v_t}, v{v_t}, v{v_t+1}')
    p(f'v_lshlrev_b32 v{v_p3[0]}, 6, v{v_t}')
    p(f'v_and_b32 v{v_t}, 3, v{lane}')
    p(f'v_lshlrev_b32 v{v_t}, 3, v{v_t}')
    p(f'v_add_u32 v{v_p3[0]}, v{v_p3[0]}, v{v_t}')
    p(f'v_bfe_u32 v{v_t}, v{lane}, 4, 1')
    p(f'v_mul_u32_u24 v{v_t+1}, 7168, v{v_t}')
    p(f'v_add_u32 v{v_p3[0]}, v{v_p3[0]}, v{v_t+1}')
    p(f'v_xor_b32 v{v_t}, s{s_ch}, v{v_t}')
    p(f'v_lshlrev_b32 v{v_t}, 5, v{v_t}')
    p(f'v_add_u32 v{v_p3[0]}, v{v_p3[0]}, v{v_t}')
    p(f'v_add_u32 v{v_p3[1]}, {4*SLOT}, v{v_p3[0]}')
    p(f'v_add_u32 v{v_p3[2]}, {8*SLOT}, v{v_p3[0]}')
    p(f'v_bfe_u32 v{v_t}, v{lane}, 4, 1')
    p(f'v_lshlrev_b32 v{v_t}, 2, v{v_t}')
    p(f'v_and_b32 v{v_t+1}, 7, v{lane}')
    p(f'v_xor_b32 v{v_t}, v{v_t}, v{v_t+1}')
    p(f'v_lshlrev_b32 v{v_t}, 4, v{v_t}')
    p(f'v_lshrrev_b32 v{v_t+1}, 3, v{lane}')
    p(f'v_mul_u32_u24 v{v_dq}, 2688, v{v_t+1}')
    p(f'v_add_u32 v{v_dq}, v{v_dq}, v{v_t}')
    p(f'v_mul_u32_u24 v{v_dg}, 3584, v{v_t+1}')
    p(f'v_add_u32 v{v_dg}, v{v_dg}, v{v_t}')
    p(f's_mov_b32 s{s_hi}, 0')
    p(f's_mov_b32 s{s_hi+1}, -1')
    p(f's_mov_b32 s{s_pad}, 0xf0000000')
    p(f's_mov_b32 s{s_pad+1}, 0xf0000000')
    def mkpat(dst, b0mul):
        p(f'v_bfe_u32 v{v_t}, v{lane}, 2, 2')
        p(f'v_lshlrev_b32 v{v_t+1}, 3, v{hh}')
        p(f'v_add_u32 v{v_t+1}, v{v_t+1}, v{v_t}')
        p(f'v_lshlrev_b32 v{dst[0]}, 7, v{v_t+1}')
        p(f'v_bfe_u32 v{v_t+1}, v{lane}, 4, 1')
        p(f'v_lshlrev_b32 v{v_t+1}, 5, v{v_t+1}')
        p(f'v_and_b32 v{v_t+5}, 3, v{lane}')
        p(f'v_lshlrev_b32 v{v_t+5}, 3, v{v_t+5}')
        p(f'v_add_u32 v{v_t+1}, v{v_t+1}, v{v_t+5}')
        p(f's_mul_i32 s{s_t0}, s{s_ch}, {b0mul}')
        p(f'v_add_u32 v{v_t+1}, s{s_t0}, v{v_t+1}')
        p(f'v_lshrrev_b32 v{v_t}, 1, v{v_t}')
        p(f'v_lshlrev_b32 v{v_t}, 6, v{v_t}')
        p(f'v_xor_b32 v{v_t+1}, v{v_t+1}, v{v_t}')
        p(f'v_add_u32 v{dst[0]}, v{dst[0]}, v{v_t+1}')
        p(f'v_add_u32 v{dst[1]}, {4*SLOT}, v{dst[0]}')
        p(f'v_add_u32 v{dst[2]}, {8*SLOT}, v{dst[0]}')
    mkpat(v_pq, 56)
    mkpat(v_pg, 64)
    p(f'v_cmp_eq_u32 vcc, 28, v{m}')
    p(f'v_mov_b32 v{v_padv}, 0')
    p(f'v_mov_b32 v{v_t}, 0x3f803f80')
    p(f'v_cndmask_b32 v{v_padv}, v{v_padv}, v{v_t}, vcc')
    p(f's_lshl_b32 s{s_t0}, s{s_r4}, 12')
    p(f'v_lshlrev_b32 v{v_t}, 7, v{m}')
    p(f'v_add_u32 v{v_t}, s{s_t0}, v{v_t}')
    p(f'v_bfe_u32 v{v_t+1}, v{m}, 1, 3')
    p(f'v_xor_b32 v{v_t+1}, v{v_t+1}, v{hh}')
    for u in range(4):
        p(f'v_xor_b32 v{v_t+5}, {2*u}, v{v_t+1}')
        p(f'v_lshlrev_b32 v{v_t+5}, 4, v{v_t+5}')
        p(f'v_add_u32 v{xr[u]}, v{v_t}, v{v_t+5}')
    if not merged:
        p(f's_cmp_eq_u32 s{s_w}, 5')
        p(f's_cbranch_scc0 {L("nzf")}')
        p(f's_lshl_b32 s{s_t0}, s2, 2')
        p(f's_add_u32 s{s_t0}, s{s_t0}, {WS_FLAG}')
        p(f'v_mov_b32 v{v_t}, 0')
        p(f'buffer_store_dword v{v_t}, v{v_t}, s[{S_WS}:{S_WS+3}], s{s_t0} offen')
        p.label(L('nzf'))

    def b_issue(G, kinds, g):
        if G > 19: return []
        if 'nodma' in EXP and G > 10: return []
        st, j = G // 4, G % 4
        kind = kinds[st]
        if kind == 3:
            base = slot_of(G) * SLOT
            o = []
            if j == 0:
                o += [I(f's_add_u32 s{r.s_so}, s{s_q+st}, s{r.s_w3}'), I(f's_add_u32 s{r.s_so2}, s{r.s_so}, s{r.s_d64g}')]
            o += [I(f's_add_u32 m0, s{r.s_mo3}, {base}'),
                  I(f's_add_u32 s{s_t3}, s{r.s_mo32}, {base}'),
                  I(f'buffer_load_dwordx4 v{v_d3}, s[{r.S_R}:{r.S_R+3}], s{r.s_so} offen lds', gives=[g]),
                  I(f's_mov_b32 m0, s{s_t3}'),
                  I(f's_add_u32 s{r.s_so}, s{r.s_so}, {112*3584}'),
                  I(f'buffer_load_dwordx4 v{v_d3}, s[{r.S_R}:{r.S_R+3}], s{r.s_so2} offen lds', gives=[g]),
                  I(f's_add_u32 s{r.s_so2}, s{r.s_so2}, {112*3584}')]
            return o
        srd = {0: S_W, 1: S_G, 2: S_U}[kind]
        vo = v_dq if kind == 0 else v_dg
        stride = 2688 if kind == 0 else 3584
        o = []
        if j == 0:
            o += [I(f's_add_u32 s{r.s_so}, s{s_q+st}, s{r.s_w8q if kind == 0 else r.s_w8g}'),
                  I(f's_add_u32 s{r.s_so2}, s{r.s_so}, s{r.s_d64q if kind == 0 else r.s_d64g}')]
        base = slot_of(G) * SLOT
        o += [I(f's_add_u32 m0, s{r.s_mo}, {base}'),
              I(f's_add_u32 s{s_t3}, s{r.s_mo2}, {base}'),
              I(f'buffer_load_dwordx4 v{vo}, s[{srd}:{srd+3}], s{r.s_so} offen lds', gives=[g]),
              I(f's_mov_b32 m0, s{s_t3}'),
              I(f's_add_u32 s{r.s_so}, s{r.s_so}, {112*stride}'),
              I(f'buffer_load_dwordx4 v{vo}, s[{srd}:{srd+3}], s{r.s_so2} offen lds', gives=[g]),
              I(f's_add_u32 s{r.s_so2}, s{r.s_so2}, {112*stride}')]
        return o

    def wread(T, kinds):
        st, t = T // 28, T % 28
        if st > 4: return []
        G = 4 * st + t // 7; ks = t % 7
        sl = slot_of(G)
        b = WF[T & 3]
        if kinds[st] == 3:
            off = (sl % 4) * SLOT + ks * 1024
            va = v_p3[sl // 4]
            return [I(f'ds_read_b64_tr_b16 v[{b}:{b+1}], v{va} offset:{off}'),
                    I(f'ds_read_b64_tr_b16 v[{b+2}:{b+3}], v{va} offset:{off+256}')]
        pat = v_pq if kinds[st] == 0 else v_pg
        off = (sl % 4) * SLOT + ks * 2048
        va = pat[sl // 4]
        return [I(f'ds_read_b64_tr_b16 v[{b}:{b+1}], v{va} offset:{off}'),
                I(f'ds_read_b64_tr_b16 v[{b+2}:{b+3}], v{va} offset:{off+512}')]
    def mf(T, w_is_a, dst):
        t = T % 28
        b = WF[T & 3]; x = XF + 4 * t
        d = dst if t == 27 else ACCA
        c = '0' if t == 0 else f'v[{ACCA}:{ACCA+15}]'
        if w_is_a: return I(f'v_mfma_f32_32x32x16_bf16 v[{d}:{d+15}], v[{b}:{b+3}], v[{x}:{x+3}], {c}')
        return I(f'v_mfma_f32_32x32x16_bf16 v[{d}:{d+15}], v[{x}:{x+3}], v[{b}:{b+3}], {c}')

    KX, KY = [0, 1, 2, 1, 2], [0, 0, 1, 2, 3]
    va, vb, ones = 244, 245, 246
    RAW = 40
    SS = [96, 100, 104, 108]
    p(f's_lshl_b32 s{s_t0}, s{s_w}, 11')
    p(f'v_add_u32 v{va}, s{s_t0}, v{v_lane16}')
    p(f'v_add_u32 v{vb}, 0x10000, v{va}')
    wa0, wa1 = 248, 249
    p(f'v_lshrrev_b32 v{v_t}, 4, v{lane}')
    p(f'v_and_b32 v{v_t+1}, 7, v{lane}')
    p(f'v_xor_b32 v{v_t}, v{v_t}, v{v_t+1}')
    p(f'v_lshlrev_b32 v{v_t}, 4, v{v_t}')
    p(f'v_lshrrev_b32 v{v_t+1}, 3, v{lane}')
    p(f'v_lshlrev_b32 v{v_t+1}, 7, v{v_t+1}')
    p(f'v_add_u32 v{v_t}, v{v_t}, v{v_t+1}')
    p(f'v_add_u32 v{wa0}, s{s_t0}, v{v_t}')
    p(f'v_xor_b32 v{wa1}, 64, v{wa0}')
    p(f'v_add_u32 v{wa1}, 1024, v{wa1}')
    p(f'v_mov_b32 v{ones}, 0x3f803f80')
    p(f'v_mov_b32 v{ones+1}, 0x3f803f80')
    for i, msk in enumerate((0x22222222, 0x44444444, 0x88888888)):
        p(f's_mov_b32 s{72+2*i if i == 0 else 74+2*i}, 0x{msk:08x}')
        p(f's_mov_b32 s{73+2*i if i == 0 else 75+2*i}, 0x{msk:08x}')
    MSK = [72, 76, 78]
    def addr(a, g): return (va if a < 4 else vb), ((a * 16384) & 0xffff) + g * 1024
    p.add([I('s_nop 0', needs=['x'])])
    if merged:
        p(f'v_readfirstlane_b32 s{r.s_tag}, v26')
        p(f's_cmp_lg_u32 s{r.s_tag}, 0')
        p(f's_cbranch_scc1 {L("taggot")}')
        p(f's_mov_b32 s{s_t0}, 0x100000')
        p.label(L('tagpoll'))
        p('global_load_dword v26, v27, s[100:101] sc1')
        p('s_waitcnt vmcnt(0)')
        p(f'v_readfirstlane_b32 s{r.s_tag}, v26')
        p(f's_cmp_lg_u32 s{r.s_tag}, 0')
        p(f's_cbranch_scc1 {L("taggot")}')
        p(f's_sub_u32 s{s_t0}, s{s_t0}, 1')
        p(f's_cmp_lg_u32 s{s_t0}, 0')
        p(f's_cbranch_scc1 {L("tagpoll")}')
        p.label(L('taggot'))
    stamp(p, 4)
    for a in range(7):
        for g in range(2):
            b, off = addr(a, g)
            rr = RAW + 4 * (g * 7 + a)
            p(f'ds_read_b128 v[{rr}:{rr+3}], v{b} offset:{off}')
    for G in range(3): p.add(b_issue(G, KX, 'g%d' % G))
    def m44(d, a, b, first):
        c = '0' if first else f'v[{d}:{d+3}]'
        return I(f'v_mfma_f32_4x4x4_16b_bf16 v[{d}:{d+3}], v[{a}:{a+1}], v[{b}:{b+1}], {c}')
    for a in range(7):
        for h in range(2):
            for g in range(2):
                rr = RAW + 4 * (g * 7 + a) + 2 * h
                p.add([m44(SS[g], rr, ones, a == 0 and h == 0), m44(SS[2 + g], rr, rr, a == 0 and h == 0)])
            g = h
            rr = RAW + 4 * (g * 7 + a); f = XF + 8 * (g * 7 + a)
            for i in range(4):
                p(f'v_lshlrev_b32 v{f+2*i}, 16, v{rr+i}')
                p(f'v_and_b32 v{f+2*i+1}, 0xffff0000, v{rr+i}')
    for k in range(4):
        for i in range(3):
            p(f'v_cndmask_b32 v{SS[k]}, v{SS[k]}, v{SS[k]+1+i}, s[{MSK[i]}:{MSK[i]+1}]')
    for ctrl in ('quad_perm:[1,0,3,2]', 'quad_perm:[2,3,0,1]', 'row_half_mirror'):
        for k in range(4):
            p(f'v_add_f32_dpp v{SS[k]}, v{SS[k]}, v{SS[k]} {ctrl} row_mask:0xf bank_mask:0xf')
    for g in range(2):
        sm, sq = SS[g], SS[2 + g]
        p(f'v_mul_f32 v{sm}, {hexf(1/448)}, v{sm}')
        p(f'v_mul_f32 v{sq}, {hexf(1/448)}, v{sq}')
        p(f'v_fma_f32 v{sq}, -v{sm}, v{sm}, v{sq}')
        p(f'v_max_f32 v{sq}, 0, v{sq}')
        p(f'v_add_f32 v{sq}, {hexf(1e-5)}, v{sq}')
        p(f'v_rsq_f32 v{sq}, v{sq}')
    for g in range(2):
        sm, sq = SS[g], SS[2 + g]
        p(f'v_mul_f32 v{sm}, v{sm}, v{sq}')
        p(f'v_sub_f32 v{sm}, 0, v{sm}')
    for a in range(7):
        for g in range(2):
            sm, sq = SS[g], SS[2 + g]
            rr = RAW + 4 * (g * 7 + a); f = XF + 8 * (g * 7 + a)
            for i in range(8): p(f'v_fma_f32 v{f+i}, v{f+i}, v{sq}, v{sm}')
            for i in range(4): p(f'v_cvt_pk_bf16_f32 v{rr+i}, v{f+2*i}, v{f+2*i+1}')
            if a == 4 and g == 0:
                p(f'v_add_u32 v{wa0}, 0x10000, v{wa0}')
                p(f'v_add_u32 v{wa1}, 0x10000, v{wa1}')
            p.add([I(f'ds_write_b128 v{(wa0, wa1)[g]}, v[{rr}:{rr+3}] offset:{(a * 16384) & 0xffff}', gives=['lds:xn'])])
    stamp(p, 1)

    def e_gu():
        body = []
        for qd in range(4):
            r0 = 4 * qd
            ee = [TP + i for i in range(4)]
            pp = [TP + 4 + i for i in range(4)]
            for i in range(4): body.append(I(f'v_mul_f32 v{ee[i]}, {hexf(-LOG2E)}, v{B1+r0+i}'))
            for i in range(4):
                body.append(I(f'v_exp_f32 v{ee[i]}, v{ee[i]}'))
                body.append(I(f'v_mul_f32 v{pp[i]}, v{B1+r0+i}, v{B2+r0+i}'))
            for i in range(4): body.append(I(f'v_add_f32 v{ee[i]}, 1.0, v{ee[i]}'))
            for i in range(4): body.append(I(f'v_rcp_f32 v{ee[i]}, v{ee[i]}'))
            for i in range(4): body.append(I(f'v_mul_f32 v{pp[i]}, v{pp[i]}, v{ee[i]}'))
            hp = TP + 8 + 2 * qd
            body.append(I(f'v_cvt_pk_bf16_f32 v{hp}, v{pp[0]}, v{pp[1]}'))
            body.append(I(f'v_cvt_pk_bf16_f32 v{hp+1}, v{pp[2]}, v{pp[3]}'))
            if qd & 1:
                body.append(I(f'buffer_store_dwordx4 v[{hp-2}:{hp+1}], v{v_lane16}, s[{S_WS}:{S_WS+3}], s{r.s_sth} offen offset:{(qd>>1)*1024}{SC}', gives=['st:h']))
        body.append(I(f's_add_u32 s{r.s_sth}, s{r.s_sth}, 4096'))
        return body
    def e_gu16(src):
        body = []
        for half in range(2):
            r0 = 4 * half
            ee = [TP + i for i in range(4)]
            pp = [TP + 4 + i for i in range(4)]
            for i in range(4): body.append(I(f'v_mul_f32 v{ee[i]}, {hexf(-LOG2E)}, v{src+r0+i}'))
            for i in range(4):
                body.append(I(f'v_exp_f32 v{ee[i]}, v{ee[i]}'))
                body.append(I(f'v_mul_f32 v{pp[i]}, v{src+r0+i}, v{src+8+r0+i}'))
            for i in range(4): body.append(I(f'v_add_f32 v{ee[i]}, 1.0, v{ee[i]}'))
            for i in range(4): body.append(I(f'v_rcp_f32 v{ee[i]}, v{ee[i]}'))
            for i in range(4): body.append(I(f'v_mul_f32 v{pp[i]}, v{pp[i]}, v{ee[i]}'))
            hp = TP + 8 + 2 * half
            body.append(I(f'v_cvt_pk_bf16_f32 v{hp}, v{pp[0]}, v{pp[1]}'))
            body.append(I(f'v_cvt_pk_bf16_f32 v{hp+1}, v{pp[2]}, v{pp[3]}'))
        body.append(I(f'buffer_store_dwordx4 v[{TP+8}:{TP+11}], v{v_lane16}, s[{S_WS}:{S_WS+3}], s{r.s_sth2} offen{SC}', gives=['st:h']))
        return body
    def e_qk():
        body = []
        O = TP + 16
        for q in range(16): body.append(I(f'v_mul_f32 v{TP+q}, s{r.s_scq}, v{B2+q}'))
        for d in range(8): body.append(I(f'v_cvt_pk_bf16_f32 v{O+d}, v{TP+2*d}, v{TP+2*d+1}'))
        body.append(I(f'v_mov_b32 v{TP}, s{r.s_padk}'))
        body.append(I(f'v_mov_b32 v{TP+1}, 0'))
        body.append(I(f'v_cndmask_b32 v{O+6}, v{O+6}, v{TP}, s[{s_hi}:{s_hi+1}]'))
        body.append(I(f'v_cndmask_b32 v{O+7}, v{O+7}, v{TP+1}, s[{s_hi}:{s_hi+1}]'))
        body.append(I(f'buffer_store_dwordx4 v[{O}:{O+3}], v{v_lane16}, s[{S_WS}:{S_WS+3}], s{r.s_stq} offen{SC}', gives=['st:qkv']))
        body.append(I(f'buffer_store_dwordx4 v[{O+4}:{O+7}], v{v_lane16}, s[{S_WS}:{S_WS+3}], s{r.s_stq} offen offset:1024{SC}', gives=['st:qkv']))
        body.append([I(f's_mov_b32 s{r.s_scq}, 1.0'), I(f's_mov_b32 s{r.s_padk}, 0x3f80'), I(f's_mov_b32 s{r.s_stq}, s{r.s_stk}')])
        return body
    def e_vv():
        O = TP + 16
        body = []
        for d in range(8): body.append(I(f'v_cvt_pk_bf16_f32 v{O+d}, v{B2+2*d}, v{B2+2*d+1}'))
        for d in range(8): body.append(I(f'v_cndmask_b32 v{O+d}, v{O+d}, v{v_padv}, s[{s_pad}:{s_pad+1}]'))
        body.append(I(f'buffer_store_dwordx4 v[{O}:{O+3}], v{v_lane16}, s[{S_WS}:{S_WS+3}], s{r.s_stv} offen{SC}', gives=['st:qkv']))
        body.append(I(f'buffer_store_dwordx4 v[{O+4}:{O+7}], v{v_lane16}, s[{S_WS}:{S_WS+3}], s{r.s_stv} offen offset:1024{SC}', gives=['st:qkv']))
        return body
    def spread(fill, items, st, en):
        n = en - st
        for k in range(n): fill[st + k] += items[len(items) * k // n: len(items) * (k + 1) // n]

    def stage(st, kinds, w_is_a, dst, epi, early=False, post_needs=()):
        fill = [[] for _ in range(28)]
        head = [[] for _ in range(28)]
        if st == 1: head[0] += b_issue(9, kinds, 'c') + b_issue(10, kinds, 'c')
        head[0] += b_issue(4 * st + 7, kinds, 'i0')
        head[7] += b_issue(4 * st + 8, kinds, 'i1')
        head[14] += b_issue(4 * st + 9, kinds, 'i2')
        head[21] += b_issue(4 * st + 10, kinds, 'i3')
        if 'noepi' in EXP: epi = None
        if epi is not None: spread(fill, epi, 1, 13 if early else 26)
        out = []
        for t in range(28):
            T = 28 * st + t
            out += wread(T + 3, kinds) + [mf(T, w_is_a, dst)] + flat(head[t]) + flat(fill[t])
        out.append(I('s_barrier', needs=['i0', 'i1'] + list(post_needs)))
        return out
    def xread(t0, t1, g):
        o = []
        for t in range(t0, t1):
            a, u = t >> 2, t & 3
            if t == 16:
                for uu in range(4): o.append(I(f'v_add_u32 v{xr[uu]}, 0x10000, v{xr[uu]}'))
            o.append(I(f'ds_read_b128 v[{XF+4*t}:{XF+4*t+3}], v{xr[u]} offset:{(a * 16384) & 0xffff}', gives=[g]))
        return o
    def stage0(kinds, w_is_a):
        o = []
        groups = [
            (['g0', 'lds:xn'], xread(0, 8, 'rd:x0'), []),
            (['g1', 'rd:x0'], xread(8, 16, 'rd:x1'), b_issue(3, kinds, 'g3') + b_issue(4, kinds, 'g4')),
            (['g2', 'rd:x1'], xread(16, 24, 'rd:x2'), b_issue(5, kinds, 'g5') + b_issue(6, kinds, 'g5')),
            (['g3', 'g4', 'rd:x2'], xread(24, 28, 'rd:x3'), b_issue(7, kinds, 'g7') + b_issue(8, kinds, 'g8')),
        ]
        for j, (needs, xr_, iss) in enumerate(groups):
            o.append(I('s_barrier', needs=needs))
            if k1.STAMP:
                idx = {0: 5, 1: 10, 2: 11, 3: 12}[j]
                o += [I('s_memtime s[94:95]'), I('s_waitcnt lgkmcnt(0)'), I(f's_mov_b32 s{80+idx}, s94')]
            o += xr_[:3]
            for k in range(3): o += wread(7 * j + k, kinds)
            o += xr_[3:]
            o += iss
            for k in range(7):
                T = 7 * j + k
                if k + 3 < 7 or j == 3: o += wread(T + 3, kinds)
                o.append(mf(T, w_is_a, B2))
        o.append(I('s_barrier', needs=['g8', 'rd:x3']))
        return o
    hook = getattr(r, 'hook', None)
    H = lambda pt: (hook(pt) if hook else [])

    def merge_fill(a, b):
        o = []; n = max(len(a), len(b))
        for k in range(n):
            o += a[len(a) * k // n: len(a) * (k + 1) // n] + b[len(b) * k // n: len(b) * (k + 1) // n]
        return o
    p(f's_cmp_eq_u32 s{s_ty}, 0')
    p(f's_cbranch_scc1 {L("seqA")}')
    p.add(stage0(KX, False)); stamp(p, 6)
    p.add(stage(1, KX, True, B1, e_vv(), early=True, post_needs=['st:qkv'] if merged else []))
    p.add(H('qkv'))
    p.add(stage(2, KX, True, B2, None))
    p.add(stage(3, KX, True, B1, e_gu()))
    p.add(stage(4, KX, True, B2, H('s4x') or None))
    stamp(p, 8)
    p.add(H('pre_fin'))
    p('s_nop 4')
    p.add(flat(e_gu()))
    p(f's_branch {L("fin")}')
    p.label(L('seqA'))
    p.add(stage0(KY, True)); stamp(p, 6)
    p.add(stage(1, KY, True, B2, e_qk(), early=True))
    p.add(stage(2, KY, True, B1, e_qk(), early=True, post_needs=['st:qkv'] if merged else []))
    p.add(H('qkv'))
    p.add(stage(3, KY, True, B2, None))
    p.add(stage(4, KY, True, B1, merge_fill(e_gu(), H('s4y'))))
    stamp(p, 8)
    p.add(H('pre_fin2'))
    p('s_nop 4')
    p.add(flat(e_gu16(B1)))
    p.label(L('fin'))
    stamp(p, 9)

def gen_k1(name):
    p = Prog()
    L = lambda s: name + '_' + s
    r = regmap()
    p.label(name)
    p('s_cmp_ge_u32 s2, 256')
    p(f's_cbranch_scc1 {L("end")}')
    stamp(p, 0)
    phase1(p, L, r, False)
    p('s_waitcnt vmcnt(0) lgkmcnt(0)')
    k1.stamp_store(p, r.S_WS, r.s_w, 0)
    p.label(L('end'))
    p('s_endpgm')
    desc = f"""
.amdhsa_kernel {name}
  .amdhsa_next_free_vgpr 256
  .amdhsa_next_free_sgpr 102
  .amdhsa_accum_offset 256
  .amdhsa_group_segment_fixed_size 0
  .amdhsa_kernarg_size 80
  .amdhsa_user_sgpr_count 2
  .amdhsa_user_sgpr_kernarg_segment_ptr 1
  .amdhsa_system_sgpr_workgroup_id_x 1
  .amdhsa_float_denorm_mode_32 3
.end_amdhsa_kernel
"""
    return p, desc
```

```python
from asmlib import *
import k1
from k1 import stamp, WS_QF, WS_KV, WS_HF, WS_OF, WS_FLAG, hexf, flat
WS_FL = (16 << 20) + 4096

KVS = 16384; KVN = 3
G0 = KVS * KVN
KPI = 8
GA = 2 * KPI * 1024
GS = GA + KPI * 2048
GN = 3
GFIRST = 4
NGS = 14
MARGIN = 64.0
L_Q = G0
T_OX = 0
T_WO = 105472
T_OF = 0
T_AX = 0

SCHEDS = {
 'a': dict(r0=0, r1=6, pvp=2, g00=10, pA0=14, sA0=18, g01=22, pA1=26, sA1=30, g10=34, pB0=38, sB0=42, g11=45, sB1=48),
 'b': dict(r0=8, r1=14, pvp=2, pA0=14, sA0=18, g00=22, pA1=26, sA1=30, g01=34, pB0=38, g10=41, sB0=44, g11=46, sB1=48),
 'c': dict(r0=5, r1=11, pvp=2, pA0=14, sA0=20, g00=24, pA1=27, sA1=31, g01=35, pB0=38, g10=41, sB0=44, g11=46, sB1=48),
 'd': dict(r0=10, r1=18, pvp=2, pA0=14, sA0=18, pA1=26, sA1=22, g00=30, g01=34, pB0=38, g10=41, sB0=44, g11=47, sB1=48),
}
SCHED = SCHEDS['b']
class R2: pass

class Ctx: pass

def make(L, S_WS, s_w, s_tag):
    SC = ' sc1'
    merged = True
    S_WD, S_WO, S_X, S_OUT = 8, 12, 96, 16
    s_hd, s_qb, s_tm, s_tn, s_gem = 31, 32, 33, 34, 35
    s_qp, s_kq, s_wn, s_k4 = 36, 37, 36, 37
    s_hi = 54
    s_t0, s_t1, s_t2, s_t3 = 58, 59, 60, 61
    s_kvg, s_kvm, s_gg, s_gm, s_gadv = 40, 41, 42, 43, 44
    s_soff, s_ost, s_flag, s_oo, s_i = 45, 46, 47, 48, 49
    s_wob, s_wom = 50, 51
    s_dsrd = 76
    s_qo = 53
    v_kv = 2
    v_h = [3, 4, 8]
    v_wv = [9, 10, 11]
    v_gd = [12, 13, 14, 15]
    v_bp, v_pw, v_xa = 16, 17, 18
    QA, QB = 20, 28
    KB, VB = [36, 44], [52, 60]
    SA, SB = [68, 84], [100, 116]
    PA, PB = 132, 140
    OA, OB = 148, 164
    ACC = [180, 196]
    HB = [[212, 216], [220, 224]]
    WB = [228, 232]
    XR = 236
    T = 240

    E = []
    def A(*txt): E.append([I(t) for t in txt])
    lane, m, hh = T, T + 4, T + 5
    A(f'v_and_b32 v{lane}, 63, v0', f's_and_b32 s{s_qp}, s{s_w}, 1', f's_lshr_b32 s{s_kq}, s{s_w}, 1')
    A(f's_and_b32 s{s_hd}, s2, 15', f's_lshr_b32 s{s_qb}, s2, 4', f's_lshr_b32 s{s_t0}, s2, 3', f's_mul_i32 s{s_t1}, s{s_t0}, 37',
      f's_lshr_b32 s{s_t1}, s{s_t1}, 8', f's_mul_i32 s{s_t2}, s{s_t1}, 7', f's_sub_u32 s{s_tn}, s{s_t0}, s{s_t2}')
    A(f's_and_b32 s{s_tm}, s2, 7', f's_lshl_b32 s{s_tm}, s{s_tm}, 2', f's_add_u32 s{s_tm}, s{s_tm}, s{s_t1}',
      's_cmp_lt_u32 s2, 224', f's_cselect_b32 s{s_gem}, 1, 0')
    A(f's_and_b32 s{s_t1}, s{s_hd}, 14', f's_mov_b32 s{s_t3}, s{s_t1}', f's_add_u32 s{s_t2}, s{s_t1}, 1',
      f'v_and_b32 v{T+1}, 15, v{lane}', f'v_lshlrev_b32 v{T+1}, 4, v{T+1}',
      f'v_add_u32 v{T+2}, s{s_t3}, v{T+1}', f'v_add_u32 v{T+3}, s{s_t2}, v{T+1}',
      f'v_cmp_gt_u32 vcc, 16, v{lane}', 's_nop 1', f'v_cndmask_b32 v{T+2}, v{T+3}, v{T+2}, vcc',
      f's_lshl_b32 s{s_t0}, s{s_qb}, 4', f's_add_u32 s{s_t0}, s{s_t0}, s{s_t1}', f'v_mov_b32 v{T+3}, s{s_t0}',
      f'v_cmp_gt_u32 vcc, 32, v{lane}', 's_nop 1', f'v_cndmask_b32 v{T+2}, v{T+3}, v{T+2}, vcc',
      f'v_lshlrev_b32 v{T+12}, 2, v{T+2}', f's_mov_b32 s{s_flag}, {WS_FL + 1*1024}')
    A(f's_lshl_b32 s{s_kvg}, s{s_hd}, 18', f's_lshl_b32 s{s_kvm}, s{s_w}, 11', f's_add_u32 s{s_kvg}, s{s_kvg}, s{s_kvm}',
      f's_add_u32 s{s_kvg}, s{s_kvg}, {WS_KV}')
    A(f's_lshl_b32 s{s_t1}, s{s_qb}, 2', f's_lshl_b32 s{s_t2}, s{s_qp}, 1', f's_add_u32 s{s_t1}, s{s_t1}, s{s_t2}',
      f's_lshr_b32 s{s_t2}, s{s_kq}, 1', f's_add_u32 s{s_t1}, s{s_t1}, s{s_t2}', f's_lshl_b32 s{s_oo}, s{s_t1}, 5',
      f's_lshl_b32 s{s_t2}, s{s_hd}, 1', f's_add_u32 s{s_oo}, s{s_oo}, s{s_t2}', f's_and_b32 s{s_t2}, s{s_kq}, 1',
      f's_add_u32 s{s_oo}, s{s_oo}, s{s_t2}', f's_lshl_b32 s{s_oo}, s{s_oo}, 10', f's_add_u32 s{s_oo}, s{s_oo}, {WS_OF}')
    for (Sd, lo, size) in ((S_WD, 28, 1792 * 896), (S_WO, 4, 448 * 896), (S_OUT, 38, 2048 * 896)):
        A(f's_mov_b32 s{Sd}, s{lo}', f's_mov_b32 s{Sd+1}, s{lo+1}', f's_mov_b32 s{Sd+2}, {size}', f's_mov_b32 s{Sd+3}, 0x20000')
    A(f's_lshl_b32 s{s_t0}, s{s_kq}, 12', f'v_add_u32 v{v_kv}, s{s_t0}, v1', f'v_and_b32 v{m}, 31, v0', f'v_bfe_u32 v{hh}, v0, 5, 1')
    A(f'v_lshrrev_b32 v{T+6}, 3, v{lane}', f'v_mul_u32_u24 v{T+6}, 896, v{T+6}', f'v_bfe_u32 v{T+7}, v{lane}, 4, 1')
    A(f'v_lshlrev_b32 v{T+7}, 2, v{T+7}', f'v_and_b32 v{T+8}, 7, v{lane}', f'v_xor_b32 v{T+7}, v{T+7}, v{T+8}')
    A(f'v_lshlrev_b32 v{T+7}, 4, v{T+7}', f'v_add_u32 v{v_bp}, v{T+6}, v{T+7}')
    a = [f's_cmp_lt_u32 s{s_w}, 4', f's_cbranch_scc0 {L("setB")}']
    a += [f'v_mov_b32 v{v_gd[q]}, v1' for q in range(4)]
    a += [f's_lshr_b32 s{s_t2}, s{s_w}, 1', f's_lshl_b32 s{s_t0}, s{s_tm}, 1', f's_add_u32 s{s_t0}, s{s_t0}, s{s_t2}',
          f's_mul_i32 s{s_gg}, s{s_t0}, {112*1024}', f's_and_b32 s{s_t3}, s{s_w}, 1', f's_lshl_b32 s{s_t3}, s{s_t3}, 12',
          f's_add_u32 s{s_gg}, s{s_gg}, s{s_t3}', f's_add_u32 s{s_gg}, s{s_gg}, {WS_HF}', f's_mov_b32 s{s_gadv}, {KPI*1024}',
          f's_lshl_b32 s{s_gm}, s{s_t2}, 13', f's_add_u32 s{s_gm}, s{s_gm}, s{s_t3}',
          f's_mov_b64 s[{s_dsrd}:{s_dsrd+1}], s[{S_WS}:{S_WS+1}]', f's_mov_b32 s{s_dsrd+2}, {k1.WS_SIZE}', f's_branch {L("setC")}',
          f'{L("setB")}:']
    a += [f'v_add_u32 v{v_gd[q]}, {q*(8*896-1024)}, v{v_bp}' for q in range(4)]
    a += [f's_sub_u32 s{s_t0}, s{s_w}, 4', f's_mul_i32 s{s_gg}, s{s_t0}, {32*896}', f's_lshl_b32 s{s_t1}, s{s_tn}, 7',
          f's_add_u32 s{s_gg}, s{s_gg}, s{s_t1}', f's_mov_b32 s{s_gadv}, {KPI*16*896}', f's_lshl_b32 s{s_gm}, s{s_t0}, 12',
          f's_add_u32 s{s_gm}, s{s_gm}, {GA}', f's_mov_b64 s[{s_dsrd}:{s_dsrd+1}], s[{S_WD}:{S_WD+1}]', f's_mov_b32 s{s_dsrd+2}, {1792*896}',
          f'{L("setC")}:', f's_mov_b32 s{s_dsrd+3}, 0x20000', f's_add_u32 s{s_gm}, s{s_gm}, {G0}']
    A(*a)
    A(f's_lshl_b32 s{s_t0}, s{s_tm}, 6', f's_lshr_b32 s{s_t1}, s{s_k4}, 1', f's_lshl_b32 s{s_t1}, s{s_t1}, 5', f's_add_u32 s{s_t0}, s{s_t0}, s{s_t1}',
      f's_mul_i32 s{s_t0}, s{s_t0}, 896', f's_lshl_b32 s{s_t1}, s{s_tn}, 7', f's_lshl_b32 s{s_t2}, s{s_wn}, 6',
      f's_add_u32 s{s_t0}, s{s_t0}, s{s_t1}', f's_add_u32 s{s_ost}, s{s_t0}, s{s_t2}', f's_and_b32 s{s_t0}, s{s_k4}, 1',
      f's_lshl_b32 s{s_t0}, s{s_t0}, 5', f's_add_u32 s{s_ost}, s{s_ost}, s{s_t0}')
    A(f'v_mul_u32_u24 v{v_xa}, 896, v{m}', f'v_lshlrev_b32 v{T+6}, 3, v{hh}', f'v_add_u32 v{v_xa}, v{v_xa}, v{T+6}')
    A(f'v_bfe_u32 v{T+6}, v{lane}, 2, 2', f'v_lshlrev_b32 v{T+7}, 2, v{hh}', f'v_add_u32 v{T+7}, v{T+7}, v{T+6}', f'v_lshlrev_b32 v{v_pw}, 7, v{T+7}')
    A(f'v_lshrrev_b32 v{T+6}, 1, v{T+6}', f'v_xor_b32 v{T+6}, s{s_wn}, v{T+6}', f'v_lshlrev_b32 v{T+6}, 6, v{T+6}', f'v_add_u32 v{v_pw}, v{v_pw}, v{T+6}')
    A(f'v_bfe_u32 v{T+6}, v{lane}, 4, 1', f'v_lshlrev_b32 v{T+6}, 5, v{T+6}', f'v_add_u32 v{v_pw}, v{v_pw}, v{T+6}')
    A(f'v_and_b32 v{T+6}, 3, v{lane}', f'v_lshlrev_b32 v{T+6}, 3, v{T+6}', f'v_add_u32 v{v_pw}, v{v_pw}, v{T+6}')
    for pos in range(GN):
        A(f's_lshl_b32 s{s_t0}, s{s_k4}, 11', f's_add_u32 s{s_t0}, s{s_t0}, {G0 + pos*GS}', f'v_add_u32 v{v_h[pos]}, s{s_t0}, v1',
          f's_lshl_b32 s{s_t1}, s{s_k4}, 12', f's_add_u32 s{s_t1}, s{s_t1}, {G0 + pos*GS + GA}', f'v_add_u32 v{v_wv[pos]}, s{s_t1}, v{v_pw}')
    A(f's_lshl_b32 s{s_wob}, s{s_tn}, 7', f's_mul_i32 s{s_t0}, s{s_w}, {8*896}', f's_add_u32 s{s_wob}, s{s_wob}, s{s_t0}', f's_lshl_b32 s{s_wom}, s{s_w}, 10')
    LATE = [I(t) for t in (f's_mov_b32 s{s_i}, 0x200000', f'{L("kvchk")}:',
      f'v_cmp_eq_u32 vcc, s{s_tag}, v{T+13}', 's_nop 0', 's_cmp_eq_u64 vcc, -1', f's_cbranch_scc1 {L("kvok")}',
      f'buffer_load_dword v{T+13}, v{T+12}, s[{S_WS}:{S_WS+3}], s{s_flag} offen sc1', 's_waitcnt vmcnt(0)',
      f's_sub_u32 s{s_i}, s{s_i}, 1', f's_cmp_lg_u32 s{s_i}, 0', f's_cbranch_scc1 {L("kvchk")}', f'{L("kvok")}:')]
    qa = [f's_lshl_b32 s{s_t0}, s{s_hd}, 6', f's_lshl_b32 s{s_t1}, s{s_qb}, 2', f's_add_u32 s{s_t0}, s{s_t0}, s{s_t1}',
          f's_lshl_b32 s{s_t0}, s{s_t0}, 11', f's_lshl_b32 s{s_t1}, s{s_w}, 10', f's_add_u32 s{s_t0}, s{s_t0}, s{s_t1}',
          f's_add_u32 s{s_qo}, s{s_t0}, {WS_QF}']
    A(*qa)
    E.insert(int(len(E) * 0.62), [I(f'buffer_load_dword v{T+13}, v{T+12}, s[{S_WS}:{S_WS+3}], s{s_flag} offen sc1')])
    QL = [I(f's_lshl_b32 s{s_t0}, s{s_w}, 10'), I(f's_add_u32 m0, s{s_t0}, {L_Q}'), I('s_nop 0'),
          I(f'buffer_load_dwordx4 v1, s[{S_WS}:{S_WS+3}], s{s_qo} offen sc1 lds', gives=['kv0'])]

    def kv_issue(slot, g=()):
        pos = slot % KVN
        return [[I(f's_add_u32 m0, s{s_kvm}, {pos*KVS}'),
                 I(f's_add_u32 s{s_soff}, s{s_kvg}, {slot*KVS}'),
                 I(f'buffer_load_dwordx4 v1, s[{S_WS}:{S_WS+3}], s{s_soff} offen{SC} lds', gives=g)],
                [I(f'buffer_load_dwordx4 v1, s[{S_WS}:{S_WS+3}], s{s_soff} offen offset:1024{SC} lds', gives=g)]]
    def g_issue(gs):
        gv = ['g%d' % gs]
        pos = gs % GN
        o = []
        for q in range(4):
            a = []
            if q == 0: a += [I(f's_add_u32 m0, s{s_gm}, {pos*GS}'), I('s_nop 0')]
            sc = SC
            a.append(I(f'buffer_load_dwordx4 v{v_gd[q]}, s[{s_dsrd}:{s_dsrd+3}], s{s_gg} offen offset:{q*1024}{sc} lds', gives=gv))
            if q == 3: a.append(I(f's_add_u32 s{s_gg}, s{s_gg}, s{s_gadv}'))
            o.append(a)
        return o
    st7 = [I('s_memtime s[94:95]'), I('s_waitcnt lgkmcnt(0)'), I('s_mov_b32 s87, s94')] if k1.STAMP else []
    first_kv = LATE + st7 + flat(kv_issue(0, ['kv0'])) + QL
    second_kv = flat(kv_issue(1, ['kv1']))
    return E, first_kv, locals()

def phase2(p, L, S_WS, s_w, s_tag, C):
    globals_ = C
    for k in ('SC', 'merged', 'S_WD', 'S_WO', 'S_X', 'S_OUT', 's_hd', 's_qb', 's_tm', 's_tn', 's_gem', 's_qp', 's_kq', 's_wn', 's_k4', 's_hi',
              's_t0', 's_t1', 's_t2', 's_t3', 's_kvg', 's_kvm', 's_gg', 's_gm', 's_gadv', 's_soff', 's_ost', 's_flag', 's_oo', 's_i', 's_wob', 's_wom',
              's_dsrd', 'v_kv', 'v_h', 'v_wv', 'v_gd', 'v_bp', 'v_pw', 'v_xa', 'QA', 'QB', 'KB', 'VB', 'SA', 'SB', 'PA', 'PB', 'OA', 'OB', 'ACC',
              'HB', 'WB', 'XR', 'T', 'kv_issue', 'g_issue'):
        pass
    (SC, merged, S_WD, S_WO, S_X, S_OUT, s_hd, s_qb, s_tm, s_tn, s_gem, s_qp, s_kq, s_wn, s_k4, s_hi, s_t0, s_t1, s_t2, s_t3, s_kvg, s_kvm,
     s_gg, s_gm, s_gadv, s_soff, s_ost, s_flag, s_oo, s_i, s_wob, s_wom, s_dsrd, v_kv, v_h, v_wv, v_gd, v_bp, v_pw, v_xa, QA, QB, KB, VB,
     SA, SB, PA, PB, OA, OB, ACC, HB, WB, XR, T, kv_issue, g_issue) = [C[k] for k in (
     'SC', 'merged', 'S_WD', 'S_WO', 'S_X', 'S_OUT', 's_hd', 's_qb', 's_tm', 's_tn', 's_gem', 's_qp', 's_kq', 's_wn', 's_k4', 's_hi',
     's_t0', 's_t1', 's_t2', 's_t3', 's_kvg', 's_kvm', 's_gg', 's_gm', 's_gadv', 's_soff', 's_ost', 's_flag', 's_oo', 's_i', 's_wob', 's_wom',
     's_dsrd', 'v_kv', 'v_h', 'v_wv', 'v_gd', 'v_bp', 'v_pw', 'v_xa', 'QA', 'QB', 'KB', 'VB', 'SA', 'SB', 'PA', 'PB', 'OA', 'OB', 'ACC',
     'HB', 'WB', 'XR', 'T', 'kv_issue', 'g_issue')]
    p.add(C['second_kv'])
    stamp(p, 1)
    mm = lambda d, a, b, c: I(f'v_mfma_f32_32x32x16_bf16 v[{d}:{d+15}], v[{a}:{a+3}], v[{b}:{b+3}], {c}')
    def rdK(buf, pos, g=()):
        return [I(f'ds_read_b128 v[{buf}:{buf+3}], v{v_kv} offset:{pos*KVS}', gives=g),
                I(f'ds_read_b128 v[{buf+4}:{buf+7}], v{v_kv} offset:{pos*KVS+1024}', gives=g)]
    def rdV(buf, pos, g=()):
        return [I(f'ds_read_b128 v[{buf}:{buf+3}], v{v_kv} offset:{pos*KVS+2048}', gives=g),
                I(f'ds_read_b128 v[{buf+4}:{buf+7}], v{v_kv} offset:{pos*KVS+3072}', gives=g)]
    p.add([I('s_barrier', needs=['kv0'])])
    stamp(p, 2)
    ab0 = getattr(phase2, 'after_beta0', None)
    p(f's_lshl_b32 s{s_t0}, s{s_qp}, 12')
    p(f'v_add_u32 v{T+1}, s{s_t0}, v1')
    for i in range(4):
        p.add([I(f'ds_read_b128 v[{QA+4*i}:{QA+4*i+3}], v{T+1} offset:{L_Q + i*1024}', gives=['rd:kv'])])
    KT = HB[0][0]
    p(f'ds_read_b128 v[{KT}:{KT+3}], v1')
    p(f'ds_read_b128 v[{KT+4}:{KT+7}], v1 offset:1024')
    p.add(rdK(KB[0], 0) + rdV(VB[0], 0, ['rd:kv']))
    p.add(flat(kv_issue(2, ['kv2'])))
    def sS(dst, kb, Q, part):
        return mm(dst, kb + 4 * part, Q + 4 * part, '0' if part == 0 else f'v[{dst}:{dst+15}]')
    for (Sx, Q) in ((SA[1], QA), (SB[1], QB)):
        p.add([sS(Sx, KT, Q, 0), sS(Sx, KT, Q, 1)])
    for (s0, Q, tt) in ((SA[1], QA, T), (SB[1], QB, T + 4)):
        p(f'v_max3_f32 v{tt}, v{s0}, v{s0+1}, v{s0+2}')
        p(f'v_max3_f32 v{tt+1}, v{s0+3}, v{s0+4}, v{s0+5}')
        p(f'v_max3_f32 v{tt+2}, v{s0+6}, v{s0+7}, v{s0+8}')
        p(f'v_max3_f32 v{tt+3}, v{s0+9}, v{s0+10}, v{s0+11}')
        p(f'v_max3_f32 v{tt}, v{tt}, v{s0+12}, v{s0+13}')
        p(f'v_max3_f32 v{tt+1}, v{tt+1}, v{s0+14}, v{s0+15}')
        p(f'v_max3_f32 v{tt}, v{tt}, v{tt+1}, v{tt+2}')
        p(f'v_max_f32 v{tt}, v{tt}, v{tt+3}')
    for (Q, tt) in ((QA, T), (QB, T + 4)):
        p(f'v_mov_b32 v{tt+1}, v{tt}')
        p(f'v_permlane32_swap_b32 v{tt}, v{tt+1}')
        p(f'v_max_f32 v{tt}, v{tt}, v{tt+1}')
        p(f'v_add_f32 v{tt}, {hexf(MARGIN)}, v{tt}')
        p(f'v_sub_f32 v{tt}, 0, v{tt}')
        p(f'v_mov_b32 v{tt+1}, 0')
        p(f'v_cvt_pk_bf16_f32 v{tt}, v{tt}, v{tt+1}')
        p(f'v_cndmask_b32 v{Q+6}, v{Q+6}, v{tt}, s[{s_hi}:{s_hi+1}]')
    for (Sx, Q) in ((SA[0], QA), (SB[0], QB)):
        p.add([sS(Sx, KB[0], Q, 0), sS(Sx, KB[0], Q, 1)])
    p.add([I('s_barrier', needs=['st:h'])])
    if ab0: p.add(ab0())
    p('s_nop 8')
    stamp(p, 3)

    def g_reads(gs, q):
        pos = gs % GN
        wb = WB[q]
        return [I(f'ds_read_b64_tr_b16 v[{wb}:{wb+1}], v{v_wv[pos]} offset:{q*2048}', gives=['rd:g']),
                I(f'ds_read_b64_tr_b16 v[{wb+2}:{wb+3}], v{v_wv[pos]} offset:{q*2048+1024}', gives=['rd:g']),
                I(f'ds_read_b128 v[{HB[q][0]}:{HB[q][0]+3}], v{v_h[pos]} offset:{q*1024}', gives=['rd:g']),
                I(f'ds_read_b128 v[{HB[q][1]}:{HB[q][1]+3}], v{v_h[pos]} offset:{q*1024+8192}', gives=['rd:g'])]
    def g_mfma(q, rbk, first=False): return mm(ACC[rbk], WB[q], HB[q][rbk], '0' if first else f'v[{ACC[rbk]}:{ACC[rbk]+15}]')

    def period(n, gem):
        i0, i1 = n & 1, (n + 1) & 1
        last = (n == 15)
        def grp(S, P, g):
            c = S[i0]
            return [I(f'v_exp_f32 v{c+4*g+k}, v{c+4*g+k}') for k in range(4)] + \
                   [I(f'v_cvt_pk_bf16_f32 v{P+2*g}, v{c+4*g}, v{c+4*g+1}'), I(f'v_cvt_pk_bf16_f32 v{P+2*g+1}, v{c+4*g+2}, v{c+4*g+3}')]
        pv = lambda O, P, part: mm(O, VB[i0] + 4 * part, P + 4 * part, '0' if (n == 0 and part == 0) else f'v[{O}:{O+15}]')
        pvp = mm(OB, VB[i1] + 4, PB + 4, f'v[{OB}:{OB+15}]')
        pos = (n + 1) % KVN
        rk = [] if last else rdK(KB[i1], pos, ['rd:kv'])
        rv = [] if last else rdV(VB[i1], pos, ['rd:kv'])
        beta = n + 1
        gs = beta - GFIRST
        do_g = gem and 0 <= gs < NGS
        if 'nogc' in k1.EXP: do_g = False
        kvi = kv_issue(beta + 2, ['kv%d' % (beta + 2)]) if beta + 2 <= 15 else [[], []]
        gi_slot = beta + 2 - GFIRST
        gi = g_issue(gi_slot) if (gem and 0 <= gi_slot < NGS) else [[], [], [], []]
        if 'nogd' in k1.EXP: gi = [[], [], [], []]
        if 'nokv' in k1.EXP: kvi = [[], []]
        wo = wo_issue(beta) if gem else [[]] * 8
        gr0 = g_reads(gs, 0) if do_g else []
        gr1 = g_reads(gs, 1) if do_g else []
        gm = lambda q, rb: [g_mfma(q, rb, gs == 0 and q == 0)] if do_g else []
        S_ = lambda S, Q, part: [] if last else [sS(S[i1], KB[i1], Q, part)]
        valu = []
        for g in range(4): valu += grp(SA, PA, g)
        for g in range(4): valu += grp(SB, PB, g)
        ins = {k: [] for k in range(49)}
        sched = SCHED
        for e in k1.EXP:
            if e.startswith('sch'): sched = SCHEDS[e[3:]]
        ins[0] += rk
        ins[sched['r0']] += gr0
        ins[sched['pvp']] += ([pvp] if n > 0 else []) + rv
        ins[sched['g00']] += gm(0, 0)
        ins[sched['pA0']] += [pv(OA, PA, 0)]
        ins[sched['sA0']] += S_(SA, QA, 0)
        ins[sched['g01']] += gm(0, 1)
        ins[sched['pA1']] += [pv(OA, PA, 1)]
        ins[sched['sA1']] += S_(SA, QA, 1)
        ins[sched['g10']] += gm(1, 0)
        ins[sched['pB0']] += [pv(OB, PB, 0)]
        ins[sched['sB0']] += S_(SB, QB, 0)
        ins[sched['g11']] += gm(1, 1)
        ins[sched['sB1']] += S_(SB, QB, 1)
        ins[sched['r1']] += gr1
        mem = [kvi[0], kvi[1], gi[0], gi[1], gi[2], gi[3]] + wo[:6]
        mem = [a for a in mem if a]
        if gem and gi_slot == 0:
            issue, check = phase2.h_poll()
            ins[0] = issue + ins[0]
            for k, a in enumerate([kvi[0], kvi[1]]): ins[4 + 4 * k] += flat(a)
            ins[28] += check
            for k, a in enumerate(gi): ins[30 + 4 * k] += flat(a)
            mem = []
        for k, a in enumerate(mem):
            ins[4 + 4 * k if len(mem) <= 10 else 3 + 3 * k] += flat(a)
        if 'tog' in k1.EXP:
            u = '%d%d' % (n, gem)
            ins[0] = [I(f's_cmp_lt_u32 s{s_w}, 4'), I(f's_cbranch_scc1 {L("tg0_" + u)}'), I('s_setprio 2'), I(f'{L("tg0_" + u)}:')] + ins[0]
            ins[28] = [I(f's_cmp_lt_u32 s{s_w}, 4'), I(f's_cbranch_scc1 {L("tg1_" + u)}'), I('s_setprio 0'), I(f'{L("tg1_" + u)}:')] + ins[28]
        if 'mprio' in k1.EXP:
            for k in list(ins.keys()):
                nw = []
                for x in ins[k]:
                    if isinstance(x, Ins) and x.kind == 'mfma': nw += [I('s_setprio 3'), x, I('s_setprio 0')]
                    else: nw.append(x)
                ins[k] = nw
        o = []
        for k in range(48):
            o += ins[k] + [valu[k]]
        o += ins[48]
        if last: o += [mm(OB, VB[i0] + 4, PB + 4, f'v[{OB}:{OB+15}]')]
        return o

    def wo_ld(q0):
        return [I(f's_add_u32 m0, s{s_wom}, {T_WO + q0*1024}'),
                I(f's_add_u32 s{s_t1}, s{s_wob}, {q0*8*896}'),
                I(f'buffer_load_dwordx4 v{v_bp}, s[{S_WO}:{S_WO+3}], s{s_t1} offen lds')]
    def wo_issue(beta):
        if beta == 16: return [wo_ld(9 + 8 * k) for k in range(6)] + [[], []]
        return [[]] * 8

    if 'tog' in k1.EXP:
        p(f's_cmp_lt_u32 s{s_w}, 4')
        p(f's_cbranch_scc0 {L("np2")}')
        p('s_setprio 1')
        p.label(L('np2'))
    if 'prio1' in k1.EXP:
        p(f's_cmp_lt_u32 s{s_w}, 4')
        p(f's_cbranch_scc1 {L("np1")}')
        p('s_setprio 1')
        p.label(L('np1'))
    for gem in (1, 0):
        if gem:
            p(f's_cmp_eq_u32 s{s_gem}, 0')
            p(f's_cbranch_scc1 {L("loop_n")}')
            for i in range(2):
                p(f'buffer_load_dwordx2 v[{XR+2*i}:{XR+2*i+1}], v{v_xa}, s[{S_X}:{S_X+3}], s{s_ost} offen offset:{16*i}')
        else:
            p.label(L('loop_n'))
        for n in range(16):
            beta = n + 1
            if n < 15 or gem:
                needs = ['rd:kv', 'rd:g']
                if beta <= 15: needs.append('kv%d' % beta)
                if gem and 0 <= beta - GFIRST < NGS: needs.append('g%d' % (beta - GFIRST))
                p.add([I('s_barrier', needs=needs)])
            p.add(period(n, gem))
        stamp(p, 4)
        if gem: p(f's_branch {L("tail")}')
    p.label(L('tail'))
    p.add([I('s_barrier', needs=['rd:g', 'rd:kv'])])
    p(f's_lshl_b32 s{s_t0}, s{s_qp}, 2')
    p(f's_add_u32 s{s_t0}, s{s_t0}, s{s_kq}')
    p(f's_lshl_b32 s{s_t0}, s{s_t0}, 13')
    p(f'v_add_u32 v{T}, s{s_t0}, v1')
    for u, O in enumerate((OA, OB)):
        for i in range(4):
            p.add([I(f'ds_write_b128 v{T}, v[{O+4*i}:{O+4*i+3}] offset:{T_OX + u*4096 + i*1024}', gives=['lds:ox'])])
    p(f's_lshl_b32 s{s_t0}, s{s_qp}, 15')
    p(f's_lshr_b32 s{s_t1}, s{s_kq}, 1')
    p(f's_lshl_b32 s{s_t1}, s{s_t1}, 12')
    p(f's_add_u32 s{s_t0}, s{s_t0}, s{s_t1}')
    p(f's_and_b32 s{s_t2}, s{s_kq}, 1')
    p(f's_lshl_b32 s{s_t3}, s{s_t2}, 11')
    p(f's_add_u32 s{s_t3}, s{s_t3}, s{s_t0}')
    p(f'v_add_u32 v{T+1}, s{s_t3}, v1')
    p(f'v_or_b32 v{T+2}, 512, v1')
    p(f'v_add_u32 v{T+2}, s{s_t0}, v{T+2}')
    p.add([I('s_barrier', needs=['lds:ox', 'g13'])])
    p(f's_cmp_eq_u32 s{s_gem}, 0')
    p(f's_cbranch_scc1 {L("nog13")}')
    p.add(g_reads(13, 0) + g_reads(13, 1))
    p.label(L('nog13'))
    X = SA[0]
    for k in range(4):
        p(f'ds_read_b128 v[{X+8*k}:{X+8*k+3}], v{T+1} offset:{T_OX + k*8192}')
        p(f'ds_read_b128 v[{X+8*k+4}:{X+8*k+7}], v{T+1} offset:{T_OX + k*8192 + 1024}')
        p(f'ds_read_b32 v{T+4+k}, v{T+2} offset:{T_OX + k*8192 + 3072}')
    for q in range(8):
        p(f'v_add_f32 v{X+q}, v{X+q}, v{X+8+q}')
        p(f'v_add_f32 v{X+16+q}, v{X+16+q}, v{X+24+q}')
    p(f'v_add_f32 v{T+4}, v{T+4}, v{T+5}')
    p(f'v_add_f32 v{T+6}, v{T+6}, v{T+7}')
    for q in range(8): p(f'v_add_f32 v{X+q}, v{X+q}, v{X+16+q}')
    p(f'v_add_f32 v{T+4}, v{T+4}, v{T+6}')
    p(f's_cmp_eq_u32 s{s_gem}, 0')
    p(f's_cbranch_scc1 {L("nog13b")}')
    p.add([g_mfma(0, 0), g_mfma(0, 1), g_mfma(1, 0), g_mfma(1, 1)])
    p.label(L('nog13b'))
    stamp(p, 5)
    p(f'v_mul_f32 v{T+5}, 0, v{X}')
    for q in range(1, 8): p(f'v_fma_f32 v{T+5}, v{X+q}, 0, v{T+5}')
    p(f'v_add_f32 v{T+5}, v{T+5}, v{T+4}')
    p(f'v_mov_b32 v{T+6}, {hexf(2.0**-80)}')
    p(f'v_mov_b32 v{T+7}, 0x7f800000')
    p(f'v_cmp_ge_f32 s[{s_t0}:{s_t0+1}], v{T+5}, v{T+6}')
    p(f'v_cmp_lt_f32 vcc, v{T+5}, v{T+7}')
    p(f's_and_b64 vcc, vcc, s[{s_t0}:{s_t0+1}]')
    p(f's_cmp_eq_u64 vcc, -1')
    p(f's_cbranch_scc0 {L("slow")}')
    p.label(L('astore'))
    p(f'v_rcp_f32 v{T+5}, v{T+4}')
    for q in range(8): p(f'v_mul_f32 v{X+q}, v{X+q}, v{T+5}')
    for d in range(4): p(f'v_cvt_pk_bf16_f32 v{PA+d}, v{X+2*d}, v{X+2*d+1}')
    p(f's_and_b32 s{s_t2}, s{s_kq}, 1')
    p(f's_cmp_eq_u32 s{s_t2}, 0')
    p(f's_cselect_b32 s{s_t1}, 0, -1')
    p(f's_mov_b32 s{s_t0}, 0')
    p(f'v_mov_b32 v{T}, 0')
    p(f'v_cndmask_b32 v{PA+2}, v{PA+2}, v{T}, s[{s_t0}:{s_t0+1}]')
    p(f'v_cndmask_b32 v{PA+3}, v{PA+3}, v{T}, s[{s_t0}:{s_t0+1}]')
    p(f'buffer_store_dwordx4 v[{PA}:{PA+3}], v1, s[{S_WS}:{S_WS+3}], s{s_oo} offen sc1')
    p('s_waitcnt vmcnt(0)')
    stamp(p, 6)
    p.add([I('s_barrier', needs=['rd:g'])])
    p(f's_cmp_eq_u32 s{s_gem}, 0')
    p(f's_cbranch_scc1 {L("nowo2")}')
    p.add(wo_ld(0))
    p(f's_cmp_eq_u32 s{s_w}, 0')
    p(f's_cbranch_scc0 {L("nowo2")}')
    p.add(wo_ld(8))
    p.label(L('nowo2'))
    p(f's_cmp_eq_u32 s{s_w}, 0')
    p(f's_cbranch_scc0 {L("noflag")}')
    if merged:
        p(f's_lshl_b32 s{s_t2}, s{s_qb}, 4')
        p(f's_add_u32 s{s_t2}, s{s_t2}, s{s_hd}')
        p(f's_lshl_b32 s{s_t2}, s{s_t2}, 2')
        p(f's_add_u32 s{s_t2}, s{s_t2}, {WS_FL + 3*1024}')
        p(f'v_mov_b32 v{T+1}, s{s_tag}')
    else:
        p(f's_lshl_b32 s{s_t2}, s2, 2')
        p(f's_add_u32 s{s_t2}, s{s_t2}, {WS_FLAG}')
        p(f'v_mov_b32 v{T+1}, 1')
    p(f'v_mov_b32 v{T}, 0')
    p(f'buffer_store_dword v{T+1}, v{T}, s[{S_WS}:{S_WS+3}], s{s_t2} offen sc1')
    p.label(L('noflag'))
    p(f's_cmp_eq_u32 s{s_gem}, 0')
    p(f's_cbranch_scc1 {L("fin")}')
    p(f's_lshr_b32 s{s_t0}, s{s_tm}, 1')
    p(f's_lshl_b32 s{s_t0}, s{s_t0}, 6')
    p(f's_add_u32 s{s_flag}, s{s_t0}, {(WS_FL + 3*1024) if merged else WS_FLAG}')
    p(f'v_and_b32 v{T}, 15, v0')
    p(f'v_lshlrev_b32 v{T}, 2, v{T}')
    p(f's_mov_b32 s{s_i}, 0x200000')
    p.label(L('poll'))
    p(f'buffer_load_dword v{T+1}, v{T}, s[{S_WS}:{S_WS+3}], s{s_flag} offen sc1')
    p('s_waitcnt vmcnt(0)')
    p(f'v_cmp_eq_u32 vcc, {"s%d" % s_tag if merged else "1"}, v{T+1}')
    p('s_cmp_eq_u64 vcc, -1')
    p(f's_cbranch_scc1 {L("polled")}')
    p(f's_sub_u32 s{s_i}, s{s_i}, 1')
    p(f's_cmp_lg_u32 s{s_i}, 0')
    p(f's_cbranch_scc1 {L("poll")}')
    p.label(L('polled'))
    stamp(p, 8)
    p(f's_lshl_b32 s{s_t0}, s{s_tm}, 16')
    p(f's_lshl_b32 s{s_t1}, s{s_w}, 13')
    p(f's_add_u32 s{s_t0}, s{s_t0}, s{s_t1}')
    p(f's_add_u32 s{s_t0}, s{s_t0}, {WS_OF}')
    p(f's_add_u32 m0, s{s_t1}, {T_OF}')
    for q in range(8):
        if q == 4:
            p('s_addk_i32 m0, 4096')
            p(f's_add_u32 s{s_t0}, s{s_t0}, 4096')
        p(f'buffer_load_dwordx4 v1, s[{S_WS}:{S_WS+3}], s{s_t0} offen offset:{(q&3)*1024} sc1 lds')
    p(f's_lshl_b32 s{s_t0}, s{s_k4}, 13')
    p(f'v_add_u32 v{v_h[0]}, s{s_t0}, v1')
    p(f's_mul_i32 s{s_t1}, s{s_k4}, {112*128}')
    p(f's_add_u32 s{s_t1}, s{s_t1}, {T_WO}')
    p(f'v_add_u32 v{v_wv[0]}, s{s_t1}, v{v_pw}')
    p('s_waitcnt vmcnt(0)')
    p('s_barrier')
    stamp(p, 7)
    def o_reads(q):
        row = 28 * (q >> 1) + 16 * (q & 1)
        wb = WB[q & 1]; hb = HB[q & 1]
        return [I(f'ds_read_b64_tr_b16 v[{wb}:{wb+1}], v{v_wv[0]} offset:{row*128}', gives=['rd:o']),
                I(f'ds_read_b64_tr_b16 v[{wb+2}:{wb+3}], v{v_wv[0]} offset:{row*128+1024}', gives=['rd:o']),
                I(f'ds_read_b128 v[{hb[0]}:{hb[0]+3}], v{v_h[0]} offset:{T_OF + q*1024}', gives=['rd:o']),
                I(f'ds_read_b128 v[{hb[1]}:{hb[1]+3}], v{v_h[0]} offset:{T_OF + 32768 + q*1024}', gives=['rd:o'])]
    p.add(o_reads(0) + o_reads(1))
    for q in range(8):
        p.add([g_mfma(q & 1, 0), g_mfma(q & 1, 1)])
        if q + 2 < 8: p.add(o_reads(q + 2))
    stamp(p, 9)
    p.add([I('s_barrier', needs=['rd:o'])])
    p(f's_lshl_b32 s{s_t0}, s{s_wn}, 2')
    p(f's_add_u32 s{s_t0}, s{s_t0}, s{s_k4}')
    p(f's_lshl_b32 s{s_t0}, s{s_t0}, 13')
    p(f'v_add_u32 v{T}, s{s_t0}, v1')
    for rbk in range(2):
        for i in range(4):
            p.add([I(f'ds_write_b128 v{T}, v[{ACC[rbk]+4*i}:{ACC[rbk]+4*i+3}] offset:{T_AX + rbk*4096 + i*1024}', gives=['lds:ax'])])
    p(f's_lshl_b32 s{s_t0}, s{s_wn}, 15')
    p(f's_lshr_b32 s{s_t1}, s{s_k4}, 1')
    p(f's_lshl_b32 s{s_t1}, s{s_t1}, 12')
    p(f's_add_u32 s{s_t0}, s{s_t0}, s{s_t1}')
    p(f's_and_b32 s{s_t2}, s{s_k4}, 1')
    p(f's_lshl_b32 s{s_t2}, s{s_t2}, 11')
    p(f's_add_u32 s{s_t0}, s{s_t0}, s{s_t2}')
    p(f'v_add_u32 v{T+1}, s{s_t0}, v1')
    p.add([I('s_barrier', needs=['lds:ax'])])
    for k in range(4):
        p(f'ds_read_b128 v[{X+8*k}:{X+8*k+3}], v{T+1} offset:{T_AX + k*8192}')
        p(f'ds_read_b128 v[{X+8*k+4}:{X+8*k+7}], v{T+1} offset:{T_AX + k*8192 + 1024}')
    for q in range(8):
        p(f'v_add_f32 v{X+q}, v{X+q}, v{X+8+q}')
        p(f'v_add_f32 v{X+16+q}, v{X+16+q}, v{X+24+q}')
    for q in range(8): p(f'v_add_f32 v{X+q}, v{X+q}, v{X+16+q}')
    for i in range(2):
        for hlf in range(2):
            xr = XR + 2 * i + hlf
            p(f'v_lshlrev_b32 v{T+2+2*hlf}, 16, v{xr}')
            p(f'v_and_b32 v{T+3+2*hlf}, 0xffff0000, v{xr}')
            p(f'v_add_f32 v{T+2+2*hlf}, v{T+2+2*hlf}, v{X+4*i+2*hlf}')
            p(f'v_add_f32 v{T+3+2*hlf}, v{T+3+2*hlf}, v{X+4*i+2*hlf+1}')
            p(f'v_cvt_pk_bf16_f32 v{xr}, v{T+2+2*hlf}, v{T+3+2*hlf}')
        p(f'buffer_store_dwordx2 v[{XR+2*i}:{XR+2*i+1}], v{v_xa}, s[{S_OUT}:{S_OUT+3}], s{s_ost} offen offset:{16*i}')
    p.label(L('fin'))
    if k1.STAMP: p('s_waitcnt vmcnt(0)')
    stamp(p, 10)
    k1.stamp_store(p, S_WS, s_w, 1)
    p('s_endpgm')

    p.label(L('slow'))
    Q = KB[1]; O = OA; M = T + 8; s0 = SB[0]
    p(f's_lshr_b32 s{s_t1}, s{s_kq}, 1')
    p(f's_cmp_eq_u32 s{s_t1}, 0')
    p(f's_cbranch_scc1 {L("sl_a")}')
    for q in range(8): p(f'v_mov_b32 v{Q+q}, v{QB+q}')
    p(f's_branch {L("sl_b")}')
    p.label(L('sl_a'))
    for q in range(8): p(f'v_mov_b32 v{Q+q}, v{QA+q}')
    p.label(L('sl_b'))
    p(f'v_mov_b32 v{T}, 0')
    p(f'v_cndmask_b32 v{Q+6}, v{Q+6}, v{T}, s[{s_hi}:{s_hi+1}]')
    for q in range(16): p(f'v_mov_b32 v{O+q}, 0')
    p(f'v_mov_b32 v{M}, 0xff800000')
    p(f's_lshl_b32 s{s_t2}, s{s_hd}, 18')
    p(f's_add_u32 s{s_t2}, s{s_t2}, {WS_KV}')
    p(f's_mov_b32 s{s_i}, 64')
    p.label(L('sloop'))
    p(f'buffer_load_dwordx4 v[{KB[0]}:{KB[0]+3}], v1, s[{S_WS}:{S_WS+3}], s{s_t2} offen{SC}')
    p(f'buffer_load_dwordx4 v[{KB[0]+4}:{KB[0]+7}], v1, s[{S_WS}:{S_WS+3}], s{s_t2} offen offset:1024{SC}')
    p(f'buffer_load_dwordx4 v[{VB[0]}:{VB[0]+3}], v1, s[{S_WS}:{S_WS+3}], s{s_t2} offen offset:2048{SC}')
    p(f'buffer_load_dwordx4 v[{VB[0]+4}:{VB[0]+7}], v1, s[{S_WS}:{S_WS+3}], s{s_t2} offen offset:3072{SC}')
    p.add([sS(s0, KB[0], Q, 0), sS(s0, KB[0], Q, 1)])
    p(f'v_max3_f32 v{T}, v{s0}, v{s0+1}, v{s0+2}')
    for q in range(3, 15, 2): p(f'v_max3_f32 v{T}, v{T}, v{s0+q}, v{s0+q+1}')
    p(f'v_max_f32 v{T}, v{T}, v{s0+15}')
    p(f'v_mov_b32 v{T+1}, v{T}')
    p(f'v_permlane32_swap_b32 v{T}, v{T+1}')
    p(f'v_max3_f32 v{T}, v{T}, v{T+1}, v{M}')
    p(f'v_sub_f32 v{T+1}, v{M}, v{T}')
    p(f'v_exp_f32 v{T+1}, v{T+1}')
    p(f'v_mov_b32 v{M}, v{T}')
    for q in range(16): p(f'v_sub_f32 v{s0+q}, v{s0+q}, v{M}')
    for q in range(16): p(f'v_exp_f32 v{s0+q}, v{s0+q}')
    for q in range(16): p(f'v_mul_f32 v{O+q}, v{O+q}, v{T+1}')
    for d in range(8): p(f'v_cvt_pk_bf16_f32 v{PA+d}, v{s0+2*d}, v{s0+2*d+1}')
    p.add([mm(O, VB[0], PA, f'v[{O}:{O+15}]'), mm(O, VB[0] + 4, PA + 4, f'v[{O}:{O+15}]')])
    p(f's_add_u32 s{s_t2}, s{s_t2}, 4096')
    p(f's_sub_u32 s{s_i}, s{s_i}, 1')
    p(f's_cmp_lg_u32 s{s_i}, 0')
    p(f's_cbranch_scc1 {L("sloop")}')
    p(f'v_mov_b32 v{T+3}, v{O+12}')
    p(f'v_mov_b32 v{T+4}, v{O+12}')
    p(f'v_permlane32_swap_b32 v{T+3}, v{T+4}')
    p(f's_and_b32 s{s_t2}, s{s_kq}, 1')
    p(f's_cmp_eq_u32 s{s_t2}, 0')
    p(f's_cbranch_scc1 {L("sl_c")}')
    for q in range(8): p(f'v_mov_b32 v{X+q}, v{O+8+q}')
    p(f's_branch {L("astore")}')
    p.label(L('sl_c'))
    for q in range(8): p(f'v_mov_b32 v{X+q}, v{O+q}')
    p(f's_branch {L("astore")}')
```

```python
from asmlib import *
import k1, ph1, ph2
from k1 import stamp
from ph1 import WS_FL

def gen(name):
    p = Prog()
    L = lambda s: name + '_' + s
    r = ph1.regmap()
    r.code_end = L('end')
    S_WS, s_w, s_tag = r.S_WS, r.s_w, r.s_tag
    s_t0, s_t1 = r.s_t0, r.s_t1
    cnt = [0]
    def flag_store(level):
        cnt[0] += 1; u = cnt[0]
        return [I(f's_cmp_eq_u32 s{s_w}, 0'), I(f's_cbranch_scc0 {L("fs%d" % u)}'),
                I(f's_lshl_b32 s{s_t0}, s75, 2'), I(f's_add_u32 s{s_t0}, s{s_t0}, {WS_FL + level*1024}'),
                I(f'v_mov_b32 v26, s{s_tag}'), I('v_mov_b32 v27, 0'),
                I(f'buffer_store_dword v26, v27, s[{S_WS}:{S_WS+3}], s{s_t0} offen sc1'),
                I(f'{L("fs%d" % u)}:')]
    L2 = lambda s: L('b_' + s)
    Ex, first_kv, Cx = ph2.make(lambda s: L('bx_' + s), S_WS, s_w, s_tag)
    Ey, first_kv2, C = ph2.make(lambda s: L('by_' + s), S_WS, s_w, s_tag)
    def idsave(): return [I(f's_lshl_b32 s75, s{r.s_rb}, 4'), I(f's_add_u32 s75, s75, s{r.s_g}')]
    def hook(pt):
        if pt == 'qkv': return flag_store(1)
        if pt == 'ids': return idsave()
        if pt == 's4x_a':
            k = int(len(Ex) * 0.62)
            return Ex[:k] + Cx['E2'] + Ex[k:]
        if pt == 's4x_b': return []
        if pt == 's4y_a': return Ey
        if pt == 's4y_b': return [[]] * 40 + C['E2'] + [[]] * 20
        if pt == 'pre_fin': return first_kv
        if pt == 'pre_fin2': return first_kv2
        return []
    r.hook = hook
    p.label(name)
    p('s_cmp_ge_u32 s2, 256')
    p(f's_cbranch_scc1 {L("end")}')
    stamp(p, 0)
    if 'dbgtime' in k1.EXP: p('s_memrealtime s[88:89]')
    ph1.phase1(p, lambda s: L('a_' + s), r, True)
    if k1.STAMP: k1.stamp_store(p, S_WS, s_w, 0)
    def after_beta0():
        return [I(f's_cmp_eq_u32 s{s_w}, 0'), I(f's_cbranch_scc0 {L2("hf")}'),
                I('s_lshl_b32 s60, s75, 2'), I(f's_add_u32 s60, s60, {WS_FL + 2*1024}'),
                I(f'v_mov_b32 v248, s{s_tag}'), I('v_mov_b32 v249, 0'),
                I(f'buffer_store_dword v248, v249, s[{S_WS}:{S_WS+3}], s60 offen sc1'),
                I(f'{L2("hf")}:')]
    def h_poll():
        issue = [I('s_lshr_b32 s52, s33, 1'), I('s_lshl_b32 s52, s52, 6'), I(f's_add_u32 s52, s52, {WS_FL + 2*1024}'),
                 I('v_and_b32 v250, 15, v0'), I('v_lshlrev_b32 v250, 2, v250'),
                 I(f'buffer_load_dword v251, v250, s[{S_WS}:{S_WS+3}], s52 offen sc1')]
        check = [I('s_mov_b32 s49, 0x200000'),
                 I(f'{L2("hchk")}:'),
                 I(f'v_cmp_eq_u32 vcc, s{s_tag}, v251'), I('s_nop 0'),
                 I('s_cmp_eq_u64 vcc, -1'), I(f's_cbranch_scc1 {L2("hok")}'),
                 I(f'buffer_load_dword v251, v250, s[{S_WS}:{S_WS+3}], s52 offen sc1'),
                 I('s_waitcnt vmcnt(0)'),
                 I('s_sub_u32 s49, s49, 1'), I('s_cmp_lg_u32 s49, 0'), I(f's_cbranch_scc1 {L2("hchk")}'),
                 I(f'{L2("hok")}:')]
        return issue, check
    ph2.phase2.h_poll = h_poll
    ph2.phase2.after_beta0 = after_beta0
    ph2.phase2(p, L2, S_WS, s_w, s_tag, C)
    p.label(L('end'))
    p('s_endpgm')
    desc = f"""
.amdhsa_kernel {name}
  .amdhsa_next_free_vgpr 256
  .amdhsa_next_free_sgpr 102
  .amdhsa_accum_offset 256
  .amdhsa_group_segment_fixed_size 0
  .amdhsa_kernarg_size 80
  .amdhsa_user_sgpr_count 2
  .amdhsa_user_sgpr_kernarg_segment_ptr 1
  .amdhsa_system_sgpr_workgroup_id_x 1
  .amdhsa_float_denorm_mode_32 3
.end_amdhsa_kernel
"""
    return p, desc
```

```python
from asmlib import *
import k1
from k1 import (WS_QF, WS_KV, WS_HF, WS_OF, WS_FLAG, SLOT, NSLOT, RING, LOG2E, CQ, hexf, flat, stamp)
from k0 import wave_sum
WS_FL = (16 << 20) + 4096

class R: pass

def regmap():
    r = R()
    r.S_W, r.S_G, r.S_U, r.S_WS, r.S_X = 8, 12, 16, 20, 96
    r.s_w, r.s_r4, r.s_ch, r.s_rb, r.s_g, r.s_p, r.s_kind, r.s_ty = 30, 31, 32, 33, 34, 35, 36, 37
    r.s_q = 40
    r.s_w8q, r.s_w8g = 45, 46
    r.s_so, r.s_so2 = 47, 48
    r.s_mo, r.s_mo2 = 49, 50
    r.s_d64q, r.s_d64g = 51, 52
    r.s_hi, r.s_pad = 54, 56
    r.s_t0, r.s_t1, r.s_t2, r.s_t3 = 58, 59, 60, 61
    r.s_stq, r.s_stk, r.s_stv, r.s_sth = 62, 63, 64, 65
    r.s_scq, r.s_padk = 66, 67
    r.s_x0, r.s_x1, r.s_xm = 68, 69, 70
    r.s_tag = 3
    r.s_sth2 = 71
    r.S_R = 24
    r.s_w3, r.s_mo3, r.s_mo32 = 53, 6, 7
    return r

def slot_of(G): return (8 + G) % NSLOT

def phase1(p, L, r, merged, stamp_base=0):
    EXP = k1.EXP
    S_W, S_G, S_U, S_WS, S_X = r.S_W, r.S_G, r.S_U, r.S_WS, r.S_X
    s_w, s_r4, s_ch, s_rb, s_g, s_p, s_kind, s_ty = r.s_w, r.s_r4, r.s_ch, r.s_rb, r.s_g, r.s_p, r.s_kind, r.s_ty
    s_q, s_t0, s_t1, s_t2, s_t3 = r.s_q, r.s_t0, r.s_t1, r.s_t2, r.s_t3
    s_hi, s_pad = r.s_hi, r.s_pad
    SC = ' sc1' if merged else ''
    v_lane16 = 1
    v_pq, v_pg = [2, 3, 4], [5, 6, 7]
    v_dq, v_dg = 8, 9
    v_t = 18
    v_padv = 28
    WF = [40, 44, 48, 52]
    ACCA, B1, B2 = 56, 72, 88
    TP = 104
    XF = 128
    xr = [240, 241, 242, 243]
    xa, xb = 250, 251
    lane, m, hh = v_t + 2, v_t + 3, v_t + 4

    p('s_load_dwordx2 s[6:7], s[0:1], 8')
    p('s_load_dwordx4 s[24:27], s[0:1], 32')
    p('s_load_dwordx2 s[4:5], s[0:1], 72')
    p(f's_load_dwordx2 s[{S_X}:{S_X+1}], s[0:1], 0')
    if merged:
        p('s_load_dwordx2 s[100:101], s[0:1], 64')
        p('s_load_dwordx2 s[28:29], s[0:1], 48')
        p('s_load_dwordx2 s[38:39], s[0:1], 56')
    p('s_getpc_b64 s[74:75]')
    p(f'v_and_b32 v{lane}, 63, v0')
    p(f'v_lshrrev_b32 v{v_t+1}, 6, v0')
    p(f'v_readfirstlane_b32 s{s_w}, v{v_t+1}')
    p(f'v_lshlrev_b32 v{v_lane16}, 4, v{lane}')
    p(f'v_and_b32 v{m}, 31, v0')
    p(f'v_bfe_u32 v{hh}, v0, 5, 1')
    GN = 4
    for e in EXP:
        if e.startswith('gn'): GN = int(e[2:])
    RR = 32 // GN
    nxr = 16 // RR
    lr, lg = RR.bit_length() - 1, GN.bit_length() - 1
    lxr = nxr.bit_length() - 1
    p(f's_and_b32 s{s_t0}, s2, {nxr-1}')
    p(f's_lshl_b32 s{s_t0}, s{s_t0}, {lr}')
    p(f's_lshr_b32 s{s_t1}, s2, 3')
    p(f's_and_b32 s{s_t2}, s{s_t1}, {RR-1}')
    p(f's_add_u32 s{s_rb}, s{s_t0}, s{s_t2}')
    p(f's_and_b32 s{s_t0}, s2, 7')
    p(f's_lshr_b32 s{s_t0}, s{s_t0}, {lxr}')
    p(f's_lshl_b32 s{s_t0}, s{s_t0}, {lg}')
    p(f's_lshr_b32 s{s_t1}, s{s_t1}, {lr}')
    p(f's_add_u32 s{s_g}, s{s_t0}, s{s_t1}')
    p(f's_lshl_b32 s{s_t0}, s{s_rb}, 7')
    p(f's_lshl_b32 s{s_t1}, s{s_w}, 4')
    p(f's_add_u32 s{s_t0}, s{s_t0}, s{s_t1}')
    p(f's_mul_i32 s{r.s_x0}, s{s_t0}, 896')
    p(f's_add_u32 s{r.s_x1}, s{r.s_x0}, {8*896}')
    p(f's_lshl_b32 s{r.s_xm}, s{s_w}, 11')
    p(f'v_lshrrev_b32 v{v_t}, 3, v{lane}')
    p(f'v_mul_u32_u24 v{v_t}, 896, v{v_t}')
    p(f'v_and_b32 v{v_t+5}, 7, v{lane}')
    p(f'v_lshlrev_b32 v{v_t+1}, 4, v{v_t+5}')
    p(f'v_add_u32 v{xa}, v{v_t}, v{v_t+1}')
    p(f's_mov_b32 s{S_X+2}, {2048*896}')
    p(f's_mov_b32 s{S_X+3}, 0x20000')
    p('s_waitcnt lgkmcnt(0)')
    stamp(p, 2)
    if k1.STAMP: p('s_getreg_b32 s93, hwreg(HW_REG_XCC_ID)')
    def x_issue(g):
        return [I(f's_mov_b32 m0, s{r.s_xm}'),
                I(f's_addk_i32 s{r.s_xm}, 16384'),
                I(f'buffer_load_dwordx4 v{xa}, s[{S_X}:{S_X+3}], s{r.s_x0} offen lds', gives=[g]),
                I('s_addk_i32 m0, 1024'),
                I(f's_addk_i32 s{r.s_x0}, 128'),
                I(f'buffer_load_dwordx4 v{xa}, s[{S_X}:{S_X+3}], s{r.s_x1} offen lds', gives=[g]),
                I(f's_addk_i32 s{r.s_x1}, 128')]
    if 'xt' in EXP:
        per = 896 // GN // 8
        p(f's_and_b32 s{s_t0}, s{s_g}, {GN-1}')
        p(f's_lshl_b32 s{s_t0}, s{s_t0}, 3')
        p(f's_add_u32 s{s_t0}, s{s_t0}, s{s_w}')
        p(f's_mul_i32 s{s_t0}, s{s_t0}, {per*128}')
        p(f's_mul_i32 s{s_t1}, s{s_rb}, {128*896}')
        p(f's_add_u32 s{s_t0}, s{s_t0}, s{s_t1}')
        p(f'v_lshlrev_b32 v{v_t}, 7, v{lane}')
        p(f's_mov_b32 exec_lo, {(1 << per) - 1}')
        p('s_mov_b32 exec_hi, 0')
        p(f'buffer_load_dword v253, v{v_t}, s[{S_X}:{S_X+3}], s{s_t0} offen', gives=['xt'])
        p('s_mov_b64 exec, -1')
        if 'xw' in EXP: p.add([I('s_nop 0', needs=['xt'])])
    if 'xfull' in EXP:
        p(f'v_lshlrev_b32 v{v_t}, 7, v{lane}')
        p(f'buffer_load_dword v253, v{v_t}, s[{S_X}:{S_X+3}], s{r.s_x0} offen', gives=['xt'])
        p(f's_add_u32 s{s_t0}, s{r.s_x0}, 8192')
        p('s_mov_b32 exec_hi, 0x0000ffff')
        p(f'buffer_load_dword v254, v{v_t}, s[{S_X}:{S_X+3}], s{s_t0} offen', gives=['xt'])
        p('s_mov_b64 exec, -1')
        p.add([I('s_nop 0', needs=['xt'])])
        stamp(p, 7)
    if merged:
        p(f's_add_u32 s{s_t0}, s2, s{s_w}')
        p(f's_cmp_eq_u32 s{s_t0}, 0')
        p(f's_cbranch_scc0 {L("notag")}')
        p('s_memrealtime s[60:61]')
        p('s_waitcnt lgkmcnt(0)')
        p('s_or_b32 s60, s60, 1')
        p(f'v_mov_b32 v{v_t}, s60')
        p(f'v_mov_b32 v{v_t+1}, 0')
        p(f'global_store_dword v{v_t+1}, v{v_t}, s[100:101] sc1')
        p.label(L('notag'))
    if 'xt2' in EXP:
        p(f's_cmp_lt_u32 s{s_w}, 4')
        p(f's_cbranch_scc1 {L("noxt2")}')
        p(f'v_lshlrev_b32 v{v_t}, 7, v{lane}')
        p(f'buffer_load_dword v253, v{v_t}, s[{S_X}:{S_X+3}], s{r.s_x0} offen')
        p(f's_add_u32 s{s_t0}, s{r.s_x0}, 8192')
        p('s_mov_b32 exec_hi, 0x0000ffff')
        p(f'buffer_load_dword v254, v{v_t}, s[{S_X}:{S_X+3}], s{s_t0} offen')
        p('s_mov_b64 exec, -1')
        p.label(L('noxt2'))
    for a in range(7): p.add(x_issue('x'))
    if merged:
        p('v_mov_b32 v27, 0')
        p.add([I('global_load_dword v26, v27, s[100:101] sc1', gives=['x'])])
    for (Sd, lo, hi, size) in ((S_W, 6, 7, 448 * 2688), (S_G, 24, 25, 448 * 3584), (S_U, 26, 27, 448 * 3584), (S_WS, 4, 5, k1.WS_SIZE)):
        p(f's_mov_b32 s{Sd}, s{lo}')
        p(f's_mov_b32 s{Sd+1}, s{hi}')
        p(f's_mov_b32 s{Sd+2}, {size}')
        p(f's_mov_b32 s{Sd+3}, 0x20000')
    if merged:
        p('s_load_dwordx2 s[4:5], s[0:1], 16')
        p('s_waitcnt lgkmcnt(0)')
    p(f's_cmp_eq_u32 s{s_w}, 7')
    p(f's_cbranch_scc0 {L("nocp")}')
    p(f's_lshr_b32 s{s_t0}, s2, 3')
    p(f's_lshl_b32 s{s_t0}, s{s_t0}, 11')
    p(f'v_lshlrev_b32 v{v_t}, 7, v{lane}')
    p(f'v_add_u32 v{v_t}, s{s_t0}, v{v_t}')
    p('s_mov_b32 exec_lo, 0xffff')
    p('s_mov_b32 exec_hi, 0')
    p(f'global_load_dword v255, v{v_t}, s[74:75]')
    p('s_mov_b64 exec, -1')
    p.label(L('nocp'))
    stamp(p, 3)
    p(f's_and_b32 s{s_r4}, s{s_w}, 3')
    p(f's_lshr_b32 s{s_ch}, s{s_w}, 2')
    p(f's_lshr_b32 s{s_p}, s{s_g}, 1')
    p(f's_and_b32 s{s_ty}, s{s_g}, 1')
    p(f's_mul_i32 s{s_t0}, s{s_p}, 7')
    p(f's_and_b32 s{s_t1}, s{s_p}, 1')
    p(f's_add_u32 s{s_t2}, s{s_t0}, s{s_t1}')
    p(f's_add_u32 s{s_t3}, s{s_t0}, 6')
    p(f's_cmp_eq_u32 s{s_t1}, 0')
    p(f's_cselect_b32 s{s_t3}, s{s_t3}, s{s_t0}')
    p(f's_mul_i32 s{s_q}, s{s_p}, 112')
    p(f's_cmp_eq_u32 s{s_ty}, 0')
    p(f's_cbranch_scc0 {L("tyB")}')
    p(f's_add_u32 s{s_q+1}, s{s_q}, 896')
    p(f's_lshl_b32 s{s_q+2}, s{s_t2}, 6')
    p(f's_mov_b32 s{s_q+3}, s{s_q+2}')
    p(f's_lshl_b32 s{s_q+4}, s{s_t3}, 6')
    p(f's_mov_b32 s{s_kind}, s{s_t3}')
    p(f's_branch {L("tyC")}')
    p.label(L('tyB'))
    p(f's_add_u32 s{s_q}, s{s_q}, 1792')
    p(f's_add_u32 s{s_t2}, s{s_t2}, 2')
    p(f's_lshl_b32 s{s_q+1}, s{s_t2}, 6')
    p(f's_mov_b32 s{s_q+2}, s{s_q+1}')
    p(f's_add_u32 s{s_q+3}, s{s_q+1}, 128')
    p(f's_mov_b32 s{s_q+4}, s{s_q+3}')
    p.label(L('tyC'))
    p(f's_lshl_b32 s{s_t0}, s{s_rb}, 2')
    p(f's_add_u32 s{s_t0}, s{s_t0}, s{s_r4}')
    p(f's_mul_i32 s{r.s_sth}, s{s_t0}, 112')
    p(f's_lshl_b32 s{r.s_sth2}, s{s_kind}, 1')
    p(f's_add_u32 s{r.s_sth2}, s{r.s_sth2}, s{s_ch}')
    p(f's_add_u32 s{r.s_sth2}, s{r.s_sth2}, s{r.s_sth}')
    p(f's_lshl_b32 s{r.s_sth2}, s{r.s_sth2}, 10')
    p(f's_add_u32 s{r.s_sth2}, s{r.s_sth2}, {WS_HF}')
    p(f's_lshl_b32 s{s_t1}, s{s_t2}, 1')
    p(f's_add_u32 s{r.s_sth}, s{r.s_sth}, s{s_t1}')
    p(f's_lshl_b32 s{s_t1}, s{s_ch}, 1')
    p(f's_add_u32 s{r.s_sth}, s{r.s_sth}, s{s_t1}')
    p(f's_lshl_b32 s{r.s_sth}, s{r.s_sth}, 10')
    p(f's_add_u32 s{r.s_sth}, s{r.s_sth}, {WS_HF}')
    p(f's_lshl_b32 s{s_t1}, s{s_p}, 1')
    p(f's_add_u32 s{s_t1}, s{s_t1}, s{s_ch}')
    p(f's_lshl_b32 s{s_t1}, s{s_t1}, 6')
    p(f's_add_u32 s{s_t1}, s{s_t1}, s{s_t0}')
    p(f's_lshl_b32 s{s_t3}, s{s_t1}, 12')
    p(f's_add_u32 s{r.s_stv}, s{s_t3}, {WS_KV + 2048}')
    p(f's_add_u32 s{r.s_stk}, s{s_t3}, {WS_KV}')
    p(f's_lshl_b32 s{r.s_stq}, s{s_t1}, 11')
    p(f's_add_u32 s{r.s_stq}, s{r.s_stq}, {WS_QF}')
    p(f's_mov_b32 s{r.s_scq}, {hexf(CQ)}')
    p(f's_mov_b32 s{r.s_padk}, 0')
    p(f's_mul_i32 s{r.s_w8q}, s{s_w}, {8*2688}')
    p(f's_mul_i32 s{r.s_w8g}, s{s_w}, {8*3584}')
    p(f's_lshl_b32 s{r.s_mo}, s{s_w}, 10')
    p(f's_cmp_lt_u32 s{s_w}, 6')
    p(f's_cselect_b32 s{r.s_d64q}, {64*2688}, 0')
    p(f's_cselect_b32 s{r.s_d64g}, {64*3584}, 0')
    p(f's_cselect_b32 s{s_t0}, 8192, 0')
    p(f's_add_u32 s{r.s_mo2}, s{r.s_mo}, s{s_t0}')
    v_p3, v_d3 = [36, 37, 38], 39
    p(f's_and_b32 s{s_t1}, s{s_w}, 1')
    p(f's_cmp_eq_u32 s{s_t1}, 0')
    p(f's_cselect_b32 s{r.S_R}, s{S_G}, s{S_U}')
    p(f's_cselect_b32 s{r.S_R+1}, s{S_G+1}, s{S_U+1}')
    p(f's_mov_b32 s{r.S_R+2}, {448*3584}')
    p(f's_mov_b32 s{r.S_R+3}, 0x20000')
    p(f's_lshr_b32 s{s_t2}, s{s_w}, 1')
    p(f's_mul_i32 s{r.s_w3}, s{s_t2}, {16*3584}')
    p(f's_mul_i32 s{r.s_mo3}, s{s_t1}, 7168')
    p(f's_lshl_b32 s{s_t2}, s{s_t2}, 10')
    p(f's_add_u32 s{r.s_mo3}, s{r.s_mo3}, s{s_t2}')
    p(f's_lshr_b32 s{s_t0}, s{s_t0}, 1')
    p(f's_add_u32 s{r.s_mo32}, s{r.s_mo3}, s{s_t0}')
    p(f'v_lshrrev_b32 v{v_t}, 2, v{lane}')
    p(f'v_mul_u32_u24 v{v_d3}, 3584, v{v_t}')
    p(f'v_and_b32 v{v_t}, 3, v{lane}')
    p(f'v_lshlrev_b32 v{v_t}, 4, v{v_t}')
    p(f's_lshl_b32 s{s_t1}, s{s_t1}, 5')
    p(f'v_xor_b32 v{v_t}, s{s_t1}, v{v_t}')
    p(f'v_add_u32 v{v_d3}, v{v_d3}, v{v_t}')
    p(f'v_bfe_u32 v{v_t}, v{lane}, 2, 2')
    p(f'v_lshlrev_b32 v{v_t+1}, 3, v{hh}')
    p(f'v_add_u32 v{v_t}, v{v_t}, v{v_t+1}')
    p(f'v_lshlrev_b32 v{v_p3[0]}, 6, v{v_t}')
    p(f'v_and_b32 v{v_t}, 3, v{lane}')
    p(f'v_lshlrev_b32 v{v_t}, 3, v{v_t}')
    p(f'v_add_u32 v{v_p3[0]}, v{v_p3[0]}, v{v_t}')
    p(f'v_bfe_u32 v{v_t}, v{lane}, 4, 1')
    p(f'v_mul_u32_u24 v{v_t+1}, 7168, v{v_t}')
    p(f'v_add_u32 v{v_p3[0]}, v{v_p3[0]}, v{v_t+1}')
    p(f'v_xor_b32 v{v_t}, s{s_ch}, v{v_t}')
    p(f'v_lshlrev_b32 v{v_t}, 5, v{v_t}')
    p(f'v_add_u32 v{v_p3[0]}, v{v_p3[0]}, v{v_t}')
    p(f'v_add_u32 v{v_p3[1]}, {4*SLOT}, v{v_p3[0]}')
    p(f'v_add_u32 v{v_p3[2]}, {8*SLOT}, v{v_p3[0]}')
    p(f'v_bfe_u32 v{v_t}, v{lane}, 4, 1')
    p(f'v_lshlrev_b32 v{v_t}, 2, v{v_t}')
    p(f'v_and_b32 v{v_t+1}, 7, v{lane}')
    p(f'v_xor_b32 v{v_t}, v{v_t}, v{v_t+1}')
    p(f'v_lshlrev_b32 v{v_t}, 4, v{v_t}')
    p(f'v_lshrrev_b32 v{v_t+1}, 3, v{lane}')
    p(f'v_mul_u32_u24 v{v_dq}, 2688, v{v_t+1}')
    p(f'v_add_u32 v{v_dq}, v{v_dq}, v{v_t}')
    p(f'v_mul_u32_u24 v{v_dg}, 3584, v{v_t+1}')
    p(f'v_add_u32 v{v_dg}, v{v_dg}, v{v_t}')
    p(f's_mov_b32 s{s_hi}, 0')
    p(f's_mov_b32 s{s_hi+1}, -1')
    p(f's_mov_b32 s{s_pad}, 0xf0000000')
    p(f's_mov_b32 s{s_pad+1}, 0xf0000000')
    def mkpat(dst, b0mul):
        p(f'v_bfe_u32 v{v_t}, v{lane}, 2, 2')
        p(f'v_lshlrev_b32 v{v_t+1}, 3, v{hh}')
        p(f'v_add_u32 v{v_t+1}, v{v_t+1}, v{v_t}')
        p(f'v_lshlrev_b32 v{dst[0]}, 7, v{v_t+1}')
        p(f'v_bfe_u32 v{v_t+1}, v{lane}, 4, 1')
        p(f'v_lshlrev_b32 v{v_t+1}, 5, v{v_t+1}')
        p(f'v_and_b32 v{v_t+5}, 3, v{lane}')
        p(f'v_lshlrev_b32 v{v_t+5}, 3, v{v_t+5}')
        p(f'v_add_u32 v{v_t+1}, v{v_t+1}, v{v_t+5}')
        p(f's_mul_i32 s{s_t0}, s{s_ch}, {b0mul}')
        p(f'v_add_u32 v{v_t+1}, s{s_t0}, v{v_t+1}')
        p(f'v_lshrrev_b32 v{v_t}, 1, v{v_t}')
        p(f'v_lshlrev_b32 v{v_t}, 6, v{v_t}')
        p(f'v_xor_b32 v{v_t+1}, v{v_t+1}, v{v_t}')
        p(f'v_add_u32 v{dst[0]}, v{dst[0]}, v{v_t+1}')
        p(f'v_add_u32 v{dst[1]}, {4*SLOT}, v{dst[0]}')
        p(f'v_add_u32 v{dst[2]}, {8*SLOT}, v{dst[0]}')
    mkpat(v_pq, 56)
    mkpat(v_pg, 64)
    p(f'v_cmp_eq_u32 vcc, 28, v{m}')
    p(f'v_mov_b32 v{v_padv}, 0')
    p(f'v_mov_b32 v{v_t}, 0x3f803f80')
    p(f'v_cndmask_b32 v{v_padv}, v{v_padv}, v{v_t}, vcc')
    p(f's_lshl_b32 s{s_t0}, s{s_r4}, 12')
    p(f'v_lshlrev_b32 v{v_t}, 7, v{m}')
    p(f'v_add_u32 v{v_t}, s{s_t0}, v{v_t}')
    p(f'v_bfe_u32 v{v_t+1}, v{m}, 1, 3')
    p(f'v_xor_b32 v{v_t+1}, v{v_t+1}, v{hh}')
    for u in range(4):
        p(f'v_xor_b32 v{v_t+5}, {2*u}, v{v_t+1}')
        p(f'v_lshlrev_b32 v{v_t+5}, 4, v{v_t+5}')
        p(f'v_add_u32 v{xr[u]}, v{v_t}, v{v_t+5}')
    if not merged:
        p(f's_cmp_eq_u32 s{s_w}, 5')
        p(f's_cbranch_scc0 {L("nzf")}')
        p(f's_lshl_b32 s{s_t0}, s2, 2')
        p(f's_add_u32 s{s_t0}, s{s_t0}, {WS_FLAG}')
        p(f'v_mov_b32 v{v_t}, 0')
        p(f'buffer_store_dword v{v_t}, v{v_t}, s[{S_WS}:{S_WS+3}], s{s_t0} offen')
        p.label(L('nzf'))

    def b_issue(G, kinds, g):
        if G > 19: return []
        if 'nodma' in EXP and G > 10: return []
        st, j = G // 4, G % 4
        kind = kinds[st]
        if kind == 3:
            base = slot_of(G) * SLOT
            o = []
            if j == 0:
                o += [I(f's_add_u32 s{r.s_so}, s{s_q+st}, s{r.s_w3}'), I(f's_add_u32 s{r.s_so2}, s{r.s_so}, s{r.s_d64g}')]
            o += [I(f's_add_u32 m0, s{r.s_mo3}, {base}'),
                  I(f's_add_u32 s{s_t3}, s{r.s_mo32}, {base}'),
                  I(f'buffer_load_dwordx4 v{v_d3}, s[{r.S_R}:{r.S_R+3}], s{r.s_so} offen lds', gives=[g]),
                  I(f's_mov_b32 m0, s{s_t3}'),
                  I(f's_add_u32 s{r.s_so}, s{r.s_so}, {112*3584}'),
                  I(f'buffer_load_dwordx4 v{v_d3}, s[{r.S_R}:{r.S_R+3}], s{r.s_so2} offen lds', gives=[g]),
                  I(f's_add_u32 s{r.s_so2}, s{r.s_so2}, {112*3584}')]
            return o
        srd = {0: S_W, 1: S_G, 2: S_U}[kind]
        vo = v_dq if kind == 0 else v_dg
        stride = 2688 if kind == 0 else 3584
        o = []
        if j == 0:
            o += [I(f's_add_u32 s{r.s_so}, s{s_q+st}, s{r.s_w8q if kind == 0 else r.s_w8g}'),
                  I(f's_add_u32 s{r.s_so2}, s{r.s_so}, s{r.s_d64q if kind == 0 else r.s_d64g}')]
        base = slot_of(G) * SLOT
        o += [I(f's_add_u32 m0, s{r.s_mo}, {base}'),
              I(f's_add_u32 s{s_t3}, s{r.s_mo2}, {base}'),
              I(f'buffer_load_dwordx4 v{vo}, s[{srd}:{srd+3}], s{r.s_so} offen lds', gives=[g]),
              I(f's_mov_b32 m0, s{s_t3}'),
              I(f's_add_u32 s{r.s_so}, s{r.s_so}, {112*stride}'),
              I(f'buffer_load_dwordx4 v{vo}, s[{srd}:{srd+3}], s{r.s_so2} offen lds', gives=[g]),
              I(f's_add_u32 s{r.s_so2}, s{r.s_so2}, {112*stride}')]
        return o

    def wread(T, kinds):
        st, t = T // 28, T % 28
        if st > 4: return []
        G = 4 * st + t // 7; ks = t % 7
        sl = slot_of(G)
        b = WF[T & 3]
        if kinds[st] == 3:
            off = (sl % 4) * SLOT + ks * 1024
            va = v_p3[sl // 4]
            return [I(f'ds_read_b64_tr_b16 v[{b}:{b+1}], v{va} offset:{off}'),
                    I(f'ds_read_b64_tr_b16 v[{b+2}:{b+3}], v{va} offset:{off+256}')]
        pat = v_pq if kinds[st] == 0 else v_pg
        off = (sl % 4) * SLOT + ks * 2048
        va = pat[sl // 4]
        return [I(f'ds_read_b64_tr_b16 v[{b}:{b+1}], v{va} offset:{off}'),
                I(f'ds_read_b64_tr_b16 v[{b+2}:{b+3}], v{va} offset:{off+512}')]
    def mf(T, w_is_a, dst):
        t = T % 28
        b = WF[T & 3]; x = XF + 4 * t
        d = dst if t == 27 else ACCA
        c = '0' if t == 0 else f'v[{ACCA}:{ACCA+15}]'
        if w_is_a: return I(f'v_mfma_f32_32x32x16_bf16 v[{d}:{d+15}], v[{b}:{b+3}], v[{x}:{x+3}], {c}')
        return I(f'v_mfma_f32_32x32x16_bf16 v[{d}:{d+15}], v[{x}:{x+3}], v[{b}:{b+3}], {c}')

    def warmups():
        if merged:
            for wv, base, size in ((3, 28, 1792 * 896), (4, 4, 448 * 896)):
                sl = size // 256
                nl = (sl + 127) // 128
                p(f's_cmp_eq_u32 s{s_w}, {wv}')
                p(f's_cbranch_scc0 {L("wd%d" % wv)}')
                p(f's_mul_i32 s{s_t0}, s2, {sl}')
                p(f'v_min_u32 v{v_t}, {nl-1}, v{lane}')
                p(f'v_lshlrev_b32 v{v_t}, 7, v{v_t}')
                p(f'v_min_u32 v{v_t}, {sl-4}, v{v_t}')
                p(f'v_add_u32 v{v_t}, s{s_t0}, v{v_t}')
                p(f's_mov_b32 exec_lo, {((1 << min(nl,32)) - 1)}')
                p(f's_mov_b32 exec_hi, {((1 << max(nl-32,0)) - 1)}')
                p(f'global_load_dword v{249+wv}, v{v_t}, s[{base}:{base+1}]')
                p('s_mov_b64 exec, -1')
                p.label(L('wd%d' % wv))
        if 'nowarm' not in EXP:
            p(f'v_lshlrev_b32 v{v_t}, 7, v{lane}')
            for i, (Sd, size) in enumerate(((S_W, 448 * 2688), (S_G, 448 * 3584), (S_U, 448 * 3584))):
                sl = (size // 256 + 127) // 128 * 128
                p(f's_cmp_eq_u32 s{s_w}, {i}')
                p(f's_cbranch_scc0 {L("wu%d" % i)}')
                p(f's_mul_i32 s{s_t0}, s2, {sl}')
                p('s_mov_b32 exec_hi, 0x0000ffff' if sl > 4096 + 768 else 's_mov_b32 exec_hi, 0x000000ff')
                p(f'buffer_load_dword v{252+i}, v{v_t}, s[{Sd}:{Sd+3}], s{s_t0} offen')
                p('s_mov_b64 exec, -1')
                p.label(L('wu%d' % i))
    if getattr(r, 'hook', None): p.add(r.hook('ids'))
    KX, KY = [0, 1, 2, 1, 2], [0, 0, 1, 2, 3]
    if 'earlywarm' in EXP: warmups()
    G_LATE = [0, 1, 2]
    if 'g0mid' in EXP:
        p.add(b_issue(0, KX, 'g0'))
        G_LATE = [1, 2]
    if 'g01mid' in EXP:
        p.add(b_issue(0, KX, 'g0') + b_issue(1, KX, 'g1'))
        G_LATE = [2]
    va, vb, ones = 244, 245, 246
    RAW = 40
    SS = [96, 100, 104, 108]
    p(f's_lshl_b32 s{s_t0}, s{s_w}, 11')
    p(f'v_add_u32 v{va}, s{s_t0}, v{v_lane16}')
    p(f'v_add_u32 v{vb}, 0x10000, v{va}')
    wa0, wa1 = 248, 249
    p(f'v_lshrrev_b32 v{v_t}, 4, v{lane}')
    p(f'v_and_b32 v{v_t+1}, 7, v{lane}')
    p(f'v_xor_b32 v{v_t}, v{v_t}, v{v_t+1}')
    p(f'v_lshlrev_b32 v{v_t}, 4, v{v_t}')
    p(f'v_lshrrev_b32 v{v_t+1}, 3, v{lane}')
    p(f'v_lshlrev_b32 v{v_t+1}, 7, v{v_t+1}')
    p(f'v_add_u32 v{v_t}, v{v_t}, v{v_t+1}')
    p(f'v_add_u32 v{wa0}, s{s_t0}, v{v_t}')
    p(f'v_xor_b32 v{wa1}, 64, v{wa0}')
    p(f'v_add_u32 v{wa1}, 1024, v{wa1}')
    p(f'v_mov_b32 v{ones}, 0x3f803f80')
    p(f'v_mov_b32 v{ones+1}, 0x3f803f80')
    for i, msk in enumerate((0x22222222, 0x44444444, 0x88888888)):
        p(f's_mov_b32 s{72+2*i if i == 0 else 74+2*i}, 0x{msk:08x}')
        p(f's_mov_b32 s{73+2*i if i == 0 else 75+2*i}, 0x{msk:08x}')
    MSK = [72, 76, 78]
    def addr(a, g): return (va if a < 4 else vb), ((a * 16384) & 0xffff) + g * 1024
    p.add([I('s_nop 0', needs=['x'])])
    if merged:
        p(f'v_readfirstlane_b32 s{r.s_tag}, v26')
        p(f's_cmp_lg_u32 s{r.s_tag}, 0')
        p(f's_cbranch_scc1 {L("taggot")}')
        p(f's_mov_b32 s{s_t0}, 0x100000')
        p.label(L('tagpoll'))
        p('global_load_dword v26, v27, s[100:101] sc1')
        p('s_waitcnt vmcnt(0)')
        p(f'v_readfirstlane_b32 s{r.s_tag}, v26')
        p(f's_cmp_lg_u32 s{r.s_tag}, 0')
        p(f's_cbranch_scc1 {L("taggot")}')
        p(f's_sub_u32 s{s_t0}, s{s_t0}, 1')
        p(f's_cmp_lg_u32 s{s_t0}, 0')
        p(f's_cbranch_scc1 {L("tagpoll")}')
        p.label(L('taggot'))
    stamp(p, 4)
    for a in range(7):
        for g in range(2):
            b, off = addr(a, g)
            rr = RAW + 4 * (g * 7 + a)
            p(f'ds_read_b128 v[{rr}:{rr+3}], v{b} offset:{off}')
    def m44(d, a, b, first):
        c = '0' if first else f'v[{d}:{d+3}]'
        return I(f'v_mfma_f32_4x4x4_16b_bf16 v[{d}:{d+3}], v[{a}:{a+1}], v[{b}:{b+1}], {c}')
    for a in range(7):
        for h in range(2):
            for g in range(2):
                rr = RAW + 4 * (g * 7 + a) + 2 * h
                p.add([m44(SS[g], rr, ones, a == 0 and h == 0), m44(SS[2 + g], rr, rr, a == 0 and h == 0)])
            g = h
            rr = RAW + 4 * (g * 7 + a); f = XF + 8 * (g * 7 + a)
            for i in range(4):
                p(f'v_lshlrev_b32 v{f+2*i}, 16, v{rr+i}')
                p(f'v_and_b32 v{f+2*i+1}, 0xffff0000, v{rr+i}')
    for k in range(4):
        for i in range(3):
            p(f'v_cndmask_b32 v{SS[k]}, v{SS[k]}, v{SS[k]+1+i}, s[{MSK[i]}:{MSK[i]+1}]')
    for ctrl in ('quad_perm:[1,0,3,2]', 'quad_perm:[2,3,0,1]', 'row_half_mirror'):
        for k in range(4):
            p(f'v_add_f32_dpp v{SS[k]}, v{SS[k]}, v{SS[k]} {ctrl} row_mask:0xf bank_mask:0xf')
    for g in range(2):
        sm, sq = SS[g], SS[2 + g]
        p(f'v_mul_f32 v{sm}, {hexf(1/448)}, v{sm}')
        p(f'v_mul_f32 v{sq}, {hexf(1/448)}, v{sq}')
        p(f'v_fma_f32 v{sq}, -v{sm}, v{sm}, v{sq}')
        p(f'v_max_f32 v{sq}, 0, v{sq}')
        p(f'v_add_f32 v{sq}, {hexf(1e-5)}, v{sq}')
        p(f'v_rsq_f32 v{sq}, v{sq}')
    for g in range(2):
        sm, sq = SS[g], SS[2 + g]
        p(f'v_mul_f32 v{sm}, v{sm}, v{sq}')
        p(f'v_sub_f32 v{sm}, 0, v{sm}')
    for G in G_LATE: p.add(b_issue(G, KX, 'g%d' % G))
    for a in range(7):
        wa_pos = 3
        for e in EXP:
            if e.startswith('wpos'): wa_pos = int(e[4:])
        if a == wa_pos and 'earlywarm' not in EXP and 'nowarm' not in EXP: warmups()
        for g in range(2):
            sm, sq = SS[g], SS[2 + g]
            rr = RAW + 4 * (g * 7 + a); f = XF + 8 * (g * 7 + a)
            for i in range(8): p(f'v_fma_f32 v{f+i}, v{f+i}, v{sq}, v{sm}')
            for i in range(4): p(f'v_cvt_pk_bf16_f32 v{rr+i}, v{f+2*i}, v{f+2*i+1}')
            if a == 4 and g == 0:
                p(f'v_add_u32 v{wa0}, 0x10000, v{wa0}')
                p(f'v_add_u32 v{wa1}, 0x10000, v{wa1}')
            p.add([I(f'ds_write_b128 v{(wa0, wa1)[g]}, v[{rr}:{rr+3}] offset:{(a * 16384) & 0xffff}', gives=['lds:xn'])])
    stamp(p, 1)

    def e_gu():
        body = []
        for qd in range(4):
            r0 = 4 * qd
            ee = [TP + i for i in range(4)]
            pp = [TP + 4 + i for i in range(4)]
            for i in range(4): body.append(I(f'v_mul_f32 v{ee[i]}, {hexf(-LOG2E)}, v{B1+r0+i}'))
            for i in range(4):
                body.append(I(f'v_exp_f32 v{ee[i]}, v{ee[i]}'))
                body.append(I(f'v_mul_f32 v{pp[i]}, v{B1+r0+i}, v{B2+r0+i}'))
            for i in range(4): body.append(I(f'v_add_f32 v{ee[i]}, 1.0, v{ee[i]}'))
            for i in range(4): body.append(I(f'v_rcp_f32 v{ee[i]}, v{ee[i]}'))
            for i in range(4): body.append(I(f'v_mul_f32 v{pp[i]}, v{pp[i]}, v{ee[i]}'))
            hp = TP + 8 + 2 * qd
            body.append(I(f'v_cvt_pk_bf16_f32 v{hp}, v{pp[0]}, v{pp[1]}'))
            body.append(I(f'v_cvt_pk_bf16_f32 v{hp+1}, v{pp[2]}, v{pp[3]}'))
            if qd & 1:
                body.append(I(f'buffer_store_dwordx4 v[{hp-2}:{hp+1}], v{v_lane16}, s[{S_WS}:{S_WS+3}], s{r.s_sth} offen offset:{(qd>>1)*1024}{SC}', gives=['st:h']))
        body.append(I(f's_add_u32 s{r.s_sth}, s{r.s_sth}, 4096'))
        return body
    def e_gu16(src):
        body = []
        for half in range(2):
            r0 = 4 * half
            ee = [TP + i for i in range(4)]
            pp = [TP + 4 + i for i in range(4)]
            for i in range(4): body.append(I(f'v_mul_f32 v{ee[i]}, {hexf(-LOG2E)}, v{src+r0+i}'))
            for i in range(4):
                body.append(I(f'v_exp_f32 v{ee[i]}, v{ee[i]}'))
                body.append(I(f'v_mul_f32 v{pp[i]}, v{src+r0+i}, v{src+8+r0+i}'))
            for i in range(4): body.append(I(f'v_add_f32 v{ee[i]}, 1.0, v{ee[i]}'))
            for i in range(4): body.append(I(f'v_rcp_f32 v{ee[i]}, v{ee[i]}'))
            for i in range(4): body.append(I(f'v_mul_f32 v{pp[i]}, v{pp[i]}, v{ee[i]}'))
            hp = TP + 8 + 2 * half
            body.append(I(f'v_cvt_pk_bf16_f32 v{hp}, v{pp[0]}, v{pp[1]}'))
            body.append(I(f'v_cvt_pk_bf16_f32 v{hp+1}, v{pp[2]}, v{pp[3]}'))
        body.append(I(f'buffer_store_dwordx4 v[{TP+8}:{TP+11}], v{v_lane16}, s[{S_WS}:{S_WS+3}], s{r.s_sth2} offen{SC}', gives=['st:h']))
        return body
    def e_qk():
        body = []
        O = TP + 16
        for q in range(16): body.append(I(f'v_mul_f32 v{TP+q}, s{r.s_scq}, v{B2+q}'))
        for d in range(8): body.append(I(f'v_cvt_pk_bf16_f32 v{O+d}, v{TP+2*d}, v{TP+2*d+1}'))
        body.append(I(f'v_mov_b32 v{TP}, s{r.s_padk}'))
        body.append(I(f'v_mov_b32 v{TP+1}, 0'))
        body.append(I(f'v_cndmask_b32 v{O+6}, v{O+6}, v{TP}, s[{s_hi}:{s_hi+1}]'))
        body.append(I(f'v_cndmask_b32 v{O+7}, v{O+7}, v{TP+1}, s[{s_hi}:{s_hi+1}]'))
        body.append(I(f'buffer_store_dwordx4 v[{O}:{O+3}], v{v_lane16}, s[{S_WS}:{S_WS+3}], s{r.s_stq} offen{SC}', gives=['st:qkv']))
        body.append(I(f'buffer_store_dwordx4 v[{O+4}:{O+7}], v{v_lane16}, s[{S_WS}:{S_WS+3}], s{r.s_stq} offen offset:1024{SC}', gives=['st:qkv']))
        body.append([I(f's_mov_b32 s{r.s_scq}, 1.0'), I(f's_mov_b32 s{r.s_padk}, 0x3f80'), I(f's_mov_b32 s{r.s_stq}, s{r.s_stk}')])
        return body
    def e_vv():
        O = TP + 16
        body = []
        for d in range(8): body.append(I(f'v_cvt_pk_bf16_f32 v{O+d}, v{B2+2*d}, v{B2+2*d+1}'))
        for d in range(8): body.append(I(f'v_cndmask_b32 v{O+d}, v{O+d}, v{v_padv}, s[{s_pad}:{s_pad+1}]'))
        body.append(I(f'buffer_store_dwordx4 v[{O}:{O+3}], v{v_lane16}, s[{S_WS}:{S_WS+3}], s{r.s_stv} offen{SC}', gives=['st:qkv']))
        body.append(I(f'buffer_store_dwordx4 v[{O+4}:{O+7}], v{v_lane16}, s[{S_WS}:{S_WS+3}], s{r.s_stv} offen offset:1024{SC}', gives=['st:qkv']))
        return body
    def spread(fill, items, st, en):
        n = en - st
        for k in range(n): fill[st + k] += items[len(items) * k // n: len(items) * (k + 1) // n]

    def stage(st, kinds, w_is_a, dst, epi, early=False, mid=None):
        fill = [[] for _ in range(28)]
        head = [[] for _ in range(28)]
        pre = [[] for _ in range(28)]
        if st == 1:
            pre[4] += [I('s_barrier', needs=['g5'])]
            pre[11] += [I('s_barrier', needs=['g6'])]
            pre[18] += [I('s_barrier', needs=['g7', 'g8'])]
            head[1] += b_issue(9, kinds, 'c')
            head[5] += b_issue(10, kinds, 'c')
            head[9] += b_issue(11, kinds, 'i0')
            head[13] += b_issue(12, kinds, 'i1')
            head[17] += b_issue(13, kinds, 'i2')
            head[21] += b_issue(14, kinds, 'i3')
        else:
            head[0] += b_issue(4 * st + 7, kinds, 'i0')
            head[7] += b_issue(4 * st + 8, kinds, 'i1')
            head[14] += b_issue(4 * st + 9, kinds, 'i2')
            head[21] += b_issue(4 * st + 10, kinds, 'i3')
        if mid is not None:
            head[10] += [I('s_barrier', needs=['st:qkv'])] + mid
        if 'noepi' in EXP: epi = None
        if epi is not None: spread(fill, epi, 1, 16 if early else 26)
        out = []
        for t in range(28):
            T = 28 * st + t
            out += pre[t] + wread(T + 3, kinds) + [mf(T, w_is_a, dst)] + flat(head[t]) + flat(fill[t])
        out.append(I('s_barrier', needs=['i0', 'i1']))
        if k1.STAMP and 'stg' in EXP and st in (1, 2, 3):
            out += [I('s_memtime s[94:95]'), I('s_waitcnt lgkmcnt(0)'), I(f's_mov_b32 s{80 + 9 + st}, s94')]
        return out
    def xread(t0, t1, g):
        o = []
        for t in range(t0, t1):
            a, u = t >> 2, t & 3
            if t == 16:
                for uu in range(4): o.append(I(f'v_add_u32 v{xr[uu]}, 0x10000, v{xr[uu]}'))
            o.append(I(f'ds_read_b128 v[{XF+4*t}:{XF+4*t+3}], v{xr[u]} offset:{(a * 16384) & 0xffff}', gives=[g]))
        return o
    def stage0(kinds, w_is_a):
        o = [I('s_barrier', needs=['g0', 'g1', 'g2', 'lds:xn'])]
        if k1.STAMP: o += [I('s_memtime s[94:95]'), I('s_waitcnt lgkmcnt(0)'), I(f's_mov_b32 s{80+5}, s94')]
        xs = xread(0, 28, 'rd:x')
        xl = {}; t = 0
        for ins_ in xs:
            xl.setdefault(t, []).append(ins_)
            if ins_.kind == 'dsr': t += 1
        for tt in range(4):
            for x in xl[tt]:
                if x.kind == 'dsr': x.gives = ['rd:xa']
        o += xl[0]; o += wread(0, kinds); o += xl[1]; o += wread(1, kinds); o += xl[2]; o += wread(2, kinds); o += xl[3]
        o += xl[4] + xl[5]
        nx = 6
        for T in range(28):
            if T == 1:
                o += [I('s_barrier', needs=['rd:xa'])] + b_issue(3, kinds, 'g3')
            if T == 9:
                o += [I('s_barrier', needs=['rd:x'])] + b_issue(4, kinds, 'g4')
            if T == 13: o += b_issue(5, kinds, 'g5')
            if T == 17: o += b_issue(6, kinds, 'g6')
            if T == 21: o += b_issue(7, kinds, 'g7')
            if T == 25: o += b_issue(8, kinds, 'g8')
            if T == 18: o += [I('s_barrier', needs=['g3'])]
            if T == 25: o += [I('s_barrier', needs=['g4'])]
            for q in range(3):
                if nx < 28 and T < 9:
                    o += xl[nx]; nx += 1
            o += wread(T + 3, kinds)
            o.append(mf(T, w_is_a, B2))
        assert nx == 28
        return o
    hook = getattr(r, 'hook', None)
    H = lambda pt: (hook(pt) if hook else [])

    def merge_fill(a, b):
        o = []; n = max(len(a), len(b))
        for k in range(n):
            o += a[len(a) * k // n: len(a) * (k + 1) // n] + b[len(b) * k // n: len(b) * (k + 1) // n]
        return o
    p(f's_cmp_eq_u32 s{s_ty}, 0')
    p(f's_cbranch_scc1 {L("seqA")}')
    p.add(stage0(KX, False)); stamp(p, 6)
    p.add(stage(1, KX, True, B1, e_vv(), early=True))
    p.add(stage(2, KX, True, B2, None, mid=H('qkv')))
    p.add(stage(3, KX, True, B1, e_gu()))
    p.add(stage(4, KX, True, B2, (H('s4x_a') + H('s4x_b')) or None))
    stamp(p, 8)
    p.add(H('pre_fin'))
    p('s_nop 4')
    p.add(flat(e_gu()))
    p(f's_branch {L("fin")}')
    p.label(L('seqA'))
    p.add(stage0(KY, True)); stamp(p, 6)
    p.add(stage(1, KY, True, B2, e_qk(), early=True))
    p.add(stage(2, KY, True, B1, e_qk(), early=True))
    s3 = stage(3, KY, True, B2, [[]] * 2 + H('s4y_a'), mid=H('qkv'))
    p.add(s3)
    p.add(stage(4, KY, True, B1, merge_fill(e_gu(), H('s4y_b'))))
    stamp(p, 8)
    p.add(H('pre_fin2'))
    p('s_nop 4')
    p.add(flat(e_gu16(B1)))
    p.label(L('fin'))
    stamp(p, 9)

def gen_k1(name):
    p = Prog()
    L = lambda s: name + '_' + s
    r = regmap()
    p.label(name)
    p('s_cmp_ge_u32 s2, 256')
    p(f's_cbranch_scc1 {L("end")}')
    stamp(p, 0)
    phase1(p, L, r, False)
    p('s_waitcnt vmcnt(0) lgkmcnt(0)')
    k1.stamp_store(p, r.S_WS, r.s_w, 0)
    p.label(L('end'))
    p('s_endpgm')
    desc = f"""
.amdhsa_kernel {name}
  .amdhsa_next_free_vgpr 256
  .amdhsa_next_free_sgpr 102
  .amdhsa_accum_offset 256
  .amdhsa_group_segment_fixed_size 0
  .amdhsa_kernarg_size 80
  .amdhsa_user_sgpr_count 2
  .amdhsa_user_sgpr_kernarg_segment_ptr 1
  .amdhsa_system_sgpr_workgroup_id_x 1
  .amdhsa_float_denorm_mode_32 3
.end_amdhsa_kernel
"""
    return p, desc
```

```python
from asmlib import *
import k1
from k1 import stamp, WS_QF, WS_KV, WS_HF, WS_OF, WS_FLAG, hexf, flat
WS_FL = (16 << 20) + 4096

KVS = 16384; KVN = 3
G0 = KVS * KVN
KPI = 8
GA = 2 * KPI * 1024
GS = GA + KPI * 2048
GN = 3
GFIRST = 4
NGS = 14
NG_LOOP = 11
MARGIN = 64.0
L_Q = G0
T_OX = 0
T_WO = 105472
T_OF = 0
T_AX = 0

SCHEDS = {
 'a': dict(r0=0, r1=6, pvp=2, g00=10, pA0=14, sA0=18, g01=22, pA1=26, sA1=30, g10=34, pB0=38, sB0=42, g11=45, sB1=48),
 'b': dict(r0=8, r1=14, pvp=2, pA0=14, sA0=18, g00=22, pA1=26, sA1=30, g01=34, pB0=38, g10=41, sB0=44, g11=46, sB1=48),
 'c': dict(r0=5, r1=11, pvp=2, pA0=14, sA0=20, g00=24, pA1=27, sA1=31, g01=35, pB0=38, g10=41, sB0=44, g11=46, sB1=48),
 'f': dict(r0=11, r1=35, pvp=1, g00=6, g01=10, pA0=14, sA0=18, sA1=22, pA1=26, g10=30, g11=34, pB0=38, sB0=42, sB1=46),
 'g': dict(r0=11, r1=31, pvp=2, g00=6, g01=10, pA0=14, sA0=18, g10=22, pA1=26, g11=30, sA1=34, pB0=38, sB0=42, sB1=46),
 'd': dict(r0=10, r1=18, pvp=2, pA0=14, sA0=18, pA1=26, sA1=22, g00=30, g01=34, pB0=38, g10=41, sB0=44, g11=47, sB1=48),
}
SCHED = SCHEDS['b']
class R2: pass

class Ctx: pass

def make(L, S_WS, s_w, s_tag):
    SC = ' sc1'
    merged = True
    S_WD, S_WO, S_X, S_OUT = 8, 12, 96, 16
    s_hd, s_qb, s_tm, s_tn, s_gem = 31, 32, 33, 34, 35
    s_qp, s_kq, s_wn, s_k4 = 36, 37, 36, 37
    s_hi = 54
    s_t0, s_t1, s_t2, s_t3 = 58, 59, 60, 61
    s_kvg, s_kvm, s_gg, s_gm, s_gadv = 40, 41, 42, 43, 44
    s_soff, s_ost, s_flag, s_oo, s_i = 45, 46, 47, 48, 49
    s_wob, s_wom = 50, 51
    s_dsrd = 76
    s_qo = 53
    v_kv = 2
    v_h = [3, 4, 8]
    v_wv = [9, 10, 11]
    v_gd = [12, 13, 14, 15]
    v_bp, v_pw, v_xa = 16, 17, 18
    QA, QB = 20, 28
    KB, VB = [36, 44], [52, 60]
    SA, SB = [68, 84], [100, 116]
    PA, PB = 132, 140
    OA, OB = 148, 164
    ACC = [180, 196]
    HB = [[212, 216], [220, 224]]
    WB = [228, 232]
    XR = 236
    T = 240

    E = []
    def A(*txt): E.append([I(t) for t in txt])
    lane, m, hh = T, T + 4, T + 5
    A(f'v_and_b32 v{lane}, 63, v0', f's_and_b32 s{s_qp}, s{s_w}, 1', f's_lshr_b32 s{s_kq}, s{s_w}, 1')
    A(f's_and_b32 s{s_hd}, s2, 15', f's_lshr_b32 s{s_qb}, s2, 4', f's_lshr_b32 s{s_t0}, s2, 3', f's_mul_i32 s{s_t1}, s{s_t0}, 37',
      f's_lshr_b32 s{s_t1}, s{s_t1}, 8', f's_mul_i32 s{s_t2}, s{s_t1}, 7', f's_sub_u32 s{s_tn}, s{s_t0}, s{s_t2}')
    A(f's_and_b32 s{s_tm}, s2, 7', f's_lshl_b32 s{s_tm}, s{s_tm}, 2', f's_add_u32 s{s_tm}, s{s_tm}, s{s_t1}',
      's_cmp_lt_u32 s2, 224', f's_cselect_b32 s{s_gem}, 1, 0')
    A(f's_and_b32 s{s_t1}, s{s_hd}, 14', f's_mov_b32 s{s_t3}, s{s_t1}', f's_add_u32 s{s_t2}, s{s_t1}, 1',
      f'v_and_b32 v{T+1}, 15, v{lane}', f'v_lshlrev_b32 v{T+1}, 4, v{T+1}',
      f'v_add_u32 v{T+2}, s{s_t3}, v{T+1}', f'v_add_u32 v{T+3}, s{s_t2}, v{T+1}',
      f'v_cmp_gt_u32 vcc, 16, v{lane}', 's_nop 1', f'v_cndmask_b32 v{T+2}, v{T+3}, v{T+2}, vcc',
      f's_lshl_b32 s{s_t0}, s{s_qb}, 4', f's_add_u32 s{s_t0}, s{s_t0}, s{s_t1}', f'v_mov_b32 v{T+3}, s{s_t0}',
      f'v_cmp_gt_u32 vcc, 32, v{lane}', 's_nop 1', f'v_cndmask_b32 v{T+2}, v{T+3}, v{T+2}, vcc',
      f'v_lshlrev_b32 v{T+12}, 2, v{T+2}', f's_mov_b32 s{s_flag}, {WS_FL + 1*1024}')
    A(f's_lshl_b32 s{s_kvg}, s{s_hd}, 18', f's_lshl_b32 s{s_kvm}, s{s_w}, 11', f's_add_u32 s{s_kvg}, s{s_kvg}, s{s_kvm}',
      f's_add_u32 s{s_kvg}, s{s_kvg}, {WS_KV}')
    A(f's_lshl_b32 s{s_t1}, s{s_qb}, 2', f's_lshl_b32 s{s_t2}, s{s_qp}, 1', f's_add_u32 s{s_t1}, s{s_t1}, s{s_t2}',
      f's_lshr_b32 s{s_t2}, s{s_kq}, 1', f's_add_u32 s{s_t1}, s{s_t1}, s{s_t2}', f's_lshl_b32 s{s_oo}, s{s_t1}, 5',
      f's_lshl_b32 s{s_t2}, s{s_hd}, 1', f's_add_u32 s{s_oo}, s{s_oo}, s{s_t2}', f's_and_b32 s{s_t2}, s{s_kq}, 1',
      f's_add_u32 s{s_oo}, s{s_oo}, s{s_t2}', f's_lshl_b32 s{s_oo}, s{s_oo}, 10', f's_add_u32 s{s_oo}, s{s_oo}, {WS_OF}')
    for (Sd, lo, size) in ((S_WD, 28, 1792 * 896), (S_WO, 4, 448 * 896), (S_OUT, 38, 2048 * 896)):
        A(f's_mov_b32 s{Sd}, s{lo}', f's_mov_b32 s{Sd+1}, s{lo+1}', f's_mov_b32 s{Sd+2}, {size}', f's_mov_b32 s{Sd+3}, 0x20000')
    A(f's_lshl_b32 s{s_t0}, s{s_kq}, 12', f'v_add_u32 v{v_kv}, s{s_t0}, v1', f'v_and_b32 v{m}, 31, v0', f'v_bfe_u32 v{hh}, v0, 5, 1')
    A(f'v_lshrrev_b32 v{T+6}, 3, v{lane}', f'v_mul_u32_u24 v{T+6}, 896, v{T+6}', f'v_bfe_u32 v{T+7}, v{lane}, 4, 1')
    A(f'v_lshlrev_b32 v{T+7}, 2, v{T+7}', f'v_and_b32 v{T+8}, 7, v{lane}', f'v_xor_b32 v{T+7}, v{T+7}, v{T+8}')
    A(f'v_lshlrev_b32 v{T+7}, 4, v{T+7}', f'v_add_u32 v{v_bp}, v{T+6}, v{T+7}')
    a = [f's_cmp_lt_u32 s{s_w}, 4', f's_cbranch_scc0 {L("setB")}']
    a += [f'v_mov_b32 v{v_gd[q]}, v1' for q in range(4)]
    a += [f's_lshr_b32 s{s_t2}, s{s_w}, 1', f's_lshl_b32 s{s_t0}, s{s_tm}, 1', f's_add_u32 s{s_t0}, s{s_t0}, s{s_t2}',
          f's_mul_i32 s{s_gg}, s{s_t0}, {112*1024}', f's_and_b32 s{s_t3}, s{s_w}, 1', f's_lshl_b32 s{s_t3}, s{s_t3}, 12',
          f's_add_u32 s{s_gg}, s{s_gg}, s{s_t3}', f's_add_u32 s{s_gg}, s{s_gg}, {WS_HF}', f's_mov_b32 s{s_gadv}, {KPI*1024}',
          f's_lshl_b32 s{s_gm}, s{s_t2}, 13', f's_add_u32 s{s_gm}, s{s_gm}, s{s_t3}',
          f's_mov_b64 s[{s_dsrd}:{s_dsrd+1}], s[{S_WS}:{S_WS+1}]', f's_mov_b32 s{s_dsrd+2}, {k1.WS_SIZE}', f's_branch {L("setC")}',
          f'{L("setB")}:']
    a += [f'v_add_u32 v{v_gd[q]}, {q*(8*896-1024)}, v{v_bp}' for q in range(4)]
    a += [f's_sub_u32 s{s_t0}, s{s_w}, 4', f's_mul_i32 s{s_gg}, s{s_t0}, {32*896}', f's_lshl_b32 s{s_t1}, s{s_tn}, 7',
          f's_add_u32 s{s_gg}, s{s_gg}, s{s_t1}', f's_mov_b32 s{s_gadv}, {KPI*16*896}', f's_lshl_b32 s{s_gm}, s{s_t0}, 12',
          f's_add_u32 s{s_gm}, s{s_gm}, {GA}', f's_mov_b64 s[{s_dsrd}:{s_dsrd+1}], s[{S_WD}:{S_WD+1}]', f's_mov_b32 s{s_dsrd+2}, {1792*896}',
          f'{L("setC")}:', f's_mov_b32 s{s_dsrd+3}, 0x20000', f's_add_u32 s{s_gm}, s{s_gm}, {G0}']
    A(*a)
    A(f's_lshl_b32 s{s_t0}, s{s_tm}, 6', f's_lshr_b32 s{s_t1}, s{s_k4}, 1', f's_lshl_b32 s{s_t1}, s{s_t1}, 5', f's_add_u32 s{s_t0}, s{s_t0}, s{s_t1}',
      f's_mul_i32 s{s_t0}, s{s_t0}, 896', f's_lshl_b32 s{s_t1}, s{s_tn}, 7', f's_lshl_b32 s{s_t2}, s{s_wn}, 6',
      f's_add_u32 s{s_t0}, s{s_t0}, s{s_t1}', f's_add_u32 s{s_ost}, s{s_t0}, s{s_t2}', f's_and_b32 s{s_t0}, s{s_k4}, 1',
      f's_lshl_b32 s{s_t0}, s{s_t0}, 5', f's_add_u32 s{s_ost}, s{s_ost}, s{s_t0}')
    A(f'v_mul_u32_u24 v{v_xa}, 896, v{m}', f'v_lshlrev_b32 v{T+6}, 3, v{hh}', f'v_add_u32 v{v_xa}, v{v_xa}, v{T+6}')
    A(f'v_bfe_u32 v{T+6}, v{lane}, 2, 2', f'v_lshlrev_b32 v{T+7}, 2, v{hh}', f'v_add_u32 v{T+7}, v{T+7}, v{T+6}', f'v_lshlrev_b32 v{v_pw}, 7, v{T+7}')
    A(f'v_lshrrev_b32 v{T+6}, 1, v{T+6}', f'v_xor_b32 v{T+6}, s{s_wn}, v{T+6}', f'v_lshlrev_b32 v{T+6}, 6, v{T+6}', f'v_add_u32 v{v_pw}, v{v_pw}, v{T+6}')
    A(f'v_bfe_u32 v{T+6}, v{lane}, 4, 1', f'v_lshlrev_b32 v{T+6}, 5, v{T+6}', f'v_add_u32 v{v_pw}, v{v_pw}, v{T+6}')
    A(f'v_and_b32 v{T+6}, 3, v{lane}', f'v_lshlrev_b32 v{T+6}, 3, v{T+6}', f'v_add_u32 v{v_pw}, v{v_pw}, v{T+6}')
    for pos in range(GN):
        A(f's_lshl_b32 s{s_t0}, s{s_k4}, 11', f's_add_u32 s{s_t0}, s{s_t0}, {G0 + pos*GS}', f'v_add_u32 v{v_h[pos]}, s{s_t0}, v1',
          f's_lshl_b32 s{s_t1}, s{s_k4}, 12', f's_add_u32 s{s_t1}, s{s_t1}, {G0 + pos*GS + GA}', f'v_add_u32 v{v_wv[pos]}, s{s_t1}, v{v_pw}')
    A(f's_lshl_b32 s{s_wob}, s{s_tn}, 7', f's_mul_i32 s{s_t0}, s{s_w}, {8*896}', f's_add_u32 s{s_wob}, s{s_wob}, s{s_t0}', f's_lshl_b32 s{s_wom}, s{s_w}, 10')
    LATE = [I(t) for t in (f's_mov_b32 s{s_i}, 0x200000', f'{L("kvchk")}:',
      f'v_cmp_eq_u32 vcc, s{s_tag}, v{T+13}', 's_nop 0', 's_cmp_eq_u64 vcc, -1', f's_cbranch_scc1 {L("kvok")}',
      f'buffer_load_dword v{T+13}, v{T+12}, s[{S_WS}:{S_WS+3}], s{s_flag} offen sc1', 's_waitcnt vmcnt(0)',
      f's_sub_u32 s{s_i}, s{s_i}, 1', f's_cmp_lg_u32 s{s_i}, 0', f's_cbranch_scc1 {L("kvchk")}', f'{L("kvok")}:')]
    qa = [f's_lshl_b32 s{s_t0}, s{s_hd}, 6', f's_lshl_b32 s{s_t1}, s{s_qb}, 2', f's_add_u32 s{s_t0}, s{s_t0}, s{s_t1}',
          f's_lshl_b32 s{s_t0}, s{s_t0}, 11', f's_lshl_b32 s{s_t1}, s{s_w}, 10', f's_add_u32 s{s_t0}, s{s_t0}, s{s_t1}',
          f's_add_u32 s{s_qo}, s{s_t0}, {WS_QF}']
    A(*qa)
    E2 = [[I(f'buffer_load_dword v{T+13}, v{T+12}, s[{S_WS}:{S_WS+3}], s{s_flag} offen sc1')]]
    QL = [I(f's_lshl_b32 s{s_t0}, s{s_w}, 10'), I(f's_add_u32 m0, s{s_t0}, {L_Q}'), I('s_nop 0'),
          I(f'buffer_load_dwordx4 v1, s[{S_WS}:{S_WS+3}], s{s_qo} offen sc1 lds', gives=['kv0'])]

    def kv_issue(slot, g=()):
        pos = slot % KVN
        return [[I(f's_add_u32 m0, s{s_kvm}, {pos*KVS}'),
                 I(f's_add_u32 s{s_soff}, s{s_kvg}, {slot*KVS}'),
                 I(f'buffer_load_dwordx4 v1, s[{S_WS}:{S_WS+3}], s{s_soff} offen{SC} lds', gives=g)],
                [I(f'buffer_load_dwordx4 v1, s[{S_WS}:{S_WS+3}], s{s_soff} offen offset:1024{SC} lds', gives=g)]]
    def g_issue(gs):
        gv = ['g%d' % gs]
        pos = gs % GN
        o = []
        for q in range(4):
            a = []
            if q == 0: a += [I(f's_add_u32 m0, s{s_gm}, {pos*GS}'), I('s_nop 0')]
            sc = SC
            a.append(I(f'buffer_load_dwordx4 v{v_gd[q]}, s[{s_dsrd}:{s_dsrd+3}], s{s_gg} offen offset:{q*1024}{sc} lds', gives=gv))
            if q == 3: a.append(I(f's_add_u32 s{s_gg}, s{s_gg}, s{s_gadv}'))
            o.append(a)
        return o
    st7 = [I('s_memtime s[94:95]'), I('s_waitcnt lgkmcnt(0)'), I('s_mov_b32 s87, s94')] if k1.STAMP else []
    first_kv = LATE + st7 + flat(kv_issue(0, ['kv0'])) + QL
    second_kv = flat(kv_issue(1, ['kv1']))
    return E, first_kv, locals()

def phase2(p, L, S_WS, s_w, s_tag, C):
    globals_ = C
    for k in ('SC', 'merged', 'S_WD', 'S_WO', 'S_X', 'S_OUT', 's_hd', 's_qb', 's_tm', 's_tn', 's_gem', 's_qp', 's_kq', 's_wn', 's_k4', 's_hi',
              's_t0', 's_t1', 's_t2', 's_t3', 's_kvg', 's_kvm', 's_gg', 's_gm', 's_gadv', 's_soff', 's_ost', 's_flag', 's_oo', 's_i', 's_wob', 's_wom',
              's_dsrd', 'v_kv', 'v_h', 'v_wv', 'v_gd', 'v_bp', 'v_pw', 'v_xa', 'QA', 'QB', 'KB', 'VB', 'SA', 'SB', 'PA', 'PB', 'OA', 'OB', 'ACC',
              'HB', 'WB', 'XR', 'T', 'kv_issue', 'g_issue'):
        pass
    (SC, merged, S_WD, S_WO, S_X, S_OUT, s_hd, s_qb, s_tm, s_tn, s_gem, s_qp, s_kq, s_wn, s_k4, s_hi, s_t0, s_t1, s_t2, s_t3, s_kvg, s_kvm,
     s_gg, s_gm, s_gadv, s_soff, s_ost, s_flag, s_oo, s_i, s_wob, s_wom, s_dsrd, v_kv, v_h, v_wv, v_gd, v_bp, v_pw, v_xa, QA, QB, KB, VB,
     SA, SB, PA, PB, OA, OB, ACC, HB, WB, XR, T, kv_issue, g_issue) = [C[k] for k in (
     'SC', 'merged', 'S_WD', 'S_WO', 'S_X', 'S_OUT', 's_hd', 's_qb', 's_tm', 's_tn', 's_gem', 's_qp', 's_kq', 's_wn', 's_k4', 's_hi',
     's_t0', 's_t1', 's_t2', 's_t3', 's_kvg', 's_kvm', 's_gg', 's_gm', 's_gadv', 's_soff', 's_ost', 's_flag', 's_oo', 's_i', 's_wob', 's_wom',
     's_dsrd', 'v_kv', 'v_h', 'v_wv', 'v_gd', 'v_bp', 'v_pw', 'v_xa', 'QA', 'QB', 'KB', 'VB', 'SA', 'SB', 'PA', 'PB', 'OA', 'OB', 'ACC',
     'HB', 'WB', 'XR', 'T', 'kv_issue', 'g_issue')]
    p.add(C['second_kv'])
    stamp(p, 1)
    mm = lambda d, a, b, c: I(f'v_mfma_f32_32x32x16_bf16 v[{d}:{d+15}], v[{a}:{a+3}], v[{b}:{b+3}], {c}')
    def rdK(buf, pos, g=()):
        return [I(f'ds_read_b128 v[{buf}:{buf+3}], v{v_kv} offset:{pos*KVS}', gives=g),
                I(f'ds_read_b128 v[{buf+4}:{buf+7}], v{v_kv} offset:{pos*KVS+1024}', gives=g)]
    def rdV(buf, pos, g=()):
        return [I(f'ds_read_b128 v[{buf}:{buf+3}], v{v_kv} offset:{pos*KVS+2048}', gives=g),
                I(f'ds_read_b128 v[{buf+4}:{buf+7}], v{v_kv} offset:{pos*KVS+3072}', gives=g)]
    p.add([I('s_barrier', needs=['kv0'])])
    stamp(p, 2)
    ab0 = getattr(phase2, 'after_beta0', None)
    p(f's_lshl_b32 s{s_t0}, s{s_qp}, 12')
    p(f'v_add_u32 v{T+1}, s{s_t0}, v1')
    for i in range(4):
        p.add([I(f'ds_read_b128 v[{QA+4*i}:{QA+4*i+3}], v{T+1} offset:{L_Q + i*1024}', gives=['rd:kv'])])
    KT = HB[0][0]
    p(f'ds_read_b128 v[{KT}:{KT+3}], v1')
    p(f'ds_read_b128 v[{KT+4}:{KT+7}], v1 offset:1024')
    p.add(rdK(KB[0], 0) + rdV(VB[0], 0, ['rd:kv']))
    p.add(flat(kv_issue(2, ['kv2'])))
    def sS(dst, kb, Q, part):
        return mm(dst, kb + 4 * part, Q + 4 * part, '0' if part == 0 else f'v[{dst}:{dst+15}]')
    for (Sx, Q) in ((SA[1], QA), (SB[1], QB)):
        p.add([sS(Sx, KT, Q, 0), sS(Sx, KT, Q, 1)])
    for (s0, Q, tt) in ((SA[1], QA, T), (SB[1], QB, T + 4)):
        p(f'v_max3_f32 v{tt}, v{s0}, v{s0+1}, v{s0+2}')
        p(f'v_max3_f32 v{tt+1}, v{s0+3}, v{s0+4}, v{s0+5}')
        p(f'v_max3_f32 v{tt+2}, v{s0+6}, v{s0+7}, v{s0+8}')
        p(f'v_max3_f32 v{tt+3}, v{s0+9}, v{s0+10}, v{s0+11}')
        p(f'v_max3_f32 v{tt}, v{tt}, v{s0+12}, v{s0+13}')
        p(f'v_max3_f32 v{tt+1}, v{tt+1}, v{s0+14}, v{s0+15}')
        p(f'v_max3_f32 v{tt}, v{tt}, v{tt+1}, v{tt+2}')
        p(f'v_max_f32 v{tt}, v{tt}, v{tt+3}')
    for (Q, tt) in ((QA, T), (QB, T + 4)):
        p(f'v_mov_b32 v{tt+1}, v{tt}')
        p(f'v_permlane32_swap_b32 v{tt}, v{tt+1}')
        p(f'v_max_f32 v{tt}, v{tt}, v{tt+1}')
        p(f'v_add_f32 v{tt}, {hexf(MARGIN)}, v{tt}')
        p(f'v_sub_f32 v{tt}, 0, v{tt}')
        p(f'v_mov_b32 v{tt+1}, 0')
        p(f'v_cvt_pk_bf16_f32 v{tt}, v{tt}, v{tt+1}')
        p(f'v_cndmask_b32 v{Q+6}, v{Q+6}, v{tt}, s[{s_hi}:{s_hi+1}]')
    for (Sx, Q) in ((SA[0], QA), (SB[0], QB)):
        p.add([sS(Sx, KB[0], Q, 0), sS(Sx, KB[0], Q, 1)])
    p.add([I('s_barrier', needs=['st:h'])])
    if ab0: p.add(ab0())
    p('s_nop 8')
    stamp(p, 3)

    def g_reads(gs, q):
        pos = gs % GN
        wb = WB[q]
        return [I(f'ds_read_b64_tr_b16 v[{wb}:{wb+1}], v{v_wv[pos]} offset:{q*2048}', gives=['rd:g']),
                I(f'ds_read_b64_tr_b16 v[{wb+2}:{wb+3}], v{v_wv[pos]} offset:{q*2048+1024}', gives=['rd:g']),
                I(f'ds_read_b128 v[{HB[q][0]}:{HB[q][0]+3}], v{v_h[pos]} offset:{q*1024}', gives=['rd:g']),
                I(f'ds_read_b128 v[{HB[q][1]}:{HB[q][1]+3}], v{v_h[pos]} offset:{q*1024+8192}', gives=['rd:g'])]
    def g_mfma(q, rbk, first=False): return mm(ACC[rbk], WB[q], HB[q][rbk], '0' if first else f'v[{ACC[rbk]}:{ACC[rbk]+15}]')

    def period(n, gem):
        i0, i1 = n & 1, (n + 1) & 1
        last = (n == 15)
        def grp(S, P, g):
            c = S[i0]
            return [I(f'v_exp_f32 v{c+4*g+k}, v{c+4*g+k}') for k in range(4)] + \
                   [I(f'v_cvt_pk_bf16_f32 v{P+2*g}, v{c+4*g}, v{c+4*g+1}'), I(f'v_cvt_pk_bf16_f32 v{P+2*g+1}, v{c+4*g+2}, v{c+4*g+3}')]
        pv = lambda O, P, part: mm(O, VB[i0] + 4 * part, P + 4 * part, '0' if (n == 0 and part == 0) else f'v[{O}:{O+15}]')
        pvp = mm(OB, VB[i1] + 4, PB + 4, f'v[{OB}:{OB+15}]')
        pos = (n + 1) % KVN
        rk = [] if last else rdK(KB[i1], pos, ['rd:kv'])
        rv = [] if last else rdV(VB[i1], pos, ['rd:kv'])
        beta = n + 1
        gs = beta - GFIRST
        do_g = gem and 0 <= gs < NG_LOOP
        if 'nogc' in k1.EXP: do_g = False
        kvi = kv_issue(beta + 2, ['kv%d' % (beta + 2)]) if beta + 2 <= 15 else [[], []]
        gi_slot = beta + 2 - GFIRST
        gi = g_issue(gi_slot) if (gem and 0 <= gi_slot < NGS) else [[], [], [], []]
        if 'nogd' in k1.EXP: gi = [[], [], [], []]
        if 'nokv' in k1.EXP: kvi = [[], []]
        wo = wo_issue(beta) if gem else [[]] * 8
        gr0 = g_reads(gs, 0) if do_g else []
        gr1 = g_reads(gs, 1) if do_g else []
        piped = any(e in ('schf', 'schg') for e in k1.EXP)
        if piped:
            do_m = gem and 0 <= gs - 1 < NG_LOOP and 'nogc' not in k1.EXP
            gm = lambda q, rb: [g_mfma(q, rb, gs - 1 == 0 and q == 0)] if do_m else []
        else:
            gm = lambda q, rb: [g_mfma(q, rb, gs == 0 and q == 0)] if do_g else []
        S_ = lambda S, Q, part: [] if last else [sS(S[i1], KB[i1], Q, part)]
        valu = []
        for g in range(4): valu += grp(SA, PA, g)
        for g in range(4): valu += grp(SB, PB, g)
        ins = {k: [] for k in range(49)}
        sched = SCHED
        for e in k1.EXP:
            if e.startswith('sch'): sched = SCHEDS[e[3:]]
        ins[0] += rk
        ins[sched['r0']] += gr0
        ins[sched['pvp']] += ([pvp] if n > 0 else []) + rv
        ins[sched['g00']] += gm(0, 0)
        ins[sched['pA0']] += [pv(OA, PA, 0)]
        ins[sched['sA0']] += S_(SA, QA, 0)
        ins[sched['g01']] += gm(0, 1)
        ins[sched['pA1']] += [pv(OA, PA, 1)]
        ins[sched['sA1']] += S_(SA, QA, 1)
        ins[sched['g10']] += gm(1, 0)
        ins[sched['pB0']] += [pv(OB, PB, 0)]
        ins[sched['sB0']] += S_(SB, QB, 0)
        ins[sched['g11']] += gm(1, 1)
        ins[sched['sB1']] += S_(SB, QB, 1)
        ins[sched['r1']] += gr1
        mem = [kvi[0], kvi[1], gi[0], gi[1], gi[2], gi[3]] + wo[:6]
        mem = [a for a in mem if a]
        if gem and gi_slot == 0:
            issue, check = phase2.h_poll()
            ins[0] = issue + ins[0]
            for k, a in enumerate([kvi[0], kvi[1]]): ins[4 + 4 * k] += flat(a)
            ins[28] += check
            for k, a in enumerate(gi): ins[30 + 4 * k] += flat(a)
            mem = []
        for k, a in enumerate(mem):
            ins[4 + 4 * k if len(mem) <= 10 else 3 + 3 * k] += flat(a)
        if 'tog' in k1.EXP:
            u = '%d%d' % (n, gem)
            ins[0] = [I(f's_cmp_lt_u32 s{s_w}, 4'), I(f's_cbranch_scc1 {L("tg0_" + u)}'), I('s_setprio 2'), I(f'{L("tg0_" + u)}:')] + ins[0]
            ins[28] = [I(f's_cmp_lt_u32 s{s_w}, 4'), I(f's_cbranch_scc1 {L("tg1_" + u)}'), I('s_setprio 0'), I(f'{L("tg1_" + u)}:')] + ins[28]
        if 'mprio' in k1.EXP:
            for k in list(ins.keys()):
                nw = []
                for x in ins[k]:
                    if isinstance(x, Ins) and x.kind == 'mfma': nw += [I('s_setprio 3'), x, I('s_setprio 0')]
                    else: nw.append(x)
                ins[k] = nw
        o = []
        for k in range(48):
            o += ins[k] + [valu[k]]
        o += ins[48]
        if last: o += [mm(OB, VB[i0] + 4, PB + 4, f'v[{OB}:{OB+15}]')]
        return o

    def wo_ld(q0):
        return [I(f's_add_u32 m0, s{s_wom}, {T_WO + q0*1024}'),
                I(f's_add_u32 s{s_t1}, s{s_wob}, {q0*8*896}'),
                I(f'buffer_load_dwordx4 v{v_bp}, s[{S_WO}:{S_WO+3}], s{s_t1} offen lds')]
    def wo_issue(beta):
        return [[]] * 8

    if 'tog' in k1.EXP:
        p(f's_cmp_lt_u32 s{s_w}, 4')
        p(f's_cbranch_scc0 {L("np2")}')
        p('s_setprio 1')
        p.label(L('np2'))
    if 'prio1' in k1.EXP:
        p(f's_cmp_lt_u32 s{s_w}, 4')
        p(f's_cbranch_scc1 {L("np1")}')
        p('s_setprio 1')
        p.label(L('np1'))
    for gem in (1, 0):
        if gem:
            p(f's_cmp_eq_u32 s{s_gem}, 0')
            p(f's_cbranch_scc1 {L("loop_n")}')
            for i in range(2):
                p(f'buffer_load_dwordx2 v[{XR+2*i}:{XR+2*i+1}], v{v_xa}, s[{S_X}:{S_X+3}], s{s_ost} offen offset:{16*i}')
        else:
            p.label(L('loop_n'))
        for n in range(16):
            beta = n + 1
            if True:
                needs = ['rd:kv', 'rd:g']
                if beta <= 15: needs.append('kv%d' % beta)
                if gem and 0 <= beta - GFIRST < NG_LOOP: needs.append('g%d' % (beta - GFIRST))
                bw = k1.STAMP and 'bw' in k1.EXP
                if bw: p.add([I('s_memtime s[92:93]'), I('s_waitcnt lgkmcnt(0)')])
                p.add([I('s_barrier', needs=needs)])
                if bw:
                    p.add([I('s_memtime s[94:95]'), I('s_waitcnt lgkmcnt(0)'), I('s_sub_u32 s94, s94, s92')])
                    p.add([I('s_mov_b32 s91, s94') if beta == 1 else I('s_add_u32 s91, s91, s94')])
                    if beta in (2, 3, 4): p.add([I(f's_mov_b32 s{80 + 10 + beta}, s94')]) if beta != 2 else None
            p.add(period(n, gem))
        stamp(p, 4)
        if gem: p(f's_branch {L("tail")}')
    p.label(L('tail'))
    OXHI = 147456 - 12 * 4096
    p(f's_lshl_b32 s{s_t0}, s{s_qp}, 2')
    p(f's_add_u32 s{s_t0}, s{s_t0}, s{s_kq}')
    p(f's_lshl_b32 s{s_t1}, s{s_t0}, 13')
    p(f's_cmp_ge_u32 s{s_t0}, 6')
    p(f's_cselect_b32 s{s_t2}, {OXHI}, 0')
    p(f's_add_u32 s{s_t1}, s{s_t1}, s{s_t2}')
    p(f'v_add_u32 v{T}, s{s_t1}, v1')
    for u, O in enumerate((OA, OB)):
        for i in range(4):
            p.add([I(f'ds_write_b128 v{T}, v[{O+4*i}:{O+4*i+3}] offset:{u*4096 + i*1024}', gives=['lds:ox'])])
    p(f's_lshr_b32 s{s_t1}, s{s_kq}, 1')
    p(f's_lshl_b32 s{s_t1}, s{s_t1}, 12')
    p(f's_and_b32 s{s_t2}, s{s_kq}, 1')
    p(f's_lshl_b32 s{s_t3}, s{s_t2}, 11')
    p(f's_add_u32 s{s_t3}, s{s_t3}, s{s_t1}')
    p(f's_lshl_b32 s{s_t0}, s{s_qp}, 15')
    p(f'v_or_b32 v{T+3}, 512, v1')
    for k in range(4):
        if k < 2:
            p(f's_cmp_eq_u32 s{s_qp}, 7')
            p(f's_add_u32 s{s_soff}, s{s_t0}, {k*8192}')
            if True:
                pass
        else:
            p(f's_cmp_eq_u32 s{s_qp}, 1')
            p(f's_cselect_b32 s{s_soff}, {OXHI}, 0')
            p(f's_add_u32 s{s_soff}, s{s_soff}, s{s_t0}')
            p(f's_add_u32 s{s_soff}, s{s_soff}, {k*8192}')
        p(f's_add_u32 s{s_i}, s{s_soff}, s{s_t3}')
        p(f'v_add_u32 v{T+4+k}, s{s_i}, v1')
        p(f's_add_u32 s{s_i}, s{s_soff}, s{s_t1}')
        p(f'v_add_u32 v{T+8+k}, s{s_i}, v{T+3}')
    p.add([I('s_barrier', needs=['lds:ox', 'g11', 'g12', 'g13'])])
    X = SA[0]
    LP = SA[0] + 32
    for k in range(4):
        p(f'ds_read_b128 v[{X+8*k}:{X+8*k+3}], v{T+4+k}')
        p(f'ds_read_b128 v[{X+8*k+4}:{X+8*k+7}], v{T+4+k} offset:1024')
        p(f'ds_read_b32 v{LP+k}, v{T+8+k} offset:3072')
    for q in range(8):
        p(f'v_add_f32 v{X+q}, v{X+q}, v{X+8+q}')
        p(f'v_add_f32 v{X+16+q}, v{X+16+q}, v{X+24+q}')
    p(f'v_add_f32 v{LP}, v{LP}, v{LP+1}')
    p(f'v_add_f32 v{LP+2}, v{LP+2}, v{LP+3}')
    for q in range(8): p(f'v_add_f32 v{X+q}, v{X+q}, v{X+16+q}')
    p(f'v_add_f32 v{T+4}, v{LP}, v{LP+2}')
    stamp(p, 5)
    p(f'v_mul_f32 v{T+5}, 0, v{X}')
    for q in range(1, 8): p(f'v_fma_f32 v{T+5}, v{X+q}, 0, v{T+5}')
    p(f'v_add_f32 v{T+5}, v{T+5}, v{T+4}')
    p(f'v_mov_b32 v{T+6}, {hexf(2.0**-80)}')
    p(f'v_mov_b32 v{T+7}, 0x7f800000')
    p(f'v_cmp_ge_f32 s[{s_t0}:{s_t0+1}], v{T+5}, v{T+6}')
    p(f'v_cmp_lt_f32 vcc, v{T+5}, v{T+7}')
    p(f's_and_b64 vcc, vcc, s[{s_t0}:{s_t0+1}]')
    p(f's_cmp_eq_u64 vcc, -1')
    p(f's_cbranch_scc0 {L("slow")}')
    p.label(L('astore'))
    p(f'v_rcp_f32 v{T+5}, v{T+4}')
    for q in range(8): p(f'v_mul_f32 v{X+q}, v{X+q}, v{T+5}')
    for d in range(4): p(f'v_cvt_pk_bf16_f32 v{PA+d}, v{X+2*d}, v{X+2*d+1}')
    p(f's_and_b32 s{s_t2}, s{s_kq}, 1')
    p(f's_cmp_eq_u32 s{s_t2}, 0')
    p(f's_cselect_b32 s{s_t1}, 0, -1')
    p(f's_mov_b32 s{s_t0}, 0')
    p(f'v_mov_b32 v{T}, 0')
    p(f'v_cndmask_b32 v{PA+2}, v{PA+2}, v{T}, s[{s_t0}:{s_t0+1}]')
    p(f'v_cndmask_b32 v{PA+3}, v{PA+3}, v{T}, s[{s_t0}:{s_t0+1}]')
    p(f'buffer_store_dwordx4 v[{PA}:{PA+3}], v1, s[{S_WS}:{S_WS+3}], s{s_oo} offen sc1')
    p(f's_cmp_eq_u32 s{s_gem}, 0')
    p(f's_cbranch_scc1 {L("nog11")}')
    p.add(g_reads(11, 0) + g_reads(11, 1))
    p.add([g_mfma(0, 0), g_mfma(0, 1), g_mfma(1, 0), g_mfma(1, 1)])
    p.label(L('nog11'))
    p('s_waitcnt vmcnt(0)')
    stamp(p, 6)
    p('s_barrier')
    p(f's_cmp_eq_u32 s{s_w}, 0')
    p(f's_cbranch_scc0 {L("noflag")}')
    p(f's_lshl_b32 s{s_t2}, s{s_qb}, 4')
    p(f's_add_u32 s{s_t2}, s{s_t2}, s{s_hd}')
    p(f's_lshl_b32 s{s_t2}, s{s_t2}, 2')
    p(f's_add_u32 s{s_t2}, s{s_t2}, {WS_FL + 3*1024}')
    p(f'v_mov_b32 v{T+1}, s{s_tag}')
    p(f'v_mov_b32 v{T}, 0')
    p(f'buffer_store_dword v{T+1}, v{T}, s[{S_WS}:{S_WS+3}], s{s_t2} offen sc1')
    p.label(L('noflag'))
    p(f's_cmp_eq_u32 s{s_gem}, 0')
    p(f's_cbranch_scc1 {L("fin")}')
    for gs in (12, 13):
        p.add(g_reads(gs, 0) + g_reads(gs, 1))
        p.add([g_mfma(0, 0), g_mfma(0, 1), g_mfma(1, 0), g_mfma(1, 1)])
    p.add([I('s_barrier', needs=['rd:g'])])
    for k in range(7): p.add(wo_ld(8 * k))
    p(f's_cmp_eq_u32 s{s_w}, 0')
    p(f's_cbranch_scc0 {L("nowo2")}')
    p.add(wo_ld(56))
    p.label(L('nowo2'))
    AX1 = 65536
    p(f's_lshl_b32 s{s_t0}, s{s_w}, 12')
    p(f's_add_u32 s{s_t0}, s{s_t0}, {AX1}')
    p(f'v_add_u32 v{T}, s{s_t0}, v1')
    p(f's_xor_b32 s{s_t0}, s{s_w}, 4')
    p(f's_lshl_b32 s{s_t0}, s{s_t0}, 12')
    p(f's_add_u32 s{s_t0}, s{s_t0}, {AX1}')
    p(f'v_add_u32 v{T+1}, s{s_t0}, v1')
    p(f's_cmp_lt_u32 s{s_w}, 4')
    p(f's_cbranch_scc0 {L("sw1")}')
    for i in range(4):
        p.add([I(f'ds_write_b128 v{T}, v[{ACC[1]+4*i}:{ACC[1]+4*i+3}] offset:{i*1024}', gives=['lds:ax1'])])
    p(f's_branch {L("sw2")}')
    p.label(L('sw1'))
    for i in range(4):
        p.add([I(f'ds_write_b128 v{T}, v[{ACC[0]+4*i}:{ACC[0]+4*i+3}] offset:{i*1024}', gives=['lds:ax1'])])
    p('s_waitcnt lgkmcnt(0)')
    for q in range(16): p(f'v_mov_b32 v{ACC[0]+q}, v{ACC[1]+q}')
    p.label(L('sw2'))
    p.add([I('s_barrier', needs=['lds:ax1'])])
    for i in range(4):
        p(f'ds_read_b128 v[{X+4*i}:{X+4*i+3}], v{T+1} offset:{i*1024}')
    for q in range(16): p(f'v_add_f32 v{ACC[0]+q}, v{ACC[0]+q}, v{X+q}')
    p(f's_lshr_b32 s{s_t0}, s{s_tm}, 1')
    p(f's_lshl_b32 s{s_t0}, s{s_t0}, 6')
    p(f's_add_u32 s{s_flag}, s{s_t0}, {WS_FL + 3*1024}')
    p(f'v_and_b32 v{T}, 15, v0')
    p(f'v_lshlrev_b32 v{T}, 2, v{T}')
    p(f's_mov_b32 s{s_i}, 0x200000')
    p.label(L('poll'))
    p(f'buffer_load_dword v{T+1}, v{T}, s[{S_WS}:{S_WS+3}], s{s_flag} offen sc1')
    p('s_waitcnt vmcnt(0)')
    p(f'v_cmp_eq_u32 vcc, s{s_tag}, v{T+1}')
    p('s_cmp_eq_u64 vcc, -1')
    p(f's_cbranch_scc1 {L("polled")}')
    p(f's_sub_u32 s{s_i}, s{s_i}, 1')
    p(f's_cmp_lg_u32 s{s_i}, 0')
    p(f's_cbranch_scc1 {L("poll")}')
    p.label(L('polled'))
    stamp(p, 8)
    p(f's_lshl_b32 s{s_t0}, s{s_tm}, 16')
    p(f's_lshl_b32 s{s_t1}, s{s_w}, 13')
    p(f's_add_u32 s{s_t0}, s{s_t0}, s{s_t1}')
    p(f's_add_u32 s{s_t0}, s{s_t0}, {WS_OF}')
    p(f's_add_u32 m0, s{s_t1}, {T_OF}')
    for q in range(8):
        if q == 4:
            p('s_addk_i32 m0, 4096')
            p(f's_add_u32 s{s_t0}, s{s_t0}, 4096')
        p(f'buffer_load_dwordx4 v1, s[{S_WS}:{S_WS+3}], s{s_t0} offen offset:{(q&3)*1024} sc1 lds')
    p(f's_and_b32 s{s_t2}, s{s_k4}, 1')
    p(f's_lshr_b32 s{s_t3}, s{s_k4}, 1')
    p(f's_lshl_b32 s{s_t0}, s{s_t3}, 15')
    p(f's_lshl_b32 s{s_t1}, s{s_t2}, 14')
    p(f's_add_u32 s{s_t0}, s{s_t0}, s{s_t1}')
    p(f'v_add_u32 v{v_h[0]}, s{s_t0}, v1')
    p(f's_mul_i32 s{s_t1}, s{s_t2}, {224*128}')
    p(f's_add_u32 s{s_t1}, s{s_t1}, {T_WO}')
    p(f'v_add_u32 v{v_wv[0]}, s{s_t1}, v{v_pw}')
    p(f's_lshl_b32 s{s_t0}, s{s_w}, 11')
    p(f's_add_u32 s{s_t0}, s{s_t0}, 65536')
    p(f'v_add_u32 v{T+2}, s{s_t0}, v1')
    p(f's_xor_b32 s{s_t0}, s{s_w}, 2')
    p(f's_lshl_b32 s{s_t0}, s{s_t0}, 11')
    p(f's_add_u32 s{s_t0}, s{s_t0}, 65536')
    p(f'v_add_u32 v{T+3}, s{s_t0}, v1')
    p('s_waitcnt vmcnt(0)')
    p('s_barrier')
    stamp(p, 7)
    OB3 = [HB[0][0], HB[0][1], HB[1][0]]
    WB3 = [WB[0], WB[1], HB[1][1]]
    def o_reads(q):
        row = 28 * (q >> 1) + 16 * (q & 1)
        wb = WB3[q % 3]; hb = OB3[q % 3]
        return [I(f'ds_read_b64_tr_b16 v[{wb}:{wb+1}], v{v_wv[0]} offset:{row*128}'),
                I(f'ds_read_b64_tr_b16 v[{wb+2}:{wb+3}], v{v_wv[0]} offset:{row*128+1024}'),
                I(f'ds_read_b128 v[{hb}:{hb+3}], v{v_h[0]} offset:{T_OF + q*1024}')]
    p.add(o_reads(0) + o_reads(1) + o_reads(2))
    for q in range(16):
        p.add([mm(ACC[0], WB3[q % 3], OB3[q % 3], f'v[{ACC[0]}:{ACC[0]+15}]')])
        if q + 3 < 16: p.add(o_reads(q + 3))
    stamp(p, 9)
    p(f's_and_b32 s{s_t2}, s{s_k4}, 1')
    p(f's_cmp_eq_u32 s{s_t2}, 0')
    p(f's_cbranch_scc0 {L("x1")}')
    p.add([I(f'ds_write_b128 v{T+2}, v[{ACC[0]+8}:{ACC[0]+11}]', gives=['lds:ax']), I(f'ds_write_b128 v{T+2}, v[{ACC[0]+12}:{ACC[0]+15}] offset:1024', gives=['lds:ax'])])
    p(f's_branch {L("x2")}')
    p.label(L('x1'))
    p.add([I(f'ds_write_b128 v{T+2}, v[{ACC[0]}:{ACC[0]+3}]', gives=['lds:ax']), I(f'ds_write_b128 v{T+2}, v[{ACC[0]+4}:{ACC[0]+7}] offset:1024', gives=['lds:ax'])])
    p('s_waitcnt lgkmcnt(0)')
    for q in range(8): p(f'v_mov_b32 v{ACC[0]+q}, v{ACC[0]+8+q}')
    p.label(L('x2'))
    p.add([I('s_barrier', needs=['lds:ax'])])
    p(f'ds_read_b128 v[{X}:{X+3}], v{T+3}')
    p(f'ds_read_b128 v[{X+4}:{X+7}], v{T+3} offset:1024')
    for q in range(8): p(f'v_add_f32 v{X+q}, v{X+q}, v{ACC[0]+q}')
    for i in range(2):
        for hlf in range(2):
            xr = XR + 2 * i + hlf
            p(f'v_lshlrev_b32 v{T+4+2*hlf}, 16, v{xr}')
            p(f'v_and_b32 v{T+5+2*hlf}, 0xffff0000, v{xr}')
            p(f'v_add_f32 v{T+4+2*hlf}, v{T+4+2*hlf}, v{X+4*i+2*hlf}')
            p(f'v_add_f32 v{T+5+2*hlf}, v{T+5+2*hlf}, v{X+4*i+2*hlf+1}')
            p(f'v_cvt_pk_bf16_f32 v{xr}, v{T+4+2*hlf}, v{T+5+2*hlf}')
        p(f'buffer_store_dwordx2 v[{XR+2*i}:{XR+2*i+1}], v{v_xa}, s[{S_OUT}:{S_OUT+3}], s{s_ost} offen offset:{16*i}')
    p.label(L('fin'))
    if k1.STAMP: p('s_waitcnt vmcnt(0)')
    stamp(p, 10)
    k1.stamp_store(p, S_WS, s_w, 1)
    p('s_endpgm')

    p.label(L('slow'))
    Q = KB[1]; O = OA; M = T + 8; s0 = SB[0]
    p(f's_lshr_b32 s{s_t1}, s{s_kq}, 1')
    p(f's_cmp_eq_u32 s{s_t1}, 0')
    p(f's_cbranch_scc1 {L("sl_a")}')
    for q in range(8): p(f'v_mov_b32 v{Q+q}, v{QB+q}')
    p(f's_branch {L("sl_b")}')
    p.label(L('sl_a'))
    for q in range(8): p(f'v_mov_b32 v{Q+q}, v{QA+q}')
    p.label(L('sl_b'))
    p(f'v_mov_b32 v{T}, 0')
    p(f'v_cndmask_b32 v{Q+6}, v{Q+6}, v{T}, s[{s_hi}:{s_hi+1}]')
    for q in range(16): p(f'v_mov_b32 v{O+q}, 0')
    p(f'v_mov_b32 v{M}, 0xff800000')
    p(f's_lshl_b32 s{s_t2}, s{s_hd}, 18')
    p(f's_add_u32 s{s_t2}, s{s_t2}, {WS_KV}')
    p(f's_mov_b32 s{s_i}, 64')
    p.label(L('sloop'))
    p(f'buffer_load_dwordx4 v[{KB[0]}:{KB[0]+3}], v1, s[{S_WS}:{S_WS+3}], s{s_t2} offen{SC}')
    p(f'buffer_load_dwordx4 v[{KB[0]+4}:{KB[0]+7}], v1, s[{S_WS}:{S_WS+3}], s{s_t2} offen offset:1024{SC}')
    p(f'buffer_load_dwordx4 v[{VB[0]}:{VB[0]+3}], v1, s[{S_WS}:{S_WS+3}], s{s_t2} offen offset:2048{SC}')
    p(f'buffer_load_dwordx4 v[{VB[0]+4}:{VB[0]+7}], v1, s[{S_WS}:{S_WS+3}], s{s_t2} offen offset:3072{SC}')
    p.add([sS(s0, KB[0], Q, 0), sS(s0, KB[0], Q, 1)])
    p(f'v_max3_f32 v{T}, v{s0}, v{s0+1}, v{s0+2}')
    for q in range(3, 15, 2): p(f'v_max3_f32 v{T}, v{T}, v{s0+q}, v{s0+q+1}')
    p(f'v_max_f32 v{T}, v{T}, v{s0+15}')
    p(f'v_mov_b32 v{T+1}, v{T}')
    p(f'v_permlane32_swap_b32 v{T}, v{T+1}')
    p(f'v_max3_f32 v{T}, v{T}, v{T+1}, v{M}')
    p(f'v_sub_f32 v{T+1}, v{M}, v{T}')
    p(f'v_exp_f32 v{T+1}, v{T+1}')
    p(f'v_mov_b32 v{M}, v{T}')
    for q in range(16): p(f'v_sub_f32 v{s0+q}, v{s0+q}, v{M}')
    for q in range(16): p(f'v_exp_f32 v{s0+q}, v{s0+q}')
    for q in range(16): p(f'v_mul_f32 v{O+q}, v{O+q}, v{T+1}')
    for d in range(8): p(f'v_cvt_pk_bf16_f32 v{PA+d}, v{s0+2*d}, v{s0+2*d+1}')
    p.add([mm(O, VB[0], PA, f'v[{O}:{O+15}]'), mm(O, VB[0] + 4, PA + 4, f'v[{O}:{O+15}]')])
    p(f's_add_u32 s{s_t2}, s{s_t2}, 4096')
    p(f's_sub_u32 s{s_i}, s{s_i}, 1')
    p(f's_cmp_lg_u32 s{s_i}, 0')
    p(f's_cbranch_scc1 {L("sloop")}')
    p(f'v_mov_b32 v{T+3}, v{O+12}')
    p(f'v_mov_b32 v{T+4}, v{O+12}')
    p(f'v_permlane32_swap_b32 v{T+3}, v{T+4}')
    p(f's_and_b32 s{s_t2}, s{s_kq}, 1')
    p(f's_cmp_eq_u32 s{s_t2}, 0')
    p(f's_cbranch_scc1 {L("sl_c")}')
    for q in range(8): p(f'v_mov_b32 v{X+q}, v{O+8+q}')
    p(f's_branch {L("astore")}')
    p.label(L('sl_c'))
    for q in range(8): p(f'v_mov_b32 v{X+q}, v{O+q}')
    p(f's_branch {L("astore")}')
```

```python
from asmlib import *
import k1
from k1 import (WS_QF, WS_KV, WS_HF, WS_OF, WS_FLAG, SLOT, NSLOT, RING, LOG2E, CQ, hexf, flat, stamp)
from k0 import wave_sum
WS_FL = (16 << 20) + 4096

class R: pass

def regmap():
    r = R()
    r.S_W, r.S_G, r.S_U, r.S_WS, r.S_X = 8, 12, 16, 20, 96
    r.s_w, r.s_r4, r.s_ch, r.s_rb, r.s_g, r.s_p, r.s_kind, r.s_ty = 30, 31, 32, 33, 34, 35, 36, 37
    r.s_q = 40
    r.s_w8q, r.s_w8g = 45, 46
    r.s_so, r.s_so2 = 47, 48
    r.s_mo, r.s_mo2 = 49, 50
    r.s_d64q, r.s_d64g = 51, 52
    r.s_hi, r.s_pad = 54, 56
    r.s_t0, r.s_t1, r.s_t2, r.s_t3 = 58, 59, 60, 61
    r.s_stq, r.s_stk, r.s_stv, r.s_sth = 62, 63, 64, 65
    r.s_scq, r.s_padk = 66, 67
    r.s_x0, r.s_x1, r.s_xm = 68, 69, 70
    r.s_tag = 3
    r.s_sth2 = 71
    r.S_R = 24
    r.s_w3, r.s_mo3, r.s_mo32 = 53, 6, 7
    return r

def slot_of(G): return (8 + G) % NSLOT

def phase1(p, L, r, merged, stamp_base=0):
    EXP = k1.EXP
    S_W, S_G, S_U, S_WS, S_X = r.S_W, r.S_G, r.S_U, r.S_WS, r.S_X
    s_w, s_r4, s_ch, s_rb, s_g, s_p, s_kind, s_ty = r.s_w, r.s_r4, r.s_ch, r.s_rb, r.s_g, r.s_p, r.s_kind, r.s_ty
    s_q, s_t0, s_t1, s_t2, s_t3 = r.s_q, r.s_t0, r.s_t1, r.s_t2, r.s_t3
    s_hi, s_pad = r.s_hi, r.s_pad
    SC = ' sc1' if merged else ''
    v_lane16 = 1
    v_pq, v_pg = [2, 3, 4], [5, 6, 7]
    v_dq, v_dg = 8, 9
    v_t = 18
    v_padv = 28
    WF = [40, 44, 48, 52]
    ACCA, B1, B2 = 56, 72, 88
    TP = 104
    XF = 128
    xr = [240, 241, 242, 243]
    xa, xb = 250, 251
    lane, m, hh = v_t + 2, v_t + 3, v_t + 4

    p('s_load_dwordx2 s[6:7], s[0:1], 8')
    p('s_load_dwordx4 s[24:27], s[0:1], 32')
    p('s_load_dwordx2 s[4:5], s[0:1], 72')
    p(f's_load_dwordx2 s[{S_X}:{S_X+1}], s[0:1], 0')
    if merged:
        p('s_load_dwordx2 s[100:101], s[0:1], 64')
        p('s_load_dwordx2 s[28:29], s[0:1], 48')
        p('s_load_dwordx2 s[38:39], s[0:1], 56')
    p('s_getpc_b64 s[74:75]')
    p(f'v_and_b32 v{lane}, 63, v0')
    p(f'v_lshrrev_b32 v{v_t+1}, 6, v0')
    p(f'v_readfirstlane_b32 s{s_w}, v{v_t+1}')
    p(f'v_lshlrev_b32 v{v_lane16}, 4, v{lane}')
    p(f'v_and_b32 v{m}, 31, v0')
    p(f'v_bfe_u32 v{hh}, v0, 5, 1')
    GN = 4
    for e in EXP:
        if e.startswith('gn'): GN = int(e[2:])
    RR = 32 // GN
    nxr = 16 // RR
    lr, lg = RR.bit_length() - 1, GN.bit_length() - 1
    lxr = nxr.bit_length() - 1
    p(f's_and_b32 s{s_t0}, s2, {nxr-1}')
    p(f's_lshl_b32 s{s_t0}, s{s_t0}, {lr}')
    p(f's_lshr_b32 s{s_t1}, s2, 3')
    p(f's_and_b32 s{s_t2}, s{s_t1}, {RR-1}')
    p(f's_add_u32 s{s_rb}, s{s_t0}, s{s_t2}')
    p(f's_and_b32 s{s_t0}, s2, 7')
    p(f's_lshr_b32 s{s_t0}, s{s_t0}, {lxr}')
    p(f's_lshl_b32 s{s_t0}, s{s_t0}, {lg}')
    p(f's_lshr_b32 s{s_t1}, s{s_t1}, {lr}')
    p(f's_add_u32 s{s_g}, s{s_t0}, s{s_t1}')
    p(f's_lshl_b32 s{s_t0}, s{s_rb}, 7')
    p(f's_lshl_b32 s{s_t1}, s{s_w}, 4')
    p(f's_add_u32 s{s_t0}, s{s_t0}, s{s_t1}')
    p(f's_mul_i32 s{r.s_x0}, s{s_t0}, 896')
    p(f's_add_u32 s{r.s_x1}, s{r.s_x0}, {8*896}')
    p(f's_lshl_b32 s{r.s_xm}, s{s_w}, 11')
    p(f'v_lshrrev_b32 v{v_t}, 3, v{lane}')
    p(f'v_mul_u32_u24 v{v_t}, 896, v{v_t}')
    p(f'v_and_b32 v{v_t+5}, 7, v{lane}')
    p(f'v_lshlrev_b32 v{v_t+1}, 4, v{v_t+5}')
    p(f'v_add_u32 v{xa}, v{v_t}, v{v_t+1}')
    p(f's_mov_b32 s{S_X+2}, {2048*896}')
    p(f's_mov_b32 s{S_X+3}, 0x20000')
    p('s_waitcnt lgkmcnt(0)')
    stamp(p, 2)
    if k1.STAMP: p('s_getreg_b32 s93, hwreg(HW_REG_XCC_ID)')
    def x_issue(g):
        return [I(f's_mov_b32 m0, s{r.s_xm}'),
                I(f's_addk_i32 s{r.s_xm}, 16384'),
                I(f'buffer_load_dwordx4 v{xa}, s[{S_X}:{S_X+3}], s{r.s_x0} offen lds', gives=[g]),
                I('s_addk_i32 m0, 1024'),
                I(f's_addk_i32 s{r.s_x0}, 128'),
                I(f'buffer_load_dwordx4 v{xa}, s[{S_X}:{S_X+3}], s{r.s_x1} offen lds', gives=[g]),
                I(f's_addk_i32 s{r.s_x1}, 128')]
    if 'xt' in EXP:
        per = 896 // GN // 8
        p(f's_and_b32 s{s_t0}, s{s_g}, {GN-1}')
        p(f's_lshl_b32 s{s_t0}, s{s_t0}, 3')
        p(f's_add_u32 s{s_t0}, s{s_t0}, s{s_w}')
        p(f's_mul_i32 s{s_t0}, s{s_t0}, {per*128}')
        p(f's_mul_i32 s{s_t1}, s{s_rb}, {128*896}')
        p(f's_add_u32 s{s_t0}, s{s_t0}, s{s_t1}')
        p(f'v_lshlrev_b32 v{v_t}, 7, v{lane}')
        p(f's_mov_b32 exec_lo, {(1 << per) - 1}')
        p('s_mov_b32 exec_hi, 0')
        p(f'buffer_load_dword v253, v{v_t}, s[{S_X}:{S_X+3}], s{s_t0} offen', gives=['xt'])
        p('s_mov_b64 exec, -1')
        if 'xw' in EXP: p.add([I('s_nop 0', needs=['xt'])])
    if 'xfull' in EXP:
        p(f'v_lshlrev_b32 v{v_t}, 7, v{lane}')
        p(f'buffer_load_dword v253, v{v_t}, s[{S_X}:{S_X+3}], s{r.s_x0} offen', gives=['xt'])
        p(f's_add_u32 s{s_t0}, s{r.s_x0}, 8192')
        p('s_mov_b32 exec_hi, 0x0000ffff')
        p(f'buffer_load_dword v254, v{v_t}, s[{S_X}:{S_X+3}], s{s_t0} offen', gives=['xt'])
        p('s_mov_b64 exec, -1')
        p.add([I('s_nop 0', needs=['xt'])])
        stamp(p, 7)
    if merged:
        p(f's_add_u32 s{s_t0}, s2, s{s_w}')
        p(f's_cmp_eq_u32 s{s_t0}, 0')
        p(f's_cbranch_scc0 {L("notag")}')
        p('s_memrealtime s[60:61]')
        p('s_waitcnt lgkmcnt(0)')
        p('s_or_b32 s60, s60, 1')
        p(f'v_mov_b32 v{v_t}, s60')
        p(f'v_mov_b32 v{v_t+1}, 0')
        p(f'global_store_dword v{v_t+1}, v{v_t}, s[100:101] sc1')
        p.label(L('notag'))
    if 'xt2' in EXP:
        p(f's_cmp_lt_u32 s{s_w}, 4')
        p(f's_cbranch_scc1 {L("noxt2")}')
        p(f'v_lshlrev_b32 v{v_t}, 7, v{lane}')
        p(f'buffer_load_dword v253, v{v_t}, s[{S_X}:{S_X+3}], s{r.s_x0} offen')
        p(f's_add_u32 s{s_t0}, s{r.s_x0}, 8192')
        p('s_mov_b32 exec_hi, 0x0000ffff')
        p(f'buffer_load_dword v254, v{v_t}, s[{S_X}:{S_X+3}], s{s_t0} offen')
        p('s_mov_b64 exec, -1')
        p.label(L('noxt2'))
    for a in range(7): p.add(x_issue('x'))
    if merged:
        p('v_mov_b32 v27, 0')
        p.add([I('global_load_dword v26, v27, s[100:101] sc1', gives=['x'])])
    for (Sd, lo, hi, size) in ((S_W, 6, 7, 448 * 2688), (S_G, 24, 25, 448 * 3584), (S_U, 26, 27, 448 * 3584), (S_WS, 4, 5, k1.WS_SIZE)):
        p(f's_mov_b32 s{Sd}, s{lo}')
        p(f's_mov_b32 s{Sd+1}, s{hi}')
        p(f's_mov_b32 s{Sd+2}, {size}')
        p(f's_mov_b32 s{Sd+3}, 0x20000')
    if merged:
        p('s_load_dwordx2 s[4:5], s[0:1], 16')
        p('s_waitcnt lgkmcnt(0)')
    def warmups(which=(0, 1, 2, 3, 4)):
        if merged:
            for wv, base, size in ((3, 28, 1792 * 896), (4, 4, 448 * 896)):
                if wv not in which: continue
                sl = size // 256
                nl = (sl + 127) // 128
                p(f's_cmp_eq_u32 s{s_w}, {wv}')
                p(f's_cbranch_scc0 {L("wd%d" % wv)}')
                p(f's_mul_i32 s{s_t0}, s2, {sl}')
                p(f'v_min_u32 v{v_t}, {nl-1}, v{lane}')
                p(f'v_lshlrev_b32 v{v_t}, 7, v{v_t}')
                p(f'v_min_u32 v{v_t}, {sl-4}, v{v_t}')
                p(f'v_add_u32 v{v_t}, s{s_t0}, v{v_t}')
                p(f's_mov_b32 exec_lo, {((1 << min(nl,32)) - 1)}')
                p(f's_mov_b32 exec_hi, {((1 << max(nl-32,0)) - 1)}')
                p(f'global_load_dword v{249+wv}, v{v_t}, s[{base}:{base+1}]')
                p('s_mov_b64 exec, -1')
                p.label(L('wd%d' % wv))
        if 'nowarm' not in EXP:
            p(f'v_lshlrev_b32 v{v_t}, 7, v{lane}')
            for i, (Sd, size) in enumerate(((S_W, 448 * 2688), (S_G, 448 * 3584), (S_U, 448 * 3584))):
                if i not in which: continue
                sl = (size // 256 + 127) // 128 * 128
                p(f's_cmp_eq_u32 s{s_w}, {i}')
                p(f's_cbranch_scc0 {L("wu%d" % i)}')
                p(f's_mul_i32 s{s_t0}, s2, {sl}')
                p('s_mov_b32 exec_hi, 0x0000ffff' if sl > 4096 + 768 else 's_mov_b32 exec_hi, 0x000000ff')
                p(f'buffer_load_dword v{252+i}, v{v_t}, s[{Sd}:{Sd+3}], s{s_t0} offen')
                p('s_mov_b64 exec, -1')
                p.label(L('wu%d' % i))
    if 'earlyq' in EXP: warmups((0,))
    p(f's_cmp_eq_u32 s{s_w}, 7')
    p(f's_cbranch_scc0 {L("nocp")}')
    p(f's_lshr_b32 s{s_t0}, s2, 3')
    p(f's_lshl_b32 s{s_t0}, s{s_t0}, 11')
    p(f'v_lshlrev_b32 v{v_t}, 7, v{lane}')
    p(f'v_add_u32 v{v_t}, s{s_t0}, v{v_t}')
    p('s_mov_b32 exec_lo, 0xffff')
    p('s_mov_b32 exec_hi, 0')
    p(f'global_load_dword v255, v{v_t}, s[74:75]')
    p('s_mov_b64 exec, -1')
    p.label(L('nocp'))
    stamp(p, 3)
    p(f's_and_b32 s{s_r4}, s{s_w}, 3')
    p(f's_lshr_b32 s{s_ch}, s{s_w}, 2')
    p(f's_lshr_b32 s{s_p}, s{s_g}, 1')
    p(f's_and_b32 s{s_ty}, s{s_g}, 1')
    p(f's_mul_i32 s{s_t0}, s{s_p}, 7')
    p(f's_and_b32 s{s_t1}, s{s_p}, 1')
    p(f's_add_u32 s{s_t2}, s{s_t0}, s{s_t1}')
    p(f's_add_u32 s{s_t3}, s{s_t0}, 6')
    p(f's_cmp_eq_u32 s{s_t1}, 0')
    p(f's_cselect_b32 s{s_t3}, s{s_t3}, s{s_t0}')
    p(f's_mul_i32 s{s_q}, s{s_p}, 112')
    p(f's_cmp_eq_u32 s{s_ty}, 0')
    p(f's_cbranch_scc0 {L("tyB")}')
    p(f's_add_u32 s{s_q+1}, s{s_q}, 896')
    p(f's_lshl_b32 s{s_q+2}, s{s_t2}, 6')
    p(f's_mov_b32 s{s_q+3}, s{s_q+2}')
    p(f's_lshl_b32 s{s_q+4}, s{s_t3}, 6')
    p(f's_mov_b32 s{s_kind}, s{s_t3}')
    p(f's_branch {L("tyC")}')
    p.label(L('tyB'))
    p(f's_add_u32 s{s_q}, s{s_q}, 1792')
    p(f's_add_u32 s{s_t2}, s{s_t2}, 2')
    p(f's_lshl_b32 s{s_q+1}, s{s_t2}, 6')
    p(f's_mov_b32 s{s_q+2}, s{s_q+1}')
    p(f's_add_u32 s{s_q+3}, s{s_q+1}, 128')
    p(f's_mov_b32 s{s_q+4}, s{s_q+3}')
    p.label(L('tyC'))
    p(f's_lshl_b32 s{s_t0}, s{s_rb}, 2')
    p(f's_add_u32 s{s_t0}, s{s_t0}, s{s_r4}')
    p(f's_mul_i32 s{r.s_sth}, s{s_t0}, 112')
    p(f's_lshl_b32 s{r.s_sth2}, s{s_kind}, 1')
    p(f's_add_u32 s{r.s_sth2}, s{r.s_sth2}, s{s_ch}')
    p(f's_add_u32 s{r.s_sth2}, s{r.s_sth2}, s{r.s_sth}')
    p(f's_lshl_b32 s{r.s_sth2}, s{r.s_sth2}, 10')
    p(f's_add_u32 s{r.s_sth2}, s{r.s_sth2}, {WS_HF}')
    p(f's_lshl_b32 s{s_t1}, s{s_t2}, 1')
    p(f's_add_u32 s{r.s_sth}, s{r.s_sth}, s{s_t1}')
    p(f's_lshl_b32 s{s_t1}, s{s_ch}, 1')
    p(f's_add_u32 s{r.s_sth}, s{r.s_sth}, s{s_t1}')
    p(f's_lshl_b32 s{r.s_sth}, s{r.s_sth}, 10')
    p(f's_add_u32 s{r.s_sth}, s{r.s_sth}, {WS_HF}')
    p(f's_lshl_b32 s{s_t1}, s{s_p}, 1')
    p(f's_add_u32 s{s_t1}, s{s_t1}, s{s_ch}')
    p(f's_lshl_b32 s{s_t1}, s{s_t1}, 6')
    p(f's_add_u32 s{s_t1}, s{s_t1}, s{s_t0}')
    p(f's_lshl_b32 s{s_t3}, s{s_t1}, 12')
    p(f's_add_u32 s{r.s_stv}, s{s_t3}, {WS_KV + 2048}')
    p(f's_add_u32 s{r.s_stk}, s{s_t3}, {WS_KV}')
    p(f's_lshl_b32 s{r.s_stq}, s{s_t1}, 11')
    p(f's_add_u32 s{r.s_stq}, s{r.s_stq}, {WS_QF}')
    p(f's_mov_b32 s{r.s_scq}, {hexf(CQ)}')
    p(f's_mov_b32 s{r.s_padk}, 0')
    p(f's_mul_i32 s{r.s_w8q}, s{s_w}, {8*2688}')
    p(f's_mul_i32 s{r.s_w8g}, s{s_w}, {8*3584}')
    p(f's_lshl_b32 s{r.s_mo}, s{s_w}, 10')
    p(f's_cmp_lt_u32 s{s_w}, 6')
    p(f's_cselect_b32 s{r.s_d64q}, {64*2688}, 0')
    p(f's_cselect_b32 s{r.s_d64g}, {64*3584}, 0')
    p(f's_cselect_b32 s{s_t0}, 8192, 0')
    p(f's_add_u32 s{r.s_mo2}, s{r.s_mo}, s{s_t0}')
    v_p3, v_d3 = [36, 37, 38], 39
    p(f's_and_b32 s{s_t1}, s{s_w}, 1')
    p(f's_cmp_eq_u32 s{s_t1}, 0')
    p(f's_cselect_b32 s{r.S_R}, s{S_G}, s{S_U}')
    p(f's_cselect_b32 s{r.S_R+1}, s{S_G+1}, s{S_U+1}')
    p(f's_mov_b32 s{r.S_R+2}, {448*3584}')
    p(f's_mov_b32 s{r.S_R+3}, 0x20000')
    p(f's_lshr_b32 s{s_t2}, s{s_w}, 1')
    p(f's_mul_i32 s{r.s_w3}, s{s_t2}, {16*3584}')
    p(f's_mul_i32 s{r.s_mo3}, s{s_t1}, 7168')
    p(f's_lshl_b32 s{s_t2}, s{s_t2}, 10')
    p(f's_add_u32 s{r.s_mo3}, s{r.s_mo3}, s{s_t2}')
    p(f's_lshr_b32 s{s_t0}, s{s_t0}, 1')
    p(f's_add_u32 s{r.s_mo32}, s{r.s_mo3}, s{s_t0}')
    p(f'v_lshrrev_b32 v{v_t}, 2, v{lane}')
    p(f'v_mul_u32_u24 v{v_d3}, 3584, v{v_t}')
    p(f'v_and_b32 v{v_t}, 3, v{lane}')
    p(f'v_lshlrev_b32 v{v_t}, 4, v{v_t}')
    p(f's_lshl_b32 s{s_t1}, s{s_t1}, 5')
    p(f'v_xor_b32 v{v_t}, s{s_t1}, v{v_t}')
    p(f'v_add_u32 v{v_d3}, v{v_d3}, v{v_t}')
    p(f'v_bfe_u32 v{v_t}, v{lane}, 2, 2')
    p(f'v_lshlrev_b32 v{v_t+1}, 3, v{hh}')
    p(f'v_add_u32 v{v_t}, v{v_t}, v{v_t+1}')
    p(f'v_lshlrev_b32 v{v_p3[0]}, 6, v{v_t}')
    p(f'v_and_b32 v{v_t}, 3, v{lane}')
    p(f'v_lshlrev_b32 v{v_t}, 3, v{v_t}')
    p(f'v_add_u32 v{v_p3[0]}, v{v_p3[0]}, v{v_t}')
    p(f'v_bfe_u32 v{v_t}, v{lane}, 4, 1')
    p(f'v_mul_u32_u24 v{v_t+1}, 7168, v{v_t}')
    p(f'v_add_u32 v{v_p3[0]}, v{v_p3[0]}, v{v_t+1}')
    p(f'v_xor_b32 v{v_t}, s{s_ch}, v{v_t}')
    p(f'v_lshlrev_b32 v{v_t}, 5, v{v_t}')
    p(f'v_add_u32 v{v_p3[0]}, v{v_p3[0]}, v{v_t}')
    p(f'v_add_u32 v{v_p3[1]}, {4*SLOT}, v{v_p3[0]}')
    p(f'v_add_u32 v{v_p3[2]}, {8*SLOT}, v{v_p3[0]}')
    p(f'v_bfe_u32 v{v_t}, v{lane}, 4, 1')
    p(f'v_lshlrev_b32 v{v_t}, 2, v{v_t}')
    p(f'v_and_b32 v{v_t+1}, 7, v{lane}')
    p(f'v_xor_b32 v{v_t}, v{v_t}, v{v_t+1}')
    p(f'v_lshlrev_b32 v{v_t}, 4, v{v_t}')
    p(f'v_lshrrev_b32 v{v_t+1}, 3, v{lane}')
    p(f'v_mul_u32_u24 v{v_dq}, 2688, v{v_t+1}')
    p(f'v_add_u32 v{v_dq}, v{v_dq}, v{v_t}')
    p(f'v_mul_u32_u24 v{v_dg}, 3584, v{v_t+1}')
    p(f'v_add_u32 v{v_dg}, v{v_dg}, v{v_t}')
    p(f's_mov_b32 s{s_hi}, 0')
    p(f's_mov_b32 s{s_hi+1}, -1')
    p(f's_mov_b32 s{s_pad}, 0xf0000000')
    p(f's_mov_b32 s{s_pad+1}, 0xf0000000')
    def mkpat(dst, b0mul):
        p(f'v_bfe_u32 v{v_t}, v{lane}, 2, 2')
        p(f'v_lshlrev_b32 v{v_t+1}, 3, v{hh}')
        p(f'v_add_u32 v{v_t+1}, v{v_t+1}, v{v_t}')
        p(f'v_lshlrev_b32 v{dst[0]}, 7, v{v_t+1}')
        p(f'v_bfe_u32 v{v_t+1}, v{lane}, 4, 1')
        p(f'v_lshlrev_b32 v{v_t+1}, 5, v{v_t+1}')
        p(f'v_and_b32 v{v_t+5}, 3, v{lane}')
        p(f'v_lshlrev_b32 v{v_t+5}, 3, v{v_t+5}')
        p(f'v_add_u32 v{v_t+1}, v{v_t+1}, v{v_t+5}')
        p(f's_mul_i32 s{s_t0}, s{s_ch}, {b0mul}')
        p(f'v_add_u32 v{v_t+1}, s{s_t0}, v{v_t+1}')
        p(f'v_lshrrev_b32 v{v_t}, 1, v{v_t}')
        p(f'v_lshlrev_b32 v{v_t}, 6, v{v_t}')
        p(f'v_xor_b32 v{v_t+1}, v{v_t+1}, v{v_t}')
        p(f'v_add_u32 v{dst[0]}, v{dst[0]}, v{v_t+1}')
        p(f'v_add_u32 v{dst[1]}, {4*SLOT}, v{dst[0]}')
        p(f'v_add_u32 v{dst[2]}, {8*SLOT}, v{dst[0]}')
    mkpat(v_pq, 56)
    mkpat(v_pg, 64)
    p(f'v_cmp_eq_u32 vcc, 28, v{m}')
    p(f'v_mov_b32 v{v_padv}, 0')
    p(f'v_mov_b32 v{v_t}, 0x3f803f80')
    p(f'v_cndmask_b32 v{v_padv}, v{v_padv}, v{v_t}, vcc')
    p(f's_lshl_b32 s{s_t0}, s{s_r4}, 12')
    p(f'v_lshlrev_b32 v{v_t}, 7, v{m}')
    p(f'v_add_u32 v{v_t}, s{s_t0}, v{v_t}')
    p(f'v_bfe_u32 v{v_t+1}, v{m}, 1, 3')
    p(f'v_xor_b32 v{v_t+1}, v{v_t+1}, v{hh}')
    for u in range(4):
        p(f'v_xor_b32 v{v_t+5}, {2*u}, v{v_t+1}')
        p(f'v_lshlrev_b32 v{v_t+5}, 4, v{v_t+5}')
        p(f'v_add_u32 v{xr[u]}, v{v_t}, v{v_t+5}')
    if not merged:
        p(f's_cmp_eq_u32 s{s_w}, 5')
        p(f's_cbranch_scc0 {L("nzf")}')
        p(f's_lshl_b32 s{s_t0}, s2, 2')
        p(f's_add_u32 s{s_t0}, s{s_t0}, {WS_FLAG}')
        p(f'v_mov_b32 v{v_t}, 0')
        p(f'buffer_store_dword v{v_t}, v{v_t}, s[{S_WS}:{S_WS+3}], s{s_t0} offen')
        p.label(L('nzf'))

    def b_issue(G, kinds, g):
        if G > 19: return []
        if 'nodma' in EXP and G > 10: return []
        st, j = G // 4, G % 4
        kind = kinds[st]
        if kind == 3:
            base = slot_of(G) * SLOT
            o = []
            if j == 0:
                o += [I(f's_add_u32 s{r.s_so}, s{s_q+st}, s{r.s_w3}'), I(f's_add_u32 s{r.s_so2}, s{r.s_so}, s{r.s_d64g}')]
            o += [I(f's_add_u32 m0, s{r.s_mo3}, {base}'),
                  I(f's_add_u32 s{s_t3}, s{r.s_mo32}, {base}'),
                  I(f'buffer_load_dwordx4 v{v_d3}, s[{r.S_R}:{r.S_R+3}], s{r.s_so} offen lds', gives=[g]),
                  I(f's_mov_b32 m0, s{s_t3}'),
                  I(f's_add_u32 s{r.s_so}, s{r.s_so}, {112*3584}'),
                  I(f'buffer_load_dwordx4 v{v_d3}, s[{r.S_R}:{r.S_R+3}], s{r.s_so2} offen lds', gives=[g]),
                  I(f's_add_u32 s{r.s_so2}, s{r.s_so2}, {112*3584}')]
            return o
        srd = {0: S_W, 1: S_G, 2: S_U}[kind]
        vo = v_dq if kind == 0 else v_dg
        stride = 2688 if kind == 0 else 3584
        o = []
        if j == 0:
            o += [I(f's_add_u32 s{r.s_so}, s{s_q+st}, s{r.s_w8q if kind == 0 else r.s_w8g}'),
                  I(f's_add_u32 s{r.s_so2}, s{r.s_so}, s{r.s_d64q if kind == 0 else r.s_d64g}')]
        base = slot_of(G) * SLOT
        o += [I(f's_add_u32 m0, s{r.s_mo}, {base}'),
              I(f's_add_u32 s{s_t3}, s{r.s_mo2}, {base}'),
              I(f'buffer_load_dwordx4 v{vo}, s[{srd}:{srd+3}], s{r.s_so} offen lds', gives=[g]),
              I(f's_mov_b32 m0, s{s_t3}'),
              I(f's_add_u32 s{r.s_so}, s{r.s_so}, {112*stride}'),
              I(f'buffer_load_dwordx4 v{vo}, s[{srd}:{srd+3}], s{r.s_so2} offen lds', gives=[g]),
              I(f's_add_u32 s{r.s_so2}, s{r.s_so2}, {112*stride}')]
        return o

    def wread(T, kinds):
        st, t = T // 28, T % 28
        if st > 4: return []
        G = 4 * st + t // 7; ks = t % 7
        sl = slot_of(G)
        b = WF[T & 3]
        if kinds[st] == 3:
            off = (sl % 4) * SLOT + ks * 1024
            va = v_p3[sl // 4]
            return [I(f'ds_read_b64_tr_b16 v[{b}:{b+1}], v{va} offset:{off}'),
                    I(f'ds_read_b64_tr_b16 v[{b+2}:{b+3}], v{va} offset:{off+256}')]
        pat = v_pq if kinds[st] == 0 else v_pg
        off = (sl % 4) * SLOT + ks * 2048
        va = pat[sl // 4]
        return [I(f'ds_read_b64_tr_b16 v[{b}:{b+1}], v{va} offset:{off}'),
                I(f'ds_read_b64_tr_b16 v[{b+2}:{b+3}], v{va} offset:{off+512}')]
    def mf(T, w_is_a, dst):
        t = T % 28
        b = WF[T & 3]; x = XF + 4 * t
        d = dst if t == 27 else ACCA
        c = '0' if t == 0 else f'v[{ACCA}:{ACCA+15}]'
        if w_is_a: return I(f'v_mfma_f32_32x32x16_bf16 v[{d}:{d+15}], v[{b}:{b+3}], v[{x}:{x+3}], {c}')
        return I(f'v_mfma_f32_32x32x16_bf16 v[{d}:{d+15}], v[{x}:{x+3}], v[{b}:{b+3}], {c}')

    if getattr(r, 'hook', None): p.add(r.hook('ids'))
    KX, KY = [0, 1, 2, 1, 2], [0, 0, 1, 2, 3]
    va, vb, ones = 244, 245, 246
    RAW = 40
    SS = [96, 100, 104, 108]
    wa = [248, 249]
    v_sw = 252
    p(f'v_lshrrev_b32 v{v_t}, 4, v{lane}')
    p(f'v_and_b32 v{v_t+1}, 7, v{lane}')
    p(f'v_xor_b32 v{v_t}, v{v_t}, v{v_t+1}')
    p(f'v_lshlrev_b32 v{v_t}, 4, v{v_t}')
    p(f'v_lshrrev_b32 v{v_t+1}, 3, v{lane}')
    p(f'v_lshlrev_b32 v{v_t+1}, 7, v{v_t+1}')
    p(f'v_add_u32 v{v_sw}, v{v_t}, v{v_t+1}')
    p(f'v_mov_b32 v{ones}, 0x3f803f80')
    p(f'v_mov_b32 v{ones+1}, 0x3f803f80')
    for i, msk in enumerate((0x22222222, 0x44444444, 0x88888888)):
        p(f's_mov_b32 s{72+2*i if i == 0 else 74+2*i}, 0x{msk:08x}')
        p(f's_mov_b32 s{73+2*i if i == 0 else 75+2*i}, 0x{msk:08x}')
    MSK = [72, 76, 78]
    def m44(d, a, b, first):
        c = '0' if first else f'v[{d}:{d+3}]'
        return I(f'v_mfma_f32_4x4x4_16b_bf16 v[{d}:{d+3}], v[{a}:{a+1}], v[{b}:{b+1}], {c}')
    def ln(ng, extra):
        p(f'v_add_u32 v{vb}, 0x10000, v{va}')
        for a in range(7):
            for g in range(ng):
                rr = RAW + 4 * (g * 7 + a)
                p(f'ds_read_b128 v[{rr}:{rr+3}], v{va if a < 4 else vb} offset:{((a * 16384) & 0xffff) + g * 1024}')
        for a in range(7):
            for h in range(2):
                for g in range(ng):
                    rr = RAW + 4 * (g * 7 + a) + 2 * h
                    p.add([m44(SS[g], rr, ones, a == 0 and h == 0), m44(SS[2 + g], rr, rr, a == 0 and h == 0)])
                for g in range(ng):
                    rr = RAW + 4 * (g * 7 + a) + 2 * h; f = XF + 8 * (g * 7 + a) + 4 * h
                    for i in range(2):
                        p(f'v_lshlrev_b32 v{f+2*i}, 16, v{rr+i}')
                        p(f'v_and_b32 v{f+2*i+1}, 0xffff0000, v{rr+i}')
        ks = [g for g in range(ng)] + [2 + g for g in range(ng)]
        for k in ks:
            for i in range(3):
                p(f'v_cndmask_b32 v{SS[k]}, v{SS[k]}, v{SS[k]+1+i}, s[{MSK[i]}:{MSK[i]+1}]')
        for ctrl in ('quad_perm:[1,0,3,2]', 'quad_perm:[2,3,0,1]', 'row_half_mirror'):
            for k in ks:
                p(f'v_add_f32_dpp v{SS[k]}, v{SS[k]}, v{SS[k]} {ctrl} row_mask:0xf bank_mask:0xf')
        for g in range(ng):
            sm, sq = SS[g], SS[2 + g]
            p(f'v_mul_f32 v{sm}, {hexf(1/448)}, v{sm}')
            p(f'v_mul_f32 v{sq}, {hexf(1/448)}, v{sq}')
            p(f'v_fma_f32 v{sq}, -v{sm}, v{sm}, v{sq}')
            p(f'v_max_f32 v{sq}, 0, v{sq}')
            p(f'v_add_f32 v{sq}, {hexf(1e-5)}, v{sq}')
            p(f'v_rsq_f32 v{sq}, v{sq}')
        for g in range(ng):
            sm, sq = SS[g], SS[2 + g]
            p(f'v_mul_f32 v{sm}, v{sm}, v{sq}')
            p(f'v_sub_f32 v{sm}, 0, v{sm}')
        if 'stats' in extra: extra['stats']()
        for a in range(7):
            if a in extra: extra[a]()
            for g in range(ng):
                sm, sq = SS[g], SS[2 + g]
                rr = RAW + 4 * (g * 7 + a); f = XF + 8 * (g * 7 + a)
                for i in range(0, 8, 2): p(f'v_pk_fma_f32 v[{f+i}:{f+i+1}], v[{f+i}:{f+i+1}], v[{sq}:{sq+1}], v[{sm}:{sm+1}] op_sel_hi:[1,0,0]')
                for i in range(4): p(f'v_cvt_pk_bf16_f32 v{rr+i}, v{f+2*i}, v{f+2*i+1}')
                if a == 4 and g == 0:
                    for gg in range(ng): p(f'v_add_u32 v{wa[gg]}, 0x10000, v{wa[gg]}')
                p.add([I(f'ds_write_b128 v{wa[g]}, v[{rr}:{rr+3}] offset:{(a * 16384) & 0xffff}', gives=['lds:xn'])])
    p.add([I('s_nop 0', needs=['x'])])
    if merged:
        p(f'v_readfirstlane_b32 s{r.s_tag}, v26')
        p(f's_cmp_lg_u32 s{r.s_tag}, 0')
        p(f's_cbranch_scc1 {L("taggot")}')
        p(f's_mov_b32 s{s_t0}, 0x100000')
        p.label(L('tagpoll'))
        p('global_load_dword v26, v27, s[100:101] sc1')
        p('s_waitcnt vmcnt(0)')
        p(f'v_readfirstlane_b32 s{r.s_tag}, v26')
        p(f's_cmp_lg_u32 s{r.s_tag}, 0')
        p(f's_cbranch_scc1 {L("taggot")}')
        p(f's_sub_u32 s{s_t0}, s{s_t0}, 1')
        p(f's_cmp_lg_u32 s{s_t0}, 0')
        p(f's_cbranch_scc1 {L("tagpoll")}')
        p.label(L('taggot'))
    stamp(p, 4)
    g01 = lambda: p.add(b_issue(0, KX, 'g0') + b_issue(1, KX, 'g1'))
    p(f's_cmp_lt_u32 s{s_w}, 4')
    p(f's_cbranch_scc1 {L("lnA")}')
    g01()
    p(f's_branch {L("lnB")}')
    p.label(L('lnA'))
    p(f's_lshl_b32 s{s_t0}, s{s_w}, 11')
    p(f'v_add_u32 v{va}, s{s_t0}, v{v_lane16}')
    p(f'v_add_u32 v{wa[0]}, s{s_t0}, v{v_sw}')
    p(f'v_xor_b32 v{wa[1]}, 64, v{wa[0]}')
    p(f'v_add_u32 v{wa[1]}, 1024, v{wa[1]}')
    ln(2, {4: g01})
    p.label(L('lnB'))
    p('s_barrier')
    stamp(p, 7)
    p(f's_add_u32 s{s_t0}, s{s_w}, 8')
    p(f's_lshl_b32 s{s_t0}, s{s_t0}, 10')
    p(f'v_add_u32 v{va}, s{s_t0}, v{v_lane16}')
    p(f's_and_b32 s{s_t1}, s{s_w}, 1')
    p(f's_lshl_b32 s{s_t1}, s{s_t1}, 6')
    p(f'v_xor_b32 v{wa[0]}, s{s_t1}, v{v_sw}')
    p(f'v_add_u32 v{wa[0]}, s{s_t0}, v{wa[0]}')
    ex = {'stats': lambda: p.add(b_issue(2, KX, 'g2'))}
    if 'nowarm' not in EXP: ex[5] = (lambda: warmups((1, 2, 3, 4))) if 'earlyq' in EXP else warmups
    ln(1, ex)
    stamp(p, 1)

    def e_gu():
        body = []
        for qd in range(4):
            r0 = 4 * qd
            ee = [TP + i for i in range(4)]
            pp = [TP + 4 + i for i in range(4)]
            for i in range(4): body.append(I(f'v_mul_f32 v{ee[i]}, {hexf(-LOG2E)}, v{B1+r0+i}'))
            for i in range(4):
                body.append(I(f'v_exp_f32 v{ee[i]}, v{ee[i]}'))
                body.append(I(f'v_mul_f32 v{pp[i]}, v{B1+r0+i}, v{B2+r0+i}'))
            for i in range(4): body.append(I(f'v_add_f32 v{ee[i]}, 1.0, v{ee[i]}'))
            for i in range(4): body.append(I(f'v_rcp_f32 v{ee[i]}, v{ee[i]}'))
            for i in range(4): body.append(I(f'v_mul_f32 v{pp[i]}, v{pp[i]}, v{ee[i]}'))
            hp = TP + 8 + 2 * qd
            body.append(I(f'v_cvt_pk_bf16_f32 v{hp}, v{pp[0]}, v{pp[1]}'))
            body.append(I(f'v_cvt_pk_bf16_f32 v{hp+1}, v{pp[2]}, v{pp[3]}'))
            if qd & 1:
                body.append(I(f'buffer_store_dwordx4 v[{hp-2}:{hp+1}], v{v_lane16}, s[{S_WS}:{S_WS+3}], s{r.s_sth} offen offset:{(qd>>1)*1024}{SC}', gives=['st:h']))
        body.append(I(f's_add_u32 s{r.s_sth}, s{r.s_sth}, 4096'))
        return body
    def e_gu16(src):
        body = []
        for half in range(2):
            r0 = 4 * half
            ee = [TP + i for i in range(4)]
            pp = [TP + 4 + i for i in range(4)]
            for i in range(4): body.append(I(f'v_mul_f32 v{ee[i]}, {hexf(-LOG2E)}, v{src+r0+i}'))
            for i in range(4):
                body.append(I(f'v_exp_f32 v{ee[i]}, v{ee[i]}'))
                body.append(I(f'v_mul_f32 v{pp[i]}, v{src+r0+i}, v{src+8+r0+i}'))
            for i in range(4): body.append(I(f'v_add_f32 v{ee[i]}, 1.0, v{ee[i]}'))
            for i in range(4): body.append(I(f'v_rcp_f32 v{ee[i]}, v{ee[i]}'))
            for i in range(4): body.append(I(f'v_mul_f32 v{pp[i]}, v{pp[i]}, v{ee[i]}'))
            hp = TP + 8 + 2 * half
            body.append(I(f'v_cvt_pk_bf16_f32 v{hp}, v{pp[0]}, v{pp[1]}'))
            body.append(I(f'v_cvt_pk_bf16_f32 v{hp+1}, v{pp[2]}, v{pp[3]}'))
        body.append(I(f'buffer_store_dwordx4 v[{TP+8}:{TP+11}], v{v_lane16}, s[{S_WS}:{S_WS+3}], s{r.s_sth2} offen{SC}', gives=['st:h']))
        return body
    def e_qk():
        body = []
        O = TP + 16
        for q in range(16): body.append(I(f'v_mul_f32 v{TP+q}, s{r.s_scq}, v{B2+q}'))
        for d in range(8): body.append(I(f'v_cvt_pk_bf16_f32 v{O+d}, v{TP+2*d}, v{TP+2*d+1}'))
        body.append(I(f'v_mov_b32 v{TP}, s{r.s_padk}'))
        body.append(I(f'v_mov_b32 v{TP+1}, 0'))
        body.append(I(f'v_cndmask_b32 v{O+6}, v{O+6}, v{TP}, s[{s_hi}:{s_hi+1}]'))
        body.append(I(f'v_cndmask_b32 v{O+7}, v{O+7}, v{TP+1}, s[{s_hi}:{s_hi+1}]'))
        body.append(I(f'buffer_store_dwordx4 v[{O}:{O+3}], v{v_lane16}, s[{S_WS}:{S_WS+3}], s{r.s_stq} offen{SC}', gives=['st:qkv']))
        body.append(I(f'buffer_store_dwordx4 v[{O+4}:{O+7}], v{v_lane16}, s[{S_WS}:{S_WS+3}], s{r.s_stq} offen offset:1024{SC}', gives=['st:qkv']))
        body.append([I(f's_mov_b32 s{r.s_scq}, 1.0'), I(f's_mov_b32 s{r.s_padk}, 0x3f80'), I(f's_mov_b32 s{r.s_stq}, s{r.s_stk}')])
        return body
    def e_vv():
        O = TP + 16
        body = []
        for d in range(8): body.append(I(f'v_cvt_pk_bf16_f32 v{O+d}, v{B2+2*d}, v{B2+2*d+1}'))
        for d in range(8): body.append(I(f'v_cndmask_b32 v{O+d}, v{O+d}, v{v_padv}, s[{s_pad}:{s_pad+1}]'))
        body.append(I(f'buffer_store_dwordx4 v[{O}:{O+3}], v{v_lane16}, s[{S_WS}:{S_WS+3}], s{r.s_stv} offen{SC}', gives=['st:qkv']))
        body.append(I(f'buffer_store_dwordx4 v[{O+4}:{O+7}], v{v_lane16}, s[{S_WS}:{S_WS+3}], s{r.s_stv} offen offset:1024{SC}', gives=['st:qkv']))
        return body
    def spread(fill, items, st, en):
        n = en - st
        for k in range(n): fill[st + k] += items[len(items) * k // n: len(items) * (k + 1) // n]

    def stage(st, kinds, w_is_a, dst, epi, early=False, mid=None):
        fill = [[] for _ in range(28)]
        head = [[] for _ in range(28)]
        pre = [[] for _ in range(28)]
        if st == 1:
            pre[4] += [I('s_barrier', needs=['g5'])]
            pre[11] += [I('s_barrier', needs=['g6'])]
            pre[18] += [I('s_barrier', needs=['g7', 'g8'])]
            head[1] += b_issue(9, kinds, 'c')
            head[5] += b_issue(10, kinds, 'c')
            head[9] += b_issue(11, kinds, 'i0')
            head[13] += b_issue(12, kinds, 'i1')
            head[17] += b_issue(13, kinds, 'i2')
            head[21] += b_issue(14, kinds, 'i3')
        else:
            head[0] += b_issue(4 * st + 7, kinds, 'i0')
            head[7] += b_issue(4 * st + 8, kinds, 'i1')
            head[14] += b_issue(4 * st + 9, kinds, 'i2')
            head[21] += b_issue(4 * st + 10, kinds, 'i3')
        if mid is not None:
            head[10] += [I('s_barrier', needs=['st:qkv'])] + mid
        if 'noepi' in EXP: epi = None
        if epi is not None: spread(fill, epi, 1, 16 if early else 26)
        out = []
        for t in range(28):
            T = 28 * st + t
            out += pre[t] + wread(T + 3, kinds) + [mf(T, w_is_a, dst)] + flat(head[t]) + flat(fill[t])
        out.append(I('s_barrier', needs=['i0', 'i1']))
        if k1.STAMP and 'stg' in EXP and st in (1, 2, 3):
            out += [I('s_memtime s[94:95]'), I('s_waitcnt lgkmcnt(0)'), I(f's_mov_b32 s{80 + 9 + st}, s94')]
        return out
    def xread(t0, t1, g):
        o = []
        for t in range(t0, t1):
            a, u = t >> 2, t & 3
            if t == 16:
                for uu in range(4): o.append(I(f'v_add_u32 v{xr[uu]}, 0x10000, v{xr[uu]}'))
            o.append(I(f'ds_read_b128 v[{XF+4*t}:{XF+4*t+3}], v{xr[u]} offset:{(a * 16384) & 0xffff}', gives=[g]))
        return o
    def stage0(kinds, w_is_a):
        o = [I('s_barrier', needs=['g0', 'lds:xn'])]
        if k1.STAMP: o += [I('s_memtime s[94:95]'), I('s_waitcnt lgkmcnt(0)'), I(f's_mov_b32 s{80+5}, s94')]
        xs = xread(0, 28, 'rd:x')
        xl = {}; t = 0
        for ins_ in xs:
            xl.setdefault(t, []).append(ins_)
            if ins_.kind == 'dsr': t += 1
        for tt in range(4):
            for x in xl[tt]:
                if x.kind == 'dsr': x.gives = ['rd:xa']
        o += xl[0]; o += wread(0, kinds); o += xl[1]; o += wread(1, kinds); o += xl[2]; o += wread(2, kinds); o += xl[3]
        o += xl[4] + xl[5]
        nx = 6
        for T in range(28):
            if T == 1:
                o += [I('s_barrier', needs=['rd:xa', 'g1'])] + b_issue(3, kinds, 'g3')
            if T == 9:
                o += [I('s_barrier', needs=['rd:x', 'g2'])] + b_issue(4, kinds, 'g4')
            if T == 13: o += b_issue(5, kinds, 'g5')
            if T == 17: o += b_issue(6, kinds, 'g6')
            if T == 21: o += b_issue(7, kinds, 'g7')
            if T == 25: o += b_issue(8, kinds, 'g8')
            if T == 18: o += [I('s_barrier', needs=['g3'])]
            if T == 25: o += [I('s_barrier', needs=['g4'])]
            for q in range(3):
                if nx < 28 and T < 9:
                    o += xl[nx]; nx += 1
            o += wread(T + 3, kinds)
            o.append(mf(T, w_is_a, B2))
        assert nx == 28
        return o
    hook = getattr(r, 'hook', None)
    H = lambda pt: (hook(pt) if hook else [])

    def merge_fill(a, b):
        o = []; n = max(len(a), len(b))
        for k in range(n):
            o += a[len(a) * k // n: len(a) * (k + 1) // n] + b[len(b) * k // n: len(b) * (k + 1) // n]
        return o
    p(f's_cmp_eq_u32 s{s_ty}, 0')
    p(f's_cbranch_scc1 {L("seqA")}')
    p.add(stage0(KX, False)); stamp(p, 6)
    p.add(stage(1, KX, True, B1, e_vv(), early=True))
    p.add(stage(2, KX, True, B2, None, mid=H('qkv')))
    p.add(stage(3, KX, True, B1, e_gu()))
    p.add(stage(4, KX, True, B2, (H('s4x_a') + H('s4x_b')) or None))
    stamp(p, 8)
    p.add(H('pre_fin'))
    p('s_nop 4')
    p.add(flat(e_gu()))
    p(f's_branch {L("fin")}')
    p.label(L('seqA'))
    p.add(stage0(KY, True)); stamp(p, 6)
    p.add(stage(1, KY, True, B2, e_qk(), early=True))
    p.add(stage(2, KY, True, B1, e_qk(), early=True))
    s3 = stage(3, KY, True, B2, [[]] * 2 + H('s4y_a'), mid=H('qkv'))
    p.add(s3)
    p.add(stage(4, KY, True, B1, merge_fill(e_gu(), H('s4y_b'))))
    stamp(p, 8)
    p.add(H('pre_fin2'))
    p('s_nop 4')
    p.add(flat(e_gu16(B1)))
    p.label(L('fin'))
    stamp(p, 9)

def gen_k1(name):
    p = Prog()
    L = lambda s: name + '_' + s
    r = regmap()
    p.label(name)
    p('s_cmp_ge_u32 s2, 256')
    p(f's_cbranch_scc1 {L("end")}')
    stamp(p, 0)
    phase1(p, L, r, False)
    p('s_waitcnt vmcnt(0) lgkmcnt(0)')
    k1.stamp_store(p, r.S_WS, r.s_w, 0)
    p.label(L('end'))
    p('s_endpgm')
    desc = f"""
.amdhsa_kernel {name}
  .amdhsa_next_free_vgpr 256
  .amdhsa_next_free_sgpr 102
  .amdhsa_accum_offset 256
  .amdhsa_group_segment_fixed_size 0
  .amdhsa_kernarg_size 80
  .amdhsa_user_sgpr_count 2
  .amdhsa_user_sgpr_kernarg_segment_ptr 1
  .amdhsa_system_sgpr_workgroup_id_x 1
  .amdhsa_float_denorm_mode_32 3
.end_amdhsa_kernel
"""
    return p, desc
```

```python
from asmlib import *
import k1
from k1 import (WS_QF, WS_KV, WS_HF, WS_OF, WS_FLAG, SLOT, NSLOT, RING, LOG2E, CQ, hexf, flat, stamp)
from k0 import wave_sum
WS_FL = (16 << 20) + 4096

class R: pass

def regmap():
    r = R()
    r.S_W, r.S_G, r.S_U, r.S_WS, r.S_X = 8, 12, 16, 20, 96
    r.s_w, r.s_r4, r.s_ch, r.s_rb, r.s_g, r.s_p, r.s_kind, r.s_ty = 30, 31, 32, 33, 34, 35, 36, 37
    r.s_q = 40
    r.s_w8q, r.s_w8g = 45, 46
    r.s_so, r.s_so2 = 47, 48
    r.s_mo, r.s_mo2 = 49, 50
    r.s_d64q, r.s_d64g = 51, 52
    r.s_hi, r.s_pad = 54, 56
    r.s_t0, r.s_t1, r.s_t2, r.s_t3 = 58, 59, 60, 61
    r.s_stq, r.s_stk, r.s_stv, r.s_sth = 62, 63, 64, 65
    r.s_scq, r.s_padk = 66, 67
    r.s_x0, r.s_x1, r.s_xm = 68, 69, 70
    r.s_tag = 3
    r.s_sth2 = 71
    r.S_R = 24
    r.s_w3, r.s_mo3, r.s_mo32 = 53, 6, 7
    return r

def slot_of(G): return (8 + G) % NSLOT

def phase1(p, L, r, merged, stamp_base=0):
    EXP = k1.EXP
    S_W, S_G, S_U, S_WS, S_X = r.S_W, r.S_G, r.S_U, r.S_WS, r.S_X
    s_w, s_r4, s_ch, s_rb, s_g, s_p, s_kind, s_ty = r.s_w, r.s_r4, r.s_ch, r.s_rb, r.s_g, r.s_p, r.s_kind, r.s_ty
    s_q, s_t0, s_t1, s_t2, s_t3 = r.s_q, r.s_t0, r.s_t1, r.s_t2, r.s_t3
    s_hi, s_pad = r.s_hi, r.s_pad
    SC = ' sc1' if merged else ''
    v_lane16 = 1
    v_pq, v_pg = [2, 3, 4], [5, 6, 7]
    v_dq, v_dg = 8, 9
    v_t = 18
    v_padv = 28
    WF = [40, 44, 48, 52]
    ACCA, B1, B2 = 56, 72, 88
    TP = 104
    XF = 128
    xr = [240, 241, 242, 243]
    xa, xb = 250, 251
    lane, m, hh = v_t + 2, v_t + 3, v_t + 4

    p(f's_load_dwordx2 s[{S_X}:{S_X+1}], s[0:1], 0')
    p('s_load_dwordx2 s[6:7], s[0:1], 8')
    p('s_load_dwordx4 s[24:27], s[0:1], 32')
    p('s_load_dwordx2 s[4:5], s[0:1], 72')
    if merged:
        p('s_load_dwordx2 s[100:101], s[0:1], 64')
        p('s_load_dwordx2 s[28:29], s[0:1], 48')
        p('s_load_dwordx2 s[38:39], s[0:1], 56')
    p('s_getpc_b64 s[74:75]')
    p.label(L('pcbase'))
    p(f'v_and_b32 v{lane}, 63, v0')
    p(f'v_lshrrev_b32 v{v_t+1}, 6, v0')
    p(f'v_readfirstlane_b32 s{s_w}, v{v_t+1}')
    p('s_nop 0')
    p(f's_cmp_eq_u32 s{s_w}, 7')
    p(f's_cbranch_scc0 {L("nocp")}')
    p(f's_lshr_b32 s{s_t0}, s2, 3')
    p(f's_lshl_b32 s{s_t0}, s{s_t0}, 11')
    p(f'v_lshlrev_b32 v{v_t}, 7, v{lane}')
    p(f'v_add_u32 v{v_t}, s{s_t0}, v{v_t}')
    p(f'v_min_u32 v{v_t}, {r.code_end}-{L("pcbase")}-4, v{v_t}')
    p('s_mov_b32 exec_lo, 0xffff')
    p('s_mov_b32 exec_hi, 0')
    p(f'global_load_dword v255, v{v_t}, s[74:75]')
    p('s_mov_b64 exec, -1')
    p.label(L('nocp'))
    p(f'v_lshlrev_b32 v{v_lane16}, 4, v{lane}')
    p(f'v_and_b32 v{m}, 31, v0')
    p(f'v_bfe_u32 v{hh}, v0, 5, 1')
    GN = 4
    for e in EXP:
        if e.startswith('gn'): GN = int(e[2:])
    RR = 32 // GN
    nxr = 16 // RR
    lr, lg = RR.bit_length() - 1, GN.bit_length() - 1
    lxr = nxr.bit_length() - 1
    p(f's_and_b32 s{s_t0}, s2, {nxr-1}')
    p(f's_lshl_b32 s{s_t0}, s{s_t0}, {lr}')
    p(f's_lshr_b32 s{s_t1}, s2, 3')
    p(f's_and_b32 s{s_t2}, s{s_t1}, {RR-1}')
    p(f's_add_u32 s{s_rb}, s{s_t0}, s{s_t2}')
    p(f's_and_b32 s{s_t0}, s2, 7')
    p(f's_lshr_b32 s{s_t0}, s{s_t0}, {lxr}')
    p(f's_lshl_b32 s{s_t0}, s{s_t0}, {lg}')
    p(f's_lshr_b32 s{s_t1}, s{s_t1}, {lr}')
    p(f's_add_u32 s{s_g}, s{s_t0}, s{s_t1}')
    p(f's_lshl_b32 s{s_t0}, s{s_rb}, 7')
    p(f's_lshl_b32 s{s_t1}, s{s_w}, 4')
    p(f's_add_u32 s{s_t0}, s{s_t0}, s{s_t1}')
    p(f's_mul_i32 s{r.s_x0}, s{s_t0}, 896')
    p(f's_add_u32 s{r.s_x1}, s{r.s_x0}, {8*896}')
    p(f's_lshl_b32 s{r.s_xm}, s{s_w}, 11')
    p(f'v_lshrrev_b32 v{v_t}, 3, v{lane}')
    p(f'v_mul_u32_u24 v{v_t}, 896, v{v_t}')
    p(f'v_and_b32 v{v_t+5}, 7, v{lane}')
    p(f'v_lshlrev_b32 v{v_t+1}, 4, v{v_t+5}')
    p(f'v_add_u32 v{xa}, v{v_t}, v{v_t+1}')
    p(f's_mov_b32 s{S_X+2}, {2048*896}')
    p(f's_mov_b32 s{S_X+3}, 0x20000')
    p('s_waitcnt lgkmcnt(0)')
    stamp(p, 2)
    if k1.STAMP: p('s_getreg_b32 s93, hwreg(HW_REG_XCC_ID)')
    def x_issue(g):
        return [I(f's_mov_b32 m0, s{r.s_xm}'),
                I(f's_addk_i32 s{r.s_xm}, 16384'),
                I(f'buffer_load_dwordx4 v{xa}, s[{S_X}:{S_X+3}], s{r.s_x0} offen lds', gives=[g]),
                I('s_addk_i32 m0, 1024'),
                I(f's_addk_i32 s{r.s_x0}, 128'),
                I(f'buffer_load_dwordx4 v{xa}, s[{S_X}:{S_X+3}], s{r.s_x1} offen lds', gives=[g]),
                I(f's_addk_i32 s{r.s_x1}, 128')]
    if 'xt' in EXP:
        per = 896 // GN // 8
        p(f's_and_b32 s{s_t0}, s{s_g}, {GN-1}')
        p(f's_lshl_b32 s{s_t0}, s{s_t0}, 3')
        p(f's_add_u32 s{s_t0}, s{s_t0}, s{s_w}')
        p(f's_mul_i32 s{s_t0}, s{s_t0}, {per*128}')
        p(f's_mul_i32 s{s_t1}, s{s_rb}, {128*896}')
        p(f's_add_u32 s{s_t0}, s{s_t0}, s{s_t1}')
        p(f'v_lshlrev_b32 v{v_t}, 7, v{lane}')
        p(f's_mov_b32 exec_lo, {(1 << per) - 1}')
        p('s_mov_b32 exec_hi, 0')
        p(f'buffer_load_dword v253, v{v_t}, s[{S_X}:{S_X+3}], s{s_t0} offen', gives=['xt'])
        p('s_mov_b64 exec, -1')
        if 'xw' in EXP: p.add([I('s_nop 0', needs=['xt'])])
    if 'xfull' in EXP:
        p(f'v_lshlrev_b32 v{v_t}, 7, v{lane}')
        p(f'buffer_load_dword v253, v{v_t}, s[{S_X}:{S_X+3}], s{r.s_x0} offen', gives=['xt'])
        p(f's_add_u32 s{s_t0}, s{r.s_x0}, 8192')
        p('s_mov_b32 exec_hi, 0x0000ffff')
        p(f'buffer_load_dword v254, v{v_t}, s[{S_X}:{S_X+3}], s{s_t0} offen', gives=['xt'])
        p('s_mov_b64 exec, -1')
        p.add([I('s_nop 0', needs=['xt'])])
        stamp(p, 7)
    if merged:
        p(f's_add_u32 s{s_t0}, s2, s{s_w}')
        p(f's_cmp_eq_u32 s{s_t0}, 0')
        p(f's_cbranch_scc0 {L("notag")}')
        p('s_memrealtime s[60:61]')
        p('s_waitcnt lgkmcnt(0)')
        p('s_or_b32 s60, s60, 1')
        p(f'v_mov_b32 v{v_t}, s60')
        p(f'v_mov_b32 v{v_t+1}, 0')
        p(f'global_store_dword v{v_t+1}, v{v_t}, s[100:101] sc1')
        p.label(L('notag'))
    if 'xt2' in EXP:
        p(f's_cmp_lt_u32 s{s_w}, 4')
        p(f's_cbranch_scc1 {L("noxt2")}')
        p(f'v_lshlrev_b32 v{v_t}, 7, v{lane}')
        p(f'buffer_load_dword v253, v{v_t}, s[{S_X}:{S_X+3}], s{r.s_x0} offen')
        p(f's_add_u32 s{s_t0}, s{r.s_x0}, 8192')
        p('s_mov_b32 exec_hi, 0x0000ffff')
        p(f'buffer_load_dword v254, v{v_t}, s[{S_X}:{S_X+3}], s{s_t0} offen')
        p('s_mov_b64 exec, -1')
        p.label(L('noxt2'))
    p(f's_mov_b32 s{s_t2}, 7')
    p.label(L('xloop'))
    p.add(x_issue('x'))
    p(f's_sub_u32 s{s_t2}, s{s_t2}, 1')
    p(f's_cmp_lg_u32 s{s_t2}, 0')
    p(f's_cbranch_scc1 {L("xloop")}')
    if merged:
        p('v_mov_b32 v27, 0')
        p.add([I('global_load_dword v26, v27, s[100:101] sc1', gives=['x'])])
    for (Sd, lo, hi, size) in ((S_W, 6, 7, 448 * 2688), (S_G, 24, 25, 448 * 3584), (S_U, 26, 27, 448 * 3584), (S_WS, 4, 5, k1.WS_SIZE)):
        p(f's_mov_b32 s{Sd}, s{lo}')
        p(f's_mov_b32 s{Sd+1}, s{hi}')
        p(f's_mov_b32 s{Sd+2}, {size}')
        p(f's_mov_b32 s{Sd+3}, 0x20000')
    if merged:
        p('s_load_dwordx2 s[4:5], s[0:1], 16')
        p('s_waitcnt lgkmcnt(0)')
    def warmups(which=(0, 1, 2, 3, 4)):
        if merged:
            for wv, base, size in ((3, 28, 1792 * 896), (4, 4, 448 * 896)):
                if wv not in which: continue
                sl = size // 256
                nl = (sl + 127) // 128
                p(f's_cmp_eq_u32 s{s_w}, {wv}')
                p(f's_cbranch_scc0 {L("wd%d" % wv)}')
                p(f's_mul_i32 s{s_t0}, s2, {sl}')
                p(f'v_min_u32 v{v_t}, {nl-1}, v{lane}')
                p(f'v_lshlrev_b32 v{v_t}, 7, v{v_t}')
                p(f'v_min_u32 v{v_t}, {sl-4}, v{v_t}')
                p(f'v_add_u32 v{v_t}, s{s_t0}, v{v_t}')
                p(f's_mov_b32 exec_lo, {((1 << min(nl,32)) - 1)}')
                p(f's_mov_b32 exec_hi, {((1 << max(nl-32,0)) - 1)}')
                p(f'global_load_dword v{249+wv}, v{v_t}, s[{base}:{base+1}]')
                p('s_mov_b64 exec, -1')
                p.label(L('wd%d' % wv))
        if 'nowarm' not in EXP:
            p(f'v_lshlrev_b32 v{v_t}, 7, v{lane}')
            for i, (Sd, size) in enumerate(((S_W, 448 * 2688), (S_G, 448 * 3584), (S_U, 448 * 3584))):
                if i not in which: continue
                sl = (size // 256 + 127) // 128 * 128
                wv_ = i + (4 if 'yw' in EXP else 0)
                p(f's_cmp_eq_u32 s{s_w}, {wv_}')
                p(f's_cbranch_scc0 {L("wu%d" % i)}')
                p(f's_mul_i32 s{s_t0}, s2, {sl}')
                p('s_mov_b32 exec_hi, 0x0000ffff' if sl > 4096 + 768 else 's_mov_b32 exec_hi, 0x000000ff')
                p(f'buffer_load_dword v{252+i}, v{v_t}, s[{Sd}:{Sd+3}], s{s_t0} offen')
                p('s_mov_b64 exec, -1')
                p.label(L('wu%d' % i))
    if 'earlyq' in EXP: warmups((0, 1, 2) if 'earlyg' in EXP else (0,))
    stamp(p, 3)
    p(f's_and_b32 s{s_r4}, s{s_w}, 3')
    p(f's_lshr_b32 s{s_ch}, s{s_w}, 2')
    p(f's_lshr_b32 s{s_p}, s{s_g}, 1')
    p(f's_and_b32 s{s_ty}, s{s_g}, 1')
    p(f's_mul_i32 s{s_t0}, s{s_p}, 7')
    p(f's_and_b32 s{s_t1}, s{s_p}, 1')
    p(f's_add_u32 s{s_t2}, s{s_t0}, s{s_t1}')
    p(f's_add_u32 s{s_t3}, s{s_t0}, 6')
    p(f's_cmp_eq_u32 s{s_t1}, 0')
    p(f's_cselect_b32 s{s_t3}, s{s_t3}, s{s_t0}')
    p(f's_mul_i32 s{s_q}, s{s_p}, 112')
    p(f's_cmp_eq_u32 s{s_ty}, 0')
    p(f's_cbranch_scc0 {L("tyB")}')
    p(f's_add_u32 s{s_q+1}, s{s_q}, 896')
    p(f's_lshl_b32 s{s_q+2}, s{s_t2}, 6')
    p(f's_mov_b32 s{s_q+3}, s{s_q+2}')
    p(f's_lshl_b32 s{s_q+4}, s{s_t3}, 6')
    p(f's_mov_b32 s{s_kind}, s{s_t3}')
    p(f's_branch {L("tyC")}')
    p.label(L('tyB'))
    p(f's_add_u32 s{s_q}, s{s_q}, 1792')
    p(f's_add_u32 s{s_t2}, s{s_t2}, 2')
    p(f's_lshl_b32 s{s_q+1}, s{s_t2}, 6')
    p(f's_mov_b32 s{s_q+2}, s{s_q+1}')
    p(f's_add_u32 s{s_q+3}, s{s_q+1}, 128')
    p(f's_mov_b32 s{s_q+4}, s{s_q+3}')
    p.label(L('tyC'))
    p(f's_lshl_b32 s{s_t0}, s{s_rb}, 2')
    p(f's_add_u32 s{s_t0}, s{s_t0}, s{s_r4}')
    p(f's_mul_i32 s{r.s_sth}, s{s_t0}, 112')
    p(f's_lshl_b32 s{r.s_sth2}, s{s_kind}, 1')
    p(f's_add_u32 s{r.s_sth2}, s{r.s_sth2}, s{s_ch}')
    p(f's_add_u32 s{r.s_sth2}, s{r.s_sth2}, s{r.s_sth}')
    p(f's_lshl_b32 s{r.s_sth2}, s{r.s_sth2}, 10')
    p(f's_add_u32 s{r.s_sth2}, s{r.s_sth2}, {WS_HF}')
    p(f's_lshl_b32 s{s_t1}, s{s_t2}, 1')
    p(f's_add_u32 s{r.s_sth}, s{r.s_sth}, s{s_t1}')
    p(f's_lshl_b32 s{s_t1}, s{s_ch}, 1')
    p(f's_add_u32 s{r.s_sth}, s{r.s_sth}, s{s_t1}')
    p(f's_lshl_b32 s{r.s_sth}, s{r.s_sth}, 10')
    p(f's_add_u32 s{r.s_sth}, s{r.s_sth}, {WS_HF}')
    p(f's_lshl_b32 s{s_t1}, s{s_p}, 1')
    p(f's_add_u32 s{s_t1}, s{s_t1}, s{s_ch}')
    p(f's_lshl_b32 s{s_t1}, s{s_t1}, 6')
    p(f's_add_u32 s{s_t1}, s{s_t1}, s{s_t0}')
    p(f's_lshl_b32 s{s_t3}, s{s_t1}, 12')
    p(f's_add_u32 s{r.s_stv}, s{s_t3}, {WS_KV + 2048}')
    p(f's_add_u32 s{r.s_stk}, s{s_t3}, {WS_KV}')
    p(f's_lshl_b32 s{r.s_stq}, s{s_t1}, 11')
    p(f's_add_u32 s{r.s_stq}, s{r.s_stq}, {WS_QF}')
    p(f's_mov_b32 s{r.s_scq}, {hexf(CQ)}')
    p(f's_mov_b32 s{r.s_padk}, 0')
    p(f's_mul_i32 s{r.s_w8q}, s{s_w}, {8*2688}')
    p(f's_mul_i32 s{r.s_w8g}, s{s_w}, {8*3584}')
    p(f's_lshl_b32 s{r.s_mo}, s{s_w}, 10')
    p(f's_cmp_lt_u32 s{s_w}, 6')
    p(f's_cselect_b32 s{r.s_d64q}, {64*2688}, 0')
    p(f's_cselect_b32 s{r.s_d64g}, {64*3584}, 0')
    p(f's_cselect_b32 s{s_t0}, 8192, 0')
    p(f's_add_u32 s{r.s_mo2}, s{r.s_mo}, s{s_t0}')
    v_p3, v_d3 = [36, 37, 38], 39
    p(f's_and_b32 s{s_t1}, s{s_w}, 1')
    p(f's_cmp_eq_u32 s{s_t1}, 0')
    p(f's_cselect_b32 s{r.S_R}, s{S_G}, s{S_U}')
    p(f's_cselect_b32 s{r.S_R+1}, s{S_G+1}, s{S_U+1}')
    p(f's_mov_b32 s{r.S_R+2}, {448*3584}')
    p(f's_mov_b32 s{r.S_R+3}, 0x20000')
    p(f's_lshr_b32 s{s_t2}, s{s_w}, 1')
    p(f's_mul_i32 s{r.s_w3}, s{s_t2}, {16*3584}')
    p(f's_mul_i32 s{r.s_mo3}, s{s_t1}, 7168')
    p(f's_lshl_b32 s{s_t2}, s{s_t2}, 10')
    p(f's_add_u32 s{r.s_mo3}, s{r.s_mo3}, s{s_t2}')
    p(f's_lshr_b32 s{s_t0}, s{s_t0}, 1')
    p(f's_add_u32 s{r.s_mo32}, s{r.s_mo3}, s{s_t0}')
    p(f'v_lshrrev_b32 v{v_t}, 2, v{lane}')
    p(f'v_mul_u32_u24 v{v_d3}, 3584, v{v_t}')
    p(f'v_and_b32 v{v_t}, 3, v{lane}')
    p(f'v_lshlrev_b32 v{v_t}, 4, v{v_t}')
    p(f's_lshl_b32 s{s_t1}, s{s_t1}, 5')
    p(f'v_xor_b32 v{v_t}, s{s_t1}, v{v_t}')
    p(f'v_add_u32 v{v_d3}, v{v_d3}, v{v_t}')
    p(f'v_bfe_u32 v{v_t}, v{lane}, 2, 2')
    p(f'v_lshlrev_b32 v{v_t+1}, 3, v{hh}')
    p(f'v_add_u32 v{v_t}, v{v_t}, v{v_t+1}')
    p(f'v_lshlrev_b32 v{v_p3[0]}, 6, v{v_t}')
    p(f'v_and_b32 v{v_t}, 3, v{lane}')
    p(f'v_lshlrev_b32 v{v_t}, 3, v{v_t}')
    p(f'v_add_u32 v{v_p3[0]}, v{v_p3[0]}, v{v_t}')
    p(f'v_bfe_u32 v{v_t}, v{lane}, 4, 1')
    p(f'v_mul_u32_u24 v{v_t+1}, 7168, v{v_t}')
    p(f'v_add_u32 v{v_p3[0]}, v{v_p3[0]}, v{v_t+1}')
    p(f'v_xor_b32 v{v_t}, s{s_ch}, v{v_t}')
    p(f'v_lshlrev_b32 v{v_t}, 5, v{v_t}')
    p(f'v_add_u32 v{v_p3[0]}, v{v_p3[0]}, v{v_t}')
    p(f'v_add_u32 v{v_p3[1]}, {4*SLOT}, v{v_p3[0]}')
    p(f'v_add_u32 v{v_p3[2]}, {8*SLOT}, v{v_p3[0]}')
    p(f'v_bfe_u32 v{v_t}, v{lane}, 4, 1')
    p(f'v_lshlrev_b32 v{v_t}, 2, v{v_t}')
    p(f'v_and_b32 v{v_t+1}, 7, v{lane}')
    p(f'v_xor_b32 v{v_t}, v{v_t}, v{v_t+1}')
    p(f'v_lshlrev_b32 v{v_t}, 4, v{v_t}')
    p(f'v_lshrrev_b32 v{v_t+1}, 3, v{lane}')
    p(f'v_mul_u32_u24 v{v_dq}, 2688, v{v_t+1}')
    p(f'v_add_u32 v{v_dq}, v{v_dq}, v{v_t}')
    p(f'v_mul_u32_u24 v{v_dg}, 3584, v{v_t+1}')
    p(f'v_add_u32 v{v_dg}, v{v_dg}, v{v_t}')
    p(f's_mov_b32 s{s_hi}, 0')
    p(f's_mov_b32 s{s_hi+1}, -1')
    p(f's_mov_b32 s{s_pad}, 0xf0000000')
    p(f's_mov_b32 s{s_pad+1}, 0xf0000000')
    def mkpat(dst, b0mul):
        p(f'v_bfe_u32 v{v_t}, v{lane}, 2, 2')
        p(f'v_lshlrev_b32 v{v_t+1}, 3, v{hh}')
        p(f'v_add_u32 v{v_t+1}, v{v_t+1}, v{v_t}')
        p(f'v_lshlrev_b32 v{dst[0]}, 7, v{v_t+1}')
        p(f'v_bfe_u32 v{v_t+1}, v{lane}, 4, 1')
        p(f'v_lshlrev_b32 v{v_t+1}, 5, v{v_t+1}')
        p(f'v_and_b32 v{v_t+5}, 3, v{lane}')
        p(f'v_lshlrev_b32 v{v_t+5}, 3, v{v_t+5}')
        p(f'v_add_u32 v{v_t+1}, v{v_t+1}, v{v_t+5}')
        p(f's_mul_i32 s{s_t0}, s{s_ch}, {b0mul}')
        p(f'v_add_u32 v{v_t+1}, s{s_t0}, v{v_t+1}')
        p(f'v_lshrrev_b32 v{v_t}, 1, v{v_t}')
        p(f'v_lshlrev_b32 v{v_t}, 6, v{v_t}')
        p(f'v_xor_b32 v{v_t+1}, v{v_t+1}, v{v_t}')
        p(f'v_add_u32 v{dst[0]}, v{dst[0]}, v{v_t+1}')
        p(f'v_add_u32 v{dst[1]}, {4*SLOT}, v{dst[0]}')
        p(f'v_add_u32 v{dst[2]}, {8*SLOT}, v{dst[0]}')
    mkpat(v_pq, 56)
    mkpat(v_pg, 64)
    p(f'v_cmp_eq_u32 vcc, 28, v{m}')
    p(f'v_mov_b32 v{v_padv}, 0')
    p(f'v_mov_b32 v{v_t}, 0x3f803f80')
    p(f'v_cndmask_b32 v{v_padv}, v{v_padv}, v{v_t}, vcc')
    p(f's_lshl_b32 s{s_t0}, s{s_r4}, 12')
    p(f'v_lshlrev_b32 v{v_t}, 7, v{m}')
    p(f'v_add_u32 v{v_t}, s{s_t0}, v{v_t}')
    p(f'v_bfe_u32 v{v_t+1}, v{m}, 1, 3')
    p(f'v_xor_b32 v{v_t+1}, v{v_t+1}, v{hh}')
    for u in range(4):
        p(f'v_xor_b32 v{v_t+5}, {2*u}, v{v_t+1}')
        p(f'v_lshlrev_b32 v{v_t+5}, 4, v{v_t+5}')
        p(f'v_add_u32 v{xr[u]}, v{v_t}, v{v_t+5}')
    if not merged:
        p(f's_cmp_eq_u32 s{s_w}, 5')
        p(f's_cbranch_scc0 {L("nzf")}')
        p(f's_lshl_b32 s{s_t0}, s2, 2')
        p(f's_add_u32 s{s_t0}, s{s_t0}, {WS_FLAG}')
        p(f'v_mov_b32 v{v_t}, 0')
        p(f'buffer_store_dword v{v_t}, v{v_t}, s[{S_WS}:{S_WS+3}], s{s_t0} offen')
        p.label(L('nzf'))

    def b_issue(G, kinds, g):
        if G > 19: return []
        if 'nodma' in EXP and G > 10: return []
        st, j = G // 4, G % 4
        kind = kinds[st]
        if kind == 3:
            base = slot_of(G) * SLOT
            o = []
            if j == 0:
                o += [I(f's_add_u32 s{r.s_so}, s{s_q+st}, s{r.s_w3}'), I(f's_add_u32 s{r.s_so2}, s{r.s_so}, s{r.s_d64g}')]
            o += [I(f's_add_u32 m0, s{r.s_mo3}, {base}'),
                  I(f's_add_u32 s{s_t3}, s{r.s_mo32}, {base}'),
                  I(f'buffer_load_dwordx4 v{v_d3}, s[{r.S_R}:{r.S_R+3}], s{r.s_so} offen lds', gives=[g]),
                  I(f's_mov_b32 m0, s{s_t3}'),
                  I(f's_add_u32 s{r.s_so}, s{r.s_so}, {112*3584}'),
                  I(f'buffer_load_dwordx4 v{v_d3}, s[{r.S_R}:{r.S_R+3}], s{r.s_so2} offen lds', gives=[g]),
                  I(f's_add_u32 s{r.s_so2}, s{r.s_so2}, {112*3584}')]
            return o
        srd = {0: S_W, 1: S_G, 2: S_U}[kind]
        vo = v_dq if kind == 0 else v_dg
        stride = 2688 if kind == 0 else 3584
        o = []
        if j == 0:
            o += [I(f's_add_u32 s{r.s_so}, s{s_q+st}, s{r.s_w8q if kind == 0 else r.s_w8g}'),
                  I(f's_add_u32 s{r.s_so2}, s{r.s_so}, s{r.s_d64q if kind == 0 else r.s_d64g}')]
        base = slot_of(G) * SLOT
        o += [I(f's_add_u32 m0, s{r.s_mo}, {base}'),
              I(f's_add_u32 s{s_t3}, s{r.s_mo2}, {base}'),
              I(f'buffer_load_dwordx4 v{vo}, s[{srd}:{srd+3}], s{r.s_so} offen lds', gives=[g]),
              I(f's_mov_b32 m0, s{s_t3}'),
              I(f's_add_u32 s{r.s_so}, s{r.s_so}, {112*stride}'),
              I(f'buffer_load_dwordx4 v{vo}, s[{srd}:{srd+3}], s{r.s_so2} offen lds', gives=[g]),
              I(f's_add_u32 s{r.s_so2}, s{r.s_so2}, {112*stride}')]
        return o

    def wread(T, kinds):
        st, t = T // 28, T % 28
        if st > 4: return []
        G = 4 * st + t // 7; ks = t % 7
        sl = slot_of(G)
        b = WF[T & 3]
        if kinds[st] == 3:
            off = (sl % 4) * SLOT + ks * 1024
            va = v_p3[sl // 4]
            return [I(f'ds_read_b64_tr_b16 v[{b}:{b+1}], v{va} offset:{off}'),
                    I(f'ds_read_b64_tr_b16 v[{b+2}:{b+3}], v{va} offset:{off+256}')]
        pat = v_pq if kinds[st] == 0 else v_pg
        off = (sl % 4) * SLOT + ks * 2048
        va = pat[sl // 4]
        return [I(f'ds_read_b64_tr_b16 v[{b}:{b+1}], v{va} offset:{off}'),
                I(f'ds_read_b64_tr_b16 v[{b+2}:{b+3}], v{va} offset:{off+512}')]
    def mf(T, w_is_a, dst):
        t = T % 28
        b = WF[T & 3]; x = XF + 4 * t
        d = dst if t == 27 else ACCA
        c = '0' if t == 0 else f'v[{ACCA}:{ACCA+15}]'
        if w_is_a: return I(f'v_mfma_f32_32x32x16_bf16 v[{d}:{d+15}], v[{b}:{b+3}], v[{x}:{x+3}], {c}')
        return I(f'v_mfma_f32_32x32x16_bf16 v[{d}:{d+15}], v[{x}:{x+3}], v[{b}:{b+3}], {c}')

    if getattr(r, 'hook', None): p.add(r.hook('ids'))
    KX, KY = [0, 1, 2, 1, 2], [0, 0, 1, 2, 3]
    va, vb, ones = 244, 245, 246
    RAW = 40
    SS = [96, 100, 104, 108]
    wa = [248, 249]
    v_sw = 252
    p(f'v_lshrrev_b32 v{v_t}, 4, v{lane}')
    p(f'v_and_b32 v{v_t+1}, 7, v{lane}')
    p(f'v_xor_b32 v{v_t}, v{v_t}, v{v_t+1}')
    p(f'v_lshlrev_b32 v{v_t}, 4, v{v_t}')
    p(f'v_lshrrev_b32 v{v_t+1}, 3, v{lane}')
    p(f'v_lshlrev_b32 v{v_t+1}, 7, v{v_t+1}')
    p(f'v_add_u32 v{v_sw}, v{v_t}, v{v_t+1}')
    p(f'v_mov_b32 v{ones}, 0x3f803f80')
    p(f'v_mov_b32 v{ones+1}, 0x3f803f80')
    for i, msk in enumerate((0x22222222, 0x44444444, 0x88888888)):
        p(f's_mov_b32 s{72+2*i if i == 0 else 74+2*i}, 0x{msk:08x}')
        p(f's_mov_b32 s{73+2*i if i == 0 else 75+2*i}, 0x{msk:08x}')
    MSK = [72, 76, 78]
    def m44(d, a, b, first):
        c = '0' if first else f'v[{d}:{d+3}]'
        return I(f'v_mfma_f32_4x4x4_16b_bf16 v[{d}:{d+3}], v[{a}:{a+1}], v[{b}:{b+1}], {c}')
    def ln(ng, extra):
        p(f'v_add_u32 v{vb}, 0x10000, v{va}')
        for a in range(7):
            for g in range(ng):
                rr = RAW + 4 * (g * 7 + a)
                p(f'ds_read_b128 v[{rr}:{rr+3}], v{va if a < 4 else vb} offset:{((a * 16384) & 0xffff) + g * 1024}')
        for a in range(7):
            for h in range(2):
                for g in range(ng):
                    rr = RAW + 4 * (g * 7 + a) + 2 * h
                    p.add([m44(SS[g], rr, ones, a == 0 and h == 0), m44(SS[2 + g], rr, rr, a == 0 and h == 0)])
                for g in range(ng):
                    rr = RAW + 4 * (g * 7 + a) + 2 * h; f = XF + 8 * (g * 7 + a) + 4 * h
                    for i in range(2):
                        p(f'v_lshlrev_b32 v{f+2*i}, 16, v{rr+i}')
                        p(f'v_and_b32 v{f+2*i+1}, 0xffff0000, v{rr+i}')
        ks = [g for g in range(ng)] + [2 + g for g in range(ng)]
        for k in ks:
            for i in range(3):
                p(f'v_cndmask_b32 v{SS[k]}, v{SS[k]}, v{SS[k]+1+i}, s[{MSK[i]}:{MSK[i]+1}]')
        for ctrl in ('quad_perm:[1,0,3,2]', 'quad_perm:[2,3,0,1]', 'row_half_mirror'):
            for k in ks:
                p(f'v_add_f32_dpp v{SS[k]}, v{SS[k]}, v{SS[k]} {ctrl} row_mask:0xf bank_mask:0xf')
        for g in range(ng):
            sm, sq = SS[g], SS[2 + g]
            p(f'v_mul_f32 v{sm}, {hexf(1/448)}, v{sm}')
            p(f'v_mul_f32 v{sq}, {hexf(1/448)}, v{sq}')
            p(f'v_fma_f32 v{sq}, -v{sm}, v{sm}, v{sq}')
            p(f'v_max_f32 v{sq}, 0, v{sq}')
            p(f'v_add_f32 v{sq}, {hexf(1e-5)}, v{sq}')
            p(f'v_rsq_f32 v{sq}, v{sq}')
        for g in range(ng):
            sm, sq = SS[g], SS[2 + g]
            p(f'v_mul_f32 v{sm}, v{sm}, v{sq}')
            p(f'v_sub_f32 v{sm}, 0, v{sm}')
        if 'stats' in extra: extra['stats']()
        for a in range(7):
            if a in extra: extra[a]()
            for g in range(ng):
                sm, sq = SS[g], SS[2 + g]
                rr = RAW + 4 * (g * 7 + a); f = XF + 8 * (g * 7 + a)
                for i in range(0, 8, 2): p(f'v_pk_fma_f32 v[{f+i}:{f+i+1}], v[{f+i}:{f+i+1}], v[{sq}:{sq+1}], v[{sm}:{sm+1}] op_sel_hi:[1,0,0]')
                for i in range(4): p(f'v_cvt_pk_bf16_f32 v{rr+i}, v{f+2*i}, v{f+2*i+1}')
                if a == 4 and g == 0:
                    for gg in range(ng): p(f'v_add_u32 v{wa[gg]}, 0x10000, v{wa[gg]}')
                p.add([I(f'ds_write_b128 v{wa[g]}, v[{rr}:{rr+3}] offset:{(a * 16384) & 0xffff}', gives=['lds:xn'])])
    p.add([I('s_nop 0', needs=['x'])])
    if merged:
        p(f'v_readfirstlane_b32 s{r.s_tag}, v26')
        p(f's_cmp_lg_u32 s{r.s_tag}, 0')
        p(f's_cbranch_scc1 {L("taggot")}')
        p(f's_mov_b32 s{s_t0}, 0x100000')
        p.label(L('tagpoll'))
        p('global_load_dword v26, v27, s[100:101] sc1')
        p('s_waitcnt vmcnt(0)')
        p(f'v_readfirstlane_b32 s{r.s_tag}, v26')
        p(f's_cmp_lg_u32 s{r.s_tag}, 0')
        p(f's_cbranch_scc1 {L("taggot")}')
        p(f's_sub_u32 s{s_t0}, s{s_t0}, 1')
        p(f's_cmp_lg_u32 s{s_t0}, 0')
        p(f's_cbranch_scc1 {L("tagpoll")}')
        p.label(L('taggot'))
    stamp(p, 4)
    g01 = lambda: p.add(b_issue(0, KX, 'g0') + b_issue(1, KX, 'g1'))
    p(f's_cmp_lt_u32 s{s_w}, 4')
    p(f's_cbranch_scc1 {L("lnA")}')
    g01()
    p(f's_branch {L("lnB")}')
    p.label(L('lnA'))
    p(f's_lshl_b32 s{s_t0}, s{s_w}, 11')
    p(f'v_add_u32 v{va}, s{s_t0}, v{v_lane16}')
    p(f'v_add_u32 v{wa[0]}, s{s_t0}, v{v_sw}')
    p(f'v_xor_b32 v{wa[1]}, 64, v{wa[0]}')
    p(f'v_add_u32 v{wa[1]}, 1024, v{wa[1]}')
    ln(2, {4: g01})
    p.label(L('lnB'))
    p('s_barrier')
    stamp(p, 7)
    p(f's_add_u32 s{s_t0}, s{s_w}, 8')
    p(f's_lshl_b32 s{s_t0}, s{s_t0}, 10')
    p(f'v_add_u32 v{va}, s{s_t0}, v{v_lane16}')
    p(f's_and_b32 s{s_t1}, s{s_w}, 1')
    p(f's_lshl_b32 s{s_t1}, s{s_t1}, 6')
    p(f'v_xor_b32 v{wa[0]}, s{s_t1}, v{v_sw}')
    p(f'v_add_u32 v{wa[0]}, s{s_t0}, v{wa[0]}')
    ex = {'stats': lambda: p.add(b_issue(2, KX, 'g2'))}
    if 'nowarm' not in EXP: ex[5] = (lambda: warmups((3, 4) if 'earlyg' in EXP else (1, 2, 3, 4))) if 'earlyq' in EXP else warmups
    ln(1, ex)
    stamp(p, 1)

    def e_gu():
        body = []
        for qd in range(4):
            r0 = 4 * qd
            ee = [TP + i for i in range(4)]
            pp = [TP + 4 + i for i in range(4)]
            for i in range(4): body.append(I(f'v_mul_f32 v{ee[i]}, {hexf(-LOG2E)}, v{B1+r0+i}'))
            for i in range(4):
                body.append(I(f'v_exp_f32 v{ee[i]}, v{ee[i]}'))
                body.append(I(f'v_mul_f32 v{pp[i]}, v{B1+r0+i}, v{B2+r0+i}'))
            for i in range(4): body.append(I(f'v_add_f32 v{ee[i]}, 1.0, v{ee[i]}'))
            for i in range(4): body.append(I(f'v_rcp_f32 v{ee[i]}, v{ee[i]}'))
            for i in range(4): body.append(I(f'v_mul_f32 v{pp[i]}, v{pp[i]}, v{ee[i]}'))
            hp = TP + 8 + 2 * qd
            body.append(I(f'v_cvt_pk_bf16_f32 v{hp}, v{pp[0]}, v{pp[1]}'))
            body.append(I(f'v_cvt_pk_bf16_f32 v{hp+1}, v{pp[2]}, v{pp[3]}'))
            if qd & 1:
                body.append(I(f'buffer_store_dwordx4 v[{hp-2}:{hp+1}], v{v_lane16}, s[{S_WS}:{S_WS+3}], s{r.s_sth} offen offset:{(qd>>1)*1024}{SC}', gives=['st:h']))
        body.append(I(f's_add_u32 s{r.s_sth}, s{r.s_sth}, 4096'))
        return body
    def e_gu16(src):
        body = []
        for half in range(2):
            r0 = 4 * half
            ee = [TP + i for i in range(4)]
            pp = [TP + 4 + i for i in range(4)]
            for i in range(4): body.append(I(f'v_mul_f32 v{ee[i]}, {hexf(-LOG2E)}, v{src+r0+i}'))
            for i in range(4):
                body.append(I(f'v_exp_f32 v{ee[i]}, v{ee[i]}'))
                body.append(I(f'v_mul_f32 v{pp[i]}, v{src+r0+i}, v{src+8+r0+i}'))
            for i in range(4): body.append(I(f'v_add_f32 v{ee[i]}, 1.0, v{ee[i]}'))
            for i in range(4): body.append(I(f'v_rcp_f32 v{ee[i]}, v{ee[i]}'))
            for i in range(4): body.append(I(f'v_mul_f32 v{pp[i]}, v{pp[i]}, v{ee[i]}'))
            hp = TP + 8 + 2 * half
            body.append(I(f'v_cvt_pk_bf16_f32 v{hp}, v{pp[0]}, v{pp[1]}'))
            body.append(I(f'v_cvt_pk_bf16_f32 v{hp+1}, v{pp[2]}, v{pp[3]}'))
        body.append(I(f'buffer_store_dwordx4 v[{TP+8}:{TP+11}], v{v_lane16}, s[{S_WS}:{S_WS+3}], s{r.s_sth2} offen{SC}', gives=['st:h']))
        return body
    def e_qk():
        body = []
        O = TP + 16
        for q in range(16): body.append(I(f'v_mul_f32 v{TP+q}, s{r.s_scq}, v{B2+q}'))
        for d in range(8): body.append(I(f'v_cvt_pk_bf16_f32 v{O+d}, v{TP+2*d}, v{TP+2*d+1}'))
        body.append(I(f'v_mov_b32 v{TP}, s{r.s_padk}'))
        body.append(I(f'v_mov_b32 v{TP+1}, 0'))
        body.append(I(f'v_cndmask_b32 v{O+6}, v{O+6}, v{TP}, s[{s_hi}:{s_hi+1}]'))
        body.append(I(f'v_cndmask_b32 v{O+7}, v{O+7}, v{TP+1}, s[{s_hi}:{s_hi+1}]'))
        body.append(I(f'buffer_store_dwordx4 v[{O}:{O+3}], v{v_lane16}, s[{S_WS}:{S_WS+3}], s{r.s_stq} offen{SC}', gives=['st:qkv']))
        body.append(I(f'buffer_store_dwordx4 v[{O+4}:{O+7}], v{v_lane16}, s[{S_WS}:{S_WS+3}], s{r.s_stq} offen offset:1024{SC}', gives=['st:qkv']))
        body.append([I(f's_mov_b32 s{r.s_scq}, 1.0'), I(f's_mov_b32 s{r.s_padk}, 0x3f80'), I(f's_mov_b32 s{r.s_stq}, s{r.s_stk}')])
        return body
    def e_vv():
        O = TP + 16
        body = []
        for d in range(8): body.append(I(f'v_cvt_pk_bf16_f32 v{O+d}, v{B2+2*d}, v{B2+2*d+1}'))
        for d in range(8): body.append(I(f'v_cndmask_b32 v{O+d}, v{O+d}, v{v_padv}, s[{s_pad}:{s_pad+1}]'))
        body.append(I(f'buffer_store_dwordx4 v[{O}:{O+3}], v{v_lane16}, s[{S_WS}:{S_WS+3}], s{r.s_stv} offen{SC}', gives=['st:qkv']))
        body.append(I(f'buffer_store_dwordx4 v[{O+4}:{O+7}], v{v_lane16}, s[{S_WS}:{S_WS+3}], s{r.s_stv} offen offset:1024{SC}', gives=['st:qkv']))
        return body
    def spread(fill, items, st, en):
        n = en - st
        for k in range(n): fill[st + k] += items[len(items) * k // n: len(items) * (k + 1) // n]

    def stage(st, kinds, w_is_a, dst, epi, early=False, mid=None):
        fill = [[] for _ in range(28)]
        head = [[] for _ in range(28)]
        pre = [[] for _ in range(28)]
        if st == 1:
            pre[4] += [I('s_barrier', needs=['g5'])]
            pre[11] += [I('s_barrier', needs=['g6'])]
            pre[18] += [I('s_barrier', needs=['g7', 'g8'])]
            head[1] += b_issue(9, kinds, 'c')
            head[5] += b_issue(10, kinds, 'c')
            head[9] += b_issue(11, kinds, 'i0')
            head[13] += b_issue(12, kinds, 'i1')
            head[17] += b_issue(13, kinds, 'i2')
            head[21] += b_issue(14, kinds, 'i3')
        else:
            head[0] += b_issue(4 * st + 7, kinds, 'i0')
            head[7] += b_issue(4 * st + 8, kinds, 'i1')
            head[14] += b_issue(4 * st + 9, kinds, 'i2')
            head[21] += b_issue(4 * st + 10, kinds, 'i3')
        if mid is not None:
            head[10] += [I('s_barrier', needs=['st:qkv'])] + mid
        if 'noepi' in EXP: epi = None
        if epi is not None: spread(fill, epi, 1, 16 if early else 26)
        out = []
        for t in range(28):
            T = 28 * st + t
            out += pre[t] + wread(T + 3, kinds) + [mf(T, w_is_a, dst)] + flat(head[t]) + flat(fill[t])
        out.append(I('s_barrier', needs=['i0', 'i1']))
        if k1.STAMP and 'stg' in EXP and st in (1, 2, 3):
            out += [I('s_memtime s[94:95]'), I('s_waitcnt lgkmcnt(0)'), I(f's_mov_b32 s{80 + 9 + st}, s94')]
        return out
    def xread(t0, t1, g):
        o = []
        for t in range(t0, t1):
            a, u = t >> 2, t & 3
            if t == 16:
                for uu in range(4): o.append(I(f'v_add_u32 v{xr[uu]}, 0x10000, v{xr[uu]}'))
            o.append(I(f'ds_read_b128 v[{XF+4*t}:{XF+4*t+3}], v{xr[u]} offset:{(a * 16384) & 0xffff}', gives=[g]))
        return o
    def stage0(kinds, w_is_a):
        o = [I('s_barrier', needs=['g0', 'lds:xn'])]
        if k1.STAMP: o += [I('s_memtime s[94:95]'), I('s_waitcnt lgkmcnt(0)'), I(f's_mov_b32 s{80+5}, s94')]
        xs = xread(0, 28, 'rd:x')
        xl = {}; t = 0
        for ins_ in xs:
            xl.setdefault(t, []).append(ins_)
            if ins_.kind == 'dsr': t += 1
        for tt in range(4):
            for x in xl[tt]:
                if x.kind == 'dsr': x.gives = ['rd:xa']
        o += xl[0]; o += wread(0, kinds); o += xl[1]; o += wread(1, kinds); o += xl[2]; o += wread(2, kinds); o += xl[3]
        o += xl[4] + xl[5]
        nx = 6
        v2 = 's0v2' in EXP
        for T in range(28):
            if T == 1:
                o += [I('s_barrier', needs=['rd:xa', 'g1'])] + b_issue(3, kinds, 'g3')
            if not v2:
                if T == 9:
                    o += [I('s_barrier', needs=['rd:x', 'g2'])] + b_issue(4, kinds, 'g4')
                if T == 13: o += b_issue(5, kinds, 'g5')
                if T == 17: o += b_issue(6, kinds, 'g6')
                if T == 21: o += b_issue(7, kinds, 'g7')
                if T == 25: o += b_issue(8, kinds, 'g8')
                per = 3; lim = 9
            else:
                if T == 6: o += [I('s_barrier', needs=['rd:x'])] + b_issue(4, kinds, 'g4')
                if T == 10: o += b_issue(5, kinds, 'g5')
                if T == 11: o += [I('s_barrier', needs=['g2'])]
                if T == 14: o += b_issue(6, kinds, 'g6')
                if T == 19: o += b_issue(7, kinds, 'g7')
                if T == 24: o += b_issue(8, kinds, 'g8')
                per = 4; lim = 6
            if T == 18: o += [I('s_barrier', needs=['g3'])]
            if T == 25: o += [I('s_barrier', needs=['g4'])]
            for q in range(per):
                if nx < 28 and T < lim:
                    o += xl[nx]; nx += 1
            o += wread(T + 3, kinds)
            o.append(mf(T, w_is_a, B2))
        assert nx == 28
        return o
    hook = getattr(r, 'hook', None)
    H = lambda pt: (hook(pt) if hook else [])

    def merge_fill(a, b):
        o = []; n = max(len(a), len(b))
        for k in range(n):
            o += a[len(a) * k // n: len(a) * (k + 1) // n] + b[len(b) * k // n: len(b) * (k + 1) // n]
        return o
    p(f's_cmp_eq_u32 s{s_ty}, 0')
    p(f's_cbranch_scc1 {L("seqA")}')
    p.add(stage0(KX, False)); stamp(p, 6)
    p.add(stage(1, KX, True, B1, e_vv(), early=True))
    p.add(stage(2, KX, True, B2, None, mid=H('qkv')))
    p.add(stage(3, KX, True, B1, e_gu()))
    p.add(stage(4, KX, True, B2, (H('s4x_a') + H('s4x_b')) or None))
    stamp(p, 8)
    p.add(H('pre_fin'))
    p('s_nop 4')
    p.add(flat(e_gu()))
    p(f's_branch {L("fin")}')
    p.label(L('seqA'))
    p.add(stage0(KY, True)); stamp(p, 6)
    p.add(stage(1, KY, True, B2, e_qk(), early=True))
    p.add(stage(2, KY, True, B1, e_qk(), early=True))
    s3 = stage(3, KY, True, B2, [[]] * 2 + H('s4y_a'), mid=H('qkv'))
    p.add(s3)
    p.add(stage(4, KY, True, B1, merge_fill(e_gu(), H('s4y_b'))))
    stamp(p, 8)
    p.add(H('pre_fin2'))
    p('s_nop 4')
    p.add(flat(e_gu16(B1)))
    p.label(L('fin'))
    stamp(p, 9)

def gen_k1(name):
    p = Prog()
    L = lambda s: name + '_' + s
    r = regmap()
    p.label(name)
    p('s_cmp_ge_u32 s2, 256')
    p(f's_cbranch_scc1 {L("end")}')
    stamp(p, 0)
    phase1(p, L, r, False)
    p('s_waitcnt vmcnt(0) lgkmcnt(0)')
    k1.stamp_store(p, r.S_WS, r.s_w, 0)
    p.label(L('end'))
    p('s_endpgm')
    desc = f"""
.amdhsa_kernel {name}
  .amdhsa_next_free_vgpr 256
  .amdhsa_next_free_sgpr 102
  .amdhsa_accum_offset 256
  .amdhsa_group_segment_fixed_size 0
  .amdhsa_kernarg_size 80
  .amdhsa_user_sgpr_count 2
  .amdhsa_user_sgpr_kernarg_segment_ptr 1
  .amdhsa_system_sgpr_workgroup_id_x 1
  .amdhsa_float_denorm_mode_32 3
.end_amdhsa_kernel
"""
    return p, desc
```

```python
from asmlib import *
import k1
from k1 import stamp, WS_QF, WS_KV, WS_HF, WS_OF, WS_FLAG, hexf, flat
WS_FL = (16 << 20) + 4096

KVS = 16384; KVN = 3
G0 = KVS * KVN
KPI = 8
GA = 2 * KPI * 1024
GS = GA + KPI * 2048
GN = 3
GFIRST = 4
NGS = 14
NG_LOOP = 11
MARGIN = 64.0
L_Q = G0
T_OX = 0
T_WO = 105472
T_OF = 0
T_AX = 0

SCHEDS = {
 'a': dict(r0=0, r1=6, pvp=2, g00=10, pA0=14, sA0=18, g01=22, pA1=26, sA1=30, g10=34, pB0=38, sB0=42, g11=45, sB1=48),
 'b': dict(r0=8, r1=14, pvp=2, pA0=14, sA0=18, g00=22, pA1=26, sA1=30, g01=34, pB0=38, g10=41, sB0=44, g11=46, sB1=48),
 'c': dict(r0=5, r1=11, pvp=2, pA0=14, sA0=20, g00=24, pA1=27, sA1=31, g01=35, pB0=38, g10=41, sB0=44, g11=46, sB1=48),
 'f': dict(r0=11, r1=35, pvp=1, g00=6, g01=10, pA0=14, sA0=18, sA1=22, pA1=26, g10=30, g11=34, pB0=38, sB0=42, sB1=46),
 'g': dict(r0=11, r1=31, pvp=2, g00=6, g01=10, pA0=14, sA0=18, g10=22, pA1=26, g11=30, sA1=34, pB0=38, sB0=42, sB1=46),
 'd': dict(r0=10, r1=18, pvp=2, pA0=14, sA0=18, pA1=26, sA1=22, g00=30, g01=34, pB0=38, g10=41, sB0=44, g11=47, sB1=48),
}
SCHED = SCHEDS['b']
class R2: pass

class Ctx: pass

def make(L, S_WS, s_w, s_tag):
    SC = ' sc1'
    merged = True
    S_WD, S_WO, S_X, S_OUT = 8, 12, 96, 16
    s_hd, s_qb, s_tm, s_tn, s_gem = 31, 32, 33, 34, 35
    s_qp, s_kq, s_wn, s_k4 = 36, 37, 36, 37
    s_hi = 54
    s_t0, s_t1, s_t2, s_t3 = 58, 59, 60, 61
    s_kvg, s_kvm, s_gg, s_gm, s_gadv = 40, 41, 42, 43, 44
    s_soff, s_ost, s_flag, s_oo, s_i = 45, 46, 47, 48, 49
    s_wob, s_wom = 50, 51
    s_dsrd = 76
    s_qo = 53
    v_kv = 2
    v_h = [3, 4, 8]
    v_wv = [9, 10, 11]
    v_gd = [12, 13, 14, 15]
    v_bp, v_pw, v_xa = 16, 17, 18
    QA, QB = 20, 28
    KB, VB = [36, 44], [52, 60]
    SA, SB = [68, 84], [100, 116]
    PA, PB = 132, 140
    OA, OB = 148, 164
    ACC = [180, 196]
    HB = [[212, 216], [220, 224]]
    WB = [228, 232]
    XR = 236
    T = 240

    E = []
    def A(*txt): E.append([I(t) for t in txt])
    lane, m, hh = T, T + 4, T + 5
    A(f'v_and_b32 v{lane}, 63, v0', f's_and_b32 s{s_qp}, s{s_w}, 1', f's_lshr_b32 s{s_kq}, s{s_w}, 1')
    A(f's_and_b32 s{s_hd}, s2, 15', f's_lshr_b32 s{s_qb}, s2, 4', f's_lshr_b32 s{s_t0}, s2, 3', f's_mul_i32 s{s_t1}, s{s_t0}, 37',
      f's_lshr_b32 s{s_t1}, s{s_t1}, 8', f's_mul_i32 s{s_t2}, s{s_t1}, 7', f's_sub_u32 s{s_tn}, s{s_t0}, s{s_t2}')
    A(f's_and_b32 s{s_tm}, s2, 7', f's_lshl_b32 s{s_tm}, s{s_tm}, 2', f's_add_u32 s{s_tm}, s{s_tm}, s{s_t1}',
      's_cmp_lt_u32 s2, 224', f's_cselect_b32 s{s_gem}, 1, 0')
    A(f's_and_b32 s{s_t1}, s{s_hd}, 14', f's_mov_b32 s{s_t3}, s{s_t1}', f's_add_u32 s{s_t2}, s{s_t1}, 1',
      f'v_and_b32 v{T+1}, 15, v{lane}', f'v_lshlrev_b32 v{T+1}, 4, v{T+1}',
      f'v_add_u32 v{T+2}, s{s_t3}, v{T+1}', f'v_add_u32 v{T+3}, s{s_t2}, v{T+1}',
      f'v_cmp_gt_u32 vcc, 16, v{lane}', 's_nop 1', f'v_cndmask_b32 v{T+2}, v{T+3}, v{T+2}, vcc',
      f's_lshl_b32 s{s_t0}, s{s_qb}, 4', f's_add_u32 s{s_t0}, s{s_t0}, s{s_t1}', f'v_mov_b32 v{T+3}, s{s_t0}',
      f'v_cmp_gt_u32 vcc, 32, v{lane}', 's_nop 1', f'v_cndmask_b32 v{T+2}, v{T+3}, v{T+2}, vcc',
      f'v_lshlrev_b32 v{T+12}, 2, v{T+2}', f's_mov_b32 s{s_flag}, {WS_FL + 1*1024}')
    A(f's_lshl_b32 s{s_kvg}, s{s_hd}, 18', f's_lshl_b32 s{s_kvm}, s{s_w}, 11', f's_add_u32 s{s_kvg}, s{s_kvg}, s{s_kvm}',
      f's_add_u32 s{s_kvg}, s{s_kvg}, {WS_KV}')
    A(f's_lshl_b32 s{s_t1}, s{s_qb}, 2', f's_lshl_b32 s{s_t2}, s{s_qp}, 1', f's_add_u32 s{s_t1}, s{s_t1}, s{s_t2}',
      f's_lshr_b32 s{s_t2}, s{s_kq}, 1', f's_add_u32 s{s_t1}, s{s_t1}, s{s_t2}', f's_lshl_b32 s{s_oo}, s{s_t1}, 5',
      f's_lshl_b32 s{s_t2}, s{s_hd}, 1', f's_add_u32 s{s_oo}, s{s_oo}, s{s_t2}', f's_and_b32 s{s_t2}, s{s_kq}, 1',
      f's_add_u32 s{s_oo}, s{s_oo}, s{s_t2}', f's_lshl_b32 s{s_oo}, s{s_oo}, 10', f's_add_u32 s{s_oo}, s{s_oo}, {WS_OF}')
    for (Sd, lo, size) in ((S_WD, 28, 1792 * 896), (S_WO, 4, 448 * 896), (S_OUT, 38, 2048 * 896)):
        A(f's_mov_b32 s{Sd}, s{lo}', f's_mov_b32 s{Sd+1}, s{lo+1}', f's_mov_b32 s{Sd+2}, {size}', f's_mov_b32 s{Sd+3}, 0x20000')
    A(f's_lshl_b32 s{s_t0}, s{s_kq}, 12', f'v_add_u32 v{v_kv}, s{s_t0}, v1', f'v_and_b32 v{m}, 31, v0', f'v_bfe_u32 v{hh}, v0, 5, 1')
    A(f'v_lshrrev_b32 v{T+6}, 3, v{lane}', f'v_mul_u32_u24 v{T+6}, 896, v{T+6}', f'v_bfe_u32 v{T+7}, v{lane}, 4, 1')
    A(f'v_lshlrev_b32 v{T+7}, 2, v{T+7}', f'v_and_b32 v{T+8}, 7, v{lane}', f'v_xor_b32 v{T+7}, v{T+7}, v{T+8}')
    A(f'v_lshlrev_b32 v{T+7}, 4, v{T+7}', f'v_add_u32 v{v_bp}, v{T+6}, v{T+7}')
    a = [f's_cmp_lt_u32 s{s_w}, 4', f's_cbranch_scc0 {L("setB")}']
    a += [f'v_mov_b32 v{v_gd[q]}, v1' for q in range(4)]
    a += [f's_lshr_b32 s{s_t2}, s{s_w}, 1', f's_lshl_b32 s{s_t0}, s{s_tm}, 1', f's_add_u32 s{s_t0}, s{s_t0}, s{s_t2}',
          f's_mul_i32 s{s_gg}, s{s_t0}, {112*1024}', f's_and_b32 s{s_t3}, s{s_w}, 1', f's_lshl_b32 s{s_t3}, s{s_t3}, 12',
          f's_add_u32 s{s_gg}, s{s_gg}, s{s_t3}', f's_add_u32 s{s_gg}, s{s_gg}, {WS_HF}', f's_mov_b32 s{s_gadv}, {KPI*1024}',
          f's_lshl_b32 s{s_gm}, s{s_t2}, 13', f's_add_u32 s{s_gm}, s{s_gm}, s{s_t3}',
          f's_mov_b64 s[{s_dsrd}:{s_dsrd+1}], s[{S_WS}:{S_WS+1}]', f's_mov_b32 s{s_dsrd+2}, {k1.WS_SIZE}', f's_branch {L("setC")}',
          f'{L("setB")}:']
    a += [f'v_add_u32 v{v_gd[q]}, {q*(8*896-1024)}, v{v_bp}' for q in range(4)]
    a += [f's_sub_u32 s{s_t0}, s{s_w}, 4', f's_mul_i32 s{s_gg}, s{s_t0}, {32*896}', f's_lshl_b32 s{s_t1}, s{s_tn}, 7',
          f's_add_u32 s{s_gg}, s{s_gg}, s{s_t1}', f's_mov_b32 s{s_gadv}, {KPI*16*896}', f's_lshl_b32 s{s_gm}, s{s_t0}, 12',
          f's_add_u32 s{s_gm}, s{s_gm}, {GA}', f's_mov_b64 s[{s_dsrd}:{s_dsrd+1}], s[{S_WD}:{S_WD+1}]', f's_mov_b32 s{s_dsrd+2}, {1792*896}',
          f'{L("setC")}:', f's_mov_b32 s{s_dsrd+3}, 0x20000', f's_add_u32 s{s_gm}, s{s_gm}, {G0}']
    A(*a)
    A(f's_lshl_b32 s{s_t0}, s{s_tm}, 6', f's_lshr_b32 s{s_t1}, s{s_k4}, 1', f's_lshl_b32 s{s_t1}, s{s_t1}, 5', f's_add_u32 s{s_t0}, s{s_t0}, s{s_t1}',
      f's_mul_i32 s{s_t0}, s{s_t0}, 896', f's_lshl_b32 s{s_t1}, s{s_tn}, 7', f's_lshl_b32 s{s_t2}, s{s_wn}, 6',
      f's_add_u32 s{s_t0}, s{s_t0}, s{s_t1}', f's_add_u32 s{s_ost}, s{s_t0}, s{s_t2}', f's_and_b32 s{s_t0}, s{s_k4}, 1',
      f's_lshl_b32 s{s_t0}, s{s_t0}, 5', f's_add_u32 s{s_ost}, s{s_ost}, s{s_t0}')
    A(f'v_mul_u32_u24 v{v_xa}, 896, v{m}', f'v_lshlrev_b32 v{T+6}, 4, v{hh}', f'v_add_u32 v{v_xa}, v{v_xa}, v{T+6}')
    A(f'v_bfe_u32 v{T+6}, v{lane}, 2, 2', f'v_lshlrev_b32 v{T+7}, 2, v{hh}', f'v_add_u32 v{T+7}, v{T+7}, v{T+6}', f'v_lshlrev_b32 v{v_pw}, 7, v{T+7}')
    A(f'v_lshrrev_b32 v{T+6}, 1, v{T+6}', f'v_xor_b32 v{T+6}, s{s_wn}, v{T+6}', f'v_lshlrev_b32 v{T+6}, 6, v{T+6}', f'v_add_u32 v{v_pw}, v{v_pw}, v{T+6}')
    A(f'v_bfe_u32 v{T+6}, v{lane}, 4, 1', f'v_lshlrev_b32 v{T+6}, 5, v{T+6}', f'v_add_u32 v{v_pw}, v{v_pw}, v{T+6}')
    A(f'v_and_b32 v{T+6}, 3, v{lane}', f'v_lshlrev_b32 v{T+6}, 3, v{T+6}', f'v_add_u32 v{v_pw}, v{v_pw}, v{T+6}')
    for pos in range(GN):
        A(f's_lshl_b32 s{s_t0}, s{s_k4}, 11', f's_add_u32 s{s_t0}, s{s_t0}, {G0 + pos*GS}', f'v_add_u32 v{v_h[pos]}, s{s_t0}, v1',
          f's_lshl_b32 s{s_t1}, s{s_k4}, 12', f's_add_u32 s{s_t1}, s{s_t1}, {G0 + pos*GS + GA}', f'v_add_u32 v{v_wv[pos]}, s{s_t1}, v{v_pw}')
    A(f's_lshl_b32 s{s_wob}, s{s_tn}, 7', f's_mul_i32 s{s_t0}, s{s_w}, {8*896}', f's_add_u32 s{s_wob}, s{s_wob}, s{s_t0}', f's_lshl_b32 s{s_wom}, s{s_w}, 10')
    LATE = [I(t) for t in (f's_mov_b32 s{s_i}, 0x200000', f'{L("kvchk")}:',
      f'v_cmp_eq_u32 vcc, s{s_tag}, v{T+13}', 's_nop 0', 's_cmp_eq_u64 vcc, -1', f's_cbranch_scc1 {L("kvok")}',
      f'buffer_load_dword v{T+13}, v{T+12}, s[{S_WS}:{S_WS+3}], s{s_flag} offen sc1', 's_waitcnt vmcnt(0)',
      f's_sub_u32 s{s_i}, s{s_i}, 1', f's_cmp_lg_u32 s{s_i}, 0', f's_cbranch_scc1 {L("kvchk")}', f'{L("kvok")}:')]
    qa = [f's_lshl_b32 s{s_t0}, s{s_hd}, 6', f's_lshl_b32 s{s_t1}, s{s_qb}, 2', f's_add_u32 s{s_t0}, s{s_t0}, s{s_t1}',
          f's_lshl_b32 s{s_t0}, s{s_t0}, 11', f's_lshl_b32 s{s_t1}, s{s_w}, 10', f's_add_u32 s{s_t0}, s{s_t0}, s{s_t1}',
          f's_add_u32 s{s_qo}, s{s_t0}, {WS_QF}']
    A(*qa)
    E2 = [[I(f'buffer_load_dword v{T+13}, v{T+12}, s[{S_WS}:{S_WS+3}], s{s_flag} offen sc1')]]
    QL = [I(f's_lshl_b32 s{s_t0}, s{s_w}, 10'), I(f's_add_u32 m0, s{s_t0}, {L_Q}'), I('s_nop 0'),
          I(f'buffer_load_dwordx4 v1, s[{S_WS}:{S_WS+3}], s{s_qo} offen sc1 lds', gives=['kv0'])]

    def kv_issue(slot, g=()):
        pos = slot % KVN
        return [[I(f's_add_u32 m0, s{s_kvm}, {pos*KVS}'),
                 I(f's_add_u32 s{s_soff}, s{s_kvg}, {slot*KVS}'),
                 I(f'buffer_load_dwordx4 v1, s[{S_WS}:{S_WS+3}], s{s_soff} offen{SC} lds', gives=g)],
                [I(f'buffer_load_dwordx4 v1, s[{S_WS}:{S_WS+3}], s{s_soff} offen offset:1024{SC} lds', gives=g)]]
    def g_issue(gs):
        gv = ['g%d' % gs]
        pos = gs % GN
        o = []
        for q in range(4):
            a = []
            if q == 0: a += [I(f's_add_u32 m0, s{s_gm}, {pos*GS}'), I('s_nop 0')]
            sc = SC
            a.append(I(f'buffer_load_dwordx4 v{v_gd[q]}, s[{s_dsrd}:{s_dsrd+3}], s{s_gg} offen offset:{q*1024}{sc} lds', gives=gv))
            if q == 3: a.append(I(f's_add_u32 s{s_gg}, s{s_gg}, s{s_gadv}'))
            o.append(a)
        return o
    st7 = [I('s_memtime s[94:95]'), I('s_waitcnt lgkmcnt(0)'), I('s_mov_b32 s87, s94')] if k1.STAMP else []
    first_kv = LATE + st7 + flat(kv_issue(0, ['kv0'])) + QL
    second_kv = flat(kv_issue(1, ['kv1']))
    return E, first_kv, locals()

def phase2(p, L, S_WS, s_w, s_tag, C):
    globals_ = C
    for k in ('SC', 'merged', 'S_WD', 'S_WO', 'S_X', 'S_OUT', 's_hd', 's_qb', 's_tm', 's_tn', 's_gem', 's_qp', 's_kq', 's_wn', 's_k4', 's_hi',
              's_t0', 's_t1', 's_t2', 's_t3', 's_kvg', 's_kvm', 's_gg', 's_gm', 's_gadv', 's_soff', 's_ost', 's_flag', 's_oo', 's_i', 's_wob', 's_wom',
              's_dsrd', 'v_kv', 'v_h', 'v_wv', 'v_gd', 'v_bp', 'v_pw', 'v_xa', 'QA', 'QB', 'KB', 'VB', 'SA', 'SB', 'PA', 'PB', 'OA', 'OB', 'ACC',
              'HB', 'WB', 'XR', 'T', 'kv_issue', 'g_issue'):
        pass
    (SC, merged, S_WD, S_WO, S_X, S_OUT, s_hd, s_qb, s_tm, s_tn, s_gem, s_qp, s_kq, s_wn, s_k4, s_hi, s_t0, s_t1, s_t2, s_t3, s_kvg, s_kvm,
     s_gg, s_gm, s_gadv, s_soff, s_ost, s_flag, s_oo, s_i, s_wob, s_wom, s_dsrd, v_kv, v_h, v_wv, v_gd, v_bp, v_pw, v_xa, QA, QB, KB, VB,
     SA, SB, PA, PB, OA, OB, ACC, HB, WB, XR, T, kv_issue, g_issue) = [C[k] for k in (
     'SC', 'merged', 'S_WD', 'S_WO', 'S_X', 'S_OUT', 's_hd', 's_qb', 's_tm', 's_tn', 's_gem', 's_qp', 's_kq', 's_wn', 's_k4', 's_hi',
     's_t0', 's_t1', 's_t2', 's_t3', 's_kvg', 's_kvm', 's_gg', 's_gm', 's_gadv', 's_soff', 's_ost', 's_flag', 's_oo', 's_i', 's_wob', 's_wom',
     's_dsrd', 'v_kv', 'v_h', 'v_wv', 'v_gd', 'v_bp', 'v_pw', 'v_xa', 'QA', 'QB', 'KB', 'VB', 'SA', 'SB', 'PA', 'PB', 'OA', 'OB', 'ACC',
     'HB', 'WB', 'XR', 'T', 'kv_issue', 'g_issue')]
    p.add(C['second_kv'])
    stamp(p, 1)
    mm = lambda d, a, b, c: I(f'v_mfma_f32_32x32x16_bf16 v[{d}:{d+15}], v[{a}:{a+3}], v[{b}:{b+3}], {c}')
    def rdK(buf, pos, g=()):
        return [I(f'ds_read_b128 v[{buf}:{buf+3}], v{v_kv} offset:{pos*KVS}', gives=g),
                I(f'ds_read_b128 v[{buf+4}:{buf+7}], v{v_kv} offset:{pos*KVS+1024}', gives=g)]
    def rdV(buf, pos, g=()):
        return [I(f'ds_read_b128 v[{buf}:{buf+3}], v{v_kv} offset:{pos*KVS+2048}', gives=g),
                I(f'ds_read_b128 v[{buf+4}:{buf+7}], v{v_kv} offset:{pos*KVS+3072}', gives=g)]
    p.add([I('s_barrier', needs=['kv0'])])
    stamp(p, 2)
    ab0 = getattr(phase2, 'after_beta0', None)
    p(f's_lshl_b32 s{s_t0}, s{s_qp}, 12')
    p(f'v_add_u32 v{T+1}, s{s_t0}, v1')
    for i in range(4):
        p.add([I(f'ds_read_b128 v[{QA+4*i}:{QA+4*i+3}], v{T+1} offset:{L_Q + i*1024}', gives=['rd:kv'])])
    KT = HB[0][0]
    p(f'ds_read_b128 v[{KT}:{KT+3}], v1')
    p(f'ds_read_b128 v[{KT+4}:{KT+7}], v1 offset:1024')
    p.add(rdK(KB[0], 0) + rdV(VB[0], 0, ['rd:kv']))
    p.add(flat(kv_issue(2, ['kv2'])))
    def sS(dst, kb, Q, part):
        return mm(dst, kb + 4 * part, Q + 4 * part, '0' if part == 0 else f'v[{dst}:{dst+15}]')
    for (Sx, Q) in ((SA[1], QA), (SB[1], QB)):
        p.add([sS(Sx, KT, Q, 0), sS(Sx, KT, Q, 1)])
    for (s0, Q, tt) in ((SA[1], QA, T), (SB[1], QB, T + 4)):
        p(f'v_max3_f32 v{tt}, v{s0}, v{s0+1}, v{s0+2}')
        p(f'v_max3_f32 v{tt+1}, v{s0+3}, v{s0+4}, v{s0+5}')
        p(f'v_max3_f32 v{tt+2}, v{s0+6}, v{s0+7}, v{s0+8}')
        p(f'v_max3_f32 v{tt+3}, v{s0+9}, v{s0+10}, v{s0+11}')
        p(f'v_max3_f32 v{tt}, v{tt}, v{s0+12}, v{s0+13}')
        p(f'v_max3_f32 v{tt+1}, v{tt+1}, v{s0+14}, v{s0+15}')
        p(f'v_max3_f32 v{tt}, v{tt}, v{tt+1}, v{tt+2}')
        p(f'v_max_f32 v{tt}, v{tt}, v{tt+3}')
    for (Q, tt) in ((QA, T), (QB, T + 4)):
        p(f'v_mov_b32 v{tt+1}, v{tt}')
        p(f'v_permlane32_swap_b32 v{tt}, v{tt+1}')
        p(f'v_max_f32 v{tt}, v{tt}, v{tt+1}')
        p(f'v_add_f32 v{tt}, {hexf(MARGIN)}, v{tt}')
        p(f'v_sub_f32 v{tt}, 0, v{tt}')
        p(f'v_mov_b32 v{tt+1}, 0')
        p(f'v_cvt_pk_bf16_f32 v{tt}, v{tt}, v{tt+1}')
        p(f'v_cndmask_b32 v{Q+6}, v{Q+6}, v{tt}, s[{s_hi}:{s_hi+1}]')
    for (Sx, Q) in ((SA[0], QA), (SB[0], QB)):
        p.add([sS(Sx, KB[0], Q, 0), sS(Sx, KB[0], Q, 1)])
    p.add([I('s_barrier', needs=['st:h'])])
    if ab0: p.add(ab0())
    p('s_nop 8')
    stamp(p, 3)

    def g_reads(gs, q):
        pos = gs % GN
        wb = WB[q]
        return [I(f'ds_read_b64_tr_b16 v[{wb}:{wb+1}], v{v_wv[pos]} offset:{q*2048}', gives=['rd:g']),
                I(f'ds_read_b64_tr_b16 v[{wb+2}:{wb+3}], v{v_wv[pos]} offset:{q*2048+1024}', gives=['rd:g']),
                I(f'ds_read_b128 v[{HB[q][0]}:{HB[q][0]+3}], v{v_h[pos]} offset:{q*1024}', gives=['rd:g']),
                I(f'ds_read_b128 v[{HB[q][1]}:{HB[q][1]+3}], v{v_h[pos]} offset:{q*1024+8192}', gives=['rd:g'])]
    def g_mfma(q, rbk, first=False): return mm(ACC[rbk], WB[q], HB[q][rbk], '0' if first else f'v[{ACC[rbk]}:{ACC[rbk]+15}]')

    def period(n, gem):
        i0, i1 = n & 1, (n + 1) & 1
        last = (n == 15)
        def grp(S, P, g):
            c = S[i0]
            return [I(f'v_exp_f32 v{c+4*g+k}, v{c+4*g+k}') for k in range(4)] + \
                   [I(f'v_cvt_pk_bf16_f32 v{P+2*g}, v{c+4*g}, v{c+4*g+1}'), I(f'v_cvt_pk_bf16_f32 v{P+2*g+1}, v{c+4*g+2}, v{c+4*g+3}')]
        pv = lambda O, P, part: mm(O, VB[i0] + 4 * part, P + 4 * part, '0' if (n == 0 and part == 0) else f'v[{O}:{O+15}]')
        pvp = mm(OB, VB[i1] + 4, PB + 4, f'v[{OB}:{OB+15}]')
        pos = (n + 1) % KVN
        rk = [] if last else rdK(KB[i1], pos, ['rd:kv'])
        rv = [] if last else rdV(VB[i1], pos, ['rd:kv'])
        beta = n + 1
        gs = beta - GFIRST
        do_g = gem and 0 <= gs < NG_LOOP
        if 'nogc' in k1.EXP: do_g = False
        kvi = kv_issue(beta + 2, ['kv%d' % (beta + 2)]) if beta + 2 <= 15 else [[], []]
        gi_slot = beta + 2 - GFIRST
        gi = g_issue(gi_slot) if (gem and 0 <= gi_slot < NGS) else [[], [], [], []]
        if 'nogd' in k1.EXP: gi = [[], [], [], []]
        if 'nokv' in k1.EXP: kvi = [[], []]
        wo = wo_issue(beta) if gem else [[]] * 8
        gr0 = g_reads(gs, 0) if do_g else []
        gr1 = g_reads(gs, 1) if do_g else []
        piped = any(e in ('schf', 'schg') for e in k1.EXP)
        if piped:
            do_m = gem and 0 <= gs - 1 < NG_LOOP and 'nogc' not in k1.EXP
            gm = lambda q, rb: [g_mfma(q, rb, gs - 1 == 0 and q == 0)] if do_m else []
        else:
            gm = lambda q, rb: [g_mfma(q, rb, gs == 0 and q == 0)] if do_g else []
        S_ = lambda S, Q, part: [] if last else [sS(S[i1], KB[i1], Q, part)]
        valu = []
        for g in range(4): valu += grp(SA, PA, g)
        for g in range(4): valu += grp(SB, PB, g)
        ins = {k: [] for k in range(49)}
        sched = SCHED
        for e in k1.EXP:
            if e.startswith('sch'): sched = SCHEDS[e[3:]]
        ins[0] += rk
        ins[sched['r0']] += gr0
        ins[sched['pvp']] += ([pvp] if n > 0 else []) + rv
        ins[sched['g00']] += gm(0, 0)
        ins[sched['pA0']] += [pv(OA, PA, 0)]
        ins[sched['sA0']] += S_(SA, QA, 0)
        ins[sched['g01']] += gm(0, 1)
        ins[sched['pA1']] += [pv(OA, PA, 1)]
        ins[sched['sA1']] += S_(SA, QA, 1)
        ins[sched['g10']] += gm(1, 0)
        ins[sched['pB0']] += [pv(OB, PB, 0)]
        ins[sched['sB0']] += S_(SB, QB, 0)
        ins[sched['g11']] += gm(1, 1)
        ins[sched['sB1']] += S_(SB, QB, 1)
        ins[sched['r1']] += gr1
        mem = [kvi[0], kvi[1], gi[0], gi[1], gi[2], gi[3]] + wo[:6]
        mem = [a for a in mem if a]
        if gem and gi_slot == 0:
            issue, check = phase2.h_poll()
            ins[0] = issue + ins[0]
            for k, a in enumerate([kvi[0], kvi[1]]): ins[4 + 4 * k] += flat(a)
            ins[28] += check
            for k, a in enumerate(gi): ins[30 + 4 * k] += flat(a)
            mem = []
        for k, a in enumerate(mem):
            ins[(3 + 7 * k) if ('dspread' in k1.EXP and len(mem) <= 6) else (4 + 4 * k if len(mem) <= 10 else 3 + 3 * k)] += flat(a)
        if 'tog' in k1.EXP:
            u = '%d%d' % (n, gem)
            ins[0] = [I(f's_cmp_lt_u32 s{s_w}, 4'), I(f's_cbranch_scc1 {L("tg0_" + u)}'), I('s_setprio 2'), I(f'{L("tg0_" + u)}:')] + ins[0]
            ins[28] = [I(f's_cmp_lt_u32 s{s_w}, 4'), I(f's_cbranch_scc1 {L("tg1_" + u)}'), I('s_setprio 0'), I(f'{L("tg1_" + u)}:')] + ins[28]
        if 'mprio' in k1.EXP:
            for k in list(ins.keys()):
                nw = []
                for x in ins[k]:
                    if isinstance(x, Ins) and x.kind == 'mfma': nw += [I('s_setprio 3'), x, I('s_setprio 0')]
                    else: nw.append(x)
                ins[k] = nw
        o = []
        for k in range(48):
            o += ins[k] + [valu[k]]
        o += ins[48]
        if last: o += [mm(OB, VB[i0] + 4, PB + 4, f'v[{OB}:{OB+15}]')]
        return o

    def wo_ld(q0):
        return [I(f's_add_u32 m0, s{s_wom}, {T_WO + q0*1024}'),
                I(f's_add_u32 s{s_t1}, s{s_wob}, {q0*8*896}'),
                I(f'buffer_load_dwordx4 v{v_bp}, s[{S_WO}:{S_WO+3}], s{s_t1} offen lds')]
    def wo_issue(beta):
        return [[]] * 8

    if 'tog' in k1.EXP:
        p(f's_cmp_lt_u32 s{s_w}, 4')
        p(f's_cbranch_scc0 {L("np2")}')
        p('s_setprio 1')
        p.label(L('np2'))
    if 'prio1' in k1.EXP:
        p(f's_cmp_lt_u32 s{s_w}, 4')
        p(f's_cbranch_scc1 {L("np1")}')
        p('s_setprio 1')
        p.label(L('np1'))
    for gem in (1, 0):
        if gem:
            p(f's_cmp_eq_u32 s{s_gem}, 0')
            p(f's_cbranch_scc1 {L("loop_n")}')
            p(f'buffer_load_dwordx4 v[{XR}:{XR+3}], v{v_xa}, s[{S_X}:{S_X+3}], s{s_ost} offen')
        else:
            p.label(L('loop_n'))
        for n in range(16):
            beta = n + 1
            if True:
                needs = ['rd:kv', 'rd:g']
                if beta <= 15: needs.append('kv%d' % beta)
                if gem and 0 <= beta - GFIRST < NG_LOOP: needs.append('g%d' % (beta - GFIRST))
                bw = k1.STAMP and 'bw' in k1.EXP
                if bw: p.add([I('s_memtime s[92:93]'), I('s_waitcnt lgkmcnt(0)')])
                p.add([I('s_barrier', needs=needs)])
                if bw:
                    p.add([I('s_memtime s[94:95]'), I('s_waitcnt lgkmcnt(0)'), I('s_sub_u32 s94, s94, s92')])
                    p.add([I('s_mov_b32 s91, s94') if beta == 1 else I('s_add_u32 s91, s91, s94')])
                    if beta in (2, 3, 4): p.add([I(f's_mov_b32 s{80 + 10 + beta}, s94')]) if beta != 2 else None
            p.add(period(n, gem))
        stamp(p, 4)
        if gem: p(f's_branch {L("tail")}')
    p.label(L('tail'))
    OXHI = 147456 - 12 * 4096
    p(f's_lshl_b32 s{s_t0}, s{s_qp}, 2')
    p(f's_add_u32 s{s_t0}, s{s_t0}, s{s_kq}')
    p(f's_lshl_b32 s{s_t1}, s{s_t0}, 13')
    p(f's_cmp_ge_u32 s{s_t0}, 6')
    p(f's_cselect_b32 s{s_t2}, {OXHI}, 0')
    p(f's_add_u32 s{s_t1}, s{s_t1}, s{s_t2}')
    p(f'v_add_u32 v{T}, s{s_t1}, v1')
    for u, O in enumerate((OA, OB)):
        for i in range(4):
            p.add([I(f'ds_write_b128 v{T}, v[{O+4*i}:{O+4*i+3}] offset:{u*4096 + i*1024}', gives=['lds:ox'])])
    p(f's_lshr_b32 s{s_t1}, s{s_kq}, 1')
    p(f's_lshl_b32 s{s_t1}, s{s_t1}, 12')
    p(f's_and_b32 s{s_t2}, s{s_kq}, 1')
    p(f's_lshl_b32 s{s_t3}, s{s_t2}, 11')
    p(f's_add_u32 s{s_t3}, s{s_t3}, s{s_t1}')
    p(f's_lshl_b32 s{s_t0}, s{s_qp}, 15')
    p(f'v_or_b32 v{T+3}, 512, v1')
    for k in range(4):
        if k < 2:
            p(f's_cmp_eq_u32 s{s_qp}, 7')
            p(f's_add_u32 s{s_soff}, s{s_t0}, {k*8192}')
            if True:
                pass
        else:
            p(f's_cmp_eq_u32 s{s_qp}, 1')
            p(f's_cselect_b32 s{s_soff}, {OXHI}, 0')
            p(f's_add_u32 s{s_soff}, s{s_soff}, s{s_t0}')
            p(f's_add_u32 s{s_soff}, s{s_soff}, {k*8192}')
        p(f's_add_u32 s{s_i}, s{s_soff}, s{s_t3}')
        p(f'v_add_u32 v{T+4+k}, s{s_i}, v1')
        p(f's_add_u32 s{s_i}, s{s_soff}, s{s_t1}')
        p(f'v_add_u32 v{T+8+k}, s{s_i}, v{T+3}')
    p.add([I('s_barrier', needs=['lds:ox', 'g11', 'g12', 'g13'])])
    X = SA[0]
    LP = SA[0] + 32
    for k in range(4):
        p(f'ds_read_b128 v[{X+8*k}:{X+8*k+3}], v{T+4+k}')
        p(f'ds_read_b128 v[{X+8*k+4}:{X+8*k+7}], v{T+4+k} offset:1024')
        p(f'ds_read_b32 v{LP+k}, v{T+8+k} offset:3072')
    for q in range(8):
        p(f'v_add_f32 v{X+q}, v{X+q}, v{X+8+q}')
        p(f'v_add_f32 v{X+16+q}, v{X+16+q}, v{X+24+q}')
    p(f'v_add_f32 v{LP}, v{LP}, v{LP+1}')
    p(f'v_add_f32 v{LP+2}, v{LP+2}, v{LP+3}')
    for q in range(8): p(f'v_add_f32 v{X+q}, v{X+q}, v{X+16+q}')
    p(f'v_add_f32 v{T+4}, v{LP}, v{LP+2}')
    stamp(p, 5)
    p(f'v_mul_f32 v{T+5}, 0, v{X}')
    for q in range(1, 8): p(f'v_fma_f32 v{T+5}, v{X+q}, 0, v{T+5}')
    p(f'v_add_f32 v{T+5}, v{T+5}, v{T+4}')
    p(f'v_mov_b32 v{T+6}, {hexf(2.0**-80)}')
    p(f'v_mov_b32 v{T+7}, 0x7f800000')
    p(f'v_cmp_ge_f32 s[{s_t0}:{s_t0+1}], v{T+5}, v{T+6}')
    p(f'v_cmp_lt_f32 vcc, v{T+5}, v{T+7}')
    p(f's_and_b64 vcc, vcc, s[{s_t0}:{s_t0+1}]')
    p(f's_cmp_eq_u64 vcc, -1')
    p(f's_cbranch_scc0 {L("slow")}')
    p.label(L('astore'))
    p(f'v_rcp_f32 v{T+5}, v{T+4}')
    for q in range(8): p(f'v_mul_f32 v{X+q}, v{X+q}, v{T+5}')
    for d in range(4): p(f'v_cvt_pk_bf16_f32 v{PA+d}, v{X+2*d}, v{X+2*d+1}')
    p(f's_and_b32 s{s_t2}, s{s_kq}, 1')
    p(f's_cmp_eq_u32 s{s_t2}, 0')
    p(f's_cselect_b32 s{s_t1}, 0, -1')
    p(f's_mov_b32 s{s_t0}, 0')
    p(f'v_mov_b32 v{T}, 0')
    p(f'v_cndmask_b32 v{PA+2}, v{PA+2}, v{T}, s[{s_t0}:{s_t0+1}]')
    p(f'v_cndmask_b32 v{PA+3}, v{PA+3}, v{T}, s[{s_t0}:{s_t0+1}]')
    p(f'buffer_store_dwordx4 v[{PA}:{PA+3}], v1, s[{S_WS}:{S_WS+3}], s{s_oo} offen sc1')
    p(f's_cmp_eq_u32 s{s_gem}, 0')
    p(f's_cbranch_scc1 {L("nog11")}')
    p.add(g_reads(11, 0) + g_reads(11, 1))
    p.add([g_mfma(0, 0), g_mfma(0, 1), g_mfma(1, 0), g_mfma(1, 1)])
    p.label(L('nog11'))
    p('s_waitcnt vmcnt(0)')
    stamp(p, 6)
    p('s_barrier')
    p(f's_cmp_eq_u32 s{s_w}, 0')
    p(f's_cbranch_scc0 {L("noflag")}')
    p(f's_lshl_b32 s{s_t2}, s{s_qb}, 4')
    p(f's_add_u32 s{s_t2}, s{s_t2}, s{s_hd}')
    p(f's_lshl_b32 s{s_t2}, s{s_t2}, 2')
    p(f's_add_u32 s{s_t2}, s{s_t2}, {WS_FL + 3*1024}')
    p(f'v_mov_b32 v{T+1}, s{s_tag}')
    p(f'v_mov_b32 v{T}, 0')
    p(f'buffer_store_dword v{T+1}, v{T}, s[{S_WS}:{S_WS+3}], s{s_t2} offen sc1')
    p.label(L('noflag'))
    p(f's_cmp_eq_u32 s{s_gem}, 0')
    p(f's_cbranch_scc1 {L("fin")}')
    for gs in (12, 13):
        p.add(g_reads(gs, 0) + g_reads(gs, 1))
        p.add([g_mfma(0, 0), g_mfma(0, 1), g_mfma(1, 0), g_mfma(1, 1)])
    p.add([I('s_barrier', needs=['rd:g'])])
    for k in range(7): p.add(wo_ld(8 * k))
    p(f's_cmp_eq_u32 s{s_w}, 0')
    p(f's_cbranch_scc0 {L("nowo2")}')
    p.add(wo_ld(56))
    p.label(L('nowo2'))
    AX1 = 65536
    p(f's_lshl_b32 s{s_t0}, s{s_w}, 12')
    p(f's_add_u32 s{s_t0}, s{s_t0}, {AX1}')
    p(f'v_add_u32 v{T}, s{s_t0}, v1')
    p(f's_xor_b32 s{s_t0}, s{s_w}, 4')
    p(f's_lshl_b32 s{s_t0}, s{s_t0}, 12')
    p(f's_add_u32 s{s_t0}, s{s_t0}, {AX1}')
    p(f'v_add_u32 v{T+1}, s{s_t0}, v1')
    p(f's_cmp_lt_u32 s{s_w}, 4')
    p(f's_cbranch_scc0 {L("sw1")}')
    for i in range(4):
        p.add([I(f'ds_write_b128 v{T}, v[{ACC[1]+4*i}:{ACC[1]+4*i+3}] offset:{i*1024}', gives=['lds:ax1'])])
    p(f's_branch {L("sw2")}')
    p.label(L('sw1'))
    for i in range(4):
        p.add([I(f'ds_write_b128 v{T}, v[{ACC[0]+4*i}:{ACC[0]+4*i+3}] offset:{i*1024}', gives=['lds:ax1'])])
    p('s_waitcnt lgkmcnt(0)')
    for q in range(16): p(f'v_mov_b32 v{ACC[0]+q}, v{ACC[1]+q}')
    p.label(L('sw2'))
    p.add([I('s_barrier', needs=['lds:ax1'])])
    for i in range(4):
        p(f'ds_read_b128 v[{X+4*i}:{X+4*i+3}], v{T+1} offset:{i*1024}')
    for q in range(16): p(f'v_add_f32 v{ACC[0]+q}, v{ACC[0]+q}, v{X+q}')
    p(f's_lshr_b32 s{s_t0}, s{s_tm}, 1')
    p(f's_lshl_b32 s{s_t0}, s{s_t0}, 6')
    p(f's_add_u32 s{s_flag}, s{s_t0}, {WS_FL + 3*1024}')
    p(f'v_and_b32 v{T}, 15, v0')
    p(f'v_lshlrev_b32 v{T}, 2, v{T}')
    p(f's_mov_b32 s{s_i}, 0x100000')
    p(f'buffer_load_dword v{T+1}, v{T}, s[{S_WS}:{S_WS+3}], s{s_flag} offen sc1')
    p.label(L('poll'))
    p(f'buffer_load_dword v{T+2}, v{T}, s[{S_WS}:{S_WS+3}], s{s_flag} offen sc1')
    p('s_waitcnt vmcnt(1)')
    p(f'v_cmp_eq_u32 vcc, s{s_tag}, v{T+1}')
    p('s_cmp_eq_u64 vcc, -1')
    p(f's_cbranch_scc1 {L("polled")}')
    p(f'buffer_load_dword v{T+1}, v{T}, s[{S_WS}:{S_WS+3}], s{s_flag} offen sc1')
    p('s_waitcnt vmcnt(1)')
    p(f'v_cmp_eq_u32 vcc, s{s_tag}, v{T+2}')
    p('s_cmp_eq_u64 vcc, -1')
    p(f's_cbranch_scc1 {L("polled")}')
    p(f's_sub_u32 s{s_i}, s{s_i}, 1')
    p(f's_cmp_lg_u32 s{s_i}, 0')
    p(f's_cbranch_scc1 {L("poll")}')
    p.label(L('polled'))
    stamp(p, 8)
    p(f's_lshl_b32 s{s_t0}, s{s_tm}, 16')
    p(f's_lshl_b32 s{s_t1}, s{s_w}, 13')
    p(f's_add_u32 s{s_t0}, s{s_t0}, s{s_t1}')
    p(f's_add_u32 s{s_t0}, s{s_t0}, {WS_OF}')
    p(f's_add_u32 m0, s{s_t1}, {T_OF}')
    for q in range(8):
        if q == 4:
            p('s_addk_i32 m0, 4096')
            p(f's_add_u32 s{s_t0}, s{s_t0}, 4096')
        p(f'buffer_load_dwordx4 v1, s[{S_WS}:{S_WS+3}], s{s_t0} offen offset:{(q&3)*1024} sc1 lds')
    p(f's_and_b32 s{s_t2}, s{s_k4}, 1')
    p(f's_lshr_b32 s{s_t3}, s{s_k4}, 1')
    p(f's_lshl_b32 s{s_t0}, s{s_t3}, 15')
    p(f's_lshl_b32 s{s_t1}, s{s_t2}, 14')
    p(f's_add_u32 s{s_t0}, s{s_t0}, s{s_t1}')
    p(f'v_add_u32 v{v_h[0]}, s{s_t0}, v1')
    p(f's_mul_i32 s{s_t1}, s{s_t2}, {224*128}')
    p(f's_add_u32 s{s_t1}, s{s_t1}, {T_WO}')
    p(f'v_add_u32 v{v_wv[0]}, s{s_t1}, v{v_pw}')
    p(f's_lshl_b32 s{s_t0}, s{s_w}, 11')
    p(f's_add_u32 s{s_t0}, s{s_t0}, 65536')
    p(f'v_add_u32 v{T+2}, s{s_t0}, v1')
    p(f's_xor_b32 s{s_t0}, s{s_w}, 2')
    p(f's_lshl_b32 s{s_t0}, s{s_t0}, 11')
    p(f's_add_u32 s{s_t0}, s{s_t0}, 65536')
    p(f'v_add_u32 v{T+3}, s{s_t0}, v1')
    p('s_waitcnt vmcnt(0)')
    p('s_barrier')
    stamp(p, 7)
    OB3 = [HB[0][0], HB[0][1], HB[1][0]]
    WB3 = [WB[0], WB[1], HB[1][1]]
    def o_reads(q):
        row = 28 * (q >> 1) + 16 * (q & 1)
        wb = WB3[q % 3]; hb = OB3[q % 3]
        return [I(f'ds_read_b64_tr_b16 v[{wb}:{wb+1}], v{v_wv[0]} offset:{row*128}'),
                I(f'ds_read_b64_tr_b16 v[{wb+2}:{wb+3}], v{v_wv[0]} offset:{row*128+1024}'),
                I(f'ds_read_b128 v[{hb}:{hb+3}], v{v_h[0]} offset:{T_OF + q*1024}')]
    p.add(o_reads(0) + o_reads(1) + o_reads(2))
    for q in range(16):
        p.add([mm(ACC[0], WB3[q % 3], OB3[q % 3], f'v[{ACC[0]}:{ACC[0]+15}]')])
        if q + 3 < 16: p.add(o_reads(q + 3))
    stamp(p, 9)
    p(f's_and_b32 s{s_t2}, s{s_k4}, 1')
    p(f's_cmp_eq_u32 s{s_t2}, 0')
    p(f's_cbranch_scc0 {L("x1")}')
    p.add([I(f'ds_write_b128 v{T+2}, v[{ACC[0]+8}:{ACC[0]+11}]', gives=['lds:ax']), I(f'ds_write_b128 v{T+2}, v[{ACC[0]+12}:{ACC[0]+15}] offset:1024', gives=['lds:ax'])])
    p(f's_branch {L("x2")}')
    p.label(L('x1'))
    p.add([I(f'ds_write_b128 v{T+2}, v[{ACC[0]}:{ACC[0]+3}]', gives=['lds:ax']), I(f'ds_write_b128 v{T+2}, v[{ACC[0]+4}:{ACC[0]+7}] offset:1024', gives=['lds:ax'])])
    p('s_waitcnt lgkmcnt(0)')
    for q in range(8): p(f'v_mov_b32 v{ACC[0]+q}, v{ACC[0]+8+q}')
    p.label(L('x2'))
    p.add([I('s_barrier', needs=['lds:ax'])])
    p(f'ds_read_b128 v[{X}:{X+3}], v{T+3}')
    p(f'ds_read_b128 v[{X+4}:{X+7}], v{T+3} offset:1024')
    for q in range(8): p(f'v_add_f32 v{X+q}, v{X+q}, v{ACC[0]+q}')
    for j in range(4): p(f'v_permlane32_swap_b32 v{X+j}, v{X+4+j}')
    for d in range(4):
        p(f'v_lshlrev_b32 v{T+4}, 16, v{XR+d}')
        p(f'v_and_b32 v{T+5}, 0xffff0000, v{XR+d}')
        p(f'v_add_f32 v{T+4}, v{T+4}, v{X+2*d}')
        p(f'v_add_f32 v{T+5}, v{T+5}, v{X+2*d+1}')
        p(f'v_cvt_pk_bf16_f32 v{XR+d}, v{T+4}, v{T+5}')
    p(f'buffer_store_dwordx4 v[{XR}:{XR+3}], v{v_xa}, s[{S_OUT}:{S_OUT+3}], s{s_ost} offen')
    p.label(L('fin'))
    if k1.STAMP: p('s_waitcnt vmcnt(0)')
    stamp(p, 10)
    k1.stamp_store(p, S_WS, s_w, 1)
    p('s_endpgm')

    p.label(L('slow'))
    Q = KB[1]; O = OA; M = T + 8; s0 = SB[0]
    p(f's_lshr_b32 s{s_t1}, s{s_kq}, 1')
    p(f's_cmp_eq_u32 s{s_t1}, 0')
    p(f's_cbranch_scc1 {L("sl_a")}')
    for q in range(8): p(f'v_mov_b32 v{Q+q}, v{QB+q}')
    p(f's_branch {L("sl_b")}')
    p.label(L('sl_a'))
    for q in range(8): p(f'v_mov_b32 v{Q+q}, v{QA+q}')
    p.label(L('sl_b'))
    p(f'v_mov_b32 v{T}, 0')
    p(f'v_cndmask_b32 v{Q+6}, v{Q+6}, v{T}, s[{s_hi}:{s_hi+1}]')
    for q in range(16): p(f'v_mov_b32 v{O+q}, 0')
    p(f'v_mov_b32 v{M}, 0xff800000')
    p(f's_lshl_b32 s{s_t2}, s{s_hd}, 18')
    p(f's_add_u32 s{s_t2}, s{s_t2}, {WS_KV}')
    p(f's_mov_b32 s{s_i}, 64')
    p.label(L('sloop'))
    p(f'buffer_load_dwordx4 v[{KB[0]}:{KB[0]+3}], v1, s[{S_WS}:{S_WS+3}], s{s_t2} offen{SC}')
    p(f'buffer_load_dwordx4 v[{KB[0]+4}:{KB[0]+7}], v1, s[{S_WS}:{S_WS+3}], s{s_t2} offen offset:1024{SC}')
    p(f'buffer_load_dwordx4 v[{VB[0]}:{VB[0]+3}], v1, s[{S_WS}:{S_WS+3}], s{s_t2} offen offset:2048{SC}')
    p(f'buffer_load_dwordx4 v[{VB[0]+4}:{VB[0]+7}], v1, s[{S_WS}:{S_WS+3}], s{s_t2} offen offset:3072{SC}')
    p.add([sS(s0, KB[0], Q, 0), sS(s0, KB[0], Q, 1)])
    p(f'v_max3_f32 v{T}, v{s0}, v{s0+1}, v{s0+2}')
    for q in range(3, 15, 2): p(f'v_max3_f32 v{T}, v{T}, v{s0+q}, v{s0+q+1}')
    p(f'v_max_f32 v{T}, v{T}, v{s0+15}')
    p(f'v_mov_b32 v{T+1}, v{T}')
    p(f'v_permlane32_swap_b32 v{T}, v{T+1}')
    p(f'v_max3_f32 v{T}, v{T}, v{T+1}, v{M}')
    p(f'v_sub_f32 v{T+1}, v{M}, v{T}')
    p(f'v_exp_f32 v{T+1}, v{T+1}')
    p(f'v_mov_b32 v{M}, v{T}')
    for q in range(16): p(f'v_sub_f32 v{s0+q}, v{s0+q}, v{M}')
    for q in range(16): p(f'v_exp_f32 v{s0+q}, v{s0+q}')
    for q in range(16): p(f'v_mul_f32 v{O+q}, v{O+q}, v{T+1}')
    for d in range(8): p(f'v_cvt_pk_bf16_f32 v{PA+d}, v{s0+2*d}, v{s0+2*d+1}')
    p.add([mm(O, VB[0], PA, f'v[{O}:{O+15}]'), mm(O, VB[0] + 4, PA + 4, f'v[{O}:{O+15}]')])
    p(f's_add_u32 s{s_t2}, s{s_t2}, 4096')
    p(f's_sub_u32 s{s_i}, s{s_i}, 1')
    p(f's_cmp_lg_u32 s{s_i}, 0')
    p(f's_cbranch_scc1 {L("sloop")}')
    p(f'v_mov_b32 v{T+3}, v{O+12}')
    p(f'v_mov_b32 v{T+4}, v{O+12}')
    p(f'v_permlane32_swap_b32 v{T+3}, v{T+4}')
    p(f's_and_b32 s{s_t2}, s{s_kq}, 1')
    p(f's_cmp_eq_u32 s{s_t2}, 0')
    p(f's_cbranch_scc1 {L("sl_c")}')
    for q in range(8): p(f'v_mov_b32 v{X+q}, v{O+8+q}')
    p(f's_branch {L("astore")}')
    p.label(L('sl_c'))
    for q in range(8): p(f'v_mov_b32 v{X+q}, v{O+q}')
    p(f's_branch {L("astore")}')
```

```python
from asmlib import *
import k1
from k1 import stamp, WS_QF, WS_KV, WS_HF, WS_OF, WS_FLAG, hexf, flat
WS_FL = (16 << 20) + 4096

KVS = 16384; KVN = 3
G0 = KVS * KVN
KPI = 8
GA = 2 * KPI * 1024
GS = GA + KPI * 2048
GN = 3
GFIRST = 4
NGS = 14
NG_LOOP = 11
MARGIN = 64.0
L_Q = G0
T_OX = 0
T_WO = 105472
T_OF = 0
T_AX = 0

SCHEDS = {
 'a': dict(r0=0, r1=6, pvp=2, g00=10, pA0=14, sA0=18, g01=22, pA1=26, sA1=30, g10=34, pB0=38, sB0=42, g11=45, sB1=48),
 'b': dict(r0=8, r1=14, pvp=2, pA0=14, sA0=18, g00=22, pA1=26, sA1=30, g01=34, pB0=38, g10=41, sB0=44, g11=46, sB1=48),
 'c': dict(r0=5, r1=11, pvp=2, pA0=14, sA0=20, g00=24, pA1=27, sA1=31, g01=35, pB0=38, g10=41, sB0=44, g11=46, sB1=48),
 'f': dict(r0=11, r1=35, pvp=1, g00=6, g01=10, pA0=14, sA0=18, sA1=22, pA1=26, g10=30, g11=34, pB0=38, sB0=42, sB1=46),
 'g': dict(r0=11, r1=31, pvp=2, g00=6, g01=10, pA0=14, sA0=18, g10=22, pA1=26, g11=30, sA1=34, pB0=38, sB0=42, sB1=46),
 'd': dict(r0=10, r1=18, pvp=2, pA0=14, sA0=18, pA1=26, sA1=22, g00=30, g01=34, pB0=38, g10=41, sB0=44, g11=47, sB1=48),
}
SCHED = SCHEDS['b']
class R2: pass

class Ctx: pass

def make(L, S_WS, s_w, s_tag):
    SC = ' sc1'
    merged = True
    S_WD, S_WO, S_X, S_OUT = 8, 12, 96, 16
    s_hd, s_qb, s_tm, s_tn, s_gem = 31, 32, 33, 34, 35
    s_qp, s_kq, s_wn, s_k4 = 36, 37, 36, 37
    s_hi = 54
    s_t0, s_t1, s_t2, s_t3 = 58, 59, 60, 61
    s_kvg, s_kvm, s_gg, s_gm, s_gadv = 40, 41, 42, 43, 44
    s_soff, s_ost, s_flag, s_oo, s_i = 45, 46, 47, 48, 49
    s_wob, s_wom = 50, 51
    s_dsrd = 76
    s_qo = 53
    v_kv = 2
    v_h = [3, 4, 8]
    v_wv = [9, 10, 11]
    v_gd = [12, 13, 14, 15]
    v_bp, v_pw, v_xa = 16, 17, 18
    QA, QB = 20, 28
    KB, VB = [36, 44], [52, 60]
    SA, SB = [68, 84], [100, 116]
    PA, PB = 132, 140
    OA, OB = 148, 164
    ACC = [180, 196]
    HB = [[212, 216], [220, 224]]
    WB = [228, 232]
    XR = 236
    T = 240

    E = []
    def A(*txt): E.append([I(t) for t in txt])
    lane, m, hh = T, T + 4, T + 5
    A(f'v_and_b32 v{lane}, 63, v0', f's_and_b32 s{s_qp}, s{s_w}, 1', f's_lshr_b32 s{s_kq}, s{s_w}, 1')
    A(f's_and_b32 s{s_hd}, s2, 15', f's_lshr_b32 s{s_qb}, s2, 4', f's_lshr_b32 s{s_t0}, s2, 3', f's_mul_i32 s{s_t1}, s{s_t0}, 37',
      f's_lshr_b32 s{s_t1}, s{s_t1}, 8', f's_mul_i32 s{s_t2}, s{s_t1}, 7', f's_sub_u32 s{s_tn}, s{s_t0}, s{s_t2}')
    A(f's_and_b32 s{s_tm}, s2, 7', f's_lshl_b32 s{s_tm}, s{s_tm}, 2', f's_add_u32 s{s_tm}, s{s_tm}, s{s_t1}',
      's_cmp_lt_u32 s2, 224', f's_cselect_b32 s{s_gem}, 1, 0')
    A(f's_and_b32 s{s_t1}, s{s_hd}, 14', f's_mov_b32 s{s_t3}, s{s_t1}', f's_add_u32 s{s_t2}, s{s_t1}, 1',
      f'v_and_b32 v{T+1}, 15, v{lane}', f'v_lshlrev_b32 v{T+1}, 4, v{T+1}',
      f'v_add_u32 v{T+2}, s{s_t3}, v{T+1}', f'v_add_u32 v{T+3}, s{s_t2}, v{T+1}',
      f'v_cmp_gt_u32 vcc, 16, v{lane}', 's_nop 1', f'v_cndmask_b32 v{T+2}, v{T+3}, v{T+2}, vcc',
      f's_lshl_b32 s{s_t0}, s{s_qb}, 4', f's_add_u32 s{s_t0}, s{s_t0}, s{s_t1}', f'v_mov_b32 v{T+3}, s{s_t0}',
      f'v_cmp_gt_u32 vcc, 32, v{lane}', 's_nop 1', f'v_cndmask_b32 v{T+2}, v{T+3}, v{T+2}, vcc',
      f'v_lshlrev_b32 v{T+12}, 2, v{T+2}', f's_mov_b32 s{s_flag}, {WS_FL + 1*1024}')
    A(f's_lshl_b32 s{s_kvg}, s{s_hd}, 18', f's_lshl_b32 s{s_kvm}, s{s_w}, 11', f's_add_u32 s{s_kvg}, s{s_kvg}, s{s_kvm}',
      f's_add_u32 s{s_kvg}, s{s_kvg}, {WS_KV}')
    A(f's_lshl_b32 s{s_t1}, s{s_qb}, 2', f's_lshl_b32 s{s_t2}, s{s_qp}, 1', f's_add_u32 s{s_t1}, s{s_t1}, s{s_t2}',
      f's_lshr_b32 s{s_t2}, s{s_kq}, 1', f's_add_u32 s{s_t1}, s{s_t1}, s{s_t2}', f's_lshl_b32 s{s_oo}, s{s_t1}, 5',
      f's_lshl_b32 s{s_t2}, s{s_hd}, 1', f's_add_u32 s{s_oo}, s{s_oo}, s{s_t2}', f's_and_b32 s{s_t2}, s{s_kq}, 1',
      f's_add_u32 s{s_oo}, s{s_oo}, s{s_t2}', f's_lshl_b32 s{s_oo}, s{s_oo}, 10', f's_add_u32 s{s_oo}, s{s_oo}, {WS_OF}')
    for (Sd, lo, size) in ((S_WD, 28, 1792 * 896), (S_WO, 4, 448 * 896), (S_OUT, 38, 2048 * 896)):
        A(f's_mov_b32 s{Sd}, s{lo}', f's_mov_b32 s{Sd+1}, s{lo+1}', f's_mov_b32 s{Sd+2}, {size}', f's_mov_b32 s{Sd+3}, 0x20000')
    A(f's_lshl_b32 s{s_t0}, s{s_kq}, 12', f'v_add_u32 v{v_kv}, s{s_t0}, v1', f'v_and_b32 v{m}, 31, v0', f'v_bfe_u32 v{hh}, v0, 5, 1')
    A(f'v_lshrrev_b32 v{T+6}, 3, v{lane}', f'v_mul_u32_u24 v{T+6}, 896, v{T+6}', f'v_bfe_u32 v{T+7}, v{lane}, 4, 1')
    A(f'v_lshlrev_b32 v{T+7}, 2, v{T+7}', f'v_and_b32 v{T+8}, 7, v{lane}', f'v_xor_b32 v{T+7}, v{T+7}, v{T+8}')
    A(f'v_lshlrev_b32 v{T+7}, 4, v{T+7}', f'v_add_u32 v{v_bp}, v{T+6}, v{T+7}')
    a = [f's_cmp_lt_u32 s{s_w}, 4', f's_cbranch_scc0 {L("setB")}']
    a += [f'v_mov_b32 v{v_gd[q]}, v1' for q in range(4)]
    a += [f's_lshr_b32 s{s_t2}, s{s_w}, 1', f's_lshl_b32 s{s_t0}, s{s_tm}, 1', f's_add_u32 s{s_t0}, s{s_t0}, s{s_t2}',
          f's_mul_i32 s{s_gg}, s{s_t0}, {112*1024}', f's_and_b32 s{s_t3}, s{s_w}, 1', f's_lshl_b32 s{s_t3}, s{s_t3}, 12',
          f's_add_u32 s{s_gg}, s{s_gg}, s{s_t3}', f's_add_u32 s{s_gg}, s{s_gg}, {WS_HF}', f's_mov_b32 s{s_gadv}, {KPI*1024}',
          f's_lshl_b32 s{s_gm}, s{s_t2}, 13', f's_add_u32 s{s_gm}, s{s_gm}, s{s_t3}',
          f's_mov_b64 s[{s_dsrd}:{s_dsrd+1}], s[{S_WS}:{S_WS+1}]', f's_mov_b32 s{s_dsrd+2}, {k1.WS_SIZE}', f's_branch {L("setC")}',
          f'{L("setB")}:']
    a += [f'v_add_u32 v{v_gd[q]}, {q*(8*896-1024)}, v{v_bp}' for q in range(4)]
    a += [f's_sub_u32 s{s_t0}, s{s_w}, 4', f's_mul_i32 s{s_gg}, s{s_t0}, {32*896}', f's_lshl_b32 s{s_t1}, s{s_tn}, 7',
          f's_add_u32 s{s_gg}, s{s_gg}, s{s_t1}', f's_mov_b32 s{s_gadv}, {KPI*16*896}', f's_lshl_b32 s{s_gm}, s{s_t0}, 12',
          f's_add_u32 s{s_gm}, s{s_gm}, {GA}', f's_mov_b64 s[{s_dsrd}:{s_dsrd+1}], s[{S_WD}:{S_WD+1}]', f's_mov_b32 s{s_dsrd+2}, {1792*896}',
          f'{L("setC")}:', f's_mov_b32 s{s_dsrd+3}, 0x20000', f's_add_u32 s{s_gm}, s{s_gm}, {G0}']
    A(*a)
    A(f's_lshl_b32 s{s_t0}, s{s_tm}, 6', f's_lshr_b32 s{s_t1}, s{s_k4}, 1', f's_lshl_b32 s{s_t1}, s{s_t1}, 5', f's_add_u32 s{s_t0}, s{s_t0}, s{s_t1}',
      f's_mul_i32 s{s_t0}, s{s_t0}, 896', f's_lshl_b32 s{s_t1}, s{s_tn}, 7', f's_lshl_b32 s{s_t2}, s{s_wn}, 6',
      f's_add_u32 s{s_t0}, s{s_t0}, s{s_t1}', f's_add_u32 s{s_ost}, s{s_t0}, s{s_t2}', f's_and_b32 s{s_t0}, s{s_k4}, 1',
      f's_lshl_b32 s{s_t0}, s{s_t0}, 5', f's_add_u32 s{s_ost}, s{s_ost}, s{s_t0}')
    A(f'v_mul_u32_u24 v{v_xa}, 896, v{m}', f'v_lshlrev_b32 v{T+6}, 4, v{hh}', f'v_add_u32 v{v_xa}, v{v_xa}, v{T+6}')
    A(f'v_bfe_u32 v{T+6}, v{lane}, 2, 2', f'v_lshlrev_b32 v{T+7}, 2, v{hh}', f'v_add_u32 v{T+7}, v{T+7}, v{T+6}', f'v_lshlrev_b32 v{v_pw}, 7, v{T+7}')
    A(f'v_lshrrev_b32 v{T+6}, 1, v{T+6}', f'v_xor_b32 v{T+6}, s{s_wn}, v{T+6}', f'v_lshlrev_b32 v{T+6}, 6, v{T+6}', f'v_add_u32 v{v_pw}, v{v_pw}, v{T+6}')
    A(f'v_bfe_u32 v{T+6}, v{lane}, 4, 1', f'v_lshlrev_b32 v{T+6}, 5, v{T+6}', f'v_add_u32 v{v_pw}, v{v_pw}, v{T+6}')
    A(f'v_and_b32 v{T+6}, 3, v{lane}', f'v_lshlrev_b32 v{T+6}, 3, v{T+6}', f'v_add_u32 v{v_pw}, v{v_pw}, v{T+6}')
    for pos in range(GN):
        A(f's_lshl_b32 s{s_t0}, s{s_k4}, 11', f's_add_u32 s{s_t0}, s{s_t0}, {G0 + pos*GS}', f'v_add_u32 v{v_h[pos]}, s{s_t0}, v1',
          f's_lshl_b32 s{s_t1}, s{s_k4}, 12', f's_add_u32 s{s_t1}, s{s_t1}, {G0 + pos*GS + GA}', f'v_add_u32 v{v_wv[pos]}, s{s_t1}, v{v_pw}')
    A(f's_lshl_b32 s{s_wob}, s{s_tn}, 7', f's_mul_i32 s{s_t0}, s{s_w}, {8*896}', f's_add_u32 s{s_wob}, s{s_wob}, s{s_t0}', f's_lshl_b32 s{s_wom}, s{s_w}, 10')
    LATE = [I(t) for t in (f's_mov_b32 s{s_i}, 0x200000', f'{L("kvchk")}:',
      f'v_cmp_eq_u32 vcc, s{s_tag}, v{T+13}', 's_nop 0', 's_cmp_eq_u64 vcc, -1', f's_cbranch_scc1 {L("kvok")}',
      f'buffer_load_dword v{T+13}, v{T+12}, s[{S_WS}:{S_WS+3}], s{s_flag} offen sc1', 's_waitcnt vmcnt(0)',
      f's_sub_u32 s{s_i}, s{s_i}, 1', f's_cmp_lg_u32 s{s_i}, 0', f's_cbranch_scc1 {L("kvchk")}', f'{L("kvok")}:')]
    qa = [f's_lshl_b32 s{s_t0}, s{s_hd}, 6', f's_lshl_b32 s{s_t1}, s{s_qb}, 2', f's_add_u32 s{s_t0}, s{s_t0}, s{s_t1}',
          f's_lshl_b32 s{s_t0}, s{s_t0}, 11', f's_lshl_b32 s{s_t1}, s{s_w}, 10', f's_add_u32 s{s_t0}, s{s_t0}, s{s_t1}',
          f's_add_u32 s{s_qo}, s{s_t0}, {WS_QF}']
    A(*qa)
    E2 = [[I(f'buffer_load_dword v{T+13}, v{T+12}, s[{S_WS}:{S_WS+3}], s{s_flag} offen sc1')]]
    QL = [I(f's_lshl_b32 s{s_t0}, s{s_w}, 10'), I(f's_add_u32 m0, s{s_t0}, {L_Q}'), I('s_nop 0'),
          I(f'buffer_load_dwordx4 v1, s[{S_WS}:{S_WS+3}], s{s_qo} offen sc1 lds', gives=['kv0'])]

    def kv_issue(slot, g=()):
        pos = slot % KVN
        return [[I(f's_add_u32 m0, s{s_kvm}, {pos*KVS}'),
                 I(f's_add_u32 s{s_soff}, s{s_kvg}, {slot*KVS}'),
                 I(f'buffer_load_dwordx4 v1, s[{S_WS}:{S_WS+3}], s{s_soff} offen{SC} lds', gives=g)],
                [I(f'buffer_load_dwordx4 v1, s[{S_WS}:{S_WS+3}], s{s_soff} offen offset:1024{SC} lds', gives=g)]]
    def g_issue(gs):
        gv = ['g%d' % gs]
        pos = gs % GN
        o = []
        for q in range(4):
            a = []
            if q == 0: a += [I(f's_add_u32 m0, s{s_gm}, {pos*GS}'), I('s_nop 0')]
            sc = SC
            a.append(I(f'buffer_load_dwordx4 v{v_gd[q]}, s[{s_dsrd}:{s_dsrd+3}], s{s_gg} offen offset:{q*1024}{sc} lds', gives=gv))
            if q == 3: a.append(I(f's_add_u32 s{s_gg}, s{s_gg}, s{s_gadv}'))
            o.append(a)
        return o
    st7 = [I('s_memtime s[94:95]'), I('s_waitcnt lgkmcnt(0)'), I('s_mov_b32 s87, s94')] if k1.STAMP else []
    first_kv = LATE + st7 + flat(kv_issue(0, ['kv0'])) + QL
    second_kv = flat(kv_issue(1, ['kv1']))
    return E, first_kv, locals()

def phase2(p, L, S_WS, s_w, s_tag, C):
    globals_ = C
    for k in ('SC', 'merged', 'S_WD', 'S_WO', 'S_X', 'S_OUT', 's_hd', 's_qb', 's_tm', 's_tn', 's_gem', 's_qp', 's_kq', 's_wn', 's_k4', 's_hi',
              's_t0', 's_t1', 's_t2', 's_t3', 's_kvg', 's_kvm', 's_gg', 's_gm', 's_gadv', 's_soff', 's_ost', 's_flag', 's_oo', 's_i', 's_wob', 's_wom',
              's_dsrd', 'v_kv', 'v_h', 'v_wv', 'v_gd', 'v_bp', 'v_pw', 'v_xa', 'QA', 'QB', 'KB', 'VB', 'SA', 'SB', 'PA', 'PB', 'OA', 'OB', 'ACC',
              'HB', 'WB', 'XR', 'T', 'kv_issue', 'g_issue'):
        pass
    (SC, merged, S_WD, S_WO, S_X, S_OUT, s_hd, s_qb, s_tm, s_tn, s_gem, s_qp, s_kq, s_wn, s_k4, s_hi, s_t0, s_t1, s_t2, s_t3, s_kvg, s_kvm,
     s_gg, s_gm, s_gadv, s_soff, s_ost, s_flag, s_oo, s_i, s_wob, s_wom, s_dsrd, v_kv, v_h, v_wv, v_gd, v_bp, v_pw, v_xa, QA, QB, KB, VB,
     SA, SB, PA, PB, OA, OB, ACC, HB, WB, XR, T, kv_issue, g_issue) = [C[k] for k in (
     'SC', 'merged', 'S_WD', 'S_WO', 'S_X', 'S_OUT', 's_hd', 's_qb', 's_tm', 's_tn', 's_gem', 's_qp', 's_kq', 's_wn', 's_k4', 's_hi',
     's_t0', 's_t1', 's_t2', 's_t3', 's_kvg', 's_kvm', 's_gg', 's_gm', 's_gadv', 's_soff', 's_ost', 's_flag', 's_oo', 's_i', 's_wob', 's_wom',
     's_dsrd', 'v_kv', 'v_h', 'v_wv', 'v_gd', 'v_bp', 'v_pw', 'v_xa', 'QA', 'QB', 'KB', 'VB', 'SA', 'SB', 'PA', 'PB', 'OA', 'OB', 'ACC',
     'HB', 'WB', 'XR', 'T', 'kv_issue', 'g_issue')]
    p.add(C['second_kv'])
    stamp(p, 1)
    mm = lambda d, a, b, c: I(f'v_mfma_f32_32x32x16_bf16 v[{d}:{d+15}], v[{a}:{a+3}], v[{b}:{b+3}], {c}')
    def rdK(buf, pos, g=()):
        return [I(f'ds_read_b128 v[{buf}:{buf+3}], v{v_kv} offset:{pos*KVS}', gives=g),
                I(f'ds_read_b128 v[{buf+4}:{buf+7}], v{v_kv} offset:{pos*KVS+1024}', gives=g)]
    def rdV(buf, pos, g=()):
        return [I(f'ds_read_b128 v[{buf}:{buf+3}], v{v_kv} offset:{pos*KVS+2048}', gives=g),
                I(f'ds_read_b128 v[{buf+4}:{buf+7}], v{v_kv} offset:{pos*KVS+3072}', gives=g)]
    p.add([I('s_barrier', needs=['kv0'])])
    stamp(p, 2)
    ab0 = getattr(phase2, 'after_beta0', None)
    p(f's_lshl_b32 s{s_t0}, s{s_qp}, 12')
    p(f'v_add_u32 v{T+1}, s{s_t0}, v1')
    for i in range(4):
        p.add([I(f'ds_read_b128 v[{QA+4*i}:{QA+4*i+3}], v{T+1} offset:{L_Q + i*1024}', gives=['rd:kv'])])
    KT = HB[0][0]
    p(f'ds_read_b128 v[{KT}:{KT+3}], v1')
    p(f'ds_read_b128 v[{KT+4}:{KT+7}], v1 offset:1024')
    p.add(rdK(KB[0], 0) + rdV(VB[0], 0, ['rd:kv']))
    p.add(flat(kv_issue(2, ['kv2'])))
    def sS(dst, kb, Q, part):
        return mm(dst, kb + 4 * part, Q + 4 * part, '0' if part == 0 else f'v[{dst}:{dst+15}]')
    for (Sx, Q) in ((SA[1], QA), (SB[1], QB)):
        p.add([sS(Sx, KT, Q, 0), sS(Sx, KT, Q, 1)])
    for (s0, Q, tt) in ((SA[1], QA, T), (SB[1], QB, T + 4)):
        p(f'v_max3_f32 v{tt}, v{s0}, v{s0+1}, v{s0+2}')
        p(f'v_max3_f32 v{tt+1}, v{s0+3}, v{s0+4}, v{s0+5}')
        p(f'v_max3_f32 v{tt+2}, v{s0+6}, v{s0+7}, v{s0+8}')
        p(f'v_max3_f32 v{tt+3}, v{s0+9}, v{s0+10}, v{s0+11}')
        p(f'v_max3_f32 v{tt}, v{tt}, v{s0+12}, v{s0+13}')
        p(f'v_max3_f32 v{tt+1}, v{tt+1}, v{s0+14}, v{s0+15}')
        p(f'v_max3_f32 v{tt}, v{tt}, v{tt+1}, v{tt+2}')
        p(f'v_max_f32 v{tt}, v{tt}, v{tt+3}')
    for (Q, tt) in ((QA, T), (QB, T + 4)):
        p(f'v_mov_b32 v{tt+1}, v{tt}')
        p(f'v_permlane32_swap_b32 v{tt}, v{tt+1}')
        p(f'v_max_f32 v{tt}, v{tt}, v{tt+1}')
        p(f'v_add_f32 v{tt}, {hexf(MARGIN)}, v{tt}')
        p(f'v_sub_f32 v{tt}, 0, v{tt}')
        p(f'v_mov_b32 v{tt+1}, 0')
        p(f'v_cvt_pk_bf16_f32 v{tt}, v{tt}, v{tt+1}')
        p(f'v_cndmask_b32 v{Q+6}, v{Q+6}, v{tt}, s[{s_hi}:{s_hi+1}]')
    for (Sx, Q) in ((SA[0], QA), (SB[0], QB)):
        p.add([sS(Sx, KB[0], Q, 0), sS(Sx, KB[0], Q, 1)])
    p.add([I('s_barrier', needs=['st:h'])])
    if ab0: p.add(ab0())
    p('s_nop 8')
    stamp(p, 3)

    def g_reads(gs, q):
        pos = gs % GN
        wb = WB[q]
        return [I(f'ds_read_b64_tr_b16 v[{wb}:{wb+1}], v{v_wv[pos]} offset:{q*2048}', gives=['rd:g']),
                I(f'ds_read_b64_tr_b16 v[{wb+2}:{wb+3}], v{v_wv[pos]} offset:{q*2048+1024}', gives=['rd:g']),
                I(f'ds_read_b128 v[{HB[q][0]}:{HB[q][0]+3}], v{v_h[pos]} offset:{q*1024}', gives=['rd:g']),
                I(f'ds_read_b128 v[{HB[q][1]}:{HB[q][1]+3}], v{v_h[pos]} offset:{q*1024+8192}', gives=['rd:g'])]
    def g_mfma(q, rbk, first=False): return mm(ACC[rbk], WB[q], HB[q][rbk], '0' if first else f'v[{ACC[rbk]}:{ACC[rbk]+15}]')

    def period(n, gem):
        i0, i1 = n & 1, (n + 1) & 1
        last = (n == 15)
        def grp(S, P, g):
            c = S[i0]
            return [I(f'v_exp_f32 v{c+4*g+k}, v{c+4*g+k}') for k in range(4)] + \
                   [I(f'v_cvt_pk_bf16_f32 v{P+2*g}, v{c+4*g}, v{c+4*g+1}'), I(f'v_cvt_pk_bf16_f32 v{P+2*g+1}, v{c+4*g+2}, v{c+4*g+3}')]
        pv = lambda O, P, part: mm(O, VB[i0] + 4 * part, P + 4 * part, '0' if (n == 0 and part == 0) else f'v[{O}:{O+15}]')
        pvp = mm(OB, VB[i1] + 4, PB + 4, f'v[{OB}:{OB+15}]')
        pos = (n + 1) % KVN
        rk = [] if last else rdK(KB[i1], pos, ['rd:kv'])
        rv = [] if last else rdV(VB[i1], pos, ['rd:kv'])
        beta = n + 1
        gs = beta - GFIRST
        do_g = gem and 0 <= gs < NG_LOOP
        if 'nogc' in k1.EXP: do_g = False
        kvi = kv_issue(beta + 2, ['kv%d' % (beta + 2)]) if beta + 2 <= 15 else [[], []]
        gi_slot = beta + 2 - GFIRST
        gi = g_issue(gi_slot) if (gem and 0 <= gi_slot < NGS) else [[], [], [], []]
        if 'nogd' in k1.EXP: gi = [[], [], [], []]
        if 'nokv' in k1.EXP: kvi = [[], []]
        wo = wo_issue(beta) if gem else [[]] * 8
        gr0 = g_reads(gs, 0) if do_g else []
        gr1 = g_reads(gs, 1) if do_g else []
        piped = any(e in ('schf', 'schg') for e in k1.EXP)
        if piped:
            do_m = gem and 0 <= gs - 1 < NG_LOOP and 'nogc' not in k1.EXP
            gm = lambda q, rb: [g_mfma(q, rb, gs - 1 == 0 and q == 0)] if do_m else []
        else:
            gm = lambda q, rb: [g_mfma(q, rb, gs == 0 and q == 0)] if do_g else []
        S_ = lambda S, Q, part: [] if last else [sS(S[i1], KB[i1], Q, part)]
        valu = []
        for g in range(4): valu += grp(SA, PA, g)
        for g in range(4): valu += grp(SB, PB, g)
        ins = {k: [] for k in range(49)}
        sched = SCHED
        for e in k1.EXP:
            if e.startswith('sch'): sched = SCHEDS[e[3:]]
        ins[0] += rk
        ins[sched['r0']] += gr0
        ins[sched['pvp']] += ([pvp] if n > 0 else []) + rv
        ins[sched['g00']] += gm(0, 0)
        ins[sched['pA0']] += [pv(OA, PA, 0)]
        ins[sched['sA0']] += S_(SA, QA, 0)
        ins[sched['g01']] += gm(0, 1)
        ins[sched['pA1']] += [pv(OA, PA, 1)]
        ins[sched['sA1']] += S_(SA, QA, 1)
        ins[sched['g10']] += gm(1, 0)
        ins[sched['pB0']] += [pv(OB, PB, 0)]
        ins[sched['sB0']] += S_(SB, QB, 0)
        ins[sched['g11']] += gm(1, 1)
        ins[sched['sB1']] += S_(SB, QB, 1)
        ins[sched['r1']] += gr1
        mem = [kvi[0], kvi[1], gi[0], gi[1], gi[2], gi[3]] + wo[:6]
        mem = [a for a in mem if a]
        if gem and gi_slot == 0:
            issue, check = phase2.h_poll()
            ins[0] = issue + ins[0]
            for k, a in enumerate([kvi[0], kvi[1]]): ins[4 + 4 * k] += flat(a)
            ins[28] += check
            for k, a in enumerate(gi): ins[30 + 4 * k] += flat(a)
            mem = []
        for k, a in enumerate(mem):
            ins[(3 + 7 * k) if ('dspread' in k1.EXP and len(mem) <= 6) else (4 + 4 * k if len(mem) <= 10 else 3 + 3 * k)] += flat(a)
        if 'tog' in k1.EXP:
            u = '%d%d' % (n, gem)
            ins[0] = [I(f's_cmp_lt_u32 s{s_w}, 4'), I(f's_cbranch_scc1 {L("tg0_" + u)}'), I('s_setprio 2'), I(f'{L("tg0_" + u)}:')] + ins[0]
            ins[28] = [I(f's_cmp_lt_u32 s{s_w}, 4'), I(f's_cbranch_scc1 {L("tg1_" + u)}'), I('s_setprio 0'), I(f'{L("tg1_" + u)}:')] + ins[28]
        if 'mprio' in k1.EXP:
            for k in list(ins.keys()):
                nw = []
                for x in ins[k]:
                    if isinstance(x, Ins) and x.kind == 'mfma': nw += [I('s_setprio 3'), x, I('s_setprio 0')]
                    else: nw.append(x)
                ins[k] = nw
        o = []
        for k in range(48):
            o += ins[k] + [valu[k]]
        o += ins[48]
        if last: o += [mm(OB, VB[i0] + 4, PB + 4, f'v[{OB}:{OB+15}]')]
        return o

    def wo_ld(q0):
        return [I(f's_add_u32 m0, s{s_wom}, {T_WO + q0*1024}'),
                I(f's_add_u32 s{s_t1}, s{s_wob}, {q0*8*896}'),
                I(f'buffer_load_dwordx4 v{v_bp}, s[{S_WO}:{S_WO+3}], s{s_t1} offen lds')]
    def wo_issue(beta):
        return [[]] * 8

    if 'tog' in k1.EXP:
        p(f's_cmp_lt_u32 s{s_w}, 4')
        p(f's_cbranch_scc0 {L("np2")}')
        p('s_setprio 1')
        p.label(L('np2'))
    if 'prio1' in k1.EXP:
        p(f's_cmp_lt_u32 s{s_w}, 4')
        p(f's_cbranch_scc1 {L("np1")}')
        p('s_setprio 1')
        p.label(L('np1'))
    for gem in (1, 0):
        if gem:
            p(f's_cmp_eq_u32 s{s_gem}, 0')
            p(f's_cbranch_scc1 {L("loop_n")}')
            p(f'buffer_load_dwordx4 v[{XR}:{XR+3}], v{v_xa}, s[{S_X}:{S_X+3}], s{s_ost} offen')
        else:
            p.label(L('loop_n'))
        for n in range(16):
            beta = n + 1
            if True:
                needs = ['rd:kv', 'rd:g']
                if beta <= 15: needs.append('kv%d' % beta)
                if gem and 0 <= beta - GFIRST < NG_LOOP: needs.append('g%d' % (beta - GFIRST))
                bw = k1.STAMP and 'bw' in k1.EXP
                if bw: p.add([I('s_memtime s[92:93]'), I('s_waitcnt lgkmcnt(0)')])
                p.add([I('s_barrier', needs=needs)])
                if bw:
                    p.add([I('s_memtime s[94:95]'), I('s_waitcnt lgkmcnt(0)'), I('s_sub_u32 s94, s94, s92')])
                    p.add([I('s_mov_b32 s91, s94') if beta == 1 else I('s_add_u32 s91, s91, s94')])
                    if beta in (2, 3, 4): p.add([I(f's_mov_b32 s{80 + 10 + beta}, s94')]) if beta != 2 else None
            p.add(period(n, gem))
        stamp(p, 4)
        if gem: p(f's_branch {L("tail")}')
    p.label(L('tail'))
    OXHI = 147456 - 12 * 4096
    p(f's_lshl_b32 s{s_t0}, s{s_qp}, 2')
    p(f's_add_u32 s{s_t0}, s{s_t0}, s{s_kq}')
    p(f's_lshl_b32 s{s_t1}, s{s_t0}, 13')
    p(f's_cmp_ge_u32 s{s_t0}, 6')
    p(f's_cselect_b32 s{s_t2}, {OXHI}, 0')
    p(f's_add_u32 s{s_t1}, s{s_t1}, s{s_t2}')
    p(f'v_add_u32 v{T}, s{s_t1}, v1')
    for u, O in enumerate((OA, OB)):
        for i in range(4):
            p.add([I(f'ds_write_b128 v{T}, v[{O+4*i}:{O+4*i+3}] offset:{u*4096 + i*1024}', gives=['lds:ox'])])
    p(f's_lshr_b32 s{s_t1}, s{s_kq}, 1')
    p(f's_lshl_b32 s{s_t1}, s{s_t1}, 12')
    p(f's_and_b32 s{s_t2}, s{s_kq}, 1')
    p(f's_lshl_b32 s{s_t3}, s{s_t2}, 11')
    p(f's_add_u32 s{s_t3}, s{s_t3}, s{s_t1}')
    p(f's_lshl_b32 s{s_t0}, s{s_qp}, 15')
    p(f'v_or_b32 v{T+3}, 512, v1')
    for k in range(4):
        if k < 2:
            p(f's_cmp_eq_u32 s{s_qp}, 7')
            p(f's_add_u32 s{s_soff}, s{s_t0}, {k*8192}')
            if True:
                pass
        else:
            p(f's_cmp_eq_u32 s{s_qp}, 1')
            p(f's_cselect_b32 s{s_soff}, {OXHI}, 0')
            p(f's_add_u32 s{s_soff}, s{s_soff}, s{s_t0}')
            p(f's_add_u32 s{s_soff}, s{s_soff}, {k*8192}')
        p(f's_add_u32 s{s_i}, s{s_soff}, s{s_t3}')
        p(f'v_add_u32 v{T+4+k}, s{s_i}, v1')
        p(f's_add_u32 s{s_i}, s{s_soff}, s{s_t1}')
        p(f'v_add_u32 v{T+8+k}, s{s_i}, v{T+3}')
    p.add([I('s_barrier', needs=['lds:ox', 'g11', 'g12', 'g13'])])
    X = SA[0]
    LP = SA[0] + 32
    for k in range(4):
        p(f'ds_read_b128 v[{X+8*k}:{X+8*k+3}], v{T+4+k}')
        p(f'ds_read_b128 v[{X+8*k+4}:{X+8*k+7}], v{T+4+k} offset:1024')
        p(f'ds_read_b32 v{LP+k}, v{T+8+k} offset:3072')
    for q in range(8):
        p(f'v_add_f32 v{X+q}, v{X+q}, v{X+8+q}')
        p(f'v_add_f32 v{X+16+q}, v{X+16+q}, v{X+24+q}')
    p(f'v_add_f32 v{LP}, v{LP}, v{LP+1}')
    p(f'v_add_f32 v{LP+2}, v{LP+2}, v{LP+3}')
    for q in range(8): p(f'v_add_f32 v{X+q}, v{X+q}, v{X+16+q}')
    p(f'v_add_f32 v{T+4}, v{LP}, v{LP+2}')
    stamp(p, 5)
    p(f'v_mul_f32 v{T+5}, 0, v{X}')
    for q in range(1, 8): p(f'v_fma_f32 v{T+5}, v{X+q}, 0, v{T+5}')
    p(f'v_add_f32 v{T+5}, v{T+5}, v{T+4}')
    p(f'v_mov_b32 v{T+6}, {hexf(2.0**-80)}')
    p(f'v_mov_b32 v{T+7}, 0x7f800000')
    p(f'v_cmp_ge_f32 s[{s_t0}:{s_t0+1}], v{T+5}, v{T+6}')
    p(f'v_cmp_lt_f32 vcc, v{T+5}, v{T+7}')
    p(f's_and_b64 vcc, vcc, s[{s_t0}:{s_t0+1}]')
    p(f's_cmp_eq_u64 vcc, -1')
    p(f's_cbranch_scc0 {L("slow")}')
    p.label(L('astore'))
    p(f'v_rcp_f32 v{T+5}, v{T+4}')
    for q in range(8): p(f'v_mul_f32 v{X+q}, v{X+q}, v{T+5}')
    for d in range(4): p(f'v_cvt_pk_bf16_f32 v{PA+d}, v{X+2*d}, v{X+2*d+1}')
    p(f's_and_b32 s{s_t2}, s{s_kq}, 1')
    p(f's_cmp_eq_u32 s{s_t2}, 0')
    p(f's_cselect_b32 s{s_t1}, 0, -1')
    p(f's_mov_b32 s{s_t0}, 0')
    p(f'v_mov_b32 v{T}, 0')
    p(f'v_cndmask_b32 v{PA+2}, v{PA+2}, v{T}, s[{s_t0}:{s_t0+1}]')
    p(f'v_cndmask_b32 v{PA+3}, v{PA+3}, v{T}, s[{s_t0}:{s_t0+1}]')
    p(f'buffer_store_dwordx4 v[{PA}:{PA+3}], v1, s[{S_WS}:{S_WS+3}], s{s_oo} offen sc1')
    p(f's_cmp_eq_u32 s{s_gem}, 0')
    p(f's_cbranch_scc1 {L("nog11")}')
    p.add(g_reads(11, 0) + g_reads(11, 1))
    p.add([g_mfma(0, 0), g_mfma(0, 1), g_mfma(1, 0), g_mfma(1, 1)])
    p.label(L('nog11'))
    p('s_waitcnt vmcnt(0)')
    stamp(p, 6)
    p('s_barrier')
    p(f's_cmp_eq_u32 s{s_w}, 0')
    p(f's_cbranch_scc0 {L("noflag")}')
    p(f's_lshl_b32 s{s_t2}, s{s_qb}, 4')
    p(f's_add_u32 s{s_t2}, s{s_t2}, s{s_hd}')
    p(f's_lshl_b32 s{s_t2}, s{s_t2}, 2')
    p(f's_add_u32 s{s_t2}, s{s_t2}, {WS_FL + 3*1024}')
    p(f'v_mov_b32 v{T+1}, s{s_tag}')
    p(f'v_mov_b32 v{T}, 0')
    p(f'buffer_store_dword v{T+1}, v{T}, s[{S_WS}:{S_WS+3}], s{s_t2} offen sc1')
    p.label(L('noflag'))
    p(f's_cmp_eq_u32 s{s_gem}, 0')
    p(f's_cbranch_scc1 {L("fin")}')
    for gs in (12, 13):
        p.add(g_reads(gs, 0) + g_reads(gs, 1))
        p.add([g_mfma(0, 0), g_mfma(0, 1), g_mfma(1, 0), g_mfma(1, 1)])
    p.add([I('s_barrier', needs=['rd:g'])])
    for k in range(7): p.add(wo_ld(8 * k))
    p(f's_cmp_eq_u32 s{s_w}, 0')
    p(f's_cbranch_scc0 {L("nowo2")}')
    p.add(wo_ld(56))
    p.label(L('nowo2'))
    AX1 = 65536
    p(f's_lshl_b32 s{s_t0}, s{s_w}, 12')
    p(f's_add_u32 s{s_t0}, s{s_t0}, {AX1}')
    p(f'v_add_u32 v{T}, s{s_t0}, v1')
    p(f's_xor_b32 s{s_t0}, s{s_w}, 4')
    p(f's_lshl_b32 s{s_t0}, s{s_t0}, 12')
    p(f's_add_u32 s{s_t0}, s{s_t0}, {AX1}')
    p(f'v_add_u32 v{T+1}, s{s_t0}, v1')
    p(f's_cmp_lt_u32 s{s_w}, 4')
    p(f's_cbranch_scc0 {L("sw1")}')
    for i in range(4):
        p.add([I(f'ds_write_b128 v{T}, v[{ACC[1]+4*i}:{ACC[1]+4*i+3}] offset:{i*1024}', gives=['lds:ax1'])])
    p(f's_branch {L("sw2")}')
    p.label(L('sw1'))
    for i in range(4):
        p.add([I(f'ds_write_b128 v{T}, v[{ACC[0]+4*i}:{ACC[0]+4*i+3}] offset:{i*1024}', gives=['lds:ax1'])])
    p('s_waitcnt lgkmcnt(0)')
    for q in range(16): p(f'v_mov_b32 v{ACC[0]+q}, v{ACC[1]+q}')
    p.label(L('sw2'))
    p.add([I('s_barrier', needs=['lds:ax1'])])
    for i in range(4):
        p(f'ds_read_b128 v[{X+4*i}:{X+4*i+3}], v{T+1} offset:{i*1024}')
    for q in range(16): p(f'v_add_f32 v{ACC[0]+q}, v{ACC[0]+q}, v{X+q}')
    p(f's_lshr_b32 s{s_t0}, s{s_tm}, 1')
    p(f's_lshl_b32 s{s_t0}, s{s_t0}, 6')
    p(f's_add_u32 s{s_flag}, s{s_t0}, {WS_FL + 3*1024}')
    p(f'v_and_b32 v{T}, 15, v0')
    p(f'v_lshlrev_b32 v{T}, 2, v{T}')
    p(f's_mov_b32 s{s_i}, 0x100000')
    p(f'buffer_load_dword v{T+1}, v{T}, s[{S_WS}:{S_WS+3}], s{s_flag} offen sc1')
    p.label(L('poll'))
    p(f'buffer_load_dword v{T+2}, v{T}, s[{S_WS}:{S_WS+3}], s{s_flag} offen sc1')
    p('s_waitcnt vmcnt(1)')
    p(f'v_cmp_eq_u32 vcc, s{s_tag}, v{T+1}')
    p('s_cmp_eq_u64 vcc, -1')
    p(f's_cbranch_scc1 {L("polled")}')
    p(f'buffer_load_dword v{T+1}, v{T}, s[{S_WS}:{S_WS+3}], s{s_flag} offen sc1')
    p('s_waitcnt vmcnt(1)')
    p(f'v_cmp_eq_u32 vcc, s{s_tag}, v{T+2}')
    p('s_cmp_eq_u64 vcc, -1')
    p(f's_cbranch_scc1 {L("polled")}')
    p(f's_sub_u32 s{s_i}, s{s_i}, 1')
    p(f's_cmp_lg_u32 s{s_i}, 0')
    p(f's_cbranch_scc1 {L("poll")}')
    p.label(L('polled'))
    stamp(p, 8)
    p(f's_lshl_b32 s{s_t0}, s{s_tm}, 16')
    p(f's_lshl_b32 s{s_t1}, s{s_w}, 13')
    p(f's_add_u32 s{s_t0}, s{s_t0}, s{s_t1}')
    p(f's_add_u32 s{s_t0}, s{s_t0}, {WS_OF}')
    p(f's_add_u32 m0, s{s_t1}, {T_OF}')
    for q in range(8):
        if q == 4:
            p('s_addk_i32 m0, 4096')
            p(f's_add_u32 s{s_t0}, s{s_t0}, 4096')
        p(f'buffer_load_dwordx4 v1, s[{S_WS}:{S_WS+3}], s{s_t0} offen offset:{(q&3)*1024} sc1 lds')
    p(f's_and_b32 s{s_t2}, s{s_k4}, 1')
    p(f's_lshr_b32 s{s_t3}, s{s_k4}, 1')
    p(f's_lshl_b32 s{s_t0}, s{s_t3}, 15')
    p(f's_lshl_b32 s{s_t1}, s{s_t2}, 14')
    p(f's_add_u32 s{s_t0}, s{s_t0}, s{s_t1}')
    p(f'v_add_u32 v{v_h[0]}, s{s_t0}, v1')
    p(f's_mul_i32 s{s_t1}, s{s_t2}, {224*128}')
    p(f's_add_u32 s{s_t1}, s{s_t1}, {T_WO}')
    p(f'v_add_u32 v{v_wv[0]}, s{s_t1}, v{v_pw}')
    p(f's_lshl_b32 s{s_t0}, s{s_w}, 11')
    p(f's_add_u32 s{s_t0}, s{s_t0}, 65536')
    p(f'v_add_u32 v{T+2}, s{s_t0}, v1')
    p(f's_xor_b32 s{s_t0}, s{s_w}, 2')
    p(f's_lshl_b32 s{s_t0}, s{s_t0}, 11')
    p(f's_add_u32 s{s_t0}, s{s_t0}, 65536')
    p(f'v_add_u32 v{T+3}, s{s_t0}, v1')
    p('s_waitcnt vmcnt(0)')
    p('s_barrier')
    stamp(p, 7)
    OB3 = [HB[0][0], HB[0][1], HB[1][0]]
    WB3 = [WB[0], WB[1], HB[1][1]]
    def o_reads(q):
        row = 28 * (q >> 1) + 16 * (q & 1)
        wb = WB3[q % 3]; hb = OB3[q % 3]
        return [I(f'ds_read_b64_tr_b16 v[{wb}:{wb+1}], v{v_wv[0]} offset:{row*128}'),
                I(f'ds_read_b64_tr_b16 v[{wb+2}:{wb+3}], v{v_wv[0]} offset:{row*128+1024}'),
                I(f'ds_read_b128 v[{hb}:{hb+3}], v{v_h[0]} offset:{T_OF + q*1024}')]
    p.add(o_reads(0) + o_reads(1) + o_reads(2))
    for q in range(16):
        p.add([mm(ACC[0], WB3[q % 3], OB3[q % 3], f'v[{ACC[0]}:{ACC[0]+15}]')])
        if q + 3 < 16: p.add(o_reads(q + 3))
    stamp(p, 9)
    p(f's_and_b32 s{s_t2}, s{s_k4}, 1')
    p(f's_cmp_eq_u32 s{s_t2}, 0')
    p(f's_cbranch_scc0 {L("x1")}')
    p.add([I(f'ds_write_b128 v{T+2}, v[{ACC[0]+8}:{ACC[0]+11}]', gives=['lds:ax']), I(f'ds_write_b128 v{T+2}, v[{ACC[0]+12}:{ACC[0]+15}] offset:1024', gives=['lds:ax'])])
    p(f's_branch {L("x2")}')
    p.label(L('x1'))
    p.add([I(f'ds_write_b128 v{T+2}, v[{ACC[0]}:{ACC[0]+3}]', gives=['lds:ax']), I(f'ds_write_b128 v{T+2}, v[{ACC[0]+4}:{ACC[0]+7}] offset:1024', gives=['lds:ax'])])
    p('s_waitcnt lgkmcnt(0)')
    for q in range(8): p(f'v_mov_b32 v{ACC[0]+q}, v{ACC[0]+8+q}')
    p.label(L('x2'))
    p.add([I('s_barrier', needs=['lds:ax'])])
    p(f'ds_read_b128 v[{X}:{X+3}], v{T+3}')
    p(f'ds_read_b128 v[{X+4}:{X+7}], v{T+3} offset:1024')
    for q in range(8): p(f'v_add_f32 v{X+q}, v{X+q}, v{ACC[0]+q}')
    for j in range(4): p(f'v_permlane32_swap_b32 v{X+j}, v{X+4+j}')
    for d in range(4):
        p(f'v_lshlrev_b32 v{T+4}, 16, v{XR+d}')
        p(f'v_and_b32 v{T+5}, 0xffff0000, v{XR+d}')
        p(f'v_add_f32 v{T+4}, v{T+4}, v{X+2*d}')
        p(f'v_add_f32 v{T+5}, v{T+5}, v{X+2*d+1}')
        p(f'v_cvt_pk_bf16_f32 v{XR+d}, v{T+4}, v{T+5}')
    p(f'buffer_store_dwordx4 v[{XR}:{XR+3}], v{v_xa}, s[{S_OUT}:{S_OUT+3}], s{s_ost} offen')
    p.label(L('fin'))
    if 'dbgtime' in k1.EXP:
        p('s_waitcnt vmcnt(0)')
        p('s_memrealtime s[90:91]')
        p('s_waitcnt lgkmcnt(0)')
        p('v_mov_b32 v2, s90')
        p('v_mov_b32 v3, 8')
        p('global_atomic_umax v3, v2, s[100:101]')
        p('s_not_b32 s88, s88')
        p('v_mov_b32 v2, s88')
        p('v_mov_b32 v3, 12')
        p('global_atomic_umax v3, v2, s[100:101]')
    if k1.STAMP: p('s_waitcnt vmcnt(0)')
    stamp(p, 10)
    k1.stamp_store(p, S_WS, s_w, 1)
    p('s_endpgm')

    p.label(L('slow'))
    Q = KB[1]; O = OA; M = T + 8; s0 = SB[0]
    p(f's_lshr_b32 s{s_t1}, s{s_kq}, 1')
    p(f's_cmp_eq_u32 s{s_t1}, 0')
    p(f's_cbranch_scc1 {L("sl_a")}')
    for q in range(8): p(f'v_mov_b32 v{Q+q}, v{QB+q}')
    p(f's_branch {L("sl_b")}')
    p.label(L('sl_a'))
    for q in range(8): p(f'v_mov_b32 v{Q+q}, v{QA+q}')
    p.label(L('sl_b'))
    p(f'v_mov_b32 v{T}, 0')
    p(f'v_cndmask_b32 v{Q+6}, v{Q+6}, v{T}, s[{s_hi}:{s_hi+1}]')
    for q in range(16): p(f'v_mov_b32 v{O+q}, 0')
    p(f'v_mov_b32 v{M}, 0xff800000')
    p(f's_lshl_b32 s{s_t2}, s{s_hd}, 18')
    p(f's_add_u32 s{s_t2}, s{s_t2}, {WS_KV}')
    p(f's_mov_b32 s{s_i}, 64')
    p.label(L('sloop'))
    p(f'buffer_load_dwordx4 v[{KB[0]}:{KB[0]+3}], v1, s[{S_WS}:{S_WS+3}], s{s_t2} offen{SC}')
    p(f'buffer_load_dwordx4 v[{KB[0]+4}:{KB[0]+7}], v1, s[{S_WS}:{S_WS+3}], s{s_t2} offen offset:1024{SC}')
    p(f'buffer_load_dwordx4 v[{VB[0]}:{VB[0]+3}], v1, s[{S_WS}:{S_WS+3}], s{s_t2} offen offset:2048{SC}')
    p(f'buffer_load_dwordx4 v[{VB[0]+4}:{VB[0]+7}], v1, s[{S_WS}:{S_WS+3}], s{s_t2} offen offset:3072{SC}')
    p.add([sS(s0, KB[0], Q, 0), sS(s0, KB[0], Q, 1)])
    p(f'v_max3_f32 v{T}, v{s0}, v{s0+1}, v{s0+2}')
    for q in range(3, 15, 2): p(f'v_max3_f32 v{T}, v{T}, v{s0+q}, v{s0+q+1}')
    p(f'v_max_f32 v{T}, v{T}, v{s0+15}')
    p(f'v_mov_b32 v{T+1}, v{T}')
    p(f'v_permlane32_swap_b32 v{T}, v{T+1}')
    p(f'v_max3_f32 v{T}, v{T}, v{T+1}, v{M}')
    p(f'v_sub_f32 v{T+1}, v{M}, v{T}')
    p(f'v_exp_f32 v{T+1}, v{T+1}')
    p(f'v_mov_b32 v{M}, v{T}')
    for q in range(16): p(f'v_sub_f32 v{s0+q}, v{s0+q}, v{M}')
    for q in range(16): p(f'v_exp_f32 v{s0+q}, v{s0+q}')
    for q in range(16): p(f'v_mul_f32 v{O+q}, v{O+q}, v{T+1}')
    for d in range(8): p(f'v_cvt_pk_bf16_f32 v{PA+d}, v{s0+2*d}, v{s0+2*d+1}')
    p.add([mm(O, VB[0], PA, f'v[{O}:{O+15}]'), mm(O, VB[0] + 4, PA + 4, f'v[{O}:{O+15}]')])
    p(f's_add_u32 s{s_t2}, s{s_t2}, 4096')
    p(f's_sub_u32 s{s_i}, s{s_i}, 1')
    p(f's_cmp_lg_u32 s{s_i}, 0')
    p(f's_cbranch_scc1 {L("sloop")}')
    p(f'v_mov_b32 v{T+3}, v{O+12}')
    p(f'v_mov_b32 v{T+4}, v{O+12}')
    p(f'v_permlane32_swap_b32 v{T+3}, v{T+4}')
    p(f's_and_b32 s{s_t2}, s{s_kq}, 1')
    p(f's_cmp_eq_u32 s{s_t2}, 0')
    p(f's_cbranch_scc1 {L("sl_c")}')
    for q in range(8): p(f'v_mov_b32 v{X+q}, v{O+8+q}')
    p(f's_branch {L("astore")}')
    p.label(L('sl_c'))
    for q in range(8): p(f'v_mov_b32 v{X+q}, v{O+q}')
    p(f's_branch {L("astore")}')
```

```python
from asmlib import *
import k1
from k1 import stamp, WS_QF, WS_KV, WS_HF, WS_OF, WS_FLAG, hexf, flat
WS_FL = (16 << 20) + 4096

KVS = 16384; KVN = 3
G0 = KVS * KVN
KPI = 8
GA = 2 * KPI * 1024
GS = GA + KPI * 2048
GN = 3
GFIRST = 4
NGS = 14
NG_LOOP = 11
MARGIN = 64.0
L_Q = G0
T_OX = 0
T_WO = 105472
T_OF = 0
T_AX = 0

SCHEDS = {
 'a': dict(r0=0, r1=6, pvp=2, g00=10, pA0=14, sA0=18, g01=22, pA1=26, sA1=30, g10=34, pB0=38, sB0=42, g11=45, sB1=48),
 'b': dict(r0=8, r1=14, pvp=2, pA0=14, sA0=18, g00=22, pA1=26, sA1=30, g01=34, pB0=38, g10=41, sB0=44, g11=46, sB1=48),
 'c': dict(r0=5, r1=11, pvp=2, pA0=14, sA0=20, g00=24, pA1=27, sA1=31, g01=35, pB0=38, g10=41, sB0=44, g11=46, sB1=48),
 'f': dict(r0=11, r1=35, pvp=1, g00=6, g01=10, pA0=14, sA0=18, sA1=22, pA1=26, g10=30, g11=34, pB0=38, sB0=42, sB1=46),
 'g': dict(r0=11, r1=31, pvp=2, g00=6, g01=10, pA0=14, sA0=18, g10=22, pA1=26, g11=30, sA1=34, pB0=38, sB0=42, sB1=46),
 'd': dict(r0=10, r1=18, pvp=2, pA0=14, sA0=18, pA1=26, sA1=22, g00=30, g01=34, pB0=38, g10=41, sB0=44, g11=47, sB1=48),
}
SCHED = SCHEDS['b']
class R2: pass

class Ctx: pass

def make(L, S_WS, s_w, s_tag):
    SC = ' sc1'
    merged = True
    S_WD, S_WO, S_X, S_OUT = 8, 12, 96, 16
    s_hd, s_qb, s_tm, s_tn, s_gem = 31, 32, 33, 34, 35
    s_qp, s_kq, s_wn, s_k4 = 36, 37, 36, 37
    s_hi = 54
    s_t0, s_t1, s_t2, s_t3 = 58, 59, 60, 61
    s_kvg, s_kvm, s_gg, s_gm, s_gadv = 40, 41, 42, 43, 44
    s_soff, s_ost, s_flag, s_oo, s_i = 45, 46, 47, 48, 49
    s_wob, s_wom = 50, 51
    s_dsrd = 76
    s_qo = 53
    v_kv = 2
    v_h = [3, 4, 8]
    v_wv = [9, 10, 11]
    v_gd = [12, 13, 14, 15]
    v_bp, v_pw, v_xa = 16, 17, 18
    QA, QB = 20, 28
    KB, VB = [36, 44], [52, 60]
    SA, SB = [68, 84], [100, 116]
    PA, PB = 132, 140
    OA, OB = 148, 164
    ACC = [180, 196]
    HB = [[212, 216], [220, 224]]
    WB = [228, 232]
    XR = 236
    T = 240

    E = []
    def A(*txt): E.append([I(t) for t in txt])
    lane, m, hh = T, T + 4, T + 5
    A(f'v_and_b32 v{lane}, 63, v0', f's_and_b32 s{s_qp}, s{s_w}, 1', f's_lshr_b32 s{s_kq}, s{s_w}, 1')
    A(f's_and_b32 s{s_hd}, s2, 15', f's_lshr_b32 s{s_qb}, s2, 4', f's_lshr_b32 s{s_t0}, s2, 3', f's_mul_i32 s{s_t1}, s{s_t0}, 37',
      f's_lshr_b32 s{s_t1}, s{s_t1}, 8', f's_mul_i32 s{s_t2}, s{s_t1}, 7', f's_sub_u32 s{s_tn}, s{s_t0}, s{s_t2}')
    A(f's_and_b32 s{s_tm}, s2, 7', f's_lshl_b32 s{s_tm}, s{s_tm}, 2', f's_add_u32 s{s_tm}, s{s_tm}, s{s_t1}',
      's_cmp_lt_u32 s2, 224', f's_cselect_b32 s{s_gem}, 1, 0')
    A(f's_and_b32 s{s_t1}, s{s_hd}, 14', f's_mov_b32 s{s_t3}, s{s_t1}', f's_add_u32 s{s_t2}, s{s_t1}, 1',
      f'v_and_b32 v{T+1}, 15, v{lane}', f'v_lshlrev_b32 v{T+1}, 4, v{T+1}',
      f'v_add_u32 v{T+2}, s{s_t3}, v{T+1}', f'v_add_u32 v{T+3}, s{s_t2}, v{T+1}',
      f'v_cmp_gt_u32 vcc, 16, v{lane}', 's_nop 1', f'v_cndmask_b32 v{T+2}, v{T+3}, v{T+2}, vcc',
      f's_lshl_b32 s{s_t0}, s{s_qb}, 4', f's_add_u32 s{s_t0}, s{s_t0}, s{s_t1}', f'v_mov_b32 v{T+3}, s{s_t0}',
      f'v_cmp_gt_u32 vcc, 32, v{lane}', 's_nop 1', f'v_cndmask_b32 v{T+2}, v{T+3}, v{T+2}, vcc',
      f'v_lshlrev_b32 v{T+12}, 2, v{T+2}', f's_mov_b32 s{s_flag}, {WS_FL + 1*1024}')
    A(f's_lshl_b32 s{s_kvg}, s{s_hd}, 18', f's_lshl_b32 s{s_kvm}, s{s_w}, 11', f's_add_u32 s{s_kvg}, s{s_kvg}, s{s_kvm}',
      f's_add_u32 s{s_kvg}, s{s_kvg}, {WS_KV}')
    A(f's_lshl_b32 s{s_t1}, s{s_qb}, 2', f's_lshl_b32 s{s_t2}, s{s_qp}, 1', f's_add_u32 s{s_t1}, s{s_t1}, s{s_t2}',
      f's_lshr_b32 s{s_t2}, s{s_kq}, 1', f's_add_u32 s{s_t1}, s{s_t1}, s{s_t2}', f's_lshl_b32 s{s_oo}, s{s_t1}, 5',
      f's_lshl_b32 s{s_t2}, s{s_hd}, 1', f's_add_u32 s{s_oo}, s{s_oo}, s{s_t2}', f's_and_b32 s{s_t2}, s{s_kq}, 1',
      f's_add_u32 s{s_oo}, s{s_oo}, s{s_t2}', f's_lshl_b32 s{s_oo}, s{s_oo}, 10', f's_add_u32 s{s_oo}, s{s_oo}, {WS_OF}')
    for (Sd, lo, size) in ((S_WD, 28, 1792 * 896), (S_WO, 4, 448 * 896), (S_OUT, 38, 2048 * 896)):
        A(f's_mov_b32 s{Sd}, s{lo}', f's_mov_b32 s{Sd+1}, s{lo+1}', f's_mov_b32 s{Sd+2}, {size}', f's_mov_b32 s{Sd+3}, 0x20000')
    A(f's_lshl_b32 s{s_t0}, s{s_kq}, 12', f'v_add_u32 v{v_kv}, s{s_t0}, v1', f'v_and_b32 v{m}, 31, v0', f'v_bfe_u32 v{hh}, v0, 5, 1')
    A(f'v_lshrrev_b32 v{T+6}, 3, v{lane}', f'v_mul_u32_u24 v{T+6}, 896, v{T+6}', f'v_bfe_u32 v{T+7}, v{lane}, 4, 1')
    A(f'v_lshlrev_b32 v{T+7}, 2, v{T+7}', f'v_and_b32 v{T+8}, 7, v{lane}', f'v_xor_b32 v{T+7}, v{T+7}, v{T+8}')
    A(f'v_lshlrev_b32 v{T+7}, 4, v{T+7}', f'v_add_u32 v{v_bp}, v{T+6}, v{T+7}')
    a = [f's_cmp_lt_u32 s{s_w}, 4', f's_cbranch_scc0 {L("setB")}']
    a += [f'v_mov_b32 v{v_gd[q]}, v1' for q in range(4)]
    a += [f's_lshr_b32 s{s_t2}, s{s_w}, 1', f's_lshl_b32 s{s_t0}, s{s_tm}, 1', f's_add_u32 s{s_t0}, s{s_t0}, s{s_t2}',
          f's_mul_i32 s{s_gg}, s{s_t0}, {112*1024}', f's_and_b32 s{s_t3}, s{s_w}, 1', f's_lshl_b32 s{s_t3}, s{s_t3}, 12',
          f's_add_u32 s{s_gg}, s{s_gg}, s{s_t3}', f's_add_u32 s{s_gg}, s{s_gg}, {WS_HF}', f's_mov_b32 s{s_gadv}, {KPI*1024}',
          f's_lshl_b32 s{s_gm}, s{s_t2}, 13', f's_add_u32 s{s_gm}, s{s_gm}, s{s_t3}',
          f's_mov_b64 s[{s_dsrd}:{s_dsrd+1}], s[{S_WS}:{S_WS+1}]', f's_mov_b32 s{s_dsrd+2}, {k1.WS_SIZE}', f's_branch {L("setC")}',
          f'{L("setB")}:']
    a += [f'v_add_u32 v{v_gd[q]}, {q*(8*896-1024)}, v{v_bp}' for q in range(4)]
    a += [f's_sub_u32 s{s_t0}, s{s_w}, 4', f's_mul_i32 s{s_gg}, s{s_t0}, {32*896}', f's_lshl_b32 s{s_t1}, s{s_tn}, 7',
          f's_add_u32 s{s_gg}, s{s_gg}, s{s_t1}', f's_mov_b32 s{s_gadv}, {KPI*16*896}', f's_lshl_b32 s{s_gm}, s{s_t0}, 12',
          f's_add_u32 s{s_gm}, s{s_gm}, {GA}', f's_mov_b64 s[{s_dsrd}:{s_dsrd+1}], s[{S_WD}:{S_WD+1}]', f's_mov_b32 s{s_dsrd+2}, {1792*896}',
          f'{L("setC")}:', f's_mov_b32 s{s_dsrd+3}, 0x20000', f's_add_u32 s{s_gm}, s{s_gm}, {G0}']
    A(*a)
    A(f's_lshl_b32 s{s_t0}, s{s_tm}, 6', f's_lshr_b32 s{s_t1}, s{s_k4}, 1', f's_lshl_b32 s{s_t1}, s{s_t1}, 5', f's_add_u32 s{s_t0}, s{s_t0}, s{s_t1}',
      f's_mul_i32 s{s_t0}, s{s_t0}, 896', f's_lshl_b32 s{s_t1}, s{s_tn}, 7', f's_lshl_b32 s{s_t2}, s{s_wn}, 6',
      f's_add_u32 s{s_t0}, s{s_t0}, s{s_t1}', f's_add_u32 s{s_ost}, s{s_t0}, s{s_t2}', f's_and_b32 s{s_t0}, s{s_k4}, 1',
      f's_lshl_b32 s{s_t0}, s{s_t0}, 5', f's_add_u32 s{s_ost}, s{s_ost}, s{s_t0}')
    A(f'v_mul_u32_u24 v{v_xa}, 896, v{m}', f'v_lshlrev_b32 v{T+6}, 4, v{hh}', f'v_add_u32 v{v_xa}, v{v_xa}, v{T+6}')
    A(f'v_bfe_u32 v{T+6}, v{lane}, 2, 2', f'v_lshlrev_b32 v{T+7}, 2, v{hh}', f'v_add_u32 v{T+7}, v{T+7}, v{T+6}', f'v_lshlrev_b32 v{v_pw}, 7, v{T+7}')
    A(f'v_lshrrev_b32 v{T+6}, 1, v{T+6}', f'v_xor_b32 v{T+6}, s{s_wn}, v{T+6}', f'v_lshlrev_b32 v{T+6}, 6, v{T+6}', f'v_add_u32 v{v_pw}, v{v_pw}, v{T+6}')
    A(f'v_bfe_u32 v{T+6}, v{lane}, 4, 1', f'v_lshlrev_b32 v{T+6}, 5, v{T+6}', f'v_add_u32 v{v_pw}, v{v_pw}, v{T+6}')
    A(f'v_and_b32 v{T+6}, 3, v{lane}', f'v_lshlrev_b32 v{T+6}, 3, v{T+6}', f'v_add_u32 v{v_pw}, v{v_pw}, v{T+6}')
    for pos in range(GN):
        A(f's_lshl_b32 s{s_t0}, s{s_k4}, 11', f's_add_u32 s{s_t0}, s{s_t0}, {G0 + pos*GS}', f'v_add_u32 v{v_h[pos]}, s{s_t0}, v1',
          f's_lshl_b32 s{s_t1}, s{s_k4}, 12', f's_add_u32 s{s_t1}, s{s_t1}, {G0 + pos*GS + GA}', f'v_add_u32 v{v_wv[pos]}, s{s_t1}, v{v_pw}')
    A(f's_lshl_b32 s{s_wob}, s{s_tn}, 7', f's_mul_i32 s{s_t0}, s{s_w}, {8*896}', f's_add_u32 s{s_wob}, s{s_wob}, s{s_t0}', f's_lshl_b32 s{s_wom}, s{s_w}, 10')
    LATE = [I(t) for t in (f's_mov_b32 s{s_i}, 0x200000', f'{L("kvchk")}:',
      f'v_cmp_eq_u32 vcc, s{s_tag}, v{T+13}', 's_nop 0', 's_cmp_eq_u64 vcc, -1', f's_cbranch_scc1 {L("kvok")}',
      f'buffer_load_dword v{T+13}, v{T+12}, s[{S_WS}:{S_WS+3}], s{s_flag} offen sc1', 's_waitcnt vmcnt(0)',
      f's_sub_u32 s{s_i}, s{s_i}, 1', f's_cmp_lg_u32 s{s_i}, 0', f's_cbranch_scc1 {L("kvchk")}', f'{L("kvok")}:')]
    qa = [f's_lshl_b32 s{s_t0}, s{s_hd}, 6', f's_lshl_b32 s{s_t1}, s{s_qb}, 2', f's_add_u32 s{s_t0}, s{s_t0}, s{s_t1}',
          f's_lshl_b32 s{s_t0}, s{s_t0}, 11', f's_lshl_b32 s{s_t1}, s{s_w}, 10', f's_add_u32 s{s_t0}, s{s_t0}, s{s_t1}',
          f's_add_u32 s{s_qo}, s{s_t0}, {WS_QF}']
    A(*qa)
    E2 = [[I(f'buffer_load_dword v{T+13}, v{T+12}, s[{S_WS}:{S_WS+3}], s{s_flag} offen sc1')]]
    QL = [I(f's_lshl_b32 s{s_t0}, s{s_w}, 10'), I(f's_add_u32 m0, s{s_t0}, {L_Q}'), I('s_nop 0'),
          I(f'buffer_load_dwordx4 v1, s[{S_WS}:{S_WS+3}], s{s_qo} offen sc1 lds', gives=['kv0'])]

    def kv_issue(slot, g=()):
        pos = slot % KVN
        return [[I(f's_add_u32 m0, s{s_kvm}, {pos*KVS}'),
                 I(f's_add_u32 s{s_soff}, s{s_kvg}, {slot*KVS}'),
                 I(f'buffer_load_dwordx4 v1, s[{S_WS}:{S_WS+3}], s{s_soff} offen{SC} lds', gives=g)],
                [I(f'buffer_load_dwordx4 v1, s[{S_WS}:{S_WS+3}], s{s_soff} offen offset:1024{SC} lds', gives=g)]]
    def g_issue(gs):
        gv = ['g%d' % gs]
        pos = gs % GN
        o = []
        for q in range(4):
            a = []
            if q == 0: a += [I(f's_add_u32 m0, s{s_gm}, {pos*GS}'), I('s_nop 0')]
            sc = SC
            a.append(I(f'buffer_load_dwordx4 v{v_gd[q]}, s[{s_dsrd}:{s_dsrd+3}], s{s_gg} offen offset:{q*1024}{sc} lds', gives=gv))
            if q == 3: a.append(I(f's_add_u32 s{s_gg}, s{s_gg}, s{s_gadv}'))
            o.append(a)
        return o
    st7 = [I('s_memtime s[94:95]'), I('s_waitcnt lgkmcnt(0)'), I('s_mov_b32 s87, s94')] if k1.STAMP else []
    first_kv = LATE + st7 + flat(kv_issue(0, ['kv0'])) + QL
    second_kv = flat(kv_issue(1, ['kv1']))
    return E, first_kv, locals()

def phase2(p, L, S_WS, s_w, s_tag, C):
    globals_ = C
    for k in ('SC', 'merged', 'S_WD', 'S_WO', 'S_X', 'S_OUT', 's_hd', 's_qb', 's_tm', 's_tn', 's_gem', 's_qp', 's_kq', 's_wn', 's_k4', 's_hi',
              's_t0', 's_t1', 's_t2', 's_t3', 's_kvg', 's_kvm', 's_gg', 's_gm', 's_gadv', 's_soff', 's_ost', 's_flag', 's_oo', 's_i', 's_wob', 's_wom',
              's_dsrd', 'v_kv', 'v_h', 'v_wv', 'v_gd', 'v_bp', 'v_pw', 'v_xa', 'QA', 'QB', 'KB', 'VB', 'SA', 'SB', 'PA', 'PB', 'OA', 'OB', 'ACC',
              'HB', 'WB', 'XR', 'T', 'kv_issue', 'g_issue'):
        pass
    (SC, merged, S_WD, S_WO, S_X, S_OUT, s_hd, s_qb, s_tm, s_tn, s_gem, s_qp, s_kq, s_wn, s_k4, s_hi, s_t0, s_t1, s_t2, s_t3, s_kvg, s_kvm,
     s_gg, s_gm, s_gadv, s_soff, s_ost, s_flag, s_oo, s_i, s_wob, s_wom, s_dsrd, v_kv, v_h, v_wv, v_gd, v_bp, v_pw, v_xa, QA, QB, KB, VB,
     SA, SB, PA, PB, OA, OB, ACC, HB, WB, XR, T, kv_issue, g_issue) = [C[k] for k in (
     'SC', 'merged', 'S_WD', 'S_WO', 'S_X', 'S_OUT', 's_hd', 's_qb', 's_tm', 's_tn', 's_gem', 's_qp', 's_kq', 's_wn', 's_k4', 's_hi',
     's_t0', 's_t1', 's_t2', 's_t3', 's_kvg', 's_kvm', 's_gg', 's_gm', 's_gadv', 's_soff', 's_ost', 's_flag', 's_oo', 's_i', 's_wob', 's_wom',
     's_dsrd', 'v_kv', 'v_h', 'v_wv', 'v_gd', 'v_bp', 'v_pw', 'v_xa', 'QA', 'QB', 'KB', 'VB', 'SA', 'SB', 'PA', 'PB', 'OA', 'OB', 'ACC',
     'HB', 'WB', 'XR', 'T', 'kv_issue', 'g_issue')]
    p.add(C['second_kv'])
    stamp(p, 1)
    mm = lambda d, a, b, c: I(f'v_mfma_f32_32x32x16_bf16 v[{d}:{d+15}], v[{a}:{a+3}], v[{b}:{b+3}], {c}')
    def rdK(buf, pos, g=()):
        return [I(f'ds_read_b128 v[{buf}:{buf+3}], v{v_kv} offset:{pos*KVS}', gives=g),
                I(f'ds_read_b128 v[{buf+4}:{buf+7}], v{v_kv} offset:{pos*KVS+1024}', gives=g)]
    def rdV(buf, pos, g=()):
        return [I(f'ds_read_b128 v[{buf}:{buf+3}], v{v_kv} offset:{pos*KVS+2048}', gives=g),
                I(f'ds_read_b128 v[{buf+4}:{buf+7}], v{v_kv} offset:{pos*KVS+3072}', gives=g)]
    p.add([I('s_barrier', needs=['kv0'])])
    stamp(p, 2)
    ab0 = getattr(phase2, 'after_beta0', None)
    p(f's_lshl_b32 s{s_t0}, s{s_qp}, 12')
    p(f'v_add_u32 v{T+1}, s{s_t0}, v1')
    for i in range(4):
        p.add([I(f'ds_read_b128 v[{QA+4*i}:{QA+4*i+3}], v{T+1} offset:{L_Q + i*1024}', gives=['rd:kv'])])
    KT = HB[0][0]
    p(f'ds_read_b128 v[{KT}:{KT+3}], v1')
    p(f'ds_read_b128 v[{KT+4}:{KT+7}], v1 offset:1024')
    p.add(rdK(KB[0], 0) + rdV(VB[0], 0, ['rd:kv']))
    p.add(flat(kv_issue(2, ['kv2'])))
    def sS(dst, kb, Q, part):
        return mm(dst, kb + 4 * part, Q + 4 * part, '0' if part == 0 else f'v[{dst}:{dst+15}]')
    for (Sx, Q) in ((SA[1], QA), (SB[1], QB)):
        p.add([sS(Sx, KT, Q, 0), sS(Sx, KT, Q, 1)])
    for (s0, Q, tt) in ((SA[1], QA, T), (SB[1], QB, T + 4)):
        p(f'v_max3_f32 v{tt}, v{s0}, v{s0+1}, v{s0+2}')
        p(f'v_max3_f32 v{tt+1}, v{s0+3}, v{s0+4}, v{s0+5}')
        p(f'v_max3_f32 v{tt+2}, v{s0+6}, v{s0+7}, v{s0+8}')
        p(f'v_max3_f32 v{tt+3}, v{s0+9}, v{s0+10}, v{s0+11}')
        p(f'v_max3_f32 v{tt}, v{tt}, v{s0+12}, v{s0+13}')
        p(f'v_max3_f32 v{tt+1}, v{tt+1}, v{s0+14}, v{s0+15}')
        p(f'v_max3_f32 v{tt}, v{tt}, v{tt+1}, v{tt+2}')
        p(f'v_max_f32 v{tt}, v{tt}, v{tt+3}')
    for (Q, tt) in ((QA, T), (QB, T + 4)):
        p(f'v_mov_b32 v{tt+1}, v{tt}')
        p(f'v_permlane32_swap_b32 v{tt}, v{tt+1}')
        p(f'v_max_f32 v{tt}, v{tt}, v{tt+1}')
        p(f'v_add_f32 v{tt}, {hexf(MARGIN)}, v{tt}')
        p(f'v_sub_f32 v{tt}, 0, v{tt}')
        p(f'v_mov_b32 v{tt+1}, 0')
        p(f'v_cvt_pk_bf16_f32 v{tt}, v{tt}, v{tt+1}')
        p(f'v_cndmask_b32 v{Q+6}, v{Q+6}, v{tt}, s[{s_hi}:{s_hi+1}]')
    for (Sx, Q) in ((SA[0], QA), (SB[0], QB)):
        p.add([sS(Sx, KB[0], Q, 0), sS(Sx, KB[0], Q, 1)])
    p.add([I('s_barrier', needs=['st:h'])])
    if ab0: p.add(ab0())
    p('s_nop 8')
    stamp(p, 3)

    def g_reads(gs, q):
        pos = gs % GN
        wb = WB[q]
        return [I(f'ds_read_b64_tr_b16 v[{wb}:{wb+1}], v{v_wv[pos]} offset:{q*2048}', gives=['rd:g']),
                I(f'ds_read_b64_tr_b16 v[{wb+2}:{wb+3}], v{v_wv[pos]} offset:{q*2048+1024}', gives=['rd:g']),
                I(f'ds_read_b128 v[{HB[q][0]}:{HB[q][0]+3}], v{v_h[pos]} offset:{q*1024}', gives=['rd:g']),
                I(f'ds_read_b128 v[{HB[q][1]}:{HB[q][1]+3}], v{v_h[pos]} offset:{q*1024+8192}', gives=['rd:g'])]
    def g_mfma(q, rbk, first=False): return mm(ACC[rbk], WB[q], HB[q][rbk], '0' if first else f'v[{ACC[rbk]}:{ACC[rbk]+15}]')

    def period(n, gem):
        i0, i1 = n & 1, (n + 1) & 1
        last = (n == 15)
        def grp(S, P, g):
            c = S[i0]
            return [I(f'v_exp_f32 v{c+4*g+k}, v{c+4*g+k}') for k in range(4)] + \
                   [I(f'v_cvt_pk_bf16_f32 v{P+2*g}, v{c+4*g}, v{c+4*g+1}'), I(f'v_cvt_pk_bf16_f32 v{P+2*g+1}, v{c+4*g+2}, v{c+4*g+3}')]
        pv = lambda O, P, part: mm(O, VB[i0] + 4 * part, P + 4 * part, '0' if (n == 0 and part == 0) else f'v[{O}:{O+15}]')
        pvp = mm(OB, VB[i1] + 4, PB + 4, f'v[{OB}:{OB+15}]')
        pos = (n + 1) % KVN
        rk = [] if last else rdK(KB[i1], pos, ['rd:kv'])
        rv = [] if last else rdV(VB[i1], pos, ['rd:kv'])
        beta = n + 1
        gs = beta - GFIRST
        do_g = gem and 0 <= gs < NG_LOOP
        if 'nogc' in k1.EXP: do_g = False
        kvi = kv_issue(beta + 2, ['kv%d' % (beta + 2)]) if beta + 2 <= 15 else [[], []]
        gi_slot = beta + 2 - GFIRST
        gi = g_issue(gi_slot) if (gem and 0 <= gi_slot < NGS) else [[], [], [], []]
        if 'nogd' in k1.EXP: gi = [[], [], [], []]
        if 'nokv' in k1.EXP: kvi = [[], []]
        wo = wo_issue(beta) if gem else [[]] * 8
        gr0 = g_reads(gs, 0) if do_g else []
        gr1 = g_reads(gs, 1) if do_g else []
        piped = any(e in ('schf', 'schg') for e in k1.EXP)
        if piped:
            do_m = gem and 0 <= gs - 1 < NG_LOOP and 'nogc' not in k1.EXP
            gm = lambda q, rb: [g_mfma(q, rb, gs - 1 == 0 and q == 0)] if do_m else []
        else:
            gm = lambda q, rb: [g_mfma(q, rb, gs == 0 and q == 0)] if do_g else []
        S_ = lambda S, Q, part: [] if last else [sS(S[i1], KB[i1], Q, part)]
        valu = []
        for g in range(4): valu += grp(SA, PA, g)
        for g in range(4): valu += grp(SB, PB, g)
        ins = {k: [] for k in range(49)}
        sched = SCHED
        for e in k1.EXP:
            if e.startswith('sch'): sched = SCHEDS[e[3:]]
        ins[0] += rk
        ins[sched['r0']] += gr0
        ins[sched['pvp']] += ([pvp] if n > 0 else []) + rv
        ins[sched['g00']] += gm(0, 0)
        ins[sched['pA0']] += [pv(OA, PA, 0)]
        ins[sched['sA0']] += S_(SA, QA, 0)
        ins[sched['g01']] += gm(0, 1)
        ins[sched['pA1']] += [pv(OA, PA, 1)]
        ins[sched['sA1']] += S_(SA, QA, 1)
        ins[sched['g10']] += gm(1, 0)
        ins[sched['pB0']] += [pv(OB, PB, 0)]
        ins[sched['sB0']] += S_(SB, QB, 0)
        ins[sched['g11']] += gm(1, 1)
        ins[sched['sB1']] += S_(SB, QB, 1)
        ins[sched['r1']] += gr1
        mem = [kvi[0], kvi[1], gi[0], gi[1], gi[2], gi[3]] + wo[:6]
        mem = [a for a in mem if a]
        if gem and gi_slot == 0:
            issue, check = phase2.h_poll()
            ins[0] = issue + ins[0]
            for k, a in enumerate([kvi[0], kvi[1]]): ins[4 + 4 * k] += flat(a)
            ins[28] += check
            for k, a in enumerate(gi): ins[30 + 4 * k] += flat(a)
            mem = []
        for k, a in enumerate(mem):
            ins[(3 + 7 * k) if ('dspread' in k1.EXP and len(mem) <= 6) else (4 + 4 * k if len(mem) <= 10 else 3 + 3 * k)] += flat(a)
        if 'tog' in k1.EXP:
            u = '%d%d' % (n, gem)
            ins[0] = [I(f's_cmp_lt_u32 s{s_w}, 4'), I(f's_cbranch_scc1 {L("tg0_" + u)}'), I('s_setprio 2'), I(f'{L("tg0_" + u)}:')] + ins[0]
            ins[28] = [I(f's_cmp_lt_u32 s{s_w}, 4'), I(f's_cbranch_scc1 {L("tg1_" + u)}'), I('s_setprio 0'), I(f'{L("tg1_" + u)}:')] + ins[28]
        if 'mprio' in k1.EXP:
            for k in list(ins.keys()):
                nw = []
                for x in ins[k]:
                    if isinstance(x, Ins) and x.kind == 'mfma': nw += [I('s_setprio 3'), x, I('s_setprio 0')]
                    else: nw.append(x)
                ins[k] = nw
        o = []
        for k in range(48):
            o += ins[k] + [valu[k]]
        o += ins[48]
        if last: o += [mm(OB, VB[i0] + 4, PB + 4, f'v[{OB}:{OB+15}]')]
        return o

    def wo_ld(q0):
        return [I(f's_add_u32 m0, s{s_wom}, {T_WO + q0*1024}'),
                I(f's_add_u32 s{s_t1}, s{s_wob}, {q0*8*896}'),
                I(f'buffer_load_dwordx4 v{v_bp}, s[{S_WO}:{S_WO+3}], s{s_t1} offen lds')]
    def wo_issue(beta):
        return [[]] * 8

    if 'tog' in k1.EXP:
        p(f's_cmp_lt_u32 s{s_w}, 4')
        p(f's_cbranch_scc0 {L("np2")}')
        p('s_setprio 1')
        p.label(L('np2'))
    if 'prio1' in k1.EXP:
        p(f's_cmp_lt_u32 s{s_w}, 4')
        p(f's_cbranch_scc1 {L("np1")}')
        p('s_setprio 1')
        p.label(L('np1'))
    for gem in (1, 0):
        if gem:
            p(f's_cmp_eq_u32 s{s_gem}, 0')
            p(f's_cbranch_scc1 {L("loop_n")}')
            p(f'buffer_load_dwordx4 v[{XR}:{XR+3}], v{v_xa}, s[{S_X}:{S_X+3}], s{s_ost} offen')
        else:
            p.label(L('loop_n'))
        for n in range(16):
            beta = n + 1
            if True:
                needs = ['rd:kv', 'rd:g']
                if beta <= 15: needs.append('kv%d' % beta)
                if gem and 0 <= beta - GFIRST < NG_LOOP: needs.append('g%d' % (beta - GFIRST))
                bw = k1.STAMP and 'bw' in k1.EXP
                if bw: p.add([I('s_memtime s[92:93]'), I('s_waitcnt lgkmcnt(0)')])
                p.add([I('s_barrier', needs=needs)])
                if bw:
                    p.add([I('s_memtime s[94:95]'), I('s_waitcnt lgkmcnt(0)'), I('s_sub_u32 s94, s94, s92')])
                    p.add([I('s_mov_b32 s91, s94') if beta == 1 else I('s_add_u32 s91, s91, s94')])
                    if beta in (2, 3, 4): p.add([I(f's_mov_b32 s{80 + 10 + beta}, s94')]) if beta != 2 else None
            p.add(period(n, gem))
        stamp(p, 4)
        if gem: p(f's_branch {L("tail")}')
    p.label(L('tail'))
    OXHI = 147456 - 12 * 4096
    p(f's_lshl_b32 s{s_t0}, s{s_qp}, 2')
    p(f's_add_u32 s{s_t0}, s{s_t0}, s{s_kq}')
    p(f's_lshl_b32 s{s_t1}, s{s_t0}, 13')
    p(f's_cmp_ge_u32 s{s_t0}, 6')
    p(f's_cselect_b32 s{s_t2}, {OXHI}, 0')
    p(f's_add_u32 s{s_t1}, s{s_t1}, s{s_t2}')
    p(f'v_add_u32 v{T}, s{s_t1}, v1')
    for u, O in enumerate((OA, OB)):
        for i in range(4):
            p.add([I(f'ds_write_b128 v{T}, v[{O+4*i}:{O+4*i+3}] offset:{u*4096 + i*1024}', gives=['lds:ox'])])
    p(f's_lshr_b32 s{s_t1}, s{s_kq}, 1')
    p(f's_lshl_b32 s{s_t1}, s{s_t1}, 12')
    p(f's_and_b32 s{s_t2}, s{s_kq}, 1')
    p(f's_lshl_b32 s{s_t3}, s{s_t2}, 11')
    p(f's_add_u32 s{s_t3}, s{s_t3}, s{s_t1}')
    p(f's_lshl_b32 s{s_t0}, s{s_qp}, 15')
    p(f'v_or_b32 v{T+3}, 512, v1')
    for k in range(4):
        if k < 2:
            p(f's_cmp_eq_u32 s{s_qp}, 7')
            p(f's_add_u32 s{s_soff}, s{s_t0}, {k*8192}')
            if True:
                pass
        else:
            p(f's_cmp_eq_u32 s{s_qp}, 1')
            p(f's_cselect_b32 s{s_soff}, {OXHI}, 0')
            p(f's_add_u32 s{s_soff}, s{s_soff}, s{s_t0}')
            p(f's_add_u32 s{s_soff}, s{s_soff}, {k*8192}')
        p(f's_add_u32 s{s_i}, s{s_soff}, s{s_t3}')
        p(f'v_add_u32 v{T+4+k}, s{s_i}, v1')
        p(f's_add_u32 s{s_i}, s{s_soff}, s{s_t1}')
        p(f'v_add_u32 v{T+8+k}, s{s_i}, v{T+3}')
    p.add([I('s_barrier', needs=['lds:ox', 'g11', 'g12', 'g13'])])
    X = SA[0]
    LP = SA[0] + 32
    for k in range(4):
        p(f'ds_read_b128 v[{X+8*k}:{X+8*k+3}], v{T+4+k}')
        p(f'ds_read_b128 v[{X+8*k+4}:{X+8*k+7}], v{T+4+k} offset:1024')
        p(f'ds_read_b32 v{LP+k}, v{T+8+k} offset:3072')
    for q in range(8):
        p(f'v_add_f32 v{X+q}, v{X+q}, v{X+8+q}')
        p(f'v_add_f32 v{X+16+q}, v{X+16+q}, v{X+24+q}')
    p(f'v_add_f32 v{LP}, v{LP}, v{LP+1}')
    p(f'v_add_f32 v{LP+2}, v{LP+2}, v{LP+3}')
    for q in range(8): p(f'v_add_f32 v{X+q}, v{X+q}, v{X+16+q}')
    p(f'v_add_f32 v{T+4}, v{LP}, v{LP+2}')
    stamp(p, 5)
    p(f'v_mul_f32 v{T+5}, 0, v{X}')
    for q in range(1, 8): p(f'v_fma_f32 v{T+5}, v{X+q}, 0, v{T+5}')
    p(f'v_add_f32 v{T+5}, v{T+5}, v{T+4}')
    p(f'v_mov_b32 v{T+6}, {hexf(2.0**-80)}')
    p(f'v_mov_b32 v{T+7}, 0x7f800000')
    p(f'v_cmp_ge_f32 s[{s_t0}:{s_t0+1}], v{T+5}, v{T+6}')
    p(f'v_cmp_lt_f32 vcc, v{T+5}, v{T+7}')
    p(f's_and_b64 vcc, vcc, s[{s_t0}:{s_t0+1}]')
    p(f's_cmp_eq_u64 vcc, -1')
    p(f's_cbranch_scc0 {L("slow")}')
    p.label(L('astore'))
    p(f'v_rcp_f32 v{T+5}, v{T+4}')
    for q in range(8): p(f'v_mul_f32 v{X+q}, v{X+q}, v{T+5}')
    for d in range(4): p(f'v_cvt_pk_bf16_f32 v{PA+d}, v{X+2*d}, v{X+2*d+1}')
    p(f's_and_b32 s{s_t2}, s{s_kq}, 1')
    p(f's_cmp_eq_u32 s{s_t2}, 0')
    p(f's_cselect_b32 s{s_t1}, 0, -1')
    p(f's_mov_b32 s{s_t0}, 0')
    p(f'v_mov_b32 v{T}, 0')
    p(f'v_cndmask_b32 v{PA+2}, v{PA+2}, v{T}, s[{s_t0}:{s_t0+1}]')
    p(f'v_cndmask_b32 v{PA+3}, v{PA+3}, v{T}, s[{s_t0}:{s_t0+1}]')
    p(f'buffer_store_dwordx4 v[{PA}:{PA+3}], v1, s[{S_WS}:{S_WS+3}], s{s_oo} offen sc1')
    p(f's_cmp_eq_u32 s{s_gem}, 0')
    p(f's_cbranch_scc1 {L("nog11")}')
    p.add(g_reads(11, 0) + g_reads(11, 1))
    p.add([g_mfma(0, 0), g_mfma(0, 1), g_mfma(1, 0), g_mfma(1, 1)])
    p.label(L('nog11'))
    p('s_waitcnt vmcnt(0)')
    stamp(p, 6)
    p('s_barrier')
    p(f's_cmp_eq_u32 s{s_w}, 0')
    p(f's_cbranch_scc0 {L("noflag")}')
    p(f's_lshl_b32 s{s_t2}, s{s_qb}, 4')
    p(f's_add_u32 s{s_t2}, s{s_t2}, s{s_hd}')
    p(f's_lshl_b32 s{s_t2}, s{s_t2}, 2')
    p(f's_add_u32 s{s_t2}, s{s_t2}, {WS_FL + 3*1024}')
    p(f'v_mov_b32 v{T+1}, s{s_tag}')
    p(f'v_mov_b32 v{T}, 0')
    p(f'buffer_store_dword v{T+1}, v{T}, s[{S_WS}:{S_WS+3}], s{s_t2} offen sc1')
    p.label(L('noflag'))
    p(f's_cmp_eq_u32 s{s_gem}, 0')
    p(f's_cbranch_scc1 {L("fin")}')
    for gs in (12, 13):
        p.add(g_reads(gs, 0) + g_reads(gs, 1))
        p.add([g_mfma(0, 0), g_mfma(0, 1), g_mfma(1, 0), g_mfma(1, 1)])
    p.add([I('s_barrier', needs=['rd:g'])])
    for k in range(7): p.add(wo_ld(8 * k))
    p(f's_cmp_eq_u32 s{s_w}, 0')
    p(f's_cbranch_scc0 {L("nowo2")}')
    p.add(wo_ld(56))
    p.label(L('nowo2'))
    AX1 = 65536
    p(f's_lshl_b32 s{s_t0}, s{s_w}, 12')
    p(f's_add_u32 s{s_t0}, s{s_t0}, {AX1}')
    p(f'v_add_u32 v{T}, s{s_t0}, v1')
    p(f's_xor_b32 s{s_t0}, s{s_w}, 4')
    p(f's_lshl_b32 s{s_t0}, s{s_t0}, 12')
    p(f's_add_u32 s{s_t0}, s{s_t0}, {AX1}')
    p(f'v_add_u32 v{T+1}, s{s_t0}, v1')
    p(f's_cmp_lt_u32 s{s_w}, 4')
    p(f's_cbranch_scc0 {L("sw1")}')
    for i in range(4):
        p.add([I(f'ds_write_b128 v{T}, v[{ACC[1]+4*i}:{ACC[1]+4*i+3}] offset:{i*1024}', gives=['lds:ax1'])])
    p(f's_branch {L("sw2")}')
    p.label(L('sw1'))
    for i in range(4):
        p.add([I(f'ds_write_b128 v{T}, v[{ACC[0]+4*i}:{ACC[0]+4*i+3}] offset:{i*1024}', gives=['lds:ax1'])])
    p('s_waitcnt lgkmcnt(0)')
    for q in range(16): p(f'v_mov_b32 v{ACC[0]+q}, v{ACC[1]+q}')
    p.label(L('sw2'))
    p.add([I('s_barrier', needs=['lds:ax1'])])
    for i in range(4):
        p(f'ds_read_b128 v[{X+4*i}:{X+4*i+3}], v{T+1} offset:{i*1024}')
    for q in range(16): p(f'v_add_f32 v{ACC[0]+q}, v{ACC[0]+q}, v{X+q}')
    p(f's_lshr_b32 s{s_t0}, s{s_tm}, 1')
    p(f's_lshl_b32 s{s_t0}, s{s_t0}, 6')
    p(f's_add_u32 s{s_flag}, s{s_t0}, {WS_FL + 3*1024}')
    p(f'v_and_b32 v{T}, 15, v0')
    p(f'v_lshlrev_b32 v{T}, 2, v{T}')
    p(f's_mov_b32 s{s_i}, 0x100000')
    p(f'buffer_load_dword v{T+1}, v{T}, s[{S_WS}:{S_WS+3}], s{s_flag} offen sc1')
    p.label(L('poll'))
    p(f'buffer_load_dword v{T+2}, v{T}, s[{S_WS}:{S_WS+3}], s{s_flag} offen sc1')
    p('s_waitcnt vmcnt(1)')
    p(f'v_cmp_eq_u32 vcc, s{s_tag}, v{T+1}')
    p('s_cmp_eq_u64 vcc, -1')
    p(f's_cbranch_scc1 {L("polled")}')
    p(f'buffer_load_dword v{T+1}, v{T}, s[{S_WS}:{S_WS+3}], s{s_flag} offen sc1')
    p('s_waitcnt vmcnt(1)')
    p(f'v_cmp_eq_u32 vcc, s{s_tag}, v{T+2}')
    p('s_cmp_eq_u64 vcc, -1')
    p(f's_cbranch_scc1 {L("polled")}')
    p(f's_sub_u32 s{s_i}, s{s_i}, 1')
    p(f's_cmp_lg_u32 s{s_i}, 0')
    p(f's_cbranch_scc1 {L("poll")}')
    p.label(L('polled'))
    stamp(p, 8)
    p(f's_lshl_b32 s{s_t0}, s{s_tm}, 16')
    p(f's_lshl_b32 s{s_t1}, s{s_w}, 13')
    p(f's_add_u32 s{s_t0}, s{s_t0}, s{s_t1}')
    p(f's_add_u32 s{s_t0}, s{s_t0}, {WS_OF}')
    p(f's_add_u32 m0, s{s_t1}, {T_OF}')
    for q in range(8):
        if q == 4:
            p('s_addk_i32 m0, 4096')
            p(f's_add_u32 s{s_t0}, s{s_t0}, 4096')
        p(f'buffer_load_dwordx4 v1, s[{S_WS}:{S_WS+3}], s{s_t0} offen offset:{(q&3)*1024} sc1 lds')
    p(f's_and_b32 s{s_t2}, s{s_k4}, 1')
    p(f's_lshr_b32 s{s_t3}, s{s_k4}, 1')
    p(f's_lshl_b32 s{s_t0}, s{s_t3}, 15')
    p(f's_lshl_b32 s{s_t1}, s{s_t2}, 14')
    p(f's_add_u32 s{s_t0}, s{s_t0}, s{s_t1}')
    p(f'v_add_u32 v{v_h[0]}, s{s_t0}, v1')
    p(f's_mul_i32 s{s_t1}, s{s_t2}, {224*128}')
    p(f's_add_u32 s{s_t1}, s{s_t1}, {T_WO}')
    p(f'v_add_u32 v{v_wv[0]}, s{s_t1}, v{v_pw}')
    p(f's_lshl_b32 s{s_t0}, s{s_w}, 11')
    p(f's_add_u32 s{s_t0}, s{s_t0}, 65536')
    p(f'v_add_u32 v{T+2}, s{s_t0}, v1')
    p(f's_xor_b32 s{s_t0}, s{s_w}, 2')
    p(f's_lshl_b32 s{s_t0}, s{s_t0}, 11')
    p(f's_add_u32 s{s_t0}, s{s_t0}, 65536')
    p(f'v_add_u32 v{T+3}, s{s_t0}, v1')
    p('s_waitcnt vmcnt(0)')
    p('s_barrier')
    stamp(p, 7)
    OB3 = [HB[0][0], HB[0][1], HB[1][0]]
    WB3 = [WB[0], WB[1], HB[1][1]]
    def o_reads(q):
        row = 28 * (q >> 1) + 16 * (q & 1)
        wb = WB3[q % 3]; hb = OB3[q % 3]
        return [I(f'ds_read_b64_tr_b16 v[{wb}:{wb+1}], v{v_wv[0]} offset:{row*128}'),
                I(f'ds_read_b64_tr_b16 v[{wb+2}:{wb+3}], v{v_wv[0]} offset:{row*128+1024}'),
                I(f'ds_read_b128 v[{hb}:{hb+3}], v{v_h[0]} offset:{T_OF + q*1024}')]
    p.add(o_reads(0) + o_reads(1) + o_reads(2))
    for q in range(16):
        p.add([mm(ACC[0], WB3[q % 3], OB3[q % 3], f'v[{ACC[0]}:{ACC[0]+15}]')])
        if q + 3 < 16: p.add(o_reads(q + 3))
    stamp(p, 9)
    p(f's_and_b32 s{s_t2}, s{s_k4}, 1')
    p(f's_cmp_eq_u32 s{s_t2}, 0')
    p(f's_cbranch_scc0 {L("x1")}')
    p.add([I(f'ds_write_b128 v{T+2}, v[{ACC[0]+8}:{ACC[0]+11}]', gives=['lds:ax']), I(f'ds_write_b128 v{T+2}, v[{ACC[0]+12}:{ACC[0]+15}] offset:1024', gives=['lds:ax'])])
    p(f's_branch {L("x2")}')
    p.label(L('x1'))
    p.add([I(f'ds_write_b128 v{T+2}, v[{ACC[0]}:{ACC[0]+3}]', gives=['lds:ax']), I(f'ds_write_b128 v{T+2}, v[{ACC[0]+4}:{ACC[0]+7}] offset:1024', gives=['lds:ax'])])
    p('s_waitcnt lgkmcnt(0)')
    for q in range(8): p(f'v_mov_b32 v{ACC[0]+q}, v{ACC[0]+8+q}')
    p.label(L('x2'))
    p.add([I('s_barrier', needs=['lds:ax'])])
    p(f'ds_read_b128 v[{X}:{X+3}], v{T+3}')
    p(f'ds_read_b128 v[{X+4}:{X+7}], v{T+3} offset:1024')
    for q in range(8): p(f'v_add_f32 v{X+q}, v{X+q}, v{ACC[0]+q}')
    for j in range(4): p(f'v_permlane32_swap_b32 v{X+j}, v{X+4+j}')
    for d in range(4):
        p(f'v_lshlrev_b32 v{T+4}, 16, v{XR+d}')
        p(f'v_and_b32 v{T+5}, 0xffff0000, v{XR+d}')
        p(f'v_add_f32 v{T+4}, v{T+4}, v{X+2*d}')
        p(f'v_add_f32 v{T+5}, v{T+5}, v{X+2*d+1}')
        p(f'v_cvt_pk_bf16_f32 v{XR+d}, v{T+4}, v{T+5}')
    p(f'buffer_store_dwordx4 v[{XR}:{XR+3}], v{v_xa}, s[{S_OUT}:{S_OUT+3}], s{s_ost} offen')
    p.label(L('fin'))
    if 'dbgtime' in k1.EXP:
        p('s_waitcnt vmcnt(0)')
        p('s_memrealtime s[90:91]')
        p('s_waitcnt lgkmcnt(0)')
        p(f's_cmp_eq_u32 s{s_w}, 0')
        p(f's_cbranch_scc0 {L("nodbg")}')
        p('s_mov_b64 exec, 1')
        p('v_mov_b32 v2, s90')
        p('v_mov_b32 v3, 8')
        p('global_atomic_umax v3, v2, s[100:101]')
        p('s_not_b32 s88, s88')
        p('v_mov_b32 v2, s88')
        p('v_mov_b32 v3, 12')
        p('global_atomic_umax v3, v2, s[100:101]')
        p.label(L('nodbg'))
    if k1.STAMP: p('s_waitcnt vmcnt(0)')
    stamp(p, 10)
    k1.stamp_store(p, S_WS, s_w, 1)
    p('s_endpgm')

    p.label(L('slow'))
    Q = KB[1]; O = OA; M = T + 8; s0 = SB[0]
    p(f's_lshr_b32 s{s_t1}, s{s_kq}, 1')
    p(f's_cmp_eq_u32 s{s_t1}, 0')
    p(f's_cbranch_scc1 {L("sl_a")}')
    for q in range(8): p(f'v_mov_b32 v{Q+q}, v{QB+q}')
    p(f's_branch {L("sl_b")}')
    p.label(L('sl_a'))
    for q in range(8): p(f'v_mov_b32 v{Q+q}, v{QA+q}')
    p.label(L('sl_b'))
    p(f'v_mov_b32 v{T}, 0')
    p(f'v_cndmask_b32 v{Q+6}, v{Q+6}, v{T}, s[{s_hi}:{s_hi+1}]')
    for q in range(16): p(f'v_mov_b32 v{O+q}, 0')
    p(f'v_mov_b32 v{M}, 0xff800000')
    p(f's_lshl_b32 s{s_t2}, s{s_hd}, 18')
    p(f's_add_u32 s{s_t2}, s{s_t2}, {WS_KV}')
    p(f's_mov_b32 s{s_i}, 64')
    p.label(L('sloop'))
    p(f'buffer_load_dwordx4 v[{KB[0]}:{KB[0]+3}], v1, s[{S_WS}:{S_WS+3}], s{s_t2} offen{SC}')
    p(f'buffer_load_dwordx4 v[{KB[0]+4}:{KB[0]+7}], v1, s[{S_WS}:{S_WS+3}], s{s_t2} offen offset:1024{SC}')
    p(f'buffer_load_dwordx4 v[{VB[0]}:{VB[0]+3}], v1, s[{S_WS}:{S_WS+3}], s{s_t2} offen offset:2048{SC}')
    p(f'buffer_load_dwordx4 v[{VB[0]+4}:{VB[0]+7}], v1, s[{S_WS}:{S_WS+3}], s{s_t2} offen offset:3072{SC}')
    p.add([sS(s0, KB[0], Q, 0), sS(s0, KB[0], Q, 1)])
    p(f'v_max3_f32 v{T}, v{s0}, v{s0+1}, v{s0+2}')
    for q in range(3, 15, 2): p(f'v_max3_f32 v{T}, v{T}, v{s0+q}, v{s0+q+1}')
    p(f'v_max_f32 v{T}, v{T}, v{s0+15}')
    p(f'v_mov_b32 v{T+1}, v{T}')
    p(f'v_permlane32_swap_b32 v{T}, v{T+1}')
    p(f'v_max3_f32 v{T}, v{T}, v{T+1}, v{M}')
    p(f'v_sub_f32 v{T+1}, v{M}, v{T}')
    p(f'v_exp_f32 v{T+1}, v{T+1}')
    p(f'v_mov_b32 v{M}, v{T}')
    for q in range(16): p(f'v_sub_f32 v{s0+q}, v{s0+q}, v{M}')
    for q in range(16): p(f'v_exp_f32 v{s0+q}, v{s0+q}')
    for q in range(16): p(f'v_mul_f32 v{O+q}, v{O+q}, v{T+1}')
    for d in range(8): p(f'v_cvt_pk_bf16_f32 v{PA+d}, v{s0+2*d}, v{s0+2*d+1}')
    p.add([mm(O, VB[0], PA, f'v[{O}:{O+15}]'), mm(O, VB[0] + 4, PA + 4, f'v[{O}:{O+15}]')])
    p(f's_add_u32 s{s_t2}, s{s_t2}, 4096')
    p(f's_sub_u32 s{s_i}, s{s_i}, 1')
    p(f's_cmp_lg_u32 s{s_i}, 0')
    p(f's_cbranch_scc1 {L("sloop")}')
    p(f'v_mov_b32 v{T+3}, v{O+12}')
    p(f'v_mov_b32 v{T+4}, v{O+12}')
    p(f'v_permlane32_swap_b32 v{T+3}, v{T+4}')
    p(f's_and_b32 s{s_t2}, s{s_kq}, 1')
    p(f's_cmp_eq_u32 s{s_t2}, 0')
    p(f's_cbranch_scc1 {L("sl_c")}')
    for q in range(8): p(f'v_mov_b32 v{X+q}, v{O+8+q}')
    p(f's_branch {L("astore")}')
    p.label(L('sl_c'))
    for q in range(8): p(f'v_mov_b32 v{X+q}, v{O+q}')
    p(f's_branch {L("astore")}')
```
